```python
import torch

def _softmax(x, axis=-1):
    return torch.softmax(x, dim=axis)
def _gelu(x):
    return torch.nn.functional.gelu(x, approximate="tanh")
def _silu(x):
    return torch.nn.functional.silu(x)
def _sigmoid(x):
    return torch.sigmoid(x)
def _layernorm(x, axis=-1, eps=1e-5):
    m = x.mean(dim=axis, keepdim=True)
    v = x.var(dim=axis, keepdim=True, unbiased=False)
    return (x - m) / torch.sqrt(v + eps)
def _scatter_add(tgt, idx, src, axis=0):
    return tgt.clone().index_add_(axis, idx, src)
def _segment_sum(src, seg, n):
    out = torch.zeros((n,) + src.shape[1:], dtype=src.dtype)
    return out.index_add_(0, seg, src)
def _pad(x, pw):
    flat = tuple(v for pair in reversed(pw) for v in pair)
    return torch.nn.functional.pad(x, flat)

kernel_name = 'interleave_layers__linear_attn_block__glu_gated_glu__prompt'

def setup_inputs():

    _w = (lambda a: (lambda t: t.to(torch.bfloat16) if t.is_floating_point() else t)(torch.as_tensor(a)))
    def _A_setup():
        B, S, D = 1, 2048, 640
        return {
            "x": _w((lambda *s: torch.randn(*s, dtype=torch.bfloat16) * 0.05)(B, S, D)),
            "wqkv": _w((lambda *s: torch.randn(*s, dtype=torch.bfloat16) * 0.05)(D, 3 * D)),
            "wo": _w((lambda *s: torch.randn(*s, dtype=torch.bfloat16) * 0.05)(D, D)),
        }
    _A_in = _A_setup()

    def _B_setup():
        B, S, D, F = 1, 2048, 640, 1728
        return {
            "x": _w((lambda *s: torch.randn(*s, dtype=torch.bfloat16) * 0.05)(B, S, D)),
            "w_gate": _w((lambda *s: torch.randn(*s, dtype=torch.bfloat16) * 0.05)(D, F)),
            "w_up": _w((lambda *s: torch.randn(*s, dtype=torch.bfloat16) * 0.05)(D, F)),
            "w_down": _w((lambda *s: torch.randn(*s, dtype=torch.bfloat16) * 0.05)(F, D)),
        }
    _B_in = _B_setup()

    return {
        "A_x": _A_in["x"],
        "A_wqkv": _A_in["wqkv"],
        "A_wo": _A_in["wo"],
        "B_x": _B_in["x"],
        "B_w_gate": _B_in["w_gate"],
        "B_w_up": _B_in["w_up"],
        "B_w_down": _B_in["w_down"],
    }

def reference(A_x, A_wqkv, A_wo, B_x, B_w_gate, B_w_up, B_w_down):
    def _A_ref(x, wqkv, wo):
        B, S, D = x.shape
        H = 32; Dh = D // H
        qkv = (lambda x, *d: x.permute(*d))((x @ wqkv).reshape(B, S, 3, H, Dh), 2, 0, 3, 1, 4)
        q, k, v = qkv[0], qkv[1], qkv[2]
        phi = lambda t: torch.where(t > 0, t + 1, torch.exp(t)) + 1e-6
        pq, pk = phi(q), phi(k)
        kv = torch.einsum("bhsd,bhse->bhde", pk, v)
        z = torch.einsum("bhsd->bhd", pk)
        num = torch.einsum("bhqd,bhde->bhqe", pq, kv)
        den = torch.einsum("bhqd,bhd->bhq", pq, z)[..., None] + 1e-6
        o = num / den
        return (lambda x, *d: x.permute(*d))(o, 0, 2, 1, 3).reshape(B, S, D) @ wo

    def _B_ref(x, w_gate, w_up, w_down):
        g = torch.einsum("bsd,df->bsf", x, w_gate)
        u = torch.einsum("bsd,df->bsf", x, w_up)
        h = _sigmoid(g) * u
        return torch.einsum("bsf,fd->bsd", h, w_down)

    x = A_x
    x = x + _A_ref(_layernorm(x, axis=-1), A_wqkv, A_wo)
    x = x + _B_ref(_layernorm(x, axis=-1), B_w_gate, B_w_up, B_w_down)
    x = x + _A_ref(_layernorm(x, axis=-1), A_wqkv, A_wo)
    x = x + _B_ref(_layernorm(x, axis=-1), B_w_gate, B_w_up, B_w_down)
    return x
```

```python
import re

TRANS = ("v_exp_f32", "v_log_f32", "v_rcp_f32", "v_rsq_f32", "v_sqrt_f32", "v_sin_f32", "v_cos_f32")
NO_DST_SALU = ("s_cmp", "s_waitcnt", "s_barrier", "s_nop", "s_branch", "s_cbranch", "s_setprio", "s_sleep",
               "s_endpgm", "s_setpc", "s_bitcmp")
REG_RE = re.compile(r"^-?(?:abs\()?\|?([vas])(?:(\d+)|\[(\d+):(\d+)\])\)?\|?$")


def regs_of(tok):
    tok = tok.strip()
    if tok in ("vcc",):
        return {"vcc"}
    if tok in ("vcc_lo", "vcc_hi"):
        return {"vcc"}
    if tok in ("exec", "exec_lo", "exec_hi"):
        return {"exec"}
    if tok == "m0":
        return {"m0"}
    m = REG_RE.match(tok)
    if not m:
        return set()
    k = m.group(1)
    if m.group(2) is not None:
        return {f"{k}{int(m.group(2))}"}
    return {f"{k}{i}" for i in range(int(m.group(3)), int(m.group(4)) + 1)}


class Ins:
    __slots__ = ("text", "kind", "rd", "wr", "tag", "flags", "cregs", "abregs", "opaque")

    def __init__(self, text, tag=None, opaque=False):
        self.text = text
        self.opaque = opaque
        self.tag = tag
        self.flags = set()
        self.rd, self.wr = set(), set()
        self.cregs, self.abregs = set(), set()
        t = text.split(";")[0].strip()
        if t.endswith(":") or t.startswith(".") or t == "":
            self.kind = "label"
            return
        parts = t.split(None, 1)
        mn = parts[0]
        ops = []
        if len(parts) > 1:
            ops = [o.strip() for o in parts[1].split(",")]
            last = ops[-1].split()
            ops[-1] = last[0] if last else ""
        R = [regs_of(o) for o in ops]
        allr = set().union(*R) if R else set()
        rest = set().union(*R[1:]) if len(R) > 1 else set()
        if mn.startswith("v_mfma"):
            self.kind = "mfma"
            self.wr = R[0]
            self.abregs = R[1] | R[2]
            self.cregs = R[3]
            self.rd = R[1] | R[2] | R[3]
            self.flags.add("p8" if "32x32" in mn else "p4")
        elif mn.startswith("v_"):
            self.kind = "valu"
            self.wr = R[0]
            self.rd = rest
            if mn.startswith(("v_fmac", "v_dot2c", "v_pk_fmac")):
                self.rd |= R[0]
            if mn.startswith("v_permlane"):
                self.flags.add("perm")
                self.rd = allr
                self.wr = allr
            if mn.startswith(("v_readfirstlane", "v_readlane")):
                self.flags.add("rdlane")
            if mn.startswith(TRANS):
                self.flags.add("trans")
            if mn.startswith("v_dot"):
                self.flags.add("dot")
                self.cregs = R[3] if len(R) > 3 else R[0]
                self.abregs = R[1] | R[2]
            if "dpp" in mn or " row_" in t or "quad_perm" in t:
                self.flags.add("dpp")
            if mn.startswith(("v_add_co", "v_sub_co", "v_addc_co")):
                self.wr = R[0] | R[1]
                self.rd = set().union(*R[2:])
        elif mn.startswith("ds_"):
            self.kind = "ds"
            if mn.startswith(("ds_read", "ds_bpermute", "ds_permute", "ds_swizzle")):
                self.wr = R[0]
                self.rd = rest
            else:
                self.rd = allr
        elif mn.startswith(("buffer_", "global_")):
            self.kind = "vmem"
            if mn in ("buffer_wbl2", "buffer_inv"):
                pass
            elif " lds" in t or "_lds_" in mn:
                self.flags.add("dma")
                self.rd = allr | {"m0"}
            elif "load" in mn:
                self.wr = R[0]
                self.rd = rest
            else:
                self.rd = allr
                if "atomic" in mn and " sc0" in t:
                    self.wr = R[0]
                if mn.endswith(("x3", "x4")) and "store" in mn:
                    self.flags.add("widestore")
                    self.cregs = R[0] if mn.startswith("buffer_") else R[1]
        elif mn.startswith(("s_load", "s_memtime", "s_memrealtime")):
            self.kind = "smem"
            self.wr = R[0]
            self.rd = rest
        elif mn.startswith("s_"):
            self.kind = "salu"
            if mn.startswith(NO_DST_SALU):
                self.rd = allr
            else:
                self.wr = R[0]
                self.rd = rest
                if "saveexec" in mn:
                    self.wr = self.wr | {"exec"}
        else:
            raise ValueError("cannot classify: " + text)


class Wait:
    def __init__(self, cls, tag):
        self.cls, self.tag = cls, tag


class Virtual:
    def __init__(self, tag):
        self.tag = tag


class Prog:
    def raw(self, text):
        for ln in text.split("\n"):
            ln = ln.strip()
            if ln:
                self.items.append(Ins(ln, None, True))
        return self

    def __init__(self):
        self.items = []

    def e(self, text, tag=None):
        for ln in text.split("\n"):
            ln = ln.strip()
            if ln:
                self.items.append(Ins(ln, tag))
        return self

    def add(self, it):
        if isinstance(it, (list, tuple)):
            for x in it:
                self.add(x)
        elif isinstance(it, str):
            self.e(it)
        else:
            self.items.append(it)

    def wvm(self, tag):
        self.items.append(Wait("vm", tag))

    def wlg(self, tag):
        self.items.append(Wait("lgkm", tag))

    def resolve_waits(self):
        out = []
        cnt = {"vm": 0, "lgkm": 0}
        done = {"vm": 0, "lgkm": 0}
        last = {"vm": {}, "lgkm": {}}
        lim = {"vm": 63, "lgkm": 15}
        smem_out = False
        for it in self.items:
            if isinstance(it, Virtual):
                cnt["vm"] += 1
                last["vm"][it.tag] = cnt["vm"]
                continue
            if not isinstance(it, Wait) and it.opaque:
                out.append(it)
                continue
            if isinstance(it, Wait):
                c = it.cls
                if it.tag == "ALL":
                    idx = cnt[c]
                else:
                    assert it.tag in last[c], f"wait on unknown tag {it.tag}"
                    idx = last[c][it.tag]
                if idx <= done[c] and not (c == "lgkm" and smem_out):
                    continue
                n = cnt[c] - idx
                if c == "lgkm" and smem_out:
                    n = 0
                    smem_out = False
                n = min(n, lim[c])
                done[c] = max(done[c], cnt[c] - n)
                name = "vmcnt" if c == "vm" else "lgkmcnt"
                if out and out[-1].text.startswith("s_waitcnt") and name not in out[-1].text and not out[-1].opaque:
                    out[-1] = Ins(out[-1].text + f" {name}({n})")
                else:
                    out.append(Ins(f"s_waitcnt {name}({n})"))
                continue
            if it.kind == "vmem":
                cnt["vm"] += 1
                if it.tag is not None:
                    last["vm"][it.tag] = cnt["vm"]
            elif it.kind == "ds":
                cnt["lgkm"] += 1
                if it.tag is not None:
                    last["lgkm"][it.tag] = cnt["lgkm"]
            elif it.kind == "smem":
                smem_out = True
                cnt["lgkm"] += 1
                if it.tag is not None:
                    last["lgkm"][it.tag] = cnt["lgkm"]
            elif it.kind == "salu" and it.text.startswith("s_waitcnt"):
                m = re.search(r"vmcnt\((\d+)\)", it.text)
                if m:
                    done["vm"] = max(done["vm"], cnt["vm"] - int(m.group(1)))
                m = re.search(r"lgkmcnt\((\d+)\)", it.text)
                if m:
                    done["lgkm"] = max(done["lgkm"], cnt["lgkm"] - int(m.group(1)))
                    if int(m.group(1)) == 0:
                        smem_out = False
            out.append(it)
        self.items = out

    def fix_hazards(self):
        out = []
        pos = 0
        valu_w, trans_w, mfma_w, mfma_c, dot_w, sg_w, store_d = {}, {}, {}, {}, {}, {}, {}
        m0_w = -100
        nnop = 0
        for it in self.items:
            if it.kind == "label":
                out.append(it)
                continue
            need = pos

            def req(p, n):
                nonlocal need
                need = max(need, p + n + 1)

            vregs_rd = [r for r in it.rd if r[0] in "va" and r != "vcc"]
            vregs_wr = [r for r in it.wr if r[0] in "va" and r != "vcc"]
            sregs_rd = [r for r in it.rd if r[0] == "s" or r == "vcc"]
            if it.kind == "mfma":
                for r in vregs_rd:
                    if r in valu_w:
                        req(valu_w[r], 2)
                    if r in dot_w:
                        req(dot_w[r][0], 3)
                for r in it.abregs:
                    if r in mfma_w:
                        p, n, _ = mfma_w[r]
                        req(p, 8 if n == 4 else 12)
                for r in it.cregs:
                    if r in mfma_w:
                        p, n, d = mfma_w[r]
                        if d != frozenset(it.cregs):
                            req(p, 6 if n == 4 else 10)
                for r in vregs_wr:
                    if r in mfma_w and r not in it.cregs:
                        p, n, d = mfma_w[r]
                        req(p, 6 if n == 4 else 10)
            else:
                for r in vregs_rd + vregs_wr:
                    if r in mfma_w:
                        p, n, _ = mfma_w[r]
                        req(p, 8 if n == 4 else 12)
                if it.kind == "valu":
                    for r in vregs_wr:
                        if r in mfma_c:
                            p, n = mfma_c[r]
                            req(p, 3 if n == 4 else 7)
                        if r in store_d:
                            req(store_d[r], 2)
                    for r in vregs_rd:
                        if r in trans_w and "trans" not in it.flags:
                            req(trans_w[r], 1)
                        if r in valu_w:
                            if "rdlane" in it.flags:
                                req(valu_w[r], 1)
                            if "perm" in it.flags or "dpp" in it.flags:
                                req(valu_w[r], 2)
                    for r in vregs_rd + vregs_wr:
                        if r in dot_w:
                            p, mn = dot_w[r]
                            same = it.text.split()[0] == mn
                            if same and r in it.cregs and r not in it.abregs:
                                pass
                            else:
                                req(p, 3)
                    for r in sregs_rd:
                        if r in sg_w:
                            req(sg_w[r], 2)
                else:
                    for r in vregs_wr:
                        if r in store_d:
                            req(store_d[r], 1)
                    for r in vregs_rd:
                        if r in dot_w:
                            req(dot_w[r][0], 3)
                        if r in trans_w:
                            req(trans_w[r], 1)
                    if it.kind == "vmem":
                        for r in sregs_rd:
                            if r in sg_w:
                                req(sg_w[r], 5)
                        if "dma" in it.flags:
                            req(m0_w, 1)
                    if it.kind in ("salu", "smem"):
                        for r in sregs_rd:
                            if r in sg_w:
                                req(sg_w[r], 2)
            while need > pos:
                k = min(need - pos, 16)
                out.append(Ins(f"s_nop {k-1}"))
                nnop += 1
                pos += k
            out.append(it)
            if it.kind == "mfma":
                n = 4 if "p4" in it.flags else 8
                d = frozenset(it.wr)
                for r in it.wr:
                    mfma_w[r] = (pos, n, d)
                    valu_w.pop(r, None)
                for r in it.cregs:
                    mfma_c[r] = (pos, n)
            elif it.kind == "valu":
                for r in it.wr:
                    if r[0] in "va" and r != "vcc":
                        valu_w[r] = pos
                        mfma_w.pop(r, None)
                        if "trans" in it.flags:
                            trans_w[r] = pos
                        else:
                            trans_w.pop(r, None)
                        if "dot" in it.flags:
                            dot_w[r] = (pos, it.text.split()[0])
                        else:
                            dot_w.pop(r, None)
                    else:
                        sg_w[r] = pos
            else:
                for r in it.wr:
                    if r == "m0":
                        m0_w = pos
                    sg_w.pop(r, None)
                    if r[0] in "va" and r != "vcc":
                        valu_w.pop(r, None)
                        mfma_w.pop(r, None)
                        trans_w.pop(r, None)
                        dot_w.pop(r, None)
                if "widestore" in it.flags:
                    for r in it.cregs:
                        store_d[r] = pos
            m = re.match(r"s_nop (\d+)", it.text)
            pos += (int(m.group(1)) + 1) if m else 1
        self.items = out
        return nnop

    def finish(self):
        self.resolve_waits()
        self.fix_hazards()
        return "\n".join(("" if it.kind == "label" else "  ") + it.text for it in self.items) + "\n"

    def max_regs(self):
        mx = {"v": -1, "a": -1, "s": -1}
        for it in self.items:
            if isinstance(it, (Wait, Virtual)) or it.kind == "label":
                continue
            for r in it.rd | it.wr:
                if r[0] in mx and r[1:].isdigit():
                    mx[r[0]] = max(mx[r[0]], int(r[1:]))
        return mx


def V(n, k=1):
    return f"v{n}" if k == 1 else f"v[{n}:{n+k-1}]"


def A(n, k=1):
    return f"a{n}" if k == 1 else f"a[{n}:{n+k-1}]"


def S(n, k=1):
    return f"s{n}" if k == 1 else f"s[{n}:{n+k-1}]"


def descriptor(name, nv, na, ns):
    acc = max(4, (nv + 3) // 4 * 4)
    total = acc + na if na else nv
    return f""".section .rodata,"a"
.p2align 6
.amdhsa_kernel {name}
  .amdhsa_next_free_vgpr {total}
  .amdhsa_next_free_sgpr {ns}
  .amdhsa_accum_offset {acc}
  .amdhsa_group_segment_fixed_size 0
  .amdhsa_kernarg_size 80
  .amdhsa_user_sgpr_count 2
  .amdhsa_user_sgpr_kernarg_segment_ptr 1
  .amdhsa_system_sgpr_workgroup_id_x 1
  .amdhsa_float_denorm_mode_32 3
.end_amdhsa_kernel
.text
"""
```

```python
import sys, struct, math
from collections import deque
from asmlib import Prog, Ins, Wait, V, A, S, descriptor

WF1 = 0
WF2 = WF1 + 16 * 21 * 8 * 1024
WF3 = WF2 + 8 * 20 * 5 * 1024
WF4 = WF3 + 16 * 21 * 14 * 1024
XB = WF4 + 8 * 54 * 5 * 1024
XSZ = 2048 * 640 * 2
PQ = XB + 4 * XSZ
HB = PQ + XSZ
ST = HB + 2048 * 1728 * 2
KVA = ST + 128 * 1024
KVSZ = 32 * 1680
STAMP = (KVA + 2 * KVSZ + 4095) // 4096 * 4096
WS_USED = STAMP + 16 * 512 * 64
STAMPS = False
STAMP_INS = 's_memrealtime'
INPLACE = True


def f32(x):
    return "0x%08x" % struct.unpack("<I", struct.pack("<f", x))[0]


LOG2E = 1.4426950408889634
MF = "v_mfma_f32_16x16x32_bf16"


def stamp(P, j):
    if STAMPS:
        P.e(f"{STAMP_INS} s[{70+2*j}:{71+2*j}]")
        P.e("s_waitcnt lgkmcnt(0)")


def stamp_flush(P, n):
    if STAMPS:
        stamp(P, n - 1)
        P.e("s_mov_b64 exec, -1")
        P.e(f"s_lshl_b32 s90, s3, 9\ns_add_u32 s90, s90, s2\ns_lshl_b32 s90, s90, 6\ns_add_u32 s90, s90, {STAMP}")
        P.e("s_cmp_lg_u32 s12, 0\ns_cselect_b32 s91, 0x40000000, 0\nv_mov_b32 v9, s91")
        for j in range(n):
            P.e(f"v_mov_b32 v10, s{70+2*j}\nv_mov_b32 v11, s{71+2*j}")
            P.e(f"buffer_store_dwordx2 v[10:11], v9, s[4:7], s90 offen offset:{8*j}")


def endpgm(P, n=4):
    if STAMPS:
        P.e("s_waitcnt vmcnt(0)")
        stamp_flush(P, n)
    P.e("s_endpgm")


def xbuf(i):
    return XB if INPLACE else XB + i * XSZ


def common_prologue(P, nwg, extra_ptr_off=None):
    P.e(f"s_cmp_ge_u32 s2, {nwg}")
    P.e("s_cbranch_scc1 L_exit")
    stamp(P, 0)
    P.e("s_load_dwordx2 s[4:5], s[0:1], 72", tag="ka")
    if extra_ptr_off is not None:
        P.e(f"s_load_dwordx2 s[8:9], s[0:1], {extra_ptr_off}", tag="ka")
    P.e("v_lshrrev_b32 v7, 6, v0")
    P.e("v_and_b32 v1, 63, v0")
    P.e("v_readfirstlane_b32 s12, v7")
    P.e("v_lshlrev_b32 v2, 4, v1")
    P.e("v_lshrrev_b32 v5, 4, v1")
    P.e("v_and_b32 v6, 15, v1")
    P.e(f"s_mov_b32 s6, {WS_USED}")
    P.e("s_mov_b32 s7, 0x20000")


def tile_map_128(P):
    P.e("s_and_b32 s15, s2, 7\ns_lshr_b32 s16, s2, 3")
    P.e("s_lshr_b32 s13, s15, 1\ns_lshl_b32 s13, s13, 2\ns_and_b32 s17, s16, 3\ns_add_u32 s13, s13, s17")
    P.e("s_and_b32 s14, s15, 1\ns_lshl_b32 s14, s14, 3\ns_lshr_b32 s17, s16, 2\ns_add_u32 s14, s14, s17")


def tile_map_64(P):
    P.e("s_and_b32 s15, s2, 7\ns_lshr_b32 s16, s2, 3")
    P.e("s_lshl_b32 s13, s15, 2\ns_and_b32 s17, s16, 3\ns_add_u32 s13, s13, s17")
    P.e("s_lshr_b32 s14, s16, 2")


def wave_dma_bases(P, nfrs, s_wbase, sreg0):
    res = {}
    r = sreg0
    for n in sorted(set(nfrs)):
        q = (n + 3) // 4
        P.e(f"s_mul_i32 s{r}, s12, {q}")
        if 4 * q != n:
            P.e(f"s_min_u32 s{r}, s{r}, {n - q}")
        P.e(f"s_lshl_b32 s{r}, s{r}, 10")
        P.e(f"s_add_u32 s{r+1}, s{r}, {s_wbase}")
        res[n] = (r, r + 1)
        r += 2
    return res


def dma_chunk(c, nfr, goff, ldsoff, bases, s_tmp):
    q = (nfr + 3) // 4
    sl, sg = bases[nfr]
    L = []
    for i in range(q):
        if i % 4 == 0:
            L.append(Ins(f"s_add_u32 m0, s{sl}, {ldsoff + i * 1024}"))
            L.append(Ins(f"s_add_u32 s{s_tmp}, s{sg}, {goff + i * 1024}"))
        L.append(Ins(f"buffer_load_dwordx4 v2, s[4:7], s{s_tmp} offen offset:{(i % 4) * 1024} lds", tag=f"W{c}"))
    return L


def lds_rd(dst, off, tag):
    base = {0: "v2", 1: "v3", 2: "v4"}[off >> 16]
    return Ins(f"ds_read_b128 {dst}, {base} offset:{off & 0xffff}", tag=tag)


def gemm_core(P, chunk_nfr, R, slot_bytes, lds_base, bases, steps, LA, wpool, xloads, pre_chunks, s_tmp,
              fillers=None, fpm=2, after_pre=None):
    nch = len(chunk_nfr)
    goffs = [sum(chunk_nfr[:c]) * 1024 for c in range(nch)]

    def issue(c):
        return list(xloads[c]) + dma_chunk(c, chunk_nfr[c], goffs[c], lds_base + (c % R) * slot_bytes, bases, s_tmp)

    fq = deque()
    issued = set()
    for c in range(min(pre_chunks, nch)):
        P.add(issue(c))
        issued.add(c)
    if after_pre:
        after_pre(P)
    for c in range(pre_chunks, min(R, nch)):
        fq.extend(issue(c))
        fq.append(("done", c))

    def pop(n):
        k = 0
        while fq and k < n:
            it = fq.popleft()
            if isinstance(it, tuple):
                issued.add(it[1])
                continue
            P.add(it)
            if not isinstance(it, Wait):
                k += 1
        while fq and isinstance(fq[0], tuple):
            issued.add(fq.popleft()[1])

    def rd(m):
        st = steps[m]
        c = st["c"]
        if m == 0 or steps[m - 1]["c"] != c:
            while c not in issued:
                pop(1)
            P.wvm(f"W{c}")
            P.e("s_barrier")
            if m == 0:
                stamp(P, 1)
            nc = c - 2 + R
            if c >= 2 and nc < nch:
                fq.extend(issue(nc))
                fq.append(("done", nc))
        P.add(lds_rd(wpool[m % len(wpool)], lds_base + (c % R) * slot_bytes + st["f"] * 1024, f"R{m}"))

    n = len(steps)
    for m in range(min(LA, n)):
        rd(m)
    for i in range(n):
        st = steps[i]
        if fillers and i in fillers:
            fq.extend(fillers[i])
        if i + LA < n:
            rd(i + LA)
        for t in st.get("xw", []):
            P.wvm(t)
        P.wlg(f"R{i}")
        mfs = st["mf"](wpool[i % len(wpool)])
        for k, mtxt in enumerate(mfs):
            P.e(mtxt)
            pop(fpm if k < len(mfs) - 1 else max(fpm - 2, 0) if len(mfs) > 1 else fpm)
    pop(10 ** 6)
    stamp(P, 2)


def stats_loads(P, s_mt0, vst, MT, s_tmp):
    P.e("v_lshlrev_b32 v8, 8, v5\nv_lshl_add_u32 v8, v6, 3, v8")
    P.e(f"s_lshl_b32 s{s_tmp}, s{s_mt0}, 10\ns_add_u32 s{s_tmp}, s{s_tmp}, {ST}")
    for m in range(MT):
        P.e(f"buffer_load_dwordx2 {V(vst + 4*m, 2)}, v8, s[4:7], s{s_tmp} offen offset:{m*1024}", tag="st")
        P.e(f"buffer_load_dwordx2 {V(vst + 4*m + 2, 2)}, v8, s[4:7], s{s_tmp} offen offset:{m*1024 + 128}", tag="st")


def allreduce_g(x, t):
    return [f"v_mov_b32 v{t}, v{x}", f"v_permlane32_swap_b32 v{x}, v{t}", f"v_add_f32 v{x}, v{x}, v{t}",
            f"v_mov_b32 v{t}, v{x}", f"v_permlane16_swap_b32 v{x}, v{t}", f"v_add_f32 v{x}, v{x}, v{t}"]


def stats_finish(vst, m, vrs, vsd, vext, t):
    a = vst + 4 * m
    L = [f"v_add_f32 v{a}, v{a}, v{a+2}", f"v_add_f32 v{a+1}, v{a+1}, v{a+3}"]
    L += allreduce_g(a, t) + allreduce_g(a + 1, t + 1)
    L += [f"v_mul_f32 v{a}, {f32(-1/640)}, v{a}",
          f"v_mul_f32 v{a+1}, {f32(1/640)}, v{a+1}",
          f"v_fma_f32 v{a+1}, -v{a}, v{a}, v{a+1}",
          f"v_max_f32 v{a+1}, 0, v{a+1}",
          f"v_add_f32 v{a+1}, {f32(1e-5)}, v{a+1}",
          f"v_rsq_f32 v{vrs}, v{a+1}",
          f"v_cvt_pk_bf16_f32 v{t}, v{a}, v{a}",
          f"v_mul_f32 v{vsd}, v{a+1}, v{vrs}",
          f"v_and_b32 v{t}, 0xffff0000, v{t}",
          f"v_sub_f32 v{a+2}, v{a}, v{t}",
          f"v_cvt_pk_bf16_f32 v{vext}, v{a}, v{a+2}",
          f"v_and_b32 v{t}, 0xffff0000, v{vext}",
          f"v_sub_f32 v{a+3}, v{a+2}, v{t}",
          f"v_mov_b32 v{vext+1}, v{vext}",
          f"v_cvt_pk_bf16_f32 v{vext+2}, v{a}, v{a+3}",
          f"v_mov_b32 v{vext+3}, 0"]
    return L


def x_loads(kbs, MT, s_x, KBT, mstride_sregs):
    L = []
    for m in range(MT):
        for kb in kbs:
            pass
    return L


def phi(P, x, rs, c, out, t, s_eps):
    P.e(f"v_mul_f32 v{t}, v{x}, v{c}")
    P.e(f"v_fma_f32 v{out}, v{x}, v{rs}, s{s_eps}")
    P.e(f"v_exp_f32 v{t}, v{t} clamp")
    P.e(f"v_max_f32 v{out}, s{s_eps}, v{out}")
    P.e(f"v_add_f32 v{out}, v{out}, v{t}")


def set_exec(P, mask):
    lo, hi = mask & 0xffffffff, mask >> 32
    if mask == (1 << 64) - 1:
        P.e("s_mov_b64 exec, -1")
    else:
        P.e(f"s_mov_b32 exec_lo, 0x{lo:08x}\ns_mov_b32 exec_hi, 0x{hi:08x}")


def lanemask(fn):
    return sum(1 << l for l in range(64) if fn(l >> 4, l & 15))


def gen_k1():
    P = Prog()
    common_prologue(P, 256)
    tile_map_128(P)
    NT, MT, KB = 8, 2, 21
    R, SLOT = 6, 16 * 1024
    SCR = R * SLOT
    RED = SCR + 1024
    LDS = RED + 4 * 3360
    ACC, WP, VST, VRS, VSD, VC, VEXT, RST, CT, T, PF, GD, ONES = 16, 80, 112, 120, 122, 124, 128, 136, 144, 152, 184, 204, 244
    P.e("s_lshl_b32 s22, s13, 3\ns_lshl_b32 s17, s12, 1\ns_add_u32 s22, s22, s17")
    P.e(f"s_mul_i32 s23, s22, 20480\ns_add_u32 s23, s23, s21\ns_add_u32 s24, s23, 20480")
    P.e(f"s_mul_i32 s25, s14, {21*8*1024}\ns_add_u32 s25, s25, {WF1}")
    chunk_kb = [2] * 10 + [1]
    chunk_nfr = [k * NT for k in chunk_kb]
    bases = wave_dma_bases(P, chunk_nfr, "s25", 30)
    P.e("v_add_u32 v3, 0x10000, v2")
    P.e(f"s_mov_b32 s26, {f32(1e-6)}")
    P.wlg("ka")
    P.e("s_and_b32 s5, s5, 0xffff")
    stats_loads(P, 22, VST, MT, 27)
    xl = []
    kb0 = 0
    for c, nk in enumerate(chunk_kb):
        L = []
        for m in range(MT):
            for kb in range(kb0, kb0 + nk):
                if kb >= 20:
                    continue
                if kb % 4 == 0 or kb == kb0:
                    L.append(Ins(f"s_add_u32 s28, s{23+m}, {(kb // 4) * 4096}"))
                L.append(Ins(f"buffer_load_dwordx4 {A((m*20+kb)*4, 4)}, v2, s[4:7], s28 offen offset:{(kb % 4) * 1024}", tag=f"X{c}"))
        xl.append(L)
        kb0 += nk
    steps = []
    kb0 = 0
    for c, nk in enumerate(chunk_kb):
        for kk in range(nk):
            kb = kb0 + kk
            for t in range(NT):
                def mf(w, kb=kb, t=t):
                    L = []
                    for m in range(MT):
                        x = A((m * 20 + kb) * 4, 4) if kb < 20 else V(VEXT + 4 * m, 4)
                        d = V(ACC + m * 32 + t * 4, 4)
                        cc = "0" if kb == 0 else d
                        L.append(f"{MF} {d}, {x}, {w}, {cc}" if t < 5 else f"{MF} {d}, {w}, {x}, {cc}")
                    return L
                steps.append(dict(c=c, f=kk * NT + t, mf=mf, xw=[f"X{c}"] if (kk == 0 and t == 0 and kb < 20) else []))
        kb0 += nk
    fl = [Wait("vm", "st")]
    for m in range(MT):
        fl += [Ins(x) for x in stats_finish(VST, m, VRS + m, VSD + m, VEXT + 4 * m, T)]
        fl.append(Ins(f"v_mul_f32 v{VC+m}, {f32(LOG2E)}, v{VRS+m}"))
    fl.append(Ins(f"s_lshl_b32 s17, s12, 7"))
    fl.append(Ins(f"s_add_u32 s17, s17, {SCR}"))
    fl.append(Ins(f"v_lshl_add_u32 v9, v6, 2, s17"))
    fl.append(Ins(f"v_lshl_add_u32 v10, v5, 4, s17"))
    for m in range(MT):
        fl.append(Ins(f"ds_write_b32 v9, v{VRS+m} offset:{m*64}", tag="bw"))
    fl.append(Wait("lgkm", "bw"))
    for m in range(MT):
        fl.append(Ins(f"ds_read_b128 {V(RST+4*m, 4)}, v10 offset:{m*64}", tag="br"))
    fl.append(Wait("lgkm", "br"))
    for m in range(MT):
        for r in range(4):
            fl.append(Ins(f"v_mul_f32 v{CT+4*m+r}, {f32(LOG2E)}, v{RST+4*m+r}"))
    for r in range(4):
        fl.append(Ins(f"v_mov_b32 v{ONES+r}, 0x3f803f80"))
    gemm_core(P, chunk_nfr, R, SLOT, 0, bases, steps, 5, [V(WP + 4 * i, 4) for i in range(8)], xl, 5, 29,
              fillers={24: fl})
    mk = lanemask(lambda g, i: i < 8)
    P.e(f"s_mov_b32 s40, 0x{mk & 0xffffffff:08x}\ns_mov_b32 s41, 0x{mk >> 32:08x}")
    for t in range(5):
        for m in range(MT):
            for r in range(4):
                x = ACC + m * 32 + t * 4 + r
                o = T + 8 + (m * 4 + r)
                if t <= 2:
                    phi(P, x, RST + 4 * m + r, CT + 4 * m + r, o, T + r, 26)
                if t >= 2:
                    P.e(f"v_mul_f32 v{x}, v{x}, v{RST+4*m+r}")
                if t == 2:
                    P.e(f"v_cndmask_b32 v{o}, v{x}, v{o}, s[40:41]")
            src = (lambda r: T + 8 + m * 4 + r) if t <= 2 else (lambda r: ACC + m * 32 + t * 4 + r)
            P.e(f"v_cvt_pk_bf16_f32 v{PF+4*t+2*m}, v{src(0)}, v{src(1)}")
            P.e(f"v_cvt_pk_bf16_f32 v{PF+4*t+2*m+1}, v{src(2)}, v{src(3)}")
    pairs = [(0, 2), (0, 3), (1, 2), (1, 3), (1, 4), (2, 3), (2, 4), (0, None), (1, None), (2, None)]
    for n, (i, j) in enumerate(pairs):
        b = V(PF + 4 * j, 4) if j is not None else V(ONES, 4)
        P.e(f"{MF} {V(GD+4*n, 4)}, {V(PF+4*i, 4)}, {b}, 0")
    P.e(f"s_mul_i32 s17, s12, 3360\ns_add_u32 s17, s17, {RED - 640}")
    P.e("v_mul_u32_u24 v11, 336, v5\nv_lshl_add_u32 v11, v6, 4, v11\nv_add_u32 v11, s17, v11")
    P.e("v_min_u32 v12, 1, v5\nv_mul_u32_u24 v12, 320, v12\nv_sub_u32 v12, v11, v12")
    P.e(f"s_mul_i32 s42, s22, 20480\ns_mul_i32 s17, s14, 1280\ns_add_u32 s42, s42, s17\ns_add_u32 s42, s42, {PQ}")
    P.e("v_lshlrev_b32 v13, 4, v6\nv_lshl_add_u32 v13, v5, 3, v13")
    for m in range(MT):
        q = T + 16 + 6 * m
        for tq in range(3):
            for r in range(4):
                x = ACC + m * 32 + (5 + tq) * 4 + r
                phi(P, x, VRS + m, VC + m, T + 8 + r, T + r, 26)
            P.e(f"v_cvt_pk_bf16_f32 v{q+2*tq}, v{T+8}, v{T+9}")
            P.e(f"v_cvt_pk_bf16_f32 v{q+2*tq+1}, v{T+10}, v{T+11}")
        if m == 1:
            P.e("s_add_u32 s42, s42, 20480")
        P.e(f"buffer_store_dwordx4 {V(q, 4)}, v2, s[4:7], s42 offen")
        set_exec(P, 0xffffffff)
        P.e(f"buffer_store_dwordx2 {V(q+4, 2)}, v13, s[4:7], s42 offen offset:1024")
        set_exec(P, (1 << 64) - 1)
    for n, (i, j) in enumerate(pairs):
        def valid(g, nn, i=i, j=j):
            kk = 4 * i + g
            if kk >= 10:
                return False
            if j is None:
                return nn == 0
            cv = 16 * j + nn - 40
            return 0 <= cv < 40 and cv // 20 == kk // 5
        set_exec(P, lanemask(valid))
        if j is None:
            P.e(f"ds_write_b128 v11, {V(GD+4*n, 4)} offset:{640 + i*1344 + 320}", tag="gw")
        else:
            off = 640 + i * 1344 + (16 * j - 40) * 16 - (320 if i == 2 else 0)
            P.e(f"ds_write_b128 {'v12' if i == 1 else 'v11'}, {V(GD+4*n, 4)} offset:{off}", tag="gw")
    set_exec(P, (1 << 64) - 1)
    P.wlg("gw")
    P.e("s_barrier")
    P.e(f"v_lshlrev_b32 v14, 2, v0\nv_add_u32 v15, {RED}, v14")
    for q in range(4):
        for w in range(4):
            P.e(f"ds_read_b32 v{T+4*q+w}, v15 offset:{w*3360 + q*1024}", tag=f"rr{q}")
    P.e("s_mul_i32 s17, s14, 3360\ns_add_u32 s17, s17, s20")
    P.e("v_cmp_gt_u32 vcc, 72, v0")
    for q in range(4):
        P.wlg(f"rr{q}")
        a = T + 4 * q
        P.e(f"v_add_f32 v{a}, v{a}, v{a+1}\nv_add_f32 v{a+2}, v{a+2}, v{a+3}\nv_add_f32 v{a}, v{a}, v{a+2}")
        if q == 3:
            P.e("v_mov_b32 v15, 0x40000000\nv_cndmask_b32 v14, v15, v14, vcc")
        P.e(f"buffer_atomic_add_f32 v{a}, v14, s[4:7], s17 offen offset:{q*1024}")
    endpgm(P)
    return P, LDS


def resid_loads(P, XR, s_xin):
    P.e("v_lshrrev_b32 v13, 1, v5\nv_lshlrev_b32 v13, 8, v13\nv_lshl_add_u32 v13, v6, 4, v13")
    P.e("v_and_b32 v14, 1, v5\nv_lshl_add_u32 v13, v14, 3, v13")
    return [Ins(f"buffer_load_dwordx4 {V(XR, 4)}, v2, s[4:7], s{s_xin} offen", tag="xr"),
            Ins(f"buffer_load_dwordx4 {V(XR+4, 4)}, v2, s[4:7], s{s_xin} offen offset:1024", tag="xr"),
            Ins(f"buffer_load_dwordx2 {V(XR+8, 2)}, v13, s[4:7], s{s_xin} offen offset:2048", tag="xr")]


def resid_epilogue(P, ACC, XR, T, s_xout, s_mt, final_flag=None):
    P.wvm("xr")
    for k in range(10):
        a = ACC + 2 * k
        P.e(f"v_lshlrev_b32 v{T}, 16, v{XR+k}\nv_and_b32 v{T+1}, 0xffff0000, v{XR+k}")
        P.e(f"v_add_f32 v{T}, v{T}, v{a}\nv_add_f32 v{T+1}, v{T+1}, v{a+1}")
        P.e(f"v_cvt_pk_bf16_f32 v{XR+k}, v{T}, v{T+1}")
    if final_flag is not None:
        P.e(f"s_cmp_lg_u32 s{final_flag}, 0\ns_cbranch_scc1 L_final")
    P.e(f"buffer_store_dwordx4 {V(XR, 4)}, v2, s[4:7], s{s_xout} offen")
    P.e(f"buffer_store_dwordx4 {V(XR+4, 4)}, v2, s[4:7], s{s_xout} offen offset:1024")
    P.e(f"buffer_store_dwordx2 {V(XR+8, 2)}, v13, s[4:7], s{s_xout} offen offset:2048")
    P.e(f"v_mov_b32 v{T}, 0\nv_mov_b32 v{T+1}, 0\nv_mov_b32 v{T+2}, 0x3f803f80")
    for k in range(10):
        P.e(f"v_dot2_f32_bf16 v{T}, v{XR+k}, v{T+2}, v{T}")
        P.e(f"v_dot2_f32_bf16 v{T+1}, v{XR+k}, v{XR+k}, v{T+1}")
    P.add(allreduce_g(T, T + 3))
    P.add(allreduce_g(T + 1, T + 4))
    P.e(f"s_lshl_b32 s17, s{s_mt}, 10\ns_lshl_b32 s18, s14, 7\ns_add_u32 s17, s17, s18\ns_add_u32 s17, s17, {ST}")
    P.e("v_lshlrev_b32 v14, 3, v6")
    set_exec(P, 0xffff)
    P.e(f"buffer_store_dwordx2 {V(T, 2)}, v14, s[4:7], s17 offen")
    endpgm(P)
    if final_flag is not None:
        P.e("L_final:")
        P.e(f"s_mul_i32 s17, s{s_mt}, 20480\ns_mul_i32 s18, s14, 160\ns_add_u32 s17, s17, s18")
        P.e("v_mul_u32_u24 v14, 1280, v6\nv_lshl_add_u32 v15, v5, 4, v14\nv_lshl_add_u32 v14, v5, 3, v14")
        P.e(f"buffer_store_dwordx4 {V(XR, 4)}, v15, s[8:11], s17 offen")
        P.e(f"buffer_store_dwordx4 {V(XR+4, 4)}, v15, s[8:11], s17 offen offset:64")
        P.e(f"buffer_store_dwordx2 {V(XR+8, 2)}, v14, s[8:11], s17 offen offset:128")
        endpgm(P)


def gen_k2():
    P = Prog()
    common_prologue(P, 256)
    tile_map_64(P)
    NT = 5
    SLOT, R = 20 * 1024, 5
    KVT = R * SLOT
    LDS = KVT + 32 * 1280
    PQR, OR, ACC, DT, BS, VE, XR = 16, 96, 176, 196, 228, 236, 244
    EP, WP = 0, 32
    P.e("s_lshl_b32 s22, s13, 2\ns_add_u32 s22, s22, s12")
    P.e(f"s_mul_i32 s25, s14, {100*1024}\ns_add_u32 s25, s25, {WF2}")
    chunk_nfr = [20] * 5
    bases = wave_dma_bases(P, chunk_nfr, "s25", 30)
    P.e("v_add_u32 v3, 0x10000, v2\nv_add_u32 v4, 0x20000, v2")
    P.e("s_lshr_b32 s26, s12, 1\ns_and_b32 s17, s12, 1\ns_lshl_b32 s17, s17, 6")
    P.e("v_add_u32 v8, s17, v1")
    P.e("v_mul_u32_u24 v9, 3121, v8\nv_lshrrev_b32 v9, 16, v9")
    P.e("v_mul_u32_u24 v10, 21, v9\nv_sub_u32 v10, v8, v10")
    P.e("s_mul_i32 s17, s26, 1680\nv_lshl_add_u32 v11, v8, 4, s17")
    P.e("v_cmp_gt_u32 vcc, 105, v8\ns_mov_b64 s[46:47], vcc")
    P.wlg("ka")
    P.e("s_and_b32 s5, s5, 0xffff")
    P.e("s_mov_b64 exec, s[46:47]")
    for rr in range(16):
        if rr == 0:
            P.e("s_mov_b32 s28, s20")
        else:
            P.e("s_add_u32 s28, s28, 3360")
        P.e(f"buffer_load_dwordx4 {V(OR+4*rr, 4)}, v11, s[4:7], s28 offen", tag=f"kv{rr}")
    P.e("s_mov_b64 exec, -1")
    P.e(f"s_mul_i32 s23, s22, 20480\ns_add_u32 s24, s23, {PQ}")
    for kb in range(20):
        if kb % 4 == 0:
            P.e(f"s_add_u32 s28, s24, {kb*1024}")
        P.e(f"buffer_load_dwordx4 {V(PQR+4*kb, 4)}, v2, s[4:7], s28 offen offset:{(kb%4)*1024}", tag=f"pq{kb}")
    P.e("s_mul_i32 s17, s14, 2560\ns_add_u32 s23, s23, s17\ns_add_u32 s43, s23, s21\ns_add_u32 s44, s23, s19")

    def after_pre(P):
        P.e(f"v_lshlrev_b32 v12, 4, v0\nv_add_u32 v12, {KVT}, v12")
        for r in range(4):
            P.e(f"v_mov_b32 v{DT+r}, 0")
        for k in range(10):
            P.e(f"ds_write_b128 v12, {V(DT, 4)} offset:{k*4096}", tag="z")
        P.e("v_add_u32 v9, s26, v9")
        P.e("v_lshrrev_b32 v14, 1, v9\nv_and_b32 v9, 1, v9")
        P.e("v_lshlrev_b32 v15, 8, v14\nv_lshlrev_b32 v14, 7, v14\nv_add_u32 v14, 512, v14")
        P.e("v_cmp_gt_u32 vcc, 16, v10")
        P.e("v_cndmask_b32 v14, v14, v15, vcc")
        P.e("v_lshl_add_u32 v14, v10, 4, v14\nv_lshl_add_u32 v14, v9, 3, v14")
        P.e(f"s_mul_i32 s17, s26, 1280\ns_add_u32 s17, s17, {KVT}\nv_add_u32 v14, s17, v14")
        for c in range(4):
            P.e(f"v_subrev_u32 v8, {c}, v5\nv_and_b32 v8, 3, v8")
            P.e(f"v_cmp_eq_u32 vcc, 3, v8")
            P.e("v_lshlrev_b32 v9, 8, v8\nv_lshl_add_u32 v9, v6, 4, v9")
            P.e("v_and_b32 v10, 7, v6\nv_lshlrev_b32 v10, 4, v10\nv_add_u32 v10, 1152, v10")
            P.e(f"v_cndmask_b32 v9, v9, v10, vcc\nv_add_u32 v{VE+c}, {KVT}, v9")
            P.e("v_and_b32 v9, 3, v6\nv_lshrrev_b32 v15, 2, v6")
            P.e("v_cmp_eq_u32 s[48:49], 0, v9")
            P.e("v_cndmask_b32 v9, 4, v15, s[48:49]")
            P.e("v_lshlrev_b32 v9, 4, v9\nv_lshl_add_u32 v9, v8, 7, v9\nv_add_u32 v9, 768, v9")
            P.e(f"v_cndmask_b32 v9, v9, v10, vcc\nv_add_u32 v{VE+4+c}, {KVT}, v9")
        P.wlg("z")
        P.e("s_barrier")
        P.e("s_mov_b64 exec, s[46:47]")
        for rr in range(16):
            P.wvm(f"kv{rr}")
            a = OR + 4 * rr
            P.e(f"v_cvt_pk_bf16_f32 v{a}, v{a}, v{a+1}\nv_cvt_pk_bf16_f32 v{a+1}, v{a+2}, v{a+3}")
            P.e(f"ds_write_b64 v14, {V(a, 2)} offset:{rr*2560}", tag="kw")
        P.e("s_mov_b64 exec, -1")
        P.add(resid_loads(P, XR, 43))
        P.e(f"s_mov_b32 s48, 0\ns_mov_b32 s49, -1\ns_mov_b32 s50, 0\ns_mov_b32 s51, 0xffff0000")
        P.e(f"s_mov_b32 s26, {f32(1e-6)}")
        P.wlg("kw")
        P.e("s_barrier")
        ELA = 3

        def erd(h):
            c = (5 * h // 2) % 4
            e = EP + 8 * (h % 4)
            P.e(f"ds_read_b128 {A(e, 4)}, v{VE+c} offset:{h*1280}", tag=f"e{h}")
            P.e(f"ds_read_b128 {A(e+4, 4)}, v{VE+4+c} offset:{h*1280}", tag=f"e{h}")

        def stage1(h):
            u0 = 5 * h // 2
            c, kbA = u0 % 4, u0 // 4
            if c <= 1:
                P.wvm(f"pq{kbA}")
                b = V(PQR + 4 * kbA, 4)
            else:
                P.wvm(f"pq{kbA+1}")
                bs = BS + 4 * (h % 2)
                for r in range(4):
                    P.e(f"v_cndmask_b32 v{bs+r}, v{PQR+4*kbA+4+r}, v{PQR+4*kbA+r}, {'s[48:49]' if c == 2 else 's[50:51]'}")
                b = V(bs, 4)
            P.wlg(f"e{h}")
            e = EP + 8 * (h % 4)
            d = DT + 8 * (h % 4)
            P.e(f"{MF} {V(d, 4)}, {A(e, 4)}, {b}, 0")
            P.e(f"{MF} {V(d+4, 4)}, {A(e+4, 4)}, {b}, 0")

        def stage2(h):
            d = DT + 8 * (h % 4)
            P.e(f"v_add_f32 v{d+5}, s26, v{d+5}\nv_rcp_f32 v{d+5}, v{d+5}")
            for i in range(5):
                P.e(f"v_mul_f32 v{d+i}, v{d+i}, v{d+5}")
            n0 = 5 * h
            if h % 2 == 0:
                P.e(f"v_cvt_pk_bf16_f32 v{OR+n0//2}, v{d}, v{d+1}\nv_cvt_pk_bf16_f32 v{OR+n0//2+1}, v{d+2}, v{d+3}")
            else:
                dp = DT + 8 * ((h - 1) % 4)
                P.e(f"v_cvt_pk_bf16_f32 v{OR+n0//2}, v{dp+4}, v{d}")
                P.e(f"v_cvt_pk_bf16_f32 v{OR+n0//2+1}, v{d+1}, v{d+2}\nv_cvt_pk_bf16_f32 v{OR+n0//2+2}, v{d+3}, v{d+4}")

        for h in range(ELA):
            erd(h)
        for h in range(33):
            if h < 32:
                stage1(h)
                if h + ELA < 32:
                    erd(h + ELA)
            if h >= 1:
                stage2(h - 1)

    steps = []
    for kb in range(20):
        for t in range(NT):
            def mf(w, kb=kb, t=t):
                d = V(ACC + 4 * t, 4)
                return [f"{MF} {d}, {w}, {V(OR+4*kb, 4)}, {'0' if kb == 0 else d}"]
            steps.append(dict(c=kb // 4, f=(kb % 4) * NT + t, mf=mf))
    gemm_core(P, chunk_nfr, R, SLOT, 0, bases, steps, 6, [A(WP + 4 * i, 4) for i in range(8)], [[]] * 5, 5, 29,
              after_pre=after_pre, fpm=1)
    resid_epilogue(P, ACC, XR, DT, 44, 22)
    return P, LDS


def gen_k3():
    P = Prog()
    common_prologue(P, 256)
    tile_map_128(P)
    NT, MT = 14, 2
    R, SLOT = 5, 28 * 1024
    LDS = R * SLOT
    ACC, WP, VST, VRS, VSD, VC, VEXT, T, HO = 16, 128, 160, 168, 170, 172, 176, 184, 200
    P.e("s_lshl_b32 s22, s13, 3\ns_lshl_b32 s17, s12, 1\ns_add_u32 s22, s22, s17")
    P.e(f"s_mul_i32 s23, s22, 20480\ns_add_u32 s23, s23, s21\ns_add_u32 s24, s23, 20480")
    P.e(f"s_mul_i32 s25, s14, {21*14*1024}\ns_add_u32 s25, s25, {WF3}")
    chunk_kb = [2] * 10 + [1]
    chunk_nfr = [k * NT for k in chunk_kb]
    bases = wave_dma_bases(P, chunk_nfr, "s25", 30)
    P.e("v_add_u32 v3, 0x10000, v2\nv_add_u32 v4, 0x20000, v2")
    P.wlg("ka")
    P.e("s_and_b32 s5, s5, 0xffff")
    stats_loads(P, 22, VST, MT, 27)
    xl = []
    kb0 = 0
    for c, nk in enumerate(chunk_kb):
        L = []
        for m in range(MT):
            for kb in range(kb0, kb0 + nk):
                if kb >= 20:
                    continue
                if kb % 4 == 0 or kb == kb0:
                    L.append(Ins(f"s_add_u32 s28, s{23+m}, {(kb // 4) * 4096}"))
                L.append(Ins(f"buffer_load_dwordx4 {A((m*20+kb)*4, 4)}, v2, s[4:7], s28 offen offset:{(kb % 4) * 1024}", tag=f"X{c}"))
        xl.append(L)
        kb0 += nk
    steps = []
    kb0 = 0
    for c, nk in enumerate(chunk_kb):
        for kk in range(nk):
            kb = kb0 + kk
            for t in range(NT):
                def mf(w, kb=kb, t=t):
                    L = []
                    for m in range(MT):
                        x = A((m * 20 + kb) * 4, 4) if kb < 20 else V(VEXT + 4 * m, 4)
                        d = V(ACC + m * 56 + t * 4, 4)
                        L.append(f"{MF} {d}, {w}, {x}, {'0' if kb == 0 else d}")
                    return L
                steps.append(dict(c=c, f=kk * NT + t, mf=mf, xw=[f"X{c}"] if (kk == 0 and t == 0 and kb < 20) else []))
        kb0 += nk
    fl = [Wait("vm", "st")]
    for m in range(MT):
        fl += [Ins(x) for x in stats_finish(VST, m, VRS + m, VSD + m, VEXT + 4 * m, T)]
        fl.append(Ins(f"v_mul_f32 v{VC+m}, {f32(-LOG2E)}, v{VRS+m}"))
    gemm_core(P, chunk_nfr, R, SLOT, 0, bases, steps, 5, [V(WP + 4 * i, 4) for i in range(8)], xl, 5, 29,
              fillers={40: fl})
    P.e("s_mul_i32 s17, s14, 14\ns_mul_i32 s18, s14, 12\ns_add_u32 s18, s18, 24\ns_min_u32 s17, s17, s18\ns_lshl_b32 s17, s17, 8")
    P.e(f"s_mul_i32 s42, s22, 55296\ns_add_u32 s42, s42, s17\ns_add_u32 s42, s42, {HB}")
    P.e("v_lshrrev_b32 v13, 1, v5\nv_lshlrev_b32 v13, 8, v13\nv_lshl_add_u32 v13, v6, 4, v13")
    P.e("v_and_b32 v14, 1, v5\nv_lshl_add_u32 v13, v14, 3, v13")
    P.e("s_cmp_lt_u32 s14, 12\ns_cselect_b32 s43, 0, 0x40000000")
    P.e("v_add_u32 v13, s43, v13")
    for m in range(MT):
        if m == 1:
            P.e("s_add_u32 s42, s42, 55296")
        for p in range(7):
            g = ACC + m * 56 + 8 * p
            u = g + 4
            for r in range(4):
                P.e(f"v_mul_f32 v{g+r}, v{g+r}, v{VC+m}")
            for r in range(4):
                P.e(f"v_exp_f32 v{g+r}, v{g+r}")
            for r in range(4):
                P.e(f"v_fma_f32 v{g+r}, v{g+r}, v{VSD+m}, v{VSD+m}")
            for r in range(4):
                P.e(f"v_rcp_f32 v{g+r}, v{g+r}")
            for r in range(4):
                P.e(f"v_mul_f32 v{u+r}, v{u+r}, v{g+r}")
            o = HO + m * 16 + 2 * p
            P.e(f"v_cvt_pk_bf16_f32 v{o}, v{u}, v{u+1}\nv_cvt_pk_bf16_f32 v{o+1}, v{u+2}, v{u+3}")
            if p % 2 == 1:
                P.e(f"buffer_store_dwordx4 {V(o-2, 4)}, v2, s[4:7], s42 offen offset:{(p//2)*1024}")
            if p == 6:
                P.e(f"buffer_store_dwordx2 {V(o, 2)}, v13, s[4:7], s42 offen offset:3072")
    endpgm(P)
    return P, LDS


def gen_k4():
    P = Prog()
    common_prologue(P, 256, extra_ptr_off=56)
    tile_map_64(P)
    NT = 5
    R, SLOT = 7, 20 * 1024
    LDS = R * SLOT
    ACC, WP, XR, T = 16, 40, 72, 84
    P.e("s_lshl_b32 s22, s13, 2\ns_add_u32 s22, s22, s12")
    P.e(f"s_mul_i32 s25, s14, {270*1024}\ns_add_u32 s25, s25, {WF4}")
    chunk_kb = [4] * 13 + [2]
    chunk_nfr = [k * NT for k in chunk_kb]
    bases = wave_dma_bases(P, chunk_nfr, "s25", 30)
    P.e("v_add_u32 v3, 0x10000, v2\nv_add_u32 v4, 0x20000, v2")
    P.e(f"s_mul_i32 s24, s22, 55296\ns_add_u32 s24, s24, {HB}")
    P.e("s_mul_i32 s23, s22, 20480\ns_mul_i32 s17, s14, 2560\ns_add_u32 s23, s23, s17\ns_add_u32 s43, s23, s21\ns_add_u32 s44, s23, s19")
    P.e(f"s_mov_b32 s10, {XSZ}\ns_mov_b32 s11, 0x20000")
    P.wlg("ka")
    P.e("s_and_b32 s5, s5, 0xffff\ns_and_b32 s9, s9, 0xffff")
    xl = []
    kb0 = 0
    for c, nk in enumerate(chunk_kb):
        L = [Ins(f"s_add_u32 s28, s24, {kb0*1024}")]
        for kb in range(kb0, kb0 + nk):
            L.append(Ins(f"buffer_load_dwordx4 {A(kb*4, 4)}, v2, s[4:7], s28 offen offset:{(kb-kb0)*1024}", tag=f"X{c}"))
        xl.append(L)
        kb0 += nk
    steps = []
    for kb in range(54):
        for t in range(NT):
            def mf(w, kb=kb, t=t):
                d = V(ACC + 4 * t, 4)
                return [f"{MF} {d}, {w}, {A(kb*4, 4)}, {'0' if kb == 0 else d}"]
            steps.append(dict(c=kb // 4, f=(kb % 4) * NT + t, mf=mf, xw=[f"X{kb//4}"] if (kb % 4 == 0 and t == 0) else []))
    Q = Prog()
    rl = resid_loads(Q, XR, 43)
    gemm_core(P, chunk_nfr, R, SLOT, 0, bases, steps, 6, [V(WP + 4 * i, 4) for i in range(8)], xl, 6, 29,
              fillers={200: Q.items + rl}, fpm=1)
    resid_epilogue(P, ACC, XR, T, 44, 22, final_flag=20)
    return P, LDS


K0_LDS = 40 * 1024
NJ1, NJ3, NJB, NJC = 64, 128, 74, 64


def gen_k0():
    texts = []
    mx = {"v": 0, "s": 0}
    P = Prog()
    common_prologue(P, NJ1 + NJ3 + NJB + NJC)
    P.e("s_load_dwordx4 s[52:55], s[0:1], 0", tag="ka")
    P.e("s_load_dwordx2 s[56:57], s[0:1], 16", tag="ka")
    P.e("s_load_dwordx4 s[60:63], s[0:1], 32", tag="ka")
    P.e("s_load_dwordx2 s[58:59], s[0:1], 48", tag="ka")
    P.e("s_mov_b32 s11, 0x20000")
    P.e("v_lshrrev_b32 v7, 2, v6\nv_and_b32 v8, 3, v6")
    P.e("v_and_b32 v9, 1, v5\nv_lshl_add_u32 v9, v9, 2, v7\nv_lshlrev_b32 v9, 1, v9")
    P.e("v_lshl_add_u32 v10, v5, 3, v7\nv_lshlrev_b32 v10, 8, v10")
    P.e("s_lshr_b32 s17, s12, 1\ns_lshl_b32 s17, s17, 3\nv_lshl_add_u32 v11, v5, 1, s17\nv_xor_b32 v11, v11, v6")
    P.wlg("ka")
    P.e("s_and_b32 s5, s5, 0xffff")
    P.e(f"s_cmp_lt_u32 s2, {NJ1 + NJ3}\ns_cbranch_scc1 L_k0_A")
    P.e(f"s_cmp_lt_u32 s2, {NJ1 + NJ3 + NJB}\ns_cbranch_scc1 L_k0_B")
    P.e("s_branch L_k0_C")
    texts.append(P)

    P = Prog()
    P.e("L_k0_A:")
    P.e(f"s_cmp_lt_u32 s2, {NJ1}\ns_cbranch_scc0 L_k0_A3")
    P.e("s_lshr_b32 s14, s2, 2\ns_and_b32 s15, s2, 3")
    P.e(f"s_mov_b32 s8, s54\ns_and_b32 s9, s55, 0xffff\ns_mov_b32 s10, {640*1920*2}\ns_mov_b32 s20, 3840")
    P.e("v_min_u32 v12, 14, v11\nv_mul_u32_u24 v13, 52, v12\nv_lshrrev_b32 v13, 8, v13")
    P.e("v_mul_u32_u24 v13, 1200, v13\nv_lshl_add_u32 v12, v12, 4, v13")
    P.e("s_mul_i32 s21, s14, 80")
    P.e("s_lshl_b32 s22, s12, 5\ns_add_u32 s22, s22, 80\ns_mov_b32 s23, 8\ns_mov_b32 s24, 3")
    P.e("s_mov_b32 s25, 208\ns_mov_b32 s26, 8\ns_mov_b32 s27, 3")
    P.e("s_cmp_eq_u32 s12, 1\ns_cselect_b32 s25, 0, s25\ns_cselect_b32 s26, 16, s26")
    P.e("s_cmp_eq_u32 s12, 2\ns_cselect_b32 s25, 8, s25\ns_cselect_b32 s26, 16, s26")
    P.e("s_cmp_eq_u32 s12, 3\ns_cselect_b32 s25, 64, s25\ns_cselect_b32 s27, 1, s27")
    P.e(f"s_mul_i32 s28, s14, {21*8*1024}\ns_add_u32 s28, s28, {WF1}\ns_lshl_b32 s17, s12, 10\ns_add_u32 s28, s28, s17")
    P.e("s_add_u32 s29, s28, 4096\ns_mov_b32 s30, 8192")
    P.e("s_branch L_k0_Ac")
    P.e("L_k0_A3:")
    P.e(f"s_sub_u32 s16, s2, {NJ1}\ns_and_b32 s18, s16, 1\ns_lshr_b32 s15, s16, 1\ns_and_b32 s15, s15, 3\ns_lshr_b32 s14, s16, 3")
    P.e("s_cmp_eq_u32 s18, 0\ns_cselect_b32 s8, s60, s62\ns_cselect_b32 s9, s61, s63\ns_and_b32 s9, s9, 0xffff")
    P.e(f"s_mov_b32 s10, {640*1728*2}\ns_mov_b32 s20, 3456")
    P.e("s_cmp_lt_u32 s14, 12\ns_cselect_b32 s17, 13, 11")
    P.e("v_min_u32 v12, s17, v11\nv_lshlrev_b32 v12, 4, v12")
    P.e("s_mul_i32 s21, s14, 224\ns_mul_i32 s17, s14, 192\ns_add_u32 s17, s17, 384\ns_min_u32 s21, s21, s17")
    P.e("s_lshr_b32 s22, s12, 1\ns_lshl_b32 s22, s22, 6\ns_and_b32 s17, s12, 1\ns_lshl_b32 s17, s17, 3\ns_add_u32 s22, s22, s17")
    P.e("s_mov_b32 s23, 16\ns_mov_b32 s24, 3\ns_mov_b32 s27, 3")
    P.e("s_add_u32 s25, s17, 128\ns_cmp_lt_u32 s12, 2\ns_cselect_b32 s25, s25, 192\ns_cselect_b32 s26, 16, 8")
    P.e(f"s_mul_i32 s28, s14, {21*14*1024}\ns_add_u32 s28, s28, {WF3}\ns_lshl_b32 s17, s18, 10\ns_add_u32 s28, s28, s17")
    P.e("s_add_u32 s17, s12, 4\ns_min_u32 s17, s17, 6\ns_lshl_b32 s17, s17, 11\ns_add_u32 s29, s28, s17")
    P.e(f"s_lshl_b32 s17, s12, 11\ns_add_u32 s28, s28, s17\ns_mov_b32 s30, {14*1024}")
    P.e("L_k0_Ac:")
    P.e("s_lshl_b32 s17, s12, 2\nv_add_u32 v13, s17, v5\nv_mul_lo_u32 v13, v13, s20\nv_add_u32 v12, v12, v13")
    P.e("s_mul_i32 s31, s15, 160\ns_mul_i32 s31, s31, s20\ns_add_u32 s31, s31, s21\ns_lshl_b32 s32, s20, 4")
    P.e("s_lshl_b32 s33, s12, 10")
    for k in range(10):
        P.e(f"s_add_u32 m0, s33, {k*4096}")
        if k:
            P.e("s_add_u32 s31, s31, s32")
        P.e("buffer_load_dwordx4 v12, s[8:11], s31 offen lds", tag="d")
    for tt, (sa, sb, sm) in enumerate(((22, 23, 24), (25, 26, 27))):
        a = 14 + tt
        P.e(f"v_min_u32 v{a}, s{sm}, v8\nv_mul_lo_u32 v{a}, v{a}, s{sb}\nv_add_u32 v{a}, s{sa}, v{a}")
        P.e(f"v_lshrrev_b32 v16, 4, v{a}\nv_xor_b32 v16, v16, v9\nv_and_b32 v{a}, 8, v{a}")
        P.e(f"v_lshl_add_u32 v{a}, v16, 4, v{a}\nv_add_u32 v{a}, v{a}, v10")
    for r in range(4):
        P.e(f"v_mov_b32 v{20+r}, 0x3f803f80")
    P.e("s_mul_i32 s17, s15, 5\ns_mul_i32 s17, s17, s30\ns_add_u32 s34, s28, s17\ns_add_u32 s35, s29, s17")
    P.wvm("d")
    P.e("s_barrier")
    stamp(P, 1)
    for tt in range(2):
        for k in range(5):
            d = 32 + (tt * 5 + k) * 4
            P.e(f"ds_read_b64_tr_b16 {V(d, 2)}, v{14+tt} offset:{k*8192}", tag=f"t{tt}{k}")
            P.e(f"ds_read_b64_tr_b16 {V(d+2, 2)}, v{14+tt} offset:{k*8192+1024}", tag=f"t{tt}{k}")
            if tt == 1 and k == 1:
                P.wlg("t04")
    for tt in range(2):
        for k in range(5):
            d = 32 + (tt * 5 + k) * 4
            P.wlg(f"t{tt}{k}")
            P.e(f"buffer_store_dwordx4 {V(d, 4)}, v2, s[4:7], s{34+tt} offen")
            P.e(f"s_add_u32 s{34+tt}, s{34+tt}, s30")
            c = V(24 + 4 * tt, 4)
            P.e(f"{MF} {c}, {V(20, 4)}, {V(d, 4)}, {'0' if k == 0 else c}")
    P.e("s_mul_i32 s17, s30, 20\ns_lshl_b32 s18, s15, 8\ns_add_u32 s17, s17, s18\ns_add_u32 s28, s28, s17\ns_add_u32 s29, s29, s17")
    set_exec(P, 0xffff)
    for tt in range(2):
        c = 24 + 4 * tt
        e = 72 + 4 * tt
        P.e(f"v_cvt_pk_bf16_f32 v{e}, v{c}, v{c}\nv_and_b32 v16, 0xffff0000, v{e}\nv_sub_f32 v17, v{c}, v16")
        P.e(f"v_cvt_pk_bf16_f32 v{e+1}, v17, v17\nv_and_b32 v16, 0xffff0000, v{e+1}\nv_sub_f32 v17, v17, v16")
        P.e(f"v_cvt_pk_bf16_f32 v{e+2}, v17, v{c}\nv_mov_b32 v{e+3}, 0")
        P.e(f"buffer_store_dwordx4 {V(e, 4)}, v2, s[4:7], s{28+tt} offen")
    endpgm(P, 3)
    texts.append(P)

    P = Prog()
    P.e("L_k0_B:")
    P.e(f"s_sub_u32 s16, s2, {NJ1 + NJ3}")
    P.e("s_cmp_lt_u32 s16, 20\ns_cbranch_scc1 L_k0_B2")
    P.e(f"s_sub_u32 s16, s16, 20\ns_mov_b32 s8, s58\ns_and_b32 s9, s59, 0xffff\ns_mov_b32 s10, {1728*640*2}")
    P.e(f"s_mov_b32 s20, {54*5*1024}\ns_mov_b32 s21, {WF4}")
    P.e("s_lshl_b32 s17, s16, 5\ns_lshl_b32 s18, s12, 2\ns_add_u32 s17, s17, s18\nv_add_u32 v12, s17, v5\nv_add_u32 v13, 16, v12")
    P.e("s_branch L_k0_Bc")
    P.e("L_k0_B2:")
    P.e(f"s_mov_b32 s8, s56\ns_and_b32 s9, s57, 0xffff\ns_mov_b32 s10, {640*640*2}")
    P.e(f"s_mov_b32 s20, {20*5*1024}\ns_mov_b32 s21, {WF2}")
    P.e("s_lshl_b32 s18, s12, 2\nv_add_u32 v14, s18, v5\nv_and_b32 v15, 7, v14\nv_lshrrev_b32 v14, 3, v14")
    P.e("s_lshl_b32 s17, s16, 3\nv_add_u32 v15, s17, v15\nv_mul_u32_u24 v16, 205, v15\nv_lshrrev_b32 v16, 10, v16")
    P.e("v_mul_u32_u24 v17, 5, v16\nv_sub_u32 v17, v15, v17\nv_mul_u32_u24 v16, 20, v16")
    P.e("v_cmp_gt_u32 vcc, 4, v17")
    for k in range(2):
        if k:
            P.e("v_add_u32 v14, 2, v14")
        P.e(f"v_lshl_add_u32 v18, v14, 2, v17\nv_add_u32 v19, 16, v14\nv_cndmask_b32 v18, v19, v18, vcc\nv_add_u32 v{12+k}, v16, v18")
    P.e("L_k0_Bc:")
    for k in range(2):
        P.e(f"v_mul_u32_u24 v{12+k}, 1280, v{12+k}\nv_lshl_add_u32 v{12+k}, v11, 4, v{12+k}")
    P.e("s_lshl_b32 s33, s12, 10")
    for pn in range(5):
        for k in range(2):
            P.e(f"s_add_u32 m0, s33, {pn*8192 + k*4096}\ns_mov_b32 s31, {pn*256}")
            P.e(f"buffer_load_dwordx4 v{12+k}, s[8:11], s31 offen lds", tag="d")
    P.e("s_mul_i32 s22, s12, 320")
    P.e("v_lshlrev_b32 v14, 4, v8\nv_add_u32 v14, s22, v14\nv_lshlrev_b32 v15, 3, v8\nv_add_u32 v15, s22, v15")
    for cq in range(2):
        for t in range(5):
            a = 20 + cq * 5 + t
            k0 = 160 * cq + (64 * (t // 2) + 8 * (t % 2) if t < 4 else 128)
            P.e(f"v_add_u32 v16, {k0}, {'v14' if t < 4 else 'v15'}")
            P.e("v_bfe_u32 v17, v16, 4, 4\nv_xor_b32 v17, v17, v9\nv_lshrrev_b32 v18, 8, v16\nv_and_b32 v16, 8, v16")
            P.e(f"v_lshl_add_u32 v16, v17, 4, v16\nv_lshl_add_u32 v16, v18, 13, v16\nv_add_u32 v{a}, v16, v10")
    P.e("s_lshl_b32 s17, s12, 1\ns_mul_i32 s17, s17, s20\ns_add_u32 s21, s21, s17\ns_mul_i32 s17, s16, 5120\ns_add_u32 s21, s21, s17")
    P.wvm("d")
    P.e("s_barrier")
    stamp(P, 1)
    for n in range(10):
        d = 32 + 4 * n
        P.e(f"ds_read_b64_tr_b16 {V(d, 2)}, v{20+n}", tag=f"t{n}")
        P.e(f"ds_read_b64_tr_b16 {V(d+2, 2)}, v{20+n} offset:1024", tag=f"t{n}")
        if n == 6:
            P.wlg("t3")
    for n in range(10):
        d = 32 + 4 * n
        if n == 4:
            P.e("s_add_u32 s17, s21, 4096")
        if n == 5:
            P.e("s_add_u32 s21, s21, s20")
        if n == 9:
            P.e("s_add_u32 s17, s21, 4096")
        P.wlg(f"t{n}")
        t = n % 5
        P.e(f"buffer_store_dwordx4 {V(d, 4)}, v2, s[4:7], {'s21' if t < 4 else 's17'} offen offset:{(t % 4)*1024}")
    endpgm(P, 3)
    texts.append(P)

    P = Prog()
    P.e("L_k0_C:")
    P.e(f"s_sub_u32 s16, s2, {NJ1 + NJ3 + NJB}")
    P.e(f"s_mov_b32 s8, s52\ns_and_b32 s9, s53, 0xffff\ns_mov_b32 s10, {XSZ}")
    P.e("s_lshl_b32 s17, s12, 2\nv_add_u32 v12, s17, v5\nv_xor_b32 v13, v12, v6\nv_mul_u32_u24 v12, 1280, v12\nv_lshl_add_u32 v12, v13, 4, v12")
    P.e("s_mul_i32 s20, s16, 40960\ns_lshl_b32 s33, s12, 10")
    for ml in range(2):
        for pn in range(5):
            P.e(f"s_add_u32 m0, s33, {ml*20480 + pn*4096}\ns_add_u32 s31, s20, {ml*20480 + pn*256}")
            P.e("buffer_load_dwordx4 v12, s[8:11], s31 offen lds", tag="d")
    for r in range(4):
        P.e(f"v_mov_b32 v{20+r}, 0")
    P.e(f"s_mul_i32 s17, s16, 1680\ns_add_u32 s17, s17, {KVA}\nv_lshlrev_b32 v14, 4, v0\nv_cmp_gt_u32 vcc, 105, v0")
    P.e("v_mov_b32 v15, 0x40000000\nv_cndmask_b32 v14, v15, v14, vcc")
    P.e(f"buffer_store_dwordx4 {V(20, 4)}, v14, s[4:7], s17 offen")
    P.e("s_lshr_b32 s22, s12, 1\ns_and_b32 s23, s12, 1\ns_mul_i32 s24, s22, 20480\ns_mul_i32 s25, s23, 40")
    P.e("v_add_u32 v14, s25, v5\nv_lshlrev_b32 v15, 8, v6\nv_add_u32 v15, s24, v15")
    for k in range(10):
        P.e(f"v_add_u32 v16, {4*k}, v14\nv_lshrrev_b32 v17, 4, v16\nv_xor_b32 v16, v16, v6\nv_and_b32 v16, 15, v16")
        P.e(f"v_lshl_add_u32 v16, v16, 4, v15\nv_lshl_add_u32 v{72+k}, v17, 12, v16")
    P.e(f"s_add_u32 s26, s20, s24\ns_mul_i32 s17, s23, 10240\ns_add_u32 s26, s26, s17\ns_add_u32 s26, s26, {xbuf(0)}")
    P.e("v_mov_b32 v24, 0\nv_mov_b32 v25, 0\nv_mov_b32 v26, 0x3f803f80")
    P.wvm("d")
    P.e("s_barrier")
    stamp(P, 1)
    for k in range(10):
        P.e(f"ds_read_b128 {V(32+4*k, 4)}, v{72+k}", tag=f"t{k}")
    for k in range(10):
        if k and k % 4 == 0:
            P.e("s_add_u32 s26, s26, 4096")
        P.wlg(f"t{k}")
        P.e(f"buffer_store_dwordx4 {V(32+4*k, 4)}, v2, s[4:7], s26 offen offset:{(k % 4)*1024}")
        for r in range(4):
            P.e(f"v_dot2_f32_bf16 v24, v{32+4*k+r}, v26, v24")
            P.e(f"v_dot2_f32_bf16 v25, v{32+4*k+r}, v{32+4*k+r}, v25")
    P.add(allreduce_g(24, 27))
    P.add(allreduce_g(25, 28))
    P.e("v_cmp_eq_u32 vcc, 0, v5\nv_cndmask_b32 v24, 0, v24, vcc\nv_cndmask_b32 v25, 0, v25, vcc")
    P.e(f"s_lshl_b32 s17, s16, 1\ns_add_u32 s17, s17, s22\ns_lshl_b32 s17, s17, 10\ns_lshl_b32 s18, s23, 7\ns_add_u32 s17, s17, s18\ns_add_u32 s17, s17, {ST}")
    P.e("v_lshlrev_b32 v14, 8, v5\nv_lshl_add_u32 v14, v6, 3, v14")
    P.e("buffer_store_dwordx2 v[24:25], v14, s[4:7], s17 offen")
    endpgm(P, 3)
    texts.append(P)
    return texts


def build(extra_nops=0):
    out = []
    hdr = []
    body = []
    desc = []

    def kernel(name, text, regs, stubs):
        for lab, ins in stubs:
            if STAMPS:
                ins = ins + [f"s_mov_b32 s3, {['k0','k1a','k2a','k3a','k4a','k1b','k2b','k3b','k4b'].index(lab[:-7])}"]
            body.append(f".globl {lab}\n.p2align 8\n.type {lab},@function\n{lab}:\n" + "".join(f"  {x}\n" for x in ins) + (f"  s_branch L_{name}\n" if len(stubs) > 1 else ""))
            desc.append(descriptor(lab, regs["v"] + 1, regs["a"] + 1, 102 if False else max(regs["s"] + 1, 16)))
        t = text.replace("L_exit", f"L_exit_{name}").replace("L_final", f"L_final_{name}")
        body.append((f".p2align 6\nL_{name}:\n" if len(stubs) > 1 else "") + t + f"L_exit_{name}:\n  s_endpgm\n")

    k0 = gen_k0()
    regs = {"v": 0, "a": -1, "s": 0}
    for p in k0:
        r = p.max_regs()
        for k in regs:
            regs[k] = max(regs[k], r[k])
    kernel("k0", "".join(p.finish() for p in k0), regs, [("k0_kernel", [])])
    lds = {}
    for name, fn, stubs in (
        ("k1", gen_k1, [("k1a_kernel", [f"s_mov_b32 s20, {KVA}", f"s_mov_b32 s21, {xbuf(0)}"]),
                        ("k1b_kernel", [f"s_mov_b32 s20, {KVA + KVSZ}", f"s_mov_b32 s21, {xbuf(2)}"])]),
        ("k2", gen_k2, [("k2a_kernel", [f"s_mov_b32 s20, {KVA}", f"s_mov_b32 s21, {xbuf(0)}", f"s_mov_b32 s19, {xbuf(1)}"]),
                        ("k2b_kernel", [f"s_mov_b32 s20, {KVA + KVSZ}", f"s_mov_b32 s21, {xbuf(2)}", f"s_mov_b32 s19, {xbuf(3)}"])]),
        ("k3", gen_k3, [("k3a_kernel", [f"s_mov_b32 s21, {xbuf(1)}"]), ("k3b_kernel", [f"s_mov_b32 s21, {xbuf(3)}"])]),
        ("k4", gen_k4, [("k4a_kernel", ["s_mov_b32 s20, 0", f"s_mov_b32 s21, {xbuf(1)}", f"s_mov_b32 s19, {xbuf(2)}"]),
                        ("k4b_kernel", ["s_mov_b32 s20, 1", f"s_mov_b32 s21, {xbuf(3)}", f"s_mov_b32 s19, {xbuf(3)}"])]),
    ):
        p, l = fn()
        regs = p.max_regs()
        lds[name] = l
        kernel(name, p.finish(), regs, stubs)
    L = [f"; @launch kernel=k0_kernel grid=({NJ1+NJ3+NJB+NJC},1,1) block=(256,1,1) lds={K0_LDS}"]
    for lay in "ab":
        for k in ("k1", "k2", "k3", "k4"):
            L.append(f"; @launch kernel={k}{lay}_kernel grid=(256,1,1) block=(256,1,1) lds={lds[k]}")
    for _ in range(extra_nops):
        L.append("; @launch kernel=nop_kernel grid=(256,1,1) block=(256,1,1) lds=0")
    if extra_nops:
        body.append(".globl nop_kernel\n.p2align 8\n.type nop_kernel,@function\nnop_kernel:\n  s_endpgm\n")
        desc.append(descriptor("nop_kernel", 8, 0, 16))
    head = "; generated by tools/gen.py: LN-folded bf16 MFMA GEMM chain (prep, qkv, attn-out, gate/up, down) x 2 layers\n"
    return head + "\n".join(L) + '\n.amdgcn_target "amdgcn-amd-amdhsa--gfx950"\n.text\n' + "".join(body) + "".join(desc)


if __name__ == "__main__":
    import argparse
    ap = argparse.ArgumentParser()
    ap.add_argument("-o", default="interleave_layers__linear_attn_block__glu_gated_glu__prompt.s")
    ap.add_argument("--debug", action="store_true")
    ap.add_argument("--nops", type=int, default=0)
    ap.add_argument("--stamps", action="store_true")
    ap.add_argument("--clk", action="store_true")
    a = ap.parse_args()
    STAMPS = a.stamps
    if a.clk:
        STAMP_INS = "s_memtime"
    if a.debug:
        INPLACE = False
    open(a.o, "w").write(build(a.nops))
    print("written", a.o)
```

```python
import sys, struct
from collections import deque
from asmlib import Prog, Ins, Wait, Virtual, V, A, S, descriptor, TRANS
from gen import f32, LOG2E, MF, allreduce_g, stats_finish, lanemask, set_exec

WF1 = 0
WF2 = WF1 + 16 * 168 * 1024
WF3 = WF2 + 8 * 100 * 1024
WF4 = WF3 + 16 * 294 * 1024
L0 = WF4 + 8 * 270 * 1024 + 4096
XSZ = 2048 * 640 * 2
XA = L0
PQ = XA + XSZ
XB = PQ + XSZ
HB = XB + XSZ
STA = HB + 2048 * 1728 * 2
STB = STA + 128 * 1024
KVA = STB + 128 * 1024
F0 = KVA + 56 * 1024
F1 = F0 + 32768
F2 = F1 + 16384
F3 = F2 + 32768
ZSZ = F3 + 32768 - KVA
LB = F3 + 32768 - L0
STAMP = L0 + 2 * LB
WS_USED = STAMP + 4 * 512 * 128
assert ZSZ == 172032 and L0 % 4096 == 0 and LB % 4096 == 0
STAMPS = False
STAMP_INS = "s_memrealtime"
OOB = 0x40000000
SLOT = 20480
SPIN = 200000
CFG = dict(g1=1, g3=2, g4=2, b1=4, b3=3, b4=8, la=6)

vSTL, vHALF, vPQT, vSTS, vRW0, vRW1, vRR, vAT, vATM, vKVL, vKVW, vE0, vE1, vZF, vPQW, vFC, vFG, vPOLL, vONE, vBW, vBR, vH3, vO16, vO8, vT = range(7, 32)
XR, CE, ONES, PV = 32, 42, 46, 50
WP = 224
sWAVE, sRB, sCG, sMT0, sMT, sCG8, sLAY = 12, 13, 14, 15, 16, 17, 20
sW5, sW1, sW2, sW3, sW4 = 21, 22, 23, 24, 25
sFA, sFB, sFG, sEPS = 26, 27, 28, 29
sX0, sX1, sXT, sDT, sA, sB, sC, sSPIN = 30, 31, 32, 33, 34, 35, 36, 37
sM8, sMASK = 38, 40
sSTMP = 64
RED = 7 * SLOT
BNC = RED + 13440
KVT = 6 * SLOT


def cost(it):
    if isinstance(it, (Wait, Virtual)):
        return 0
    if isinstance(it, list):
        return sum(cost(x) for x in it)
    t = it.text
    if t.startswith("v_mfma"):
        return 12
    if t.startswith(TRANS):
        return 8
    return 4


def I(text, tag=None):
    return [Ins(x.strip(), tag) for x in text.split("\n") if x.strip()]


_nstamp = [0]


def stamp(P):
    if STAMPS:
        j = _nstamp[0]
        _nstamp[0] += 1
        P.raw(f"{STAMP_INS} s[{sSTMP+2*j}:{sSTMP+2*j+1}]\ns_waitcnt lgkmcnt(0)")


def stamp_flush(P):
    if STAMPS:
        P.raw(f"s_cmp_lg_u32 s{sWAVE}, 0\ns_cbranch_scc1 L_nost{len(P.items)}")
        lab = P.items[-1].text.split()[-1]
        P.raw(f"s_cmp_lg_u32 s{sLAY}, 0\ns_cselect_b32 s{sA}, {512*128}, 0\ns_lshl_b32 s{sB}, s2, 7\ns_add_u32 s{sA}, s{sA}, s{sB}\ns_add_u32 s{sA}, s{sA}, {STAMP + 512*128}")
        P.raw(f"v_mov_b32 v{vT}, 0")
        for j in range(_nstamp[0]):
            P.raw(f"v_mov_b32 v250, s{sSTMP+2*j}\nv_mov_b32 v251, s{sSTMP+2*j+1}\ns_nop 1")
            P.raw(f"buffer_store_dwordx2 v[250:251], v{vT}, s[4:7], s{sA} offen offset:{8*j}\ns_nop 1")
        P.raw(f"s_waitcnt vmcnt(0)\n{lab}:")


class Chunk:
    def __init__(self, name, sbase, foff, n, slot, event):
        self.name, self.sbase, self.foff, self.n, self.slot, self.event = name, sbase, foff, n, slot, event
        self.q = (n + 3) // 4
        self.tag = "W" + name


class Op:
    def __init__(self, fn, tag, prio, event=None, step=0):
        self.fn, self.tag, self.prio, self.event, self.step = fn, tag, prio, event, step


class Sched:
    dma_ctx = None
    x_ctx = None

    def __init__(self, P, name):
        self.P, self.name = P, name
        self.vq, self.aq = [], deque()
        self.events = {None}
        self.marks = set()
        self.now = 0

    def dma(self, ch, prio):
        for i in range(ch.q):
            def fn(ch=ch, i=i):
                L = []
                key = (ch.name, i // 4)
                if Sched.dma_ctx != key:
                    Sched.dma_ctx = key
                    o = (i // 4) * 4096
                    if ch.q == 5:
                        L += I(f"s_add_u32 m0, s{sW5}, {ch.slot*SLOT + o}\ns_add_u32 s{sDT}, s{ch.sbase}, {ch.foff*1024 + o}")
                    else:
                        L += I(f"s_mul_i32 s{sDT}, s{sWAVE}, {ch.q*1024}\ns_add_u32 m0, s{sDT}, {ch.slot*SLOT}\ns_sub_u32 s{sDT}, s{sDT}, s{sW5}")
                        L += I(f"s_add_u32 s{sDT}, s{sDT}, s{ch.sbase}\ns_add_u32 s{sDT}, s{sDT}, {ch.foff*1024}")
                L += I(f"buffer_load_dwordx4 v2, s[4:7], s{sDT} offen offset:{(i % 4)*1024} lds", ch.tag)
                return L
            self.vq.append(Op(fn, ch.tag, prio + i * 1e-3, ch.event))

    def load(self, dst, vaddr, sbase, off, tag, prio, w=4, event=None, step=0):
        def fn():
            L = []
            if off < 4096:
                so = f"s{sbase}"
            else:
                key = (sbase, off >> 12)
                if Sched.x_ctx != key:
                    Sched.x_ctx = key
                    L += I(f"s_add_u32 s{sXT}, s{sbase}, {off & ~4095}")
                so = f"s{sXT}"
            return L + I(f"buffer_load_dwordx{w} {dst}, v{vaddr}, s[4:7], {so} offen offset:{off & 4095} sc1", tag)
        self.vq.append(Op(fn, tag, prio, event, step))

    def alu(self, items, step=0, event=None):
        for it in items:
            if isinstance(it, str):
                for x in I(it):
                    self.aq.append((x, step, event))
            else:
                self.aq.append((it, step, event))

    def mark(self, name):
        self.aq.append((name, 0, None))

    def emit_op(self, op):
        self.vq.remove(op)
        L = op.fn()
        self.P.add(L)
        return cost(L)

    def next_op(self):
        el = [o for o in self.vq if o.event in self.events and o.step <= self.now]
        return min(el, key=lambda o: o.prio) if el else None

    def burst(self, n):
        for _ in range(n):
            op = self.next_op()
            if op is None:
                break
            self.emit_op(op)

    def force(self, tag):
        ops = sorted([o for o in self.vq if o.tag == tag], key=lambda o: o.prio)
        if ops:
            print(f"  [{self.name}] forced {len(ops)} x {tag} at step {self.now}", file=sys.stderr)
        for o in ops:
            assert o.event in self.events, (tag, o.event)
            self.emit_op(o)

    def pop_alu(self):
        it, _, _ = self.aq.popleft()
        if isinstance(it, str):
            self.marks.add(it)
            return 0
        if isinstance(it, Wait) and it.cls == "vm":
            self.force(it.tag)
        self.P.add(it)
        return cost(it)

    def drain_to(self, mark):
        while mark not in self.marks:
            self.pop_alu()

    def drain(self):
        while self.aq:
            self.pop_alu()

    def run(self, steps, chunks, vgap, extra=0, nobar=()):
        P, LA = self.P, CFG["la"]
        seen = set()

        def rd(m):
            st = steps[m]
            dst = A(WP + 4 * (m % 8), 4)
            if "fr" in st:
                c, f = st["fr"]
                ch = chunks[c]
                if c not in seen:
                    seen.add(c)
                    if c not in nobar:
                        self.force(ch.tag)
                        P.wvm(ch.tag)
                        P.e("s_barrier")
                    self.events.add(f"{self.name}:{c}")
                off = ch.slot * SLOT + f * 1024
                P.e(f"ds_read_b128 {dst}, v{2 + (off >> 16)} offset:{off & 0xffff}", tag=f"R{m}")
            else:
                P.e(st["rd"](dst), tag=f"R{m}")

        n = len(steps)
        self.now = 0
        for m in range(min(LA, n)):
            rd(m)
        credit, lastv = 0, -100
        for i, st in enumerate(steps):
            self.now = i
            if "aw" in st:
                self.drain_to(st["aw"])
            for t in st.get("xw", []):
                self.force(t)
                P.wvm(t)
            P.wlg(f"R{i}")
            mfs = st["mf"](A(WP + 4 * (i % 8), 4))
            for k, t in enumerate(mfs):
                P.e(t)
                credit = min(credit, 0) + 8 + extra
                if k == len(mfs) - 1 and i + LA < n:
                    rd(i + LA)
                    credit -= 4
                if k == 0 and i - lastv >= vgap:
                    op = self.next_op()
                    if op is not None:
                        credit -= self.emit_op(op)
                        lastv = i
                while credit > 0 and self.aq and self.aq[0][1] <= i and self.aq[0][2] in self.events:
                    credit -= self.pop_alu()
        self.now = n
        P.e("s_barrier")
        self.events.add(f"{self.name}:end")
        stamp(P)

    def late(self):
        n = len(self.vq)
        self.burst(10 ** 6)
        assert not self.vq
        print(f"  [{self.name}] late ops {n}", file=sys.stderr)


def mk_chunks():
    ch = {}
    s1 = [6, 7, 0, 1, 2, 3, 4, 5, 6]
    e1 = ["p4:9", "p4:10", "p4:11", "p4:12", "p4:13", "p4:end", "p4:end", "p4:8", "p1:2"]
    ch["p1"] = [Chunk(f"1_{c}", sW1, 20 * c, 20 if c < 8 else 8, s1[c], e1[c]) for c in range(9)]
    ch["p2"] = [Chunk(f"2_{c}", sW2, 20 * c, 20, 1 + c, f"p1:{5+c}" if c < 4 else "p1:end") for c in range(5)]
    e3 = ["p1:4", "p2:2", "p2:3", "p2:4"] + ["p2:end"] * 4 + [f"p3:{c-6}" for c in range(8, 15)]
    ch["p3"] = [Chunk(f"3_{c}", sW3, 20 * c, 20 if c < 14 else 14, c % 8, e3[c]) for c in range(15)]
    e4 = [f"p3:{c+9}" for c in range(6)] + ["p3:end"] * 2 + [f"p4:{c-6}" for c in range(8, 14)]
    ch["p4"] = [Chunk(f"4_{c}", sW4, 20 * c, 20 if c < 13 else 10, (15 + c) % 8, e4[c]) for c in range(14)]
    return ch


def handoff(P, sc, wtag, wr, stride_reg, uid):
    sc.late()
    P.e(wr)
    P.wvm(wtag)
    P.e("s_barrier")
    P.raw(f"s_cmp_lg_u32 s{sWAVE}, 0\ns_cbranch_scc1 L_nf{uid}\nbuffer_store_dword v{vONE}, v{stride_reg}, s[4:7], s{sA} offen sc1\nL_nf{uid}:")
    stamp(P)


def poll(P, rdoff, uid, wide=False, label=None):
    P.e(rdoff)
    P.raw(f"s_cmp_lg_u32 s{sWAVE}, 0\ns_cbranch_scc1 L_pd{uid}\ns_mov_b32 s{sSPIN}, {SPIN}\nL_pl{uid}:")
    if wide:
        P.raw(f"buffer_load_dwordx4 v[252:255], v2, s[4:7], s{sB} offen sc1\ns_waitcnt vmcnt(0)\nv_min_u32 v252, v252, v253\nv_min3_u32 v252, v252, v254, v255")
    else:
        P.raw(f"buffer_load_dword v252, v{vPOLL}, s[4:7], s{sB} offen sc1\ns_waitcnt vmcnt(0)")
    P.raw(f"v_cmp_eq_u32 vcc, 0, v252\ns_nop 1\ns_cbranch_vccz L_pd{uid}")
    P.raw(f"s_sub_u32 s{sSPIN}, s{sSPIN}, 1\ns_cmp_lg_u32 s{sSPIN}, 0\ns_cbranch_scc1 L_pl{uid}\nL_pd{uid}:")
    P.e("s_barrier")
    if label:
        P.e(label)
    stamp(P)


def x_phase_loads(sc, P, xbuf, stbuf, VST, nt1):
    P.e(f"s_mul_i32 s{sX0}, s{sMT0}, 20480\ns_add_u32 s{sX0}, s{sX0}, s{sLAY}\ns_add_u32 s{sX0}, s{sX0}, {xbuf}\ns_add_u32 s{sX1}, s{sX0}, 20480")
    P.e(f"s_lshl_b32 s{sC}, s{sMT0}, 10\ns_add_u32 s{sC}, s{sC}, s{sLAY}\ns_add_u32 s{sC}, s{sC}, {stbuf}")
    Sched.x_ctx = None
    for k0 in range(0, 20, 2):
        for m in range(2):
            for kb in (k0, k0 + 1):
                sc.load(A((m * 20 + kb) * 4, 4), 2, sX0 + m, kb * 1024, f"X{k0}", k0 * nt1 - 100 + m + (kb - k0) * 0.1)
    for m in range(2):
        for j in range(2):
            sc.load(V(VST + 4 * m + 2 * j, 2), vSTL, sC, m * 1024 + j * 128, "st", 8 * nt1 - 101, w=2)


def phi4(xs, rs, cs, ts, outs):
    L = [f"v_mul_f32 v{t}, v{x}, v{c}" for x, c, t in zip(xs, cs, ts)]
    L += [f"v_fma_f32 v{o}, v{x}, v{r}, s{sEPS}" for x, r, o in zip(xs, rs, outs)]
    L += [f"v_exp_f32 v{t}, v{t} clamp" for t in ts]
    L += [f"v_max_f32 v{o}, s{sEPS}, v{o}" for o in outs]
    L += [f"v_add_f32 v{o}, v{o}, v{t}" for o, t in zip(outs, ts)]
    return L


PAIRS = [(0, 2), (0, 3), (1, 2), (1, 3), (1, 4), (2, 3), (2, 4), (0, None), (1, None), (2, None)]


def red_mask(i, j):
    def valid(g, nn):
        kk = 4 * i + g
        if kk >= 10:
            return False
        if j is None:
            return nn == 0
        cv = 16 * j + nn - 40
        return 0 <= cv < 40 and cv // 20 == kk // 5
    return lanemask(valid)


def phase1(P, ch):
    sc = Sched(P, "p1")
    ACC, ACQ, VST, VRS, VSD, VC, VEXT, RST, CT, T, PF, QO = PV, PV + 40, PV + 64, PV + 72, PV + 74, PV + 76, PV + 78, PV + 86, PV + 94, PV + 102, PV + 126, PV + 146
    GD = ACC
    x_phase_loads(sc, P, XA, STA, VST, 5)
    P.e(f"s_cmp_eq_u32 s{sLAY}, 0\ns_cbranch_scc1 L_first")
    poll(P, f"s_lshl_b32 s{sB}, s{sFA}, 7\ns_add_u32 s{sB}, s{sB}, {F0 + LB}", "1", label="L_first:")
    sc.burst(2 * CFG["b1"])
    sc.dma(ch["p1"][8], 120)
    sc.dma(ch["p3"][0], 1000)
    for c in range(5):
        sc.dma(ch["p2"][c], 500 + c)
    steps = []
    for t0, nt in ((0, 5), (5, 3)):
        for kb in range(21):
            for t in range(t0, t0 + nt):
                def mf(w, kb=kb, t=t):
                    L = []
                    for m in range(2):
                        x = A((m * 20 + kb) * 4, 4) if kb < 20 else V(VEXT + 4 * m, 4)
                        d = V(ACC + (m * 5 + t) * 4, 4) if t < 5 else V(ACQ + (m * 3 + t - 5) * 4, 4)
                        cc = "0" if kb == 0 else d
                        L.append(f"{MF} {d}, {x}, {w}, {cc}" if t < 5 else f"{MF} {d}, {w}, {x}, {cc}")
                    return L
                st = dict(fr=divmod(len(steps), 20), mf=mf)
                if t == 0 and kb % 2 == 0 and kb < 20:
                    st["xw"] = [f"X{kb}"]
                if t == 0 and kb == 20:
                    st["aw"] = "ext"
                steps.append(st)
    sc.alu([Wait("vm", "st")], step=52)
    for m in range(2):
        sc.alu(stats_finish(VST, m, VRS + m, VSD + m, VEXT + 4 * m, T) + [f"v_mul_f32 v{VC+m}, {f32(LOG2E)}, v{VRS+m}"])
    sc.alu([Ins(f"ds_write_b32 v{vBW}, v{VRS+m} offset:{m*64}", "bw") for m in range(2)], event="p1:3")
    sc.mark("ext")
    sc.alu([Wait("lgkm", "bw")], step=88)
    sc.alu([Ins(f"ds_read_b128 {V(RST+4*m, 4)}, v{vBR} offset:{m*64}", "br") for m in range(2)])
    sc.alu([Wait("lgkm", "br")], step=94)
    sc.alu([f"v_mul_f32 v{CT+k}, {f32(LOG2E)}, v{RST+k}" for k in range(8)])
    first = True
    for t in range(5):
        for m in range(2):
            x = [ACC + (m * 5 + t) * 4 + r for r in range(4)]
            rs = [RST + 4 * m + r for r in range(4)]
            cs = [CT + 4 * m + r for r in range(4)]
            ts = [T + 4 * m + r for r in range(4)]
            L = []
            if t < 2:
                L += phi4(x, rs, cs, ts, x)
            elif t == 2:
                o = [T + 8 + 4 * m + r for r in range(4)]
                L += phi4(x, rs, cs, ts, o)
                L += [f"v_mul_f32 v{a}, v{a}, v{r}" for a, r in zip(x, rs)]
                L += [f"v_cndmask_b32 v{a}, v{a}, v{b}, s[{sM8}:{sM8+1}]" for a, b in zip(x, o)]
            else:
                L += [f"v_mul_f32 v{a}, v{a}, v{r}" for a, r in zip(x, rs)]
            L += [f"v_cvt_pk_bf16_f32 v{PF+4*t+2*m}, v{x[0]}, v{x[1]}", f"v_cvt_pk_bf16_f32 v{PF+4*t+2*m+1}, v{x[2]}, v{x[3]}"]
            sc.alu(L, step=106 if first else 0)
            first = False
    for n, (i, j) in enumerate(PAIRS):
        b = V(PF + 4 * j, 4) if j is not None else V(ONES, 4)
        sc.alu([f"{MF} {V(GD+4*n, 4)}, {V(PF+4*i, 4)}, {b}, 0"])
    for n0 in range(0, 10, 2):
        grp = []
        for n in (n0, n0 + 1):
            i, j = PAIRS[n]
            grp += I(f"s_mov_b64 exec, s[{sMASK+2*n}:{sMASK+2*n+1}]")
            if j is None:
                grp += I(f"ds_write_b128 v{vRW0}, {V(GD+4*n, 4)} offset:{640 + i*1344 + 320}", "gw")
            else:
                off = 640 + i * 1344 + (16 * j - 40) * 16 - (320 if i == 2 else 0)
                grp += I(f"ds_write_b128 v{vRW1 if i == 1 else vRW0}, {V(GD+4*n, 4)} offset:{off}", "gw")
        grp += I("s_mov_b64 exec, -1")
        sc.alu([grp])
    sc.alu([Wait("lgkm", "gw"), "s_barrier"])
    for q in range(4):
        sc.alu([Ins(f"ds_read_b32 v{T+4*q+w}, v{vRR} offset:{w*3360 + q*1024}", f"rr{q}") for w in range(4)])
    sc.alu([f"s_mul_i32 s{sC}, s{sCG}, 3360\ns_add_u32 s{sC}, s{sC}, s{sLAY}\ns_add_u32 s{sC}, s{sC}, {KVA}"])
    for q in range(4):
        a = T + 4 * q
        sc.alu([Wait("lgkm", f"rr{q}"), f"v_add_f32 v{a}, v{a}, v{a+1}\nv_add_f32 v{a+2}, v{a+2}, v{a+3}\nv_add_f32 v{a}, v{a}, v{a+2}",
                Ins(f"buffer_atomic_add_f32 v{a}, v{vATM if q == 3 else vAT}, s[4:7], s{sC} offen offset:{q*1024}", "out")])
    sc.run(steps, ch["p1"], CFG["g1"])
    print(f"  [p1] alu left {len(sc.aq)}", file=sys.stderr)
    sc.drain()
    P.e(f"s_mul_i32 s{sC}, s{sCG}, 1280\ns_add_u32 s{sC}, s{sC}, s{sX0}\ns_add_u32 s{sC}, s{sC}, {PQ - XA}")
    for m in range(2):
        q = QO + 6 * m
        for tq in range(3):
            x = [ACQ + (m * 3 + tq) * 4 + r for r in range(4)]
            P.add(phi4(x, [VRS + m] * 4, [VC + m] * 4, [T + 16 + 4 * (tq % 2) + r for r in range(4)], x))
            P.e(f"v_cvt_pk_bf16_f32 v{q+2*tq}, v{x[0]}, v{x[1]}\nv_cvt_pk_bf16_f32 v{q+2*tq+1}, v{x[2]}, v{x[3]}")
            if tq == 1:
                if m == 1:
                    P.e(f"s_add_u32 s{sC}, s{sC}, 20480")
                P.e(f"buffer_store_dwordx4 {V(q, 4)}, v2, s[4:7], s{sC} offen sc1", tag="out")
        P.e(f"buffer_store_dwordx2 {V(q+4, 2)}, v{vPQT}, s[4:7], s{sC} offen offset:1024 sc1", tag="out")
    handoff(P, sc, "out", f"s_lshl_b32 s{sA}, s{sFA}, 2\ns_add_u32 s{sA}, s{sA}, s{sLAY}\ns_add_u32 s{sA}, s{sA}, {F1}", vFG, "1")


def resid_epilogue(P, ACC, T, xbuf, stbuf, final=False):
    P.e(f"s_mul_i32 s{sC}, s{sMT}, 20480\ns_mul_i32 s{sA}, s{sCG8}, 2560\ns_add_u32 s{sC}, s{sC}, s{sA}\ns_add_u32 s{sC}, s{sC}, s{sLAY}\ns_add_u32 s{sC}, s{sC}, {xbuf}")
    P.e(f"s_lshl_b32 s{sB}, s{sMT}, 10\ns_lshl_b32 s{sA}, s{sCG8}, 7\ns_add_u32 s{sB}, s{sB}, s{sA}\ns_add_u32 s{sB}, s{sB}, s{sLAY}\ns_add_u32 s{sB}, s{sB}, {stbuf}")
    P.e(f"v_mov_b32 v{T}, 0\nv_mov_b32 v{T+1}, 0")
    for k0 in (0, 4, 8):
        ks = range(k0, min(k0 + 4, 10))
        for k in ks:
            P.e(f"v_lshlrev_b32 v{T+4+2*(k%4)}, 16, v{XR+k}\nv_and_b32 v{T+5+2*(k%4)}, 0xffff0000, v{XR+k}")
        for k in ks:
            P.e(f"v_pk_add_f32 {V(T+4+2*(k%4), 2)}, {V(T+4+2*(k%4), 2)}, {V(ACC+2*k, 2)}")
        for k in ks:
            P.e(f"v_cvt_pk_bf16_f32 v{XR+k}, v{T+4+2*(k%4)}, v{T+5+2*(k%4)}")
        if final:
            continue
        if k0 < 8:
            P.e(f"buffer_store_dwordx4 {V(XR+k0, 4)}, v2, s[4:7], s{sC} offen offset:{k0*256} sc1", tag="out")
        else:
            P.e(f"buffer_store_dwordx2 {V(XR+8, 2)}, v{vHALF}, s[4:7], s{sC} offen offset:2048 sc1", tag="out")
    if final:
        P.e(f"s_mul_i32 s{sA}, s{sMT}, 20480\ns_mul_i32 s{sB}, s{sCG8}, 160\ns_add_u32 s{sA}, s{sA}, s{sB}")
        P.e(f"buffer_store_dwordx4 {V(XR, 4)}, v{vO16}, s[8:11], s{sA} offen")
        P.e(f"buffer_store_dwordx4 {V(XR+4, 4)}, v{vO16}, s[8:11], s{sA} offen offset:64")
        P.e(f"buffer_store_dwordx2 {V(XR+8, 2)}, v{vO8}, s[8:11], s{sA} offen offset:128")
        return
    for k in range(10):
        P.e(f"v_dot2_f32_bf16 v{T}, v{XR+k}, v{ONES}, v{T}")
        P.e(f"v_dot2_f32_bf16 v{T+1}, v{XR+k}, v{XR+k}, v{T+1}")
    a, b = allreduce_g(T, T + 2), allreduce_g(T + 1, T + 3)
    for x, y in zip(a, b):
        P.e(x)
        P.e(y)
    P.e(f"buffer_store_dwordx2 {V(T, 2)}, v{vSTS}, s[4:7], s{sB} offen sc1", tag="out")


def wr_cluster(sf, F):
    return (f"s_lshr_b32 s{sA}, s{sf}, 4\ns_lshl_b32 s{sA}, s{sA}, 11\ns_and_b32 s{sB}, s{sf}, 15\ns_lshl_b32 s{sB}, s{sB}, 2\n"
            f"s_add_u32 s{sA}, s{sA}, s{sB}\ns_add_u32 s{sA}, s{sA}, s{sLAY}\ns_add_u32 s{sA}, s{sA}, {F}")


def rd_cluster(sf, F):
    return f"s_lshl_b32 s{sB}, s{sf}, 7\ns_add_u32 s{sB}, s{sB}, s{sLAY}\ns_add_u32 s{sB}, s{sB}, {F}"


def phase2(P, ch):
    sc = Sched(P, "p2")
    OR, ACC, DT, T = PV, PV + 80, PV + 100, PV + 132
    for r in range(4):
        P.e(f"v_mov_b32 v{DT+r}, 0")
    for k in range(10):
        P.e(f"ds_write_b128 v{vZF}, {V(DT, 4)} offset:{k*4096}", tag="z")
    P.e(f"s_add_u32 s{sX0}, s{sLAY}, {KVA}")
    P.e(f"s_mul_i32 s{sX1}, s{sMT}, 20480\ns_add_u32 s{sX1}, s{sX1}, s{sLAY}\ns_add_u32 s{sX1}, s{sX1}, {PQ}")
    P.wlg("z")
    poll(P, f"s_add_u32 s{sB}, s{sFG}, s{sLAY}\ns_add_u32 s{sB}, s{sB}, {F1}", "2", wide=True)
    for rr in range(16):
        if rr:
            P.e(f"s_add_u32 s{sX0}, s{sX0}, 3360")
        P.e(f"buffer_load_dwordx4 {V(OR+4*rr, 4)}, v{vKVL}, s[4:7], s{sX0} offen sc1", tag=f"kv{rr}")
    Sched.x_ctx = None
    for h in range(32):
        sc.load(A(4 * h, 4), vPQW, sX1, (5 * h // 2) * 256, f"pq{h}", h)
    sc.burst(8)
    for rr in range(16):
        P.wvm(f"kv{rr}")
        a = OR + 4 * rr
        P.e(f"v_cvt_pk_bf16_f32 v{a}, v{a}, v{a+1}\nv_cvt_pk_bf16_f32 v{a+1}, v{a+2}, v{a+3}")
        P.e(f"ds_write_b64 v{vKVW}, {V(a, 2)} offset:{rr*2560}", tag="kw")
        if rr % 2:
            sc.burst(1)
    P.wlg("kw")
    P.e("s_barrier")
    stamp(P)
    for c in range(1, 8):
        sc.dma(ch["p3"][c], 1000 + c)
    steps = []
    nw = 0

    def wstep(n):
        kb, t = divmod(n, 5)

        def mf(w):
            d = V(ACC + 4 * t, 4)
            return [f"{MF} {d}, {w}, {V(OR+4*kb, 4)}, {'0' if kb == 0 else d}"]
        st = dict(fr=divmod(n, 20), mf=mf)
        if t == 0:
            st["aw"] = f"o{(8*kb+7)//5}"
        return st

    for h in range(32):
        d = DT + 8 * (h % 4)
        for j in range(2):
            st = dict(rd=lambda dst, h=h, j=j: f"ds_read_b128 {dst}, v{vE0+j} offset:{h*1280}",
                      mf=lambda w, h=h, j=j, d=d: [f"{MF} {V(d+4*j, 4)}, {w}, {A(4*h, 4)}, {V(CE, 4) if j else '0'}"])
            if j == 0:
                st["xw"] = [f"pq{h}"]
                if h >= 3:
                    st["aw"] = f"o{h-3}"
            steps.append(st)
        L = [f"v_rcp_f32 v{d+5}, v{d+5}"] + [f"v_mul_f32 v{d+i}, v{d+i}, v{d+5}" for i in range(5)]
        n0 = 5 * h
        if h % 2 == 0:
            L += [f"v_cvt_pk_bf16_f32 v{OR+n0//2}, v{d}, v{d+1}", f"v_cvt_pk_bf16_f32 v{OR+n0//2+1}, v{d+2}, v{d+3}"]
        else:
            dp = DT + 8 * ((h - 1) % 4)
            L += [f"v_cvt_pk_bf16_f32 v{OR+n0//2}, v{dp+4}, v{d}", f"v_cvt_pk_bf16_f32 v{OR+n0//2+1}, v{d+1}, v{d+2}",
                  f"v_cvt_pk_bf16_f32 v{OR+n0//2+2}, v{d+3}, v{d+4}"]
        sc.alu(L, step=len(steps) + 1)
        sc.mark(f"o{h}")
        lim = min(100, int(round((h - 1) * 100 / 32)))
        while nw < lim and (8 * (nw // 5) + 7) // 5 <= h - 2:
            steps.append(wstep(nw))
            nw += 1
    while nw < 100:
        steps.append(wstep(nw))
        nw += 1
    sc.run(steps, ch["p2"], 2, extra=5, nobar=(0, 1))
    sc.drain()
    resid_epilogue(P, ACC, T, XB, STB)
    handoff(P, sc, "out", wr_cluster(sFB, F2), vFC, "2")


def phase3(P, ch):
    sc = Sched(P, "p3")
    ACC, VST, VRS, VSD, VC, VEXT, T, HO = PV, PV + 112, PV + 120, PV + 122, PV + 124, PV + 126, PV + 134, PV + 142
    x_phase_loads(sc, P, XB, STB, VST, 6)
    poll(P, rd_cluster(sFA, F2), "3")
    sc.burst(2 * CFG["b3"])
    for c in range(8, 15):
        sc.dma(ch["p3"][c], 20 * c - 60)
    for c in range(8):
        sc.dma(ch["p4"][c], 1000 + c)
    steps = []
    gend = {}
    for p0, npair in ((0, 3), (3, 2), (5, 1), (6, 1)):
        for kb in range(21):
            for t in range(2 * p0, 2 * (p0 + npair)):
                def mf(w, kb=kb, t=t):
                    L = []
                    for m in range(2):
                        x = A((m * 20 + kb) * 4, 4) if kb < 20 else V(VEXT + 4 * m, 4)
                        d = V(ACC + m * 56 + t * 4, 4)
                        L.append(f"{MF} {d}, {w}, {x}, {'0' if kb == 0 else d}")
                    return L
                st = dict(fr=divmod(len(steps), 20), mf=mf)
                if t == 0 and kb % 2 == 0 and kb < 20:
                    st["xw"] = [f"X{kb}"]
                if t == 0 and kb == 20:
                    st["aw"] = "ext"
                steps.append(st)
        for p in range(p0, p0 + npair):
            gend[p] = len(steps)
    sc.alu([Wait("vm", "st")], step=64)
    for m in range(2):
        sc.alu(stats_finish(VST, m, VRS + m, VSD + m, VEXT + 4 * m, T) + [f"v_mul_f32 v{VC+m}, {f32(-LOG2E)}, v{VRS+m}"])
    sc.mark("ext")
    sc.alu([f"s_mul_i32 s{sA}, s{sCG}, 14\ns_mul_i32 s{sB}, s{sCG}, 12\ns_add_u32 s{sB}, s{sB}, 24\ns_min_u32 s{sA}, s{sA}, s{sB}\ns_lshl_b32 s{sA}, s{sA}, 8",
            f"s_mul_i32 s{sC}, s{sMT0}, 55296\ns_add_u32 s{sC}, s{sC}, s{sA}\ns_add_u32 s{sC}, s{sC}, s{sLAY}\ns_add_u32 s{sC}, s{sC}, {HB}\ns_add_u32 s{sB}, s{sC}, 55296"])

    def epi(p, m):
        g = ACC + m * 56 + 8 * p
        u = g + 4
        L = [f"v_mul_f32 v{g+r}, v{g+r}, v{VC+m}" for r in range(4)]
        L += [f"v_exp_f32 v{g+r}, v{g+r}" for r in range(4)]
        L += [f"v_fma_f32 v{g+r}, v{g+r}, v{VSD+m}, v{VSD+m}" for r in range(4)]
        L += [f"v_rcp_f32 v{g+r}, v{g+r}" for r in range(4)]
        L += [f"v_mul_f32 v{u+r}, v{u+r}, v{g+r}" for r in range(4)]
        o = HO + m * 14 + 2 * p
        L += [f"v_cvt_pk_bf16_f32 v{o}, v{u}, v{u+1}", f"v_cvt_pk_bf16_f32 v{o+1}, v{u+2}, v{u+3}"]
        L = [Ins(x) for x in L]
        so = sB if m else sC
        if p % 2 == 1:
            L.append(Ins(f"buffer_store_dwordx4 {V(o-2, 4)}, v2, s[4:7], s{so} offen offset:{(p//2)*1024} sc1", "out"))
        if p == 6:
            L.append(Ins(f"buffer_store_dwordx2 {V(o, 2)}, v{vH3}, s[4:7], s{so} offen offset:3072 sc1", "out"))
        return L

    for p in range(6):
        for m in range(2):
            sc.alu(epi(p, m), step=gend[p] + 1)
    sc.run(steps, ch["p3"], CFG["g3"])
    print(f"  [p3] alu left {len(sc.aq)}", file=sys.stderr)
    sc.drain()
    a, b = epi(6, 0), epi(6, 1)
    for k in range(0, 20, 4):
        P.add(a[k:k + 4] + b[k:k + 4])
    P.add(a[20:] + b[20:])
    handoff(P, sc, "out", wr_cluster(sFA, F3), vFC, "3")


def phase4(P, ch):
    sc = Sched(P, "p4")
    ACC, T = PV, PV + 20
    P.e(f"s_mul_i32 s{sX0}, s{sMT}, 55296\ns_add_u32 s{sX0}, s{sX0}, s{sLAY}\ns_add_u32 s{sX0}, s{sX0}, {HB}")
    Sched.x_ctx = None
    for kb in range(54):
        sc.load(A(kb * 4, 4), 2, sX0, kb * 1024, f"X{kb}", kb * 5 - 50)
    poll(P, rd_cluster(sFB, F3), "4")
    sc.burst(CFG["b4"])
    for c in range(8, 14):
        sc.dma(ch["p4"][c], 20 * c - 60)
    for c in range(8):
        sc.dma(ch["p1"][c], 1000 + c)
    steps = []
    for kb in range(54):
        for t in range(5):
            def mf(w, kb=kb, t=t):
                d = V(ACC + 4 * t, 4)
                return [f"{MF} {d}, {w}, {A(kb*4, 4)}, {'0' if kb == 0 else d}"]
            st = dict(fr=divmod(len(steps), 20), mf=mf)
            if t == 0:
                st["xw"] = [f"X{kb}"]
            steps.append(st)
    sc.run(steps, ch["p4"], CFG["g4"])
    P.e(f"s_cmp_lg_u32 s{sLAY}, 0\ns_cbranch_scc1 L_final")
    resid_epilogue(P, ACC, T, XA + LB, STA + LB)
    handoff(P, sc, "out", wr_cluster(sFB, F0 + LB), vFC, "4")
    stamp_flush(P)
    P.e(f"s_mov_b32 s{sLAY}, {LB}\ns_branch L_layer\nL_final:")
    resid_epilogue(P, ACC, T, 0, 0, final=True)
    P.e("s_waitcnt vmcnt(0)")
    stamp_flush(P)
    P.e("s_endpgm")


def gen_main():
    ch = mk_chunks()
    _nstamp[0] = 0
    Q = Prog()
    Q.e("s_cmp_ge_u32 s2, 256\ns_cbranch_scc1 L_exit")
    stamp(Q)
    Q.e("s_load_dwordx2 s[4:5], s[0:1], 72", tag="ka")
    Q.e("s_load_dwordx2 s[8:9], s[0:1], 56", tag="ka")
    Q.e("v_lshrrev_b32 v7, 6, v0\nv_and_b32 v1, 63, v0\nv_readfirstlane_b32 s12, v7\nv_lshlrev_b32 v2, 4, v1\nv_lshrrev_b32 v5, 4, v1\nv_and_b32 v6, 15, v1")
    Q.e(f"s_mov_b32 s6, {WS_USED}\ns_mov_b32 s7, 0x20000\ns_mov_b32 s10, {XSZ}\ns_mov_b32 s11, 0x20000")
    Q.e(f"s_and_b32 s{sA}, s2, 7\ns_lshr_b32 s{sB}, s2, 3\ns_and_b32 s{sC}, s{sB}, 3\ns_lshr_b32 s{sCG8}, s{sB}, 2")
    Q.e(f"s_lshr_b32 s{sRB}, s{sA}, 1\ns_lshl_b32 s{sRB}, s{sRB}, 2\ns_add_u32 s{sRB}, s{sRB}, s{sC}")
    Q.e(f"s_and_b32 s{sCG}, s{sA}, 1\ns_lshl_b32 s{sCG}, s{sCG}, 3\ns_add_u32 s{sCG}, s{sCG}, s{sCG8}")
    Q.e(f"s_mul_i32 s{sW5}, s{sWAVE}, 5120\ns_mul_i32 s{sW1}, s{sCG}, {168*1024}\ns_add_u32 s{sW1}, s{sW1}, s{sW5}")
    Q.wlg("ka")
    Q.e("s_and_b32 s5, s5, 0xffff\ns_and_b32 s9, s9, 0xffff")
    sc = Sched(Q, "pro")
    Sched.dma_ctx = None
    order = [0, 1, 2, 3, 4, 7, 5, 6]
    for n, c in enumerate(order):
        ev, ch["p1"][c].event = ch["p1"][c].event, None
        sc.dma(ch["p1"][c], n)
        ch["p1"][c].event = ev
    sc.burst(40)
    Q.e(f"s_lshl_b32 s{sA}, s{sA}, 2\ns_add_u32 s{sA}, s{sA}, s{sC}")
    Q.e(f"s_lshl_b32 s{sMT}, s{sA}, 2\ns_add_u32 s{sMT}, s{sMT}, s{sWAVE}")
    Q.e(f"s_lshl_b32 s{sFB}, s{sA}, 3\ns_add_u32 s{sFB}, s{sFB}, s{sCG8}")
    Q.e(f"s_lshl_b32 s{sFA}, s{sRB}, 4\ns_add_u32 s{sFA}, s{sFA}, s{sCG}")
    Q.e(f"s_lshl_b32 s{sMT0}, s{sRB}, 3\ns_lshl_b32 s{sB}, s{sWAVE}, 1\ns_add_u32 s{sMT0}, s{sMT0}, s{sB}")
    Q.e(f"s_and_b32 s{sFG}, s2, 15\ns_lshl_b32 s{sFG}, s{sFG}, 10\ns_mov_b32 s{sEPS}, {f32(1e-6)}\ns_mov_b32 s{sLAY}, 0")
    for r, base, n, cg in ((sW2, WF2, 100, sCG8), (sW3, WF3, 294, sCG), (sW4, WF4, 270, sCG8)):
        Q.e(f"s_mul_i32 s{r}, s{cg}, {n*1024}\ns_add_u32 s{r}, s{r}, {base}\ns_add_u32 s{r}, s{r}, s{sW5}")
    Q.e("v_add_u32 v3, 0x10000, v2\nv_add_u32 v4, 0x20000, v2")
    Q.e(f"v_mov_b32 v{vT}, {OOB}")
    Q.e(f"v_lshlrev_b32 v{vSTL}, 8, v5\nv_lshl_add_u32 v{vSTL}, v6, 3, v{vSTL}")
    Q.e(f"v_lshrrev_b32 v{vHALF}, 1, v5\nv_lshlrev_b32 v{vHALF}, 8, v{vHALF}\nv_lshl_add_u32 v{vHALF}, v6, 4, v{vHALF}")
    Q.e(f"v_and_b32 v{vPQT}, 1, v5\nv_lshl_add_u32 v{vHALF}, v{vPQT}, 3, v{vHALF}")
    Q.e(f"s_mul_i32 s{sC}, s{sMT}, 20480\ns_mul_i32 s{sB}, s{sCG8}, 2560\ns_add_u32 s{sC}, s{sC}, s{sB}\ns_add_u32 s{sC}, s{sC}, {XA}")
    Q.e(f"buffer_load_dwordx4 {V(XR, 4)}, v2, s[4:7], s{sC} offen\nbuffer_load_dwordx4 {V(XR+4, 4)}, v2, s[4:7], s{sC} offen offset:1024")
    Q.e(f"buffer_load_dwordx2 {V(XR+8, 2)}, v{vHALF}, s[4:7], s{sC} offen offset:2048")
    Q.e(f"v_cmp_gt_u32 vcc, 32, v1\nv_cndmask_b32 v{vPQT}, v{vT}, v{vHALF}, vcc")
    Q.e(f"v_cmp_gt_u32 vcc, 16, v1\nv_lshlrev_b32 v{vSTS}, 3, v6\nv_cndmask_b32 v{vSTS}, v{vT}, v{vSTS}, vcc")
    Q.e(f"v_lshlrev_b32 v{vFC}, 7, v1\nv_cndmask_b32 v{vFC}, v{vT}, v{vFC}, vcc\nv_lshlrev_b32 v{vFG}, 10, v1\nv_cndmask_b32 v{vFG}, v{vT}, v{vFG}, vcc")
    Q.e(f"v_lshlrev_b32 v{vPOLL}, 2, v6\nv_mov_b32 v{vONE}, 1")
    Q.e(f"v_cmp_gt_u32 vcc, 48, v1\nv_cndmask_b32 v{vPQW}, v{vT}, v2, vcc")
    Q.e(f"s_cmp_lt_u32 s{sCG}, 12\ns_cselect_b32 s{sB}, 0, {OOB}\nv_add_u32 v{vH3}, s{sB}, v{vHALF}")
    Q.e(f"v_mul_u32_u24 v{vO8}, 1280, v6\nv_lshl_add_u32 v{vO16}, v5, 4, v{vO8}\nv_lshl_add_u32 v{vO8}, v5, 3, v{vO8}")
    Q.e(f"s_mul_i32 s{sB}, s{sWAVE}, 3360\ns_add_u32 s{sB}, s{sB}, {RED - 640}")
    Q.e(f"v_mul_u32_u24 v{vRW0}, 336, v5\nv_lshl_add_u32 v{vRW0}, v6, 4, v{vRW0}\nv_add_u32 v{vRW0}, s{sB}, v{vRW0}")
    Q.e(f"v_min_u32 v{vRW1}, 1, v5\nv_mul_u32_u24 v{vRW1}, 320, v{vRW1}\nv_sub_u32 v{vRW1}, v{vRW0}, v{vRW1}")
    Q.e(f"v_lshlrev_b32 v{vAT}, 2, v0\nv_add_u32 v{vRR}, {RED}, v{vAT}\nv_cmp_gt_u32 vcc, 72, v0\nv_cndmask_b32 v{vATM}, v{vT}, v{vAT}, vcc")
    Q.e(f"s_lshl_b32 s{sB}, s{sWAVE}, 7\ns_add_u32 s{sB}, s{sB}, {BNC}\nv_lshl_add_u32 v{vBW}, v6, 2, s{sB}\nv_lshl_add_u32 v{vBR}, v5, 4, s{sB}")
    mk = lanemask(lambda g, i: i < 8)
    Q.e(f"s_mov_b32 s{sM8}, 0x{mk & 0xffffffff:08x}\ns_mov_b32 s{sM8+1}, 0x{mk >> 32:08x}")
    for n, (i, j) in enumerate(PAIRS):
        mk = red_mask(i, j)
        Q.e(f"s_mov_b32 s{sMASK+2*n}, 0x{mk & 0xffffffff:08x}\ns_mov_b32 s{sMASK+2*n+1}, 0x{mk >> 32:08x}")
    a, b, c, d, e = PV, PV + 1, PV + 2, PV + 3, PV + 4
    Q.e(f"s_lshr_b32 s{sA}, s{sWAVE}, 1\ns_and_b32 s{sB}, s{sWAVE}, 1\ns_lshl_b32 s{sB}, s{sB}, 6\nv_add_u32 v{a}, s{sB}, v1")
    Q.e(f"v_mul_u32_u24 v{b}, 3121, v{a}\nv_lshrrev_b32 v{b}, 16, v{b}\nv_mul_u32_u24 v{c}, 21, v{b}\nv_sub_u32 v{c}, v{a}, v{c}")
    Q.e(f"s_mul_i32 s{sB}, s{sA}, 1680\nv_lshl_add_u32 v{vKVL}, v{a}, 4, s{sB}")
    Q.e(f"v_add_u32 v{b}, s{sA}, v{b}\nv_lshrrev_b32 v{d}, 1, v{b}\nv_and_b32 v{b}, 1, v{b}")
    Q.e(f"v_lshlrev_b32 v{e}, 8, v{d}\nv_lshlrev_b32 v{d}, 7, v{d}\nv_add_u32 v{d}, 512, v{d}\nv_cmp_gt_u32 vcc, 16, v{c}\nv_cndmask_b32 v{d}, v{d}, v{e}, vcc")
    Q.e(f"v_lshl_add_u32 v{d}, v{c}, 4, v{d}\nv_lshl_add_u32 v{d}, v{b}, 3, v{d}")
    Q.e(f"v_cmp_gt_u32 vcc, 105, v{a}\nv_mov_b32 v{e}, 1152\nv_cndmask_b32 v{d}, v{e}, v{d}, vcc\nv_cndmask_b32 v{vKVL}, v{vT}, v{vKVL}, vcc")
    Q.e(f"s_mul_i32 s{sB}, s{sA}, 1280\ns_add_u32 s{sB}, s{sB}, {KVT}\nv_add_u32 v{vKVW}, s{sB}, v{d}")
    Q.e(f"v_lshlrev_b32 v{vZF}, 4, v0\nv_add_u32 v{vZF}, {KVT}, v{vZF}")
    Q.e(f"v_and_b32 v{c}, 7, v6\nv_lshlrev_b32 v{c}, 4, v{c}\nv_add_u32 v{c}, 1152, v{c}")
    Q.e(f"v_and_b32 v{b}, 3, v6\nv_lshrrev_b32 v{d}, 2, v6\nv_cmp_eq_u32 vcc, 0, v{b}\nv_cndmask_b32 v{b}, 4, v{d}, vcc")
    Q.e(f"v_lshlrev_b32 v{b}, 4, v{b}\nv_lshl_add_u32 v{b}, v5, 7, v{b}\nv_add_u32 v{b}, 768, v{b}")
    Q.e(f"v_cmp_eq_u32 vcc, 3, v5\nv_cndmask_b32 v{b}, v{b}, v{c}, vcc\nv_add_u32 v{vE1}, {KVT}, v{b}")
    Q.e(f"v_cndmask_b32 v{b}, v2, v{c}, vcc\nv_add_u32 v{vE0}, {KVT}, v{b}")
    Q.e(f"v_mov_b32 v{CE}, 0\nv_mov_b32 v{CE+1}, s{sEPS}\nv_mov_b32 v{CE+2}, 0\nv_mov_b32 v{CE+3}, 0")
    for r in range(4):
        Q.e(f"v_mov_b32 v{ONES+r}, 0x3f803f80")
    P = Prog()
    P.e(".p2align 6\nL_layer:")
    for c in order:
        for i in range(5):
            P.add(Virtual(ch["p1"][c].tag))
    Sched.dma_ctx = None
    phase1(P, ch)
    phase2(P, ch)
    phase3(P, ch)
    phase4(P, ch)
    return Q, P


K0ST = ""


def k0_prologue(P, nwg):
    P.e(f"s_cmp_ge_u32 s2, {nwg}\ns_cbranch_scc1 L_exit")
    if STAMPS:
        P.raw(f"{STAMP_INS} s[70:71]")
    P.e("s_load_dwordx2 s[4:5], s[0:1], 72", tag="ka")
    P.e("v_lshrrev_b32 v7, 6, v0\nv_and_b32 v1, 63, v0\nv_readfirstlane_b32 s12, v7\nv_lshlrev_b32 v2, 4, v1\nv_lshrrev_b32 v5, 4, v1\nv_and_b32 v6, 15, v1")
    P.e(f"s_mov_b32 s6, {WS_USED}\ns_mov_b32 s7, 0x20000")


def k0_end(P):
    if STAMPS:
        P.e(f"s_waitcnt vmcnt(0)\n{STAMP_INS} s[72:73]\ns_mov_b64 exec, -1\ns_lshl_b32 s90, s2, 7\ns_add_u32 s90, s90, {STAMP}")
        P.e("s_cmp_lg_u32 s12, 0\ns_cselect_b32 s91, 0x40000000, 0\nv_mov_b32 v9, s91\ns_waitcnt lgkmcnt(0)")
        P.e("v_mov_b32 v10, s70\nv_mov_b32 v11, s71\nv_mov_b32 v12, s72\nv_mov_b32 v13, s73\nbuffer_store_dwordx4 v[10:13], v9, s[4:7], s90 offen")
    P.e("s_endpgm")


K0_LDS = 40 * 1024
NJ1, NJ3, NJB, NJC = 64, 128, 74, 64


def gen_k0():
    texts = []
    mx = {"v": 0, "s": 0}
    P = Prog()
    k0_prologue(P, NJ1 + NJ3 + NJB + NJC)
    P.e("s_load_dwordx4 s[52:55], s[0:1], 0", tag="ka")
    P.e("s_load_dwordx2 s[56:57], s[0:1], 16", tag="ka")
    P.e("s_load_dwordx4 s[60:63], s[0:1], 32", tag="ka")
    P.e("s_load_dwordx2 s[58:59], s[0:1], 48", tag="ka")
    P.e("s_mov_b32 s11, 0x20000")
    P.e("v_lshrrev_b32 v7, 2, v6\nv_and_b32 v8, 3, v6")
    P.e("v_and_b32 v9, 1, v5\nv_lshl_add_u32 v9, v9, 2, v7\nv_lshlrev_b32 v9, 1, v9")
    P.e("v_lshl_add_u32 v10, v5, 3, v7\nv_lshlrev_b32 v10, 8, v10")
    P.e("s_lshr_b32 s17, s12, 1\ns_lshl_b32 s17, s17, 3\nv_lshl_add_u32 v11, v5, 1, s17\nv_xor_b32 v11, v11, v6")
    P.wlg("ka")
    P.e("s_and_b32 s5, s5, 0xffff")
    P.e(f"s_cmp_lt_u32 s2, {NJ1 + NJ3}\ns_cbranch_scc1 L_k0_A")
    P.e(f"s_cmp_lt_u32 s2, {NJ1 + NJ3 + NJB}\ns_cbranch_scc1 L_k0_B")
    P.e("s_branch L_k0_C")
    texts.append(P)

    P = Prog()
    P.e("L_k0_A:")
    P.e(f"s_cmp_lt_u32 s2, {NJ1}\ns_cbranch_scc0 L_k0_A3")
    P.e("s_lshr_b32 s14, s2, 2\ns_and_b32 s15, s2, 3")
    P.e(f"s_mov_b32 s8, s54\ns_and_b32 s9, s55, 0xffff\ns_mov_b32 s10, {640*1920*2}\ns_mov_b32 s20, 3840")
    P.e("v_min_u32 v12, 14, v11\nv_mul_u32_u24 v13, 52, v12\nv_lshrrev_b32 v13, 8, v13")
    P.e("v_mul_u32_u24 v13, 1200, v13\nv_lshl_add_u32 v12, v12, 4, v13")
    P.e("s_mul_i32 s21, s14, 80")
    P.e("s_lshl_b32 s22, s12, 5\ns_add_u32 s22, s22, 80\ns_mov_b32 s23, 8\ns_mov_b32 s24, 3")
    P.e("s_mov_b32 s25, 208\ns_mov_b32 s26, 8\ns_mov_b32 s27, 3")
    P.e("s_cmp_eq_u32 s12, 1\ns_cselect_b32 s25, 0, s25\ns_cselect_b32 s26, 16, s26")
    P.e("s_cmp_eq_u32 s12, 2\ns_cselect_b32 s25, 8, s25\ns_cselect_b32 s26, 16, s26")
    P.e("s_cmp_eq_u32 s12, 3\ns_cselect_b32 s25, 64, s25\ns_cselect_b32 s27, 1, s27")
    P.e(f"s_mul_i32 s28, s14, {21*8*1024}\ns_add_u32 s28, s28, {WF1}\ns_lshl_b32 s17, s12, 10\ns_add_u32 s28, s28, s17")
    P.e(f"s_cmp_eq_u32 s12, 0\ns_mov_b32 s17, {104*1024}\ns_mov_b32 s36, 3072\ns_cselect_b32 s17, 4096, s17\ns_cselect_b32 s36, 5120, s36\ns_add_u32 s29, s28, s17\ns_mov_b32 s30, 5120")
    P.e("s_branch L_k0_Ac")
    P.e("L_k0_A3:")
    P.e(f"s_sub_u32 s16, s2, {NJ1}\ns_and_b32 s18, s16, 1\ns_lshr_b32 s15, s16, 1\ns_and_b32 s15, s15, 3\ns_lshr_b32 s14, s16, 3")
    P.e("s_cmp_eq_u32 s18, 0\ns_cselect_b32 s8, s60, s62\ns_cselect_b32 s9, s61, s63\ns_and_b32 s9, s9, 0xffff")
    P.e(f"s_mov_b32 s10, {640*1728*2}\ns_mov_b32 s20, 3456")
    P.e("s_cmp_lt_u32 s14, 12\ns_cselect_b32 s17, 13, 11")
    P.e("v_min_u32 v12, s17, v11\nv_lshlrev_b32 v12, 4, v12")
    P.e("s_mul_i32 s21, s14, 224\ns_mul_i32 s17, s14, 192\ns_add_u32 s17, s17, 384\ns_min_u32 s21, s21, s17")
    P.e("s_lshr_b32 s22, s12, 1\ns_lshl_b32 s22, s22, 6\ns_and_b32 s17, s12, 1\ns_lshl_b32 s17, s17, 3\ns_add_u32 s22, s22, s17")
    P.e("s_mov_b32 s23, 16\ns_mov_b32 s24, 3\ns_mov_b32 s27, 3")
    P.e("s_add_u32 s25, s17, 128\ns_cmp_lt_u32 s12, 2\ns_cselect_b32 s25, s25, 192\ns_cselect_b32 s26, 16, 8")
    P.e(f"s_mul_i32 s28, s14, {21*14*1024}\ns_add_u32 s28, s28, {WF3}\ns_lshl_b32 s17, s18, 10\ns_add_u32 s28, s28, s17")
    P.e(f"s_cmp_eq_u32 s12, 1\ns_mov_b32 s17, {252*1024}\ns_cselect_b32 s17, {210*1024}, s17\ns_cmp_eq_u32 s12, 0\ns_cselect_b32 s17, {128*1024}, s17\ns_mov_b32 s36, 2048\ns_cselect_b32 s36, 4096, s36\ns_add_u32 s29, s28, s17")
    P.e(f"s_lshl_b32 s17, s12, 11\ns_cmp_eq_u32 s12, 3\ns_cselect_b32 s17, {126*1024}, s17\ns_mov_b32 s30, 6144\ns_cselect_b32 s30, 4096, s30\ns_add_u32 s28, s28, s17")
    P.e("L_k0_Ac:")
    P.e("s_lshl_b32 s17, s12, 2\nv_add_u32 v13, s17, v5\nv_mul_lo_u32 v13, v13, s20\nv_add_u32 v12, v12, v13")
    P.e("s_mul_i32 s31, s15, 160\ns_mul_i32 s31, s31, s20\ns_add_u32 s31, s31, s21\ns_lshl_b32 s32, s20, 4")
    P.e("s_lshl_b32 s33, s12, 10")
    for k in range(10):
        P.e(f"s_add_u32 m0, s33, {k*4096}")
        if k:
            P.e("s_add_u32 s31, s31, s32")
        P.e("buffer_load_dwordx4 v12, s[8:11], s31 offen lds", tag="d")
    for tt, (sa, sb, sm) in enumerate(((22, 23, 24), (25, 26, 27))):
        a = 14 + tt
        P.e(f"v_min_u32 v{a}, s{sm}, v8\nv_mul_lo_u32 v{a}, v{a}, s{sb}\nv_add_u32 v{a}, s{sa}, v{a}")
        P.e(f"v_lshrrev_b32 v16, 4, v{a}\nv_xor_b32 v16, v16, v9\nv_and_b32 v{a}, 8, v{a}")
        P.e(f"v_lshl_add_u32 v{a}, v16, 4, v{a}\nv_add_u32 v{a}, v{a}, v10")
    for r in range(4):
        P.e(f"v_mov_b32 v{20+r}, 0x3f803f80")
    P.e("s_mul_i32 s18, s15, 5\ns_mul_i32 s17, s18, s30\ns_add_u32 s34, s28, s17\ns_mul_i32 s17, s18, s36\ns_add_u32 s35, s29, s17")
    P.wvm("d")
    P.e("s_barrier")
    for tt in range(2):
        for k in range(5):
            d = 32 + (tt * 5 + k) * 4
            P.e(f"ds_read_b64_tr_b16 {V(d, 2)}, v{14+tt} offset:{k*8192}", tag=f"t{tt}{k}")
            P.e(f"ds_read_b64_tr_b16 {V(d+2, 2)}, v{14+tt} offset:{k*8192+1024}", tag=f"t{tt}{k}")
            if tt == 1 and k == 1:
                P.wlg("t04")
    for tt in range(2):
        for k in range(5):
            d = 32 + (tt * 5 + k) * 4
            P.wlg(f"t{tt}{k}")
            P.e(f"buffer_store_dwordx4 {V(d, 4)}, v2, s[4:7], s{34+tt} offen{K0ST}")
            P.e(f"s_add_u32 s{34+tt}, s{34+tt}, s{36 if tt else 30}")
            c = V(24 + 4 * tt, 4)
            P.e(f"{MF} {c}, {V(20, 4)}, {V(d, 4)}, {'0' if k == 0 else c}")
    P.e("s_lshl_b32 s18, s15, 8\ns_mul_i32 s17, s30, 20\ns_add_u32 s17, s17, s18\ns_add_u32 s28, s28, s17\ns_mul_i32 s17, s36, 20\ns_add_u32 s17, s17, s18\ns_add_u32 s29, s29, s17")
    set_exec(P, 0xffff)
    for tt in range(2):
        c = 24 + 4 * tt
        e = 72 + 4 * tt
        P.e(f"v_cvt_pk_bf16_f32 v{e}, v{c}, v{c}\nv_and_b32 v16, 0xffff0000, v{e}\nv_sub_f32 v17, v{c}, v16")
        P.e(f"v_cvt_pk_bf16_f32 v{e+1}, v17, v17\nv_and_b32 v16, 0xffff0000, v{e+1}\nv_sub_f32 v17, v17, v16")
        P.e(f"v_cvt_pk_bf16_f32 v{e+2}, v17, v{c}\nv_mov_b32 v{e+3}, 0")
        P.e(f"buffer_store_dwordx4 {V(e, 4)}, v2, s[4:7], s{28+tt} offen{K0ST}")
    k0_end(P)
    texts.append(P)

    P = Prog()
    P.e("L_k0_B:")
    P.e(f"s_sub_u32 s16, s2, {NJ1 + NJ3}")
    P.e("s_cmp_lt_u32 s16, 20\ns_cbranch_scc1 L_k0_B2")
    P.e(f"s_sub_u32 s16, s16, 20\ns_mov_b32 s8, s58\ns_and_b32 s9, s59, 0xffff\ns_mov_b32 s10, {1728*640*2}")
    P.e(f"s_mov_b32 s20, {54*5*1024}\ns_mov_b32 s21, {WF4}")
    P.e("s_lshl_b32 s17, s16, 5\ns_lshl_b32 s18, s12, 2\ns_add_u32 s17, s17, s18\nv_add_u32 v12, s17, v5\nv_add_u32 v13, 16, v12")
    P.e("s_branch L_k0_Bc")
    P.e("L_k0_B2:")
    P.e(f"s_mov_b32 s8, s56\ns_and_b32 s9, s57, 0xffff\ns_mov_b32 s10, {640*640*2}")
    P.e(f"s_mov_b32 s20, {20*5*1024}\ns_mov_b32 s21, {WF2}")
    P.e("s_lshl_b32 s18, s12, 2\nv_add_u32 v14, s18, v5\nv_and_b32 v15, 7, v14\nv_lshrrev_b32 v14, 3, v14")
    P.e("s_lshl_b32 s17, s16, 3\nv_add_u32 v15, s17, v15\nv_mul_u32_u24 v16, 205, v15\nv_lshrrev_b32 v16, 10, v16")
    P.e("v_mul_u32_u24 v17, 5, v16\nv_sub_u32 v17, v15, v17\nv_mul_u32_u24 v16, 20, v16")
    P.e("v_cmp_gt_u32 vcc, 4, v17")
    for k in range(2):
        if k:
            P.e("v_add_u32 v14, 2, v14")
        P.e(f"v_lshl_add_u32 v18, v14, 2, v17\nv_add_u32 v19, 16, v14\nv_cndmask_b32 v18, v19, v18, vcc\nv_add_u32 v{12+k}, v16, v18")
    P.e("L_k0_Bc:")
    for k in range(2):
        P.e(f"v_mul_u32_u24 v{12+k}, 1280, v{12+k}\nv_lshl_add_u32 v{12+k}, v11, 4, v{12+k}")
    P.e("s_lshl_b32 s33, s12, 10")
    for pn in range(5):
        for k in range(2):
            P.e(f"s_add_u32 m0, s33, {pn*8192 + k*4096}\ns_mov_b32 s31, {pn*256}")
            P.e(f"buffer_load_dwordx4 v{12+k}, s[8:11], s31 offen lds", tag="d")
    P.e("s_mul_i32 s22, s12, 320")
    P.e("v_lshlrev_b32 v14, 4, v8\nv_add_u32 v14, s22, v14\nv_lshlrev_b32 v15, 3, v8\nv_add_u32 v15, s22, v15")
    for cq in range(2):
        for t in range(5):
            a = 20 + cq * 5 + t
            k0 = 160 * cq + (64 * (t // 2) + 8 * (t % 2) if t < 4 else 128)
            P.e(f"v_add_u32 v16, {k0}, {'v14' if t < 4 else 'v15'}")
            P.e("v_bfe_u32 v17, v16, 4, 4\nv_xor_b32 v17, v17, v9\nv_lshrrev_b32 v18, 8, v16\nv_and_b32 v16, 8, v16")
            P.e(f"v_lshl_add_u32 v16, v17, 4, v16\nv_lshl_add_u32 v16, v18, 13, v16\nv_add_u32 v{a}, v16, v10")
    P.e("s_lshl_b32 s17, s12, 1\ns_mul_i32 s17, s17, s20\ns_add_u32 s21, s21, s17\ns_mul_i32 s17, s16, 5120\ns_add_u32 s21, s21, s17")
    P.wvm("d")
    P.e("s_barrier")
    for n in range(10):
        d = 32 + 4 * n
        P.e(f"ds_read_b64_tr_b16 {V(d, 2)}, v{20+n}", tag=f"t{n}")
        P.e(f"ds_read_b64_tr_b16 {V(d+2, 2)}, v{20+n} offset:1024", tag=f"t{n}")
        if n == 6:
            P.wlg("t3")
    for n in range(10):
        d = 32 + 4 * n
        if n == 4:
            P.e("s_add_u32 s17, s21, 4096")
        if n == 5:
            P.e("s_add_u32 s21, s21, s20")
        if n == 9:
            P.e("s_add_u32 s17, s21, 4096")
        P.wlg(f"t{n}")
        t = n % 5
        P.e(f"buffer_store_dwordx4 {V(d, 4)}, v2, s[4:7], {'s21' if t < 4 else 's17'} offen offset:{(t % 4)*1024}{K0ST}")
    k0_end(P)
    texts.append(P)

    P = Prog()
    P.e("L_k0_C:")
    P.e(f"s_sub_u32 s16, s2, {NJ1 + NJ3 + NJB}")
    P.e(f"s_mov_b32 s8, s52\ns_and_b32 s9, s53, 0xffff\ns_mov_b32 s10, {XSZ}")
    P.e("s_lshl_b32 s17, s12, 2\nv_add_u32 v12, s17, v5\nv_xor_b32 v13, v12, v6\nv_mul_u32_u24 v12, 1280, v12\nv_lshl_add_u32 v12, v13, 4, v12")
    P.e("s_mul_i32 s20, s16, 40960\ns_lshl_b32 s33, s12, 10")
    for ml in range(2):
        for pn in range(5):
            P.e(f"s_add_u32 m0, s33, {ml*20480 + pn*4096}\ns_add_u32 s31, s20, {ml*20480 + pn*256}")
            P.e("buffer_load_dwordx4 v12, s[8:11], s31 offen lds", tag="d")
    for r in range(4):
        P.e(f"v_mov_b32 v{20+r}, 0")
    P.e(f"s_and_b32 s17, s16, 31\ns_mul_i32 s17, s17, {ZSZ//32}\ns_lshr_b32 s18, s16, 5\ns_mul_i32 s18, s18, {LB}\ns_add_u32 s17, s17, s18\ns_add_u32 s17, s17, {KVA}")
    P.e(f"v_lshlrev_b32 v14, 4, v0\nbuffer_store_dwordx4 {V(20, 4)}, v14, s[4:7], s17 offen{K0ST}")
    P.e(f"v_cmp_gt_u32 vcc, {(ZSZ//32 - 4096)//16}, v0\nv_mov_b32 v15, 0x40000000\nv_cndmask_b32 v14, v15, v14, vcc\ns_add_u32 s17, s17, 4096")
    P.e(f"buffer_store_dwordx4 {V(20, 4)}, v14, s[4:7], s17 offen{K0ST}")
    P.e("s_lshr_b32 s22, s12, 1\ns_and_b32 s23, s12, 1\ns_mul_i32 s24, s22, 20480\ns_mul_i32 s25, s23, 40")
    P.e("v_add_u32 v14, s25, v5\nv_lshlrev_b32 v15, 8, v6\nv_add_u32 v15, s24, v15")
    for k in range(10):
        P.e(f"v_add_u32 v16, {4*k}, v14\nv_lshrrev_b32 v17, 4, v16\nv_xor_b32 v16, v16, v6\nv_and_b32 v16, 15, v16")
        P.e(f"v_lshl_add_u32 v16, v16, 4, v15\nv_lshl_add_u32 v{72+k}, v17, 12, v16")
    P.e(f"s_add_u32 s26, s20, s24\ns_mul_i32 s17, s23, 10240\ns_add_u32 s26, s26, s17\ns_add_u32 s26, s26, {XA}")
    P.e("v_mov_b32 v24, 0\nv_mov_b32 v25, 0\nv_mov_b32 v26, 0x3f803f80")
    P.wvm("d")
    P.e("s_barrier")
    for k in range(10):
        P.e(f"ds_read_b128 {V(32+4*k, 4)}, v{72+k}", tag=f"t{k}")
    for k in range(10):
        if k and k % 4 == 0:
            P.e("s_add_u32 s26, s26, 4096")
        P.wlg(f"t{k}")
        P.e(f"buffer_store_dwordx4 {V(32+4*k, 4)}, v2, s[4:7], s26 offen offset:{(k % 4)*1024}{K0ST}")
        for r in range(4):
            P.e(f"v_dot2_f32_bf16 v24, v{32+4*k+r}, v26, v24")
            P.e(f"v_dot2_f32_bf16 v25, v{32+4*k+r}, v{32+4*k+r}, v25")
    P.add(allreduce_g(24, 27))
    P.add(allreduce_g(25, 28))
    P.e("v_cmp_eq_u32 vcc, 0, v5\nv_cndmask_b32 v24, 0, v24, vcc\nv_cndmask_b32 v25, 0, v25, vcc")
    P.e(f"s_lshl_b32 s17, s16, 1\ns_add_u32 s17, s17, s22\ns_lshl_b32 s17, s17, 10\ns_lshl_b32 s18, s23, 7\ns_add_u32 s17, s17, s18\ns_add_u32 s17, s17, {STA}")
    P.e("v_lshlrev_b32 v14, 8, v5\nv_lshl_add_u32 v14, v6, 3, v14")
    P.e(f"buffer_store_dwordx2 v[24:25], v14, s[4:7], s17 offen{K0ST}")
    k0_end(P)
    texts.append(P)
    return texts


def build():
    body, desc = [], []
    k0 = gen_k0()
    regs = {"v": 0, "a": -1, "s": 0}
    for p in k0:
        r = p.max_regs()
        for k in regs:
            regs[k] = max(regs[k], r[k])
    body.append(".globl k0_kernel\n.p2align 8\n.type k0_kernel,@function\nk0_kernel:\n" + "".join(p.finish() for p in k0).replace("L_exit", "L_exit_k0") + "L_exit_k0:\n  s_endpgm\n")
    desc.append(descriptor("k0_kernel", regs["v"] + 1, 0, max(regs["s"] + 1, 16)))
    Q, P = gen_main()
    rq, rp = Q.max_regs(), P.max_regs()
    print("main regs", rq, rp, file=sys.stderr)
    body.append(".globl main_kernel\n.p2align 8\n.type main_kernel,@function\nmain_kernel:\n" + Q.finish() + P.finish() + "L_exit:\n  s_endpgm\n")
    desc.append(descriptor("main_kernel", 256, 256, max(rq["s"], rp["s"]) + 1))
    L = [f"; @launch kernel=k0_kernel grid=({NJ1+NJ3+NJB+NJC},1,1) block=(256,1,1) lds={K0_LDS}",
         f"; @launch kernel=main_kernel grid=(256,1,1) block=(256,1,1) lds={8*SLOT}"]
    head = "; generated by tools/gen2.py: weight re-layout launch + persistent launch (qkv, attn-out, gate/up, down) x 2 layers\n"
    return head + "\n".join(L) + '\n.amdgcn_target "amdgcn-amd-amdhsa--gfx950"\n.text\n' + "".join(body) + "".join(desc)


if __name__ == "__main__":
    import argparse
    ap = argparse.ArgumentParser()
    ap.add_argument("-o", default="v2.s")
    ap.add_argument("--stamps", action="store_true")
    ap.add_argument("--clk", action="store_true")
    ap.add_argument("--cfg", default="")
    a = ap.parse_args()
    STAMPS = a.stamps
    if a.clk:
        STAMP_INS = "s_memtime"
    for kv in a.cfg.split(","):
        if kv:
            k, v = kv.split("=")
            CFG[k] = float(v) if "." in v else int(v)
    if CFG.get("k0sc1"):
        K0ST = " sc1"
    open(a.o, "w").write(build())
    print("written", a.o)
```

```python
import sys, struct
from collections import deque
from asmlib import Prog, Ins, Wait, Virtual, V, A, S, descriptor, TRANS
from gen import f32, LOG2E, MF, allreduce_g, stats_finish, lanemask, set_exec

WF1 = 0
WF2 = WF1 + 16 * 168 * 1024
WF3 = WF2 + 8 * 100 * 1024
WF4 = WF3 + 16 * 294 * 1024
L0 = WF4 + 8 * 270 * 1024 + 4096
XSZ = 2048 * 640 * 2
XA = L0
PQ = XA + XSZ
XB = PQ + XSZ
HB = XB + XSZ
STA = HB + 2048 * 1728 * 2
STB = STA + 128 * 1024
KVA = STB + 128 * 1024
F0 = KVA + 56 * 1024
F1 = F0 + 32768
F2 = F1 + 16384
F3 = F2 + 32768
ZSZ = F3 + 32768 - KVA
LB = F3 + 32768 - L0
STAMP = L0 + 2 * LB
WS_USED = STAMP + 4 * 512 * 128
assert ZSZ == 172032 and L0 % 4096 == 0 and LB % 4096 == 0
STAMPS = False
STAMP_INS = "s_memrealtime"
OOB = 0x40000000
SLOT = 20480
SPIN = 200000
CFG = dict(g1=1, g3=2, g4=2, b1=4, b3=3, b4=8, la=6)

vSTL, vHALF, vPQT, vSTS, vRW0, vRW1, vRR, vAT, vATM, vKVL, vKVW, vE0, vE1, vZF, vPQW, vFC, vFG, vPOLL, vONE, vBW, vBR, vH3, vO16, vO8, vT = range(7, 32)
XR, CE, ONES, PV = 32, 42, 46, 50
WP = 224
sWAVE, sRB, sCG, sMT0, sMT, sCG8, sLAY = 12, 13, 14, 15, 16, 17, 20
sW5, sW1, sW2, sW3, sW4 = 21, 22, 23, 24, 25
sFA, sFB, sFG, sEPS = 26, 27, 28, 29
sX0, sX1, sXT, sDT, sA, sB, sC, sSPIN = 30, 31, 32, 33, 34, 35, 36, 37
sM8, sMASK = 38, 40
sSTMP = 64
RED = 7 * SLOT
BNC = RED + 13440
KVT = 6 * SLOT


def cost(it):
    if isinstance(it, (Wait, Virtual)):
        return 0
    if isinstance(it, list):
        return sum(cost(x) for x in it)
    t = it.text
    if t.startswith("v_mfma"):
        return 12
    if t.startswith(TRANS):
        return 8
    return 4


def I(text, tag=None):
    return [Ins(x.strip(), tag) for x in text.split("\n") if x.strip()]


_nstamp = [0]


def stamp(P):
    if STAMPS:
        j = _nstamp[0]
        _nstamp[0] += 1
        P.raw(f"{STAMP_INS} s[{sSTMP+2*j}:{sSTMP+2*j+1}]\ns_waitcnt lgkmcnt(0)")


def stamp_flush(P):
    if STAMPS:
        P.raw(f"s_cmp_lg_u32 s{sWAVE}, 0\ns_cbranch_scc1 L_nost{len(P.items)}")
        lab = P.items[-1].text.split()[-1]
        P.raw(f"s_cmp_lg_u32 s{sLAY}, 0\ns_cselect_b32 s{sA}, {512*128}, 0\ns_lshl_b32 s{sB}, s2, 7\ns_add_u32 s{sA}, s{sA}, s{sB}\ns_add_u32 s{sA}, s{sA}, {STAMP + 512*128}")
        P.raw(f"v_mov_b32 v{vT}, 0")
        for j in range(_nstamp[0]):
            P.raw(f"v_mov_b32 v250, s{sSTMP+2*j}\nv_mov_b32 v251, s{sSTMP+2*j+1}\ns_nop 1")
            P.raw(f"buffer_store_dwordx2 v[250:251], v{vT}, s[4:7], s{sA} offen offset:{8*j}\ns_nop 1")
        P.raw(f"s_waitcnt vmcnt(0)\n{lab}:")


class Chunk:
    def __init__(self, name, sbase, foff, n, slot, event):
        self.name, self.sbase, self.foff, self.n, self.slot, self.event = name, sbase, foff, n, slot, event
        self.q = (n + 3) // 4
        self.tag = "W" + name


class Op:
    def __init__(self, fn, tag, prio, event=None, step=0):
        self.fn, self.tag, self.prio, self.event, self.step = fn, tag, prio, event, step


class Sched:
    dma_ctx = None
    x_ctx = None

    def __init__(self, P, name):
        self.P, self.name = P, name
        self.vq, self.aq = [], deque()
        self.events = {None}
        self.marks = set()
        self.now = 0

    def dma(self, ch, prio):
        for i in range(ch.q):
            def fn(ch=ch, i=i):
                L = []
                key = (ch.name, i // 4)
                if Sched.dma_ctx != key:
                    Sched.dma_ctx = key
                    o = (i // 4) * 4096
                    if ch.q == 5:
                        L += I(f"s_add_u32 m0, s{sW5}, {ch.slot*SLOT + o}\ns_add_u32 s{sDT}, s{ch.sbase}, {ch.foff*1024 + o}")
                    else:
                        L += I(f"s_mul_i32 s{sDT}, s{sWAVE}, {ch.q*1024}\ns_add_u32 m0, s{sDT}, {ch.slot*SLOT}\ns_sub_u32 s{sDT}, s{sDT}, s{sW5}")
                        L += I(f"s_add_u32 s{sDT}, s{sDT}, s{ch.sbase}\ns_add_u32 s{sDT}, s{sDT}, {ch.foff*1024}")
                L += I(f"buffer_load_dwordx4 v2, s[4:7], s{sDT} offen offset:{(i % 4)*1024} lds", ch.tag)
                return L
            self.vq.append(Op(fn, ch.tag, prio + i * 1e-3, ch.event))

    def load(self, dst, vaddr, sbase, off, tag, prio, w=4, event=None, step=0):
        def fn():
            L = []
            if off < 4096:
                so = f"s{sbase}"
            else:
                key = (sbase, off >> 12)
                if Sched.x_ctx != key:
                    Sched.x_ctx = key
                    L += I(f"s_add_u32 s{sXT}, s{sbase}, {off & ~4095}")
                so = f"s{sXT}"
            return L + I(f"buffer_load_dwordx{w} {dst}, v{vaddr}, s[4:7], {so} offen offset:{off & 4095} sc1", tag)
        self.vq.append(Op(fn, tag, prio, event, step))

    def alu(self, items, step=0, event=None):
        for it in items:
            if isinstance(it, str):
                for x in I(it):
                    self.aq.append((x, step, event))
            else:
                self.aq.append((it, step, event))

    def mark(self, name):
        self.aq.append((name, 0, None))

    def emit_op(self, op):
        self.vq.remove(op)
        L = op.fn()
        self.P.add(L)
        return cost(L)

    def next_op(self):
        el = [o for o in self.vq if o.event in self.events and o.step <= self.now]
        return min(el, key=lambda o: o.prio) if el else None

    def burst(self, n):
        for _ in range(n):
            op = self.next_op()
            if op is None:
                break
            self.emit_op(op)

    def force(self, tag):
        ops = sorted([o for o in self.vq if o.tag == tag], key=lambda o: o.prio)
        if ops:
            print(f"  [{self.name}] forced {len(ops)} x {tag} at step {self.now}", file=sys.stderr)
        for o in ops:
            assert o.event in self.events, (tag, o.event)
            self.emit_op(o)

    def pop_alu(self):
        it, _, _ = self.aq.popleft()
        if isinstance(it, str):
            self.marks.add(it)
            return 0
        if isinstance(it, Wait) and it.cls == "vm":
            self.force(it.tag)
        self.P.add(it)
        return cost(it)

    def drain_to(self, mark):
        while mark not in self.marks:
            self.pop_alu()

    def drain(self):
        while self.aq:
            self.pop_alu()

    def run(self, steps, chunks, vgap, extra=0, nobar=()):
        P, LA = self.P, CFG["la"]
        seen = set()

        def rd(m):
            st = steps[m]
            dst = A(WP + 4 * (m % 8), 4)
            if "fr" in st:
                c, f = st["fr"]
                ch = chunks[c]
                if c not in seen:
                    seen.add(c)
                    if c not in nobar:
                        self.force(ch.tag)
                        P.wvm(ch.tag)
                        P.e("s_barrier")
                    self.events.add(f"{self.name}:{c}")
                off = ch.slot * SLOT + f * 1024
                P.e(f"ds_read_b128 {dst}, v{2 + (off >> 16)} offset:{off & 0xffff}", tag=f"R{m}")
            else:
                P.e(st["rd"](dst), tag=f"R{m}")

        n = len(steps)
        self.now = 0
        for m in range(min(LA, n)):
            rd(m)
        credit, lastv = 0, -100
        for i, st in enumerate(steps):
            self.now = i
            if "aw" in st:
                self.drain_to(st["aw"])
            for t in st.get("xw", []):
                self.force(t)
                P.wvm(t)
            P.wlg(f"R{i}")
            mfs = st["mf"](A(WP + 4 * (i % 8), 4))
            for k, t in enumerate(mfs):
                P.e(t)
                credit = min(credit, 0) + 8 + extra
                if k == len(mfs) - 1 and i + LA < n:
                    rd(i + LA)
                    credit -= 4
                if k == 0 and i - lastv >= vgap:
                    op = self.next_op()
                    if op is not None:
                        credit -= self.emit_op(op)
                        lastv = i
                while credit > 0 and self.aq and self.aq[0][1] <= i and self.aq[0][2] in self.events:
                    credit -= self.pop_alu()
        self.now = n
        P.e("s_barrier")
        self.events.add(f"{self.name}:end")
        stamp(P)

    def late(self):
        n = len(self.vq)
        self.burst(10 ** 6)
        assert not self.vq
        print(f"  [{self.name}] late ops {n}", file=sys.stderr)


def mk_chunks():
    ch = {}
    s1 = [6, 7, 0, 1, 2, 3, 4, 5, 6]
    e1 = ["p4:9", "p4:10", "p4:11", "p4:12", "p4:13", "p4:end", "p4:end", "p4:8", "p1:2"]
    ch["p1"] = [Chunk(f"1_{c}", sW1, 20 * c, 20 if c < 8 else 8, s1[c], e1[c]) for c in range(9)]
    ch["p2"] = [Chunk(f"2_{c}", sW2, 20 * c, 20, 1 + c, f"p1:{5+c}" if c < 4 else "p1:end") for c in range(5)]
    e3 = ["p1:4", "p2:2", "p2:3", "p2:4"] + ["p2:end"] * 4 + [f"p3:{c-6}" for c in range(8, 15)]
    ch["p3"] = [Chunk(f"3_{c}", sW3, 20 * c, 20 if c < 14 else 14, c % 8, e3[c]) for c in range(15)]
    e4 = [f"p3:{c+9}" for c in range(6)] + ["p3:end"] * 2 + [f"p4:{c-6}" for c in range(8, 14)]
    ch["p4"] = [Chunk(f"4_{c}", sW4, 20 * c, 20 if c < 13 else 10, (15 + c) % 8, e4[c]) for c in range(14)]
    return ch


def handoff(P, sc, wtag, wr, stride_reg, uid):
    sc.late()
    P.e(wr)
    P.wvm(wtag)
    P.e("s_barrier")
    P.raw(f"s_cmp_lg_u32 s{sWAVE}, 0\ns_cbranch_scc1 L_nf{uid}\nbuffer_store_dword v{vONE}, v{stride_reg}, s[4:7], s{sA} offen sc1\nL_nf{uid}:")
    stamp(P)


def poll(P, rdoff, uid, wide=False, label=None):
    P.e(rdoff)
    P.raw(f"s_cmp_lg_u32 s{sWAVE}, 0\ns_cbranch_scc1 L_pd{uid}\ns_mov_b32 s{sSPIN}, {SPIN}\nL_pl{uid}:")
    if wide:
        P.raw(f"buffer_load_dwordx4 v[252:255], v2, s[4:7], s{sB} offen sc1\ns_waitcnt vmcnt(0)\nv_min_u32 v252, v252, v253\nv_min3_u32 v252, v252, v254, v255")
    else:
        P.raw(f"buffer_load_dword v252, v{vPOLL}, s[4:7], s{sB} offen sc1\ns_waitcnt vmcnt(0)")
    P.raw(f"v_cmp_eq_u32 vcc, 0, v252\ns_nop 1\ns_cbranch_vccz L_pd{uid}")
    P.raw(f"s_sub_u32 s{sSPIN}, s{sSPIN}, 1\ns_cmp_lg_u32 s{sSPIN}, 0\ns_cbranch_scc1 L_pl{uid}\nL_pd{uid}:")
    P.e("s_barrier")
    if label:
        P.e(label)
    stamp(P)


def x_phase_loads(sc, P, xbuf, stbuf, VST, nt1):
    P.e(f"s_mul_i32 s{sX0}, s{sMT0}, 20480\ns_add_u32 s{sX0}, s{sX0}, s{sLAY}\ns_add_u32 s{sX0}, s{sX0}, {xbuf}\ns_add_u32 s{sX1}, s{sX0}, 20480")
    P.e(f"s_lshl_b32 s{sC}, s{sMT0}, 10\ns_add_u32 s{sC}, s{sC}, s{sLAY}\ns_add_u32 s{sC}, s{sC}, {stbuf}")
    Sched.x_ctx = None
    for k0 in range(0, 20, 2):
        for m in range(2):
            for kb in (k0, k0 + 1):
                sc.load(A((m * 20 + kb) * 4, 4), 2, sX0 + m, kb * 1024, f"X{k0}", k0 * nt1 - 100 + m + (kb - k0) * 0.1)
    for m in range(2):
        for j in range(2):
            sc.load(V(VST + 4 * m + 2 * j, 2), vSTL, sC, m * 1024 + j * 128, "st", 8 * nt1 - 101, w=2)


def phi4(xs, rs, cs, ts, outs):
    L = [f"v_mul_f32 v{t}, v{x}, v{c}" for x, c, t in zip(xs, cs, ts)]
    L += [f"v_fma_f32 v{o}, v{x}, v{r}, s{sEPS}" for x, r, o in zip(xs, rs, outs)]
    L += [f"v_exp_f32 v{t}, v{t} clamp" for t in ts]
    L += [f"v_max_f32 v{o}, s{sEPS}, v{o}" for o in outs]
    L += [f"v_add_f32 v{o}, v{o}, v{t}" for o, t in zip(outs, ts)]
    return L


PAIRS = [(0, 2), (0, 3), (1, 2), (1, 3), (1, 4), (2, 3), (2, 4), (0, None), (1, None), (2, None)]


def red_mask(i, j):
    def valid(g, nn):
        kk = 4 * i + g
        if kk >= 10:
            return False
        if j is None:
            return nn == 0
        cv = 16 * j + nn - 40
        return 0 <= cv < 40 and cv // 20 == kk // 5
    return lanemask(valid)


def phase1(P, ch):
    sc = Sched(P, "p1")
    ACC, ACQ, VST, VRS, VSD, VC, VEXT, RST, CT, T, PF, QO = PV, PV + 40, PV + 64, PV + 72, PV + 74, PV + 76, PV + 78, PV + 86, PV + 94, PV + 102, PV + 126, PV + 146
    GD = ACC
    x_phase_loads(sc, P, XA, STA, VST, 5)
    P.e(f"s_cmp_eq_u32 s{sLAY}, 0\ns_cbranch_scc1 L_first")
    poll(P, f"s_lshl_b32 s{sB}, s{sFA}, 7\ns_add_u32 s{sB}, s{sB}, {F0 + LB}", "1", label="L_first:")
    sc.burst(2 * CFG["b1"])
    sc.dma(ch["p1"][8], 120)
    sc.dma(ch["p3"][0], 1000)
    for c in range(5):
        sc.dma(ch["p2"][c], 500 + c)
    steps = []
    for t0, nt in ((0, 5), (5, 3)):
        for kb in range(21):
            for t in range(t0, t0 + nt):
                def mf(w, kb=kb, t=t):
                    L = []
                    for m in range(2):
                        x = A((m * 20 + kb) * 4, 4) if kb < 20 else V(VEXT + 4 * m, 4)
                        d = V(ACC + (m * 5 + t) * 4, 4) if t < 5 else V(ACQ + (m * 3 + t - 5) * 4, 4)
                        cc = "0" if kb == 0 else d
                        L.append(f"{MF} {d}, {x}, {w}, {cc}" if t < 5 else f"{MF} {d}, {w}, {x}, {cc}")
                    return L
                st = dict(fr=divmod(len(steps), 20), mf=mf)
                if t == 0 and kb % 2 == 0 and kb < 20:
                    st["xw"] = [f"X{kb}"]
                if t == 0 and kb == 20:
                    st["aw"] = "ext"
                steps.append(st)
    sc.alu([Wait("vm", "st")], step=52)
    for m in range(2):
        sc.alu(stats_finish(VST, m, VRS + m, VSD + m, VEXT + 4 * m, T) + [f"v_mul_f32 v{VC+m}, {f32(LOG2E)}, v{VRS+m}"])
    sc.alu([Ins(f"ds_write_b32 v{vBW}, v{VRS+m} offset:{m*64}", "bw") for m in range(2)], event="p1:3")
    sc.mark("ext")
    sc.alu([Wait("lgkm", "bw")], step=88)
    sc.alu([Ins(f"ds_read_b128 {V(RST+4*m, 4)}, v{vBR} offset:{m*64}", "br") for m in range(2)])
    sc.alu([Wait("lgkm", "br")], step=94)
    sc.alu([f"v_mul_f32 v{CT+k}, {f32(LOG2E)}, v{RST+k}" for k in range(8)])
    first = True
    for t in range(5):
        for m in range(2):
            x = [ACC + (m * 5 + t) * 4 + r for r in range(4)]
            rs = [RST + 4 * m + r for r in range(4)]
            cs = [CT + 4 * m + r for r in range(4)]
            ts = [T + 4 * m + r for r in range(4)]
            L = []
            if t < 2:
                L += phi4(x, rs, cs, ts, x)
            elif t == 2:
                o = [T + 8 + 4 * m + r for r in range(4)]
                L += phi4(x, rs, cs, ts, o)
                L += [f"v_mul_f32 v{a}, v{a}, v{r}" for a, r in zip(x, rs)]
                L += [f"v_cndmask_b32 v{a}, v{a}, v{b}, s[{sM8}:{sM8+1}]" for a, b in zip(x, o)]
            else:
                L += [f"v_mul_f32 v{a}, v{a}, v{r}" for a, r in zip(x, rs)]
            L += [f"v_cvt_pk_bf16_f32 v{PF+4*t+2*m}, v{x[0]}, v{x[1]}", f"v_cvt_pk_bf16_f32 v{PF+4*t+2*m+1}, v{x[2]}, v{x[3]}"]
            sc.alu(L, step=106 if first else 0)
            first = False
    for n, (i, j) in enumerate(PAIRS):
        b = V(PF + 4 * j, 4) if j is not None else V(ONES, 4)
        sc.alu([f"{MF} {V(GD+4*n, 4)}, {V(PF+4*i, 4)}, {b}, 0"])
    for n0 in range(0, 10, 2):
        grp = []
        for n in (n0, n0 + 1):
            i, j = PAIRS[n]
            grp += I(f"s_mov_b64 exec, s[{sMASK+2*n}:{sMASK+2*n+1}]")
            if j is None:
                grp += I(f"ds_write_b128 v{vRW0}, {V(GD+4*n, 4)} offset:{640 + i*1344 + 320}", "gw")
            else:
                off = 640 + i * 1344 + (16 * j - 40) * 16 - (320 if i == 2 else 0)
                grp += I(f"ds_write_b128 v{vRW1 if i == 1 else vRW0}, {V(GD+4*n, 4)} offset:{off}", "gw")
        grp += I("s_mov_b64 exec, -1")
        sc.alu([grp])
    sc.alu([Wait("lgkm", "gw"), "s_barrier"])
    for q in range(4):
        sc.alu([Ins(f"ds_read_b32 v{T+4*q+w}, v{vRR} offset:{w*3360 + q*1024}", f"rr{q}") for w in range(4)])
    sc.alu([f"s_mul_i32 s{sC}, s{sCG}, 3360\ns_add_u32 s{sC}, s{sC}, s{sLAY}\ns_add_u32 s{sC}, s{sC}, {KVA}"])
    for q in range(4):
        a = T + 4 * q
        sc.alu([Wait("lgkm", f"rr{q}"), f"v_add_f32 v{a}, v{a}, v{a+1}\nv_add_f32 v{a+2}, v{a+2}, v{a+3}\nv_add_f32 v{a}, v{a}, v{a+2}",
                Ins(f"buffer_atomic_add_f32 v{a}, v{vATM if q == 3 else vAT}, s[4:7], s{sC} offen offset:{q*1024}", "out")])
    sc.run(steps, ch["p1"], CFG["g1"])
    print(f"  [p1] alu left {len(sc.aq)}", file=sys.stderr)
    sc.drain()
    P.e(f"s_mul_i32 s{sC}, s{sCG}, 1280\ns_add_u32 s{sC}, s{sC}, s{sX0}\ns_add_u32 s{sC}, s{sC}, {PQ - XA}")
    for m in range(2):
        q = QO + 6 * m
        for tq in range(3):
            x = [ACQ + (m * 3 + tq) * 4 + r for r in range(4)]
            P.add(phi4(x, [VRS + m] * 4, [VC + m] * 4, [T + 16 + 4 * (tq % 2) + r for r in range(4)], x))
            P.e(f"v_cvt_pk_bf16_f32 v{q+2*tq}, v{x[0]}, v{x[1]}\nv_cvt_pk_bf16_f32 v{q+2*tq+1}, v{x[2]}, v{x[3]}")
            if tq == 1:
                if m == 1:
                    P.e(f"s_add_u32 s{sC}, s{sC}, 20480")
                P.e(f"buffer_store_dwordx4 {V(q, 4)}, v2, s[4:7], s{sC} offen sc1", tag="out")
        P.e(f"buffer_store_dwordx2 {V(q+4, 2)}, v{vPQT}, s[4:7], s{sC} offen offset:1024 sc1", tag="out")
    handoff(P, sc, "out", f"s_lshl_b32 s{sA}, s{sFA}, 2\ns_add_u32 s{sA}, s{sA}, s{sLAY}\ns_add_u32 s{sA}, s{sA}, {F1}", vFG, "1")


def resid_epilogue(P, ACC, T, xbuf, stbuf, final=False):
    P.e(f"s_mul_i32 s{sC}, s{sMT}, 20480\ns_mul_i32 s{sA}, s{sCG8}, 2560\ns_add_u32 s{sC}, s{sC}, s{sA}\ns_add_u32 s{sC}, s{sC}, s{sLAY}\ns_add_u32 s{sC}, s{sC}, {xbuf}")
    P.e(f"s_lshl_b32 s{sB}, s{sMT}, 10\ns_lshl_b32 s{sA}, s{sCG8}, 7\ns_add_u32 s{sB}, s{sB}, s{sA}\ns_add_u32 s{sB}, s{sB}, s{sLAY}\ns_add_u32 s{sB}, s{sB}, {stbuf}")
    P.e(f"v_mov_b32 v{T}, 0\nv_mov_b32 v{T+1}, 0")
    for k0 in (0, 4, 8):
        ks = range(k0, min(k0 + 4, 10))
        for k in ks:
            P.e(f"v_lshlrev_b32 v{T+4+2*(k%4)}, 16, v{XR+k}\nv_and_b32 v{T+5+2*(k%4)}, 0xffff0000, v{XR+k}")
        for k in ks:
            P.e(f"v_pk_add_f32 {V(T+4+2*(k%4), 2)}, {V(T+4+2*(k%4), 2)}, {V(ACC+2*k, 2)}")
        for k in ks:
            P.e(f"v_cvt_pk_bf16_f32 v{XR+k}, v{T+4+2*(k%4)}, v{T+5+2*(k%4)}")
        if final:
            continue
        if k0 < 8:
            P.e(f"buffer_store_dwordx4 {V(XR+k0, 4)}, v2, s[4:7], s{sC} offen offset:{k0*256} sc1", tag="out")
        else:
            P.e(f"buffer_store_dwordx2 {V(XR+8, 2)}, v{vHALF}, s[4:7], s{sC} offen offset:2048 sc1", tag="out")
    if final:
        P.e(f"s_mul_i32 s{sA}, s{sMT}, 20480\ns_mul_i32 s{sB}, s{sCG8}, 160\ns_add_u32 s{sA}, s{sA}, s{sB}")
        P.e(f"buffer_store_dwordx4 {V(XR, 4)}, v{vO16}, s[8:11], s{sA} offen")
        P.e(f"buffer_store_dwordx4 {V(XR+4, 4)}, v{vO16}, s[8:11], s{sA} offen offset:64")
        P.e(f"buffer_store_dwordx2 {V(XR+8, 2)}, v{vO8}, s[8:11], s{sA} offen offset:128")
        return
    for k in range(10):
        P.e(f"v_dot2_f32_bf16 v{T}, v{XR+k}, v{ONES}, v{T}")
        P.e(f"v_dot2_f32_bf16 v{T+1}, v{XR+k}, v{XR+k}, v{T+1}")
    a, b = allreduce_g(T, T + 2), allreduce_g(T + 1, T + 3)
    for x, y in zip(a, b):
        P.e(x)
        P.e(y)
    P.e(f"buffer_store_dwordx2 {V(T, 2)}, v{vSTS}, s[4:7], s{sB} offen sc1", tag="out")


def wr_cluster(sf, F):
    return (f"s_lshr_b32 s{sA}, s{sf}, 4\ns_lshl_b32 s{sA}, s{sA}, 11\ns_and_b32 s{sB}, s{sf}, 15\ns_lshl_b32 s{sB}, s{sB}, 2\n"
            f"s_add_u32 s{sA}, s{sA}, s{sB}\ns_add_u32 s{sA}, s{sA}, s{sLAY}\ns_add_u32 s{sA}, s{sA}, {F}")


def rd_cluster(sf, F):
    return f"s_lshl_b32 s{sB}, s{sf}, 7\ns_add_u32 s{sB}, s{sB}, s{sLAY}\ns_add_u32 s{sB}, s{sB}, {F}"


def phase2(P, ch):
    sc = Sched(P, "p2")
    OR, ACC, DT, T = PV, PV + 80, PV + 100, PV + 132
    for r in range(4):
        P.e(f"v_mov_b32 v{DT+r}, 0")
    for k in range(10):
        P.e(f"ds_write_b128 v{vZF}, {V(DT, 4)} offset:{k*4096}", tag="z")
    P.e(f"s_add_u32 s{sX0}, s{sLAY}, {KVA}")
    P.e(f"s_mul_i32 s{sX1}, s{sMT}, 20480\ns_add_u32 s{sX1}, s{sX1}, s{sLAY}\ns_add_u32 s{sX1}, s{sX1}, {PQ}")
    P.wlg("z")
    poll(P, f"s_add_u32 s{sB}, s{sFG}, s{sLAY}\ns_add_u32 s{sB}, s{sB}, {F1}", "2", wide=True)
    for rr in range(16):
        if rr:
            P.e(f"s_add_u32 s{sX0}, s{sX0}, 3360")
        P.e(f"buffer_load_dwordx4 {V(OR+4*rr, 4)}, v{vKVL}, s[4:7], s{sX0} offen sc1", tag=f"kv{rr}")
    Sched.x_ctx = None
    for h in range(32):
        sc.load(A(4 * h, 4), vPQW, sX1, (5 * h // 2) * 256, f"pq{h}", h)
    sc.burst(8)
    for rr in range(16):
        P.wvm(f"kv{rr}")
        a = OR + 4 * rr
        P.e(f"v_cvt_pk_bf16_f32 v{a}, v{a}, v{a+1}\nv_cvt_pk_bf16_f32 v{a+1}, v{a+2}, v{a+3}")
        P.e(f"ds_write_b64 v{vKVW}, {V(a, 2)} offset:{rr*2560}", tag="kw")
        if rr % 2:
            sc.burst(1)
    P.wlg("kw")
    P.e("s_barrier")
    stamp(P)
    for c in range(1, 8):
        sc.dma(ch["p3"][c], 1000 + c)
    steps = []
    nw = 0

    def wstep(n):
        kb, t = divmod(n, 5)

        def mf(w):
            d = V(ACC + 4 * t, 4)
            return [f"{MF} {d}, {w}, {V(OR+4*kb, 4)}, {'0' if kb == 0 else d}"]
        st = dict(fr=divmod(n, 20), mf=mf)
        if t == 0:
            st["aw"] = f"o{(8*kb+7)//5}"
        return st

    for h in range(32):
        d = DT + 8 * (h % 4)
        for j in range(2):
            st = dict(rd=lambda dst, h=h, j=j: f"ds_read_b128 {dst}, v{vE0+j} offset:{h*1280}",
                      mf=lambda w, h=h, j=j, d=d: [f"{MF} {V(d+4*j, 4)}, {w}, {A(4*h, 4)}, {V(CE, 4) if j else '0'}"])
            if j == 0:
                st["xw"] = [f"pq{h}"]
                if h >= 3:
                    st["aw"] = f"o{h-3}"
            steps.append(st)
        L = [f"v_rcp_f32 v{d+5}, v{d+5}"] + [f"v_mul_f32 v{d+i}, v{d+i}, v{d+5}" for i in range(5)]
        n0 = 5 * h
        if h % 2 == 0:
            L += [f"v_cvt_pk_bf16_f32 v{OR+n0//2}, v{d}, v{d+1}", f"v_cvt_pk_bf16_f32 v{OR+n0//2+1}, v{d+2}, v{d+3}"]
        else:
            dp = DT + 8 * ((h - 1) % 4)
            L += [f"v_cvt_pk_bf16_f32 v{OR+n0//2}, v{dp+4}, v{d}", f"v_cvt_pk_bf16_f32 v{OR+n0//2+1}, v{d+1}, v{d+2}",
                  f"v_cvt_pk_bf16_f32 v{OR+n0//2+2}, v{d+3}, v{d+4}"]
        sc.alu(L, step=len(steps) + 1)
        sc.mark(f"o{h}")
        lim = min(100, int(round((h - 1) * 100 / 32)))
        while nw < lim and (8 * (nw // 5) + 7) // 5 <= h - 2:
            steps.append(wstep(nw))
            nw += 1
    while nw < 100:
        steps.append(wstep(nw))
        nw += 1
    sc.run(steps, ch["p2"], 2, extra=5, nobar=(0, 1))
    sc.drain()
    resid_epilogue(P, ACC, T, XB, STB)
    handoff(P, sc, "out", wr_cluster(sFB, F2), vFC, "2")


def phase3(P, ch):
    sc = Sched(P, "p3")
    ACC, VST, VRS, VSD, VC, VEXT, T, HO = PV, PV + 112, PV + 120, PV + 122, PV + 124, PV + 126, PV + 134, PV + 142
    x_phase_loads(sc, P, XB, STB, VST, 6)
    poll(P, rd_cluster(sFA, F2), "3")
    sc.burst(2 * CFG["b3"])
    for c in range(8, 15):
        sc.dma(ch["p3"][c], 20 * c - 60)
    for c in range(8):
        sc.dma(ch["p4"][c], 1000 + c)
    steps = []
    gend = {}
    for p0, npair in ((0, 3), (3, 2), (5, 1), (6, 1)):
        for kb in range(21):
            for t in range(2 * p0, 2 * (p0 + npair)):
                def mf(w, kb=kb, t=t):
                    L = []
                    for m in range(2):
                        x = A((m * 20 + kb) * 4, 4) if kb < 20 else V(VEXT + 4 * m, 4)
                        d = V(ACC + m * 56 + t * 4, 4)
                        L.append(f"{MF} {d}, {w}, {x}, {'0' if kb == 0 else d}")
                    return L
                st = dict(fr=divmod(len(steps), 20), mf=mf)
                if t == 0 and kb % 2 == 0 and kb < 20:
                    st["xw"] = [f"X{kb}"]
                if t == 0 and kb == 20:
                    st["aw"] = "ext"
                steps.append(st)
        for p in range(p0, p0 + npair):
            gend[p] = len(steps)
    sc.alu([Wait("vm", "st")], step=64)
    for m in range(2):
        sc.alu(stats_finish(VST, m, VRS + m, VSD + m, VEXT + 4 * m, T) + [f"v_mul_f32 v{VC+m}, {f32(-LOG2E)}, v{VRS+m}"])
    sc.mark("ext")
    sc.alu([f"s_mul_i32 s{sA}, s{sCG}, 14\ns_mul_i32 s{sB}, s{sCG}, 12\ns_add_u32 s{sB}, s{sB}, 24\ns_min_u32 s{sA}, s{sA}, s{sB}\ns_lshl_b32 s{sA}, s{sA}, 8",
            f"s_mul_i32 s{sC}, s{sMT0}, 55296\ns_add_u32 s{sC}, s{sC}, s{sA}\ns_add_u32 s{sC}, s{sC}, s{sLAY}\ns_add_u32 s{sC}, s{sC}, {HB}\ns_add_u32 s{sB}, s{sC}, 55296"])

    def epi(p, m):
        g = ACC + m * 56 + 8 * p
        u = g + 4
        L = [f"v_mul_f32 v{g+r}, v{g+r}, v{VC+m}" for r in range(4)]
        L += [f"v_exp_f32 v{g+r}, v{g+r}" for r in range(4)]
        L += [f"v_fma_f32 v{g+r}, v{g+r}, v{VSD+m}, v{VSD+m}" for r in range(4)]
        L += [f"v_rcp_f32 v{g+r}, v{g+r}" for r in range(4)]
        L += [f"v_mul_f32 v{u+r}, v{u+r}, v{g+r}" for r in range(4)]
        o = HO + m * 14 + 2 * p
        L += [f"v_cvt_pk_bf16_f32 v{o}, v{u}, v{u+1}", f"v_cvt_pk_bf16_f32 v{o+1}, v{u+2}, v{u+3}"]
        L = [Ins(x) for x in L]
        so = sB if m else sC
        if p % 2 == 1:
            L.append(Ins(f"buffer_store_dwordx4 {V(o-2, 4)}, v2, s[4:7], s{so} offen offset:{(p//2)*1024} sc1", "out"))
        if p == 6:
            L.append(Ins(f"buffer_store_dwordx2 {V(o, 2)}, v{vH3}, s[4:7], s{so} offen offset:3072 sc1", "out"))
        return L

    for p in range(6):
        for m in range(2):
            sc.alu(epi(p, m), step=gend[p] + 1)
    sc.run(steps, ch["p3"], CFG["g3"])
    print(f"  [p3] alu left {len(sc.aq)}", file=sys.stderr)
    sc.drain()
    a, b = epi(6, 0), epi(6, 1)
    for k in range(0, 20, 4):
        P.add(a[k:k + 4] + b[k:k + 4])
    P.add(a[20:] + b[20:])
    handoff(P, sc, "out", wr_cluster(sFA, F3), vFC, "3")


def phase4(P, ch):
    sc = Sched(P, "p4")
    ACC, T = PV, PV + 20
    P.e(f"s_mul_i32 s{sX0}, s{sMT}, 55296\ns_add_u32 s{sX0}, s{sX0}, s{sLAY}\ns_add_u32 s{sX0}, s{sX0}, {HB}")
    Sched.x_ctx = None
    for kb in range(54):
        sc.load(A(kb * 4, 4), 2, sX0, kb * 1024, f"X{kb}", kb * 5 - 50)
    poll(P, rd_cluster(sFB, F3), "4")
    sc.burst(CFG["b4"])
    for c in range(8, 14):
        sc.dma(ch["p4"][c], 20 * c - 60)
    for c in range(8):
        sc.dma(ch["p1"][c], 1000 + c)
    steps = []
    for kb in range(54):
        for t in range(5):
            def mf(w, kb=kb, t=t):
                d = V(ACC + 4 * t, 4)
                return [f"{MF} {d}, {w}, {A(kb*4, 4)}, {'0' if kb == 0 else d}"]
            st = dict(fr=divmod(len(steps), 20), mf=mf)
            if t == 0:
                st["xw"] = [f"X{kb}"]
            steps.append(st)
    sc.run(steps, ch["p4"], CFG["g4"])
    P.e(f"s_cmp_lg_u32 s{sLAY}, 0\ns_cbranch_scc1 L_final")
    resid_epilogue(P, ACC, T, XA + LB, STA + LB)
    handoff(P, sc, "out", wr_cluster(sFB, F0 + LB), vFC, "4")
    stamp_flush(P)
    P.e(f"s_mov_b32 s{sLAY}, {LB}\ns_branch L_layer\nL_final:")
    resid_epilogue(P, ACC, T, 0, 0, final=True)
    P.e("s_waitcnt vmcnt(0)")
    stamp_flush(P)
    P.e("s_endpgm")


def gen_main():
    ch = mk_chunks()
    _nstamp[0] = 0
    Q = Prog()
    Q.e("s_cmp_ge_u32 s2, 256\ns_cbranch_scc1 L_exit")
    stamp(Q)
    Q.e("s_load_dwordx2 s[4:5], s[0:1], 72", tag="ka")
    Q.e("s_load_dwordx2 s[8:9], s[0:1], 56", tag="ka")
    Q.e("v_lshrrev_b32 v7, 6, v0\nv_and_b32 v1, 63, v0\nv_readfirstlane_b32 s12, v7\nv_lshlrev_b32 v2, 4, v1\nv_lshrrev_b32 v5, 4, v1\nv_and_b32 v6, 15, v1")
    Q.e(f"s_mov_b32 s6, {WS_USED}\ns_mov_b32 s7, 0x20000\ns_mov_b32 s10, {XSZ}\ns_mov_b32 s11, 0x20000")
    Q.e(f"s_and_b32 s{sA}, s2, 7\ns_lshr_b32 s{sB}, s2, 3\ns_and_b32 s{sC}, s{sB}, 3\ns_lshr_b32 s{sCG8}, s{sB}, 2")
    Q.e(f"s_lshr_b32 s{sRB}, s{sA}, 1\ns_lshl_b32 s{sRB}, s{sRB}, 2\ns_add_u32 s{sRB}, s{sRB}, s{sC}")
    Q.e(f"s_and_b32 s{sCG}, s{sA}, 1\ns_lshl_b32 s{sCG}, s{sCG}, 3\ns_add_u32 s{sCG}, s{sCG}, s{sCG8}")
    Q.e(f"s_mul_i32 s{sW5}, s{sWAVE}, 5120\ns_mul_i32 s{sW1}, s{sCG}, {168*1024}\ns_add_u32 s{sW1}, s{sW1}, s{sW5}")
    Q.wlg("ka")
    Q.e("s_and_b32 s5, s5, 0xffff\ns_and_b32 s9, s9, 0xffff")
    sc = Sched(Q, "pro")
    Sched.dma_ctx = None
    order = [0, 1, 2, 3, 4, 7, 5, 6]
    for n, c in enumerate(order):
        ev, ch["p1"][c].event = ch["p1"][c].event, None
        sc.dma(ch["p1"][c], n)
        ch["p1"][c].event = ev
    sc.burst(40)
    Q.e(f"s_lshl_b32 s{sA}, s{sA}, 2\ns_add_u32 s{sA}, s{sA}, s{sC}")
    Q.e(f"s_lshl_b32 s{sMT}, s{sA}, 2\ns_add_u32 s{sMT}, s{sMT}, s{sWAVE}")
    Q.e(f"s_lshl_b32 s{sFB}, s{sA}, 3\ns_add_u32 s{sFB}, s{sFB}, s{sCG8}")
    Q.e(f"s_lshl_b32 s{sFA}, s{sRB}, 4\ns_add_u32 s{sFA}, s{sFA}, s{sCG}")
    Q.e(f"s_lshl_b32 s{sMT0}, s{sRB}, 3\ns_lshl_b32 s{sB}, s{sWAVE}, 1\ns_add_u32 s{sMT0}, s{sMT0}, s{sB}")
    Q.e(f"s_and_b32 s{sFG}, s2, 15\ns_lshl_b32 s{sFG}, s{sFG}, 10\ns_mov_b32 s{sEPS}, {f32(1e-6)}\ns_mov_b32 s{sLAY}, 0")
    for r, base, n, cg in ((sW2, WF2, 100, sCG8), (sW3, WF3, 294, sCG), (sW4, WF4, 270, sCG8)):
        Q.e(f"s_mul_i32 s{r}, s{cg}, {n*1024}\ns_add_u32 s{r}, s{r}, {base}\ns_add_u32 s{r}, s{r}, s{sW5}")
    Q.e("v_add_u32 v3, 0x10000, v2\nv_add_u32 v4, 0x20000, v2")
    Q.e(f"v_mov_b32 v{vT}, {OOB}")
    Q.e(f"v_lshlrev_b32 v{vSTL}, 8, v5\nv_lshl_add_u32 v{vSTL}, v6, 3, v{vSTL}")
    Q.e(f"v_lshrrev_b32 v{vHALF}, 1, v5\nv_lshlrev_b32 v{vHALF}, 8, v{vHALF}\nv_lshl_add_u32 v{vHALF}, v6, 4, v{vHALF}")
    Q.e(f"v_and_b32 v{vPQT}, 1, v5\nv_lshl_add_u32 v{vHALF}, v{vPQT}, 3, v{vHALF}")
    Q.e(f"s_mul_i32 s{sC}, s{sMT}, 20480\ns_mul_i32 s{sB}, s{sCG8}, 2560\ns_add_u32 s{sC}, s{sC}, s{sB}\ns_add_u32 s{sC}, s{sC}, {XA}")
    Q.e(f"buffer_load_dwordx4 {V(XR, 4)}, v2, s[4:7], s{sC} offen\nbuffer_load_dwordx4 {V(XR+4, 4)}, v2, s[4:7], s{sC} offen offset:1024")
    Q.e(f"buffer_load_dwordx2 {V(XR+8, 2)}, v{vHALF}, s[4:7], s{sC} offen offset:2048")
    Q.e(f"v_cmp_gt_u32 vcc, 32, v1\nv_cndmask_b32 v{vPQT}, v{vT}, v{vHALF}, vcc")
    Q.e(f"v_cmp_gt_u32 vcc, 16, v1\nv_lshlrev_b32 v{vSTS}, 3, v6\nv_cndmask_b32 v{vSTS}, v{vT}, v{vSTS}, vcc")
    Q.e(f"v_lshlrev_b32 v{vFC}, 7, v1\nv_cndmask_b32 v{vFC}, v{vT}, v{vFC}, vcc\nv_lshlrev_b32 v{vFG}, 10, v1\nv_cndmask_b32 v{vFG}, v{vT}, v{vFG}, vcc")
    Q.e(f"v_lshlrev_b32 v{vPOLL}, 2, v6\nv_mov_b32 v{vONE}, 1")
    Q.e(f"v_cmp_gt_u32 vcc, 48, v1\nv_cndmask_b32 v{vPQW}, v{vT}, v2, vcc")
    Q.e(f"s_cmp_lt_u32 s{sCG}, 12\ns_cselect_b32 s{sB}, 0, {OOB}\nv_add_u32 v{vH3}, s{sB}, v{vHALF}")
    Q.e(f"v_mul_u32_u24 v{vO8}, 1280, v6\nv_lshl_add_u32 v{vO16}, v5, 4, v{vO8}\nv_lshl_add_u32 v{vO8}, v5, 3, v{vO8}")
    Q.e(f"s_mul_i32 s{sB}, s{sWAVE}, 3360\ns_add_u32 s{sB}, s{sB}, {RED - 640}")
    Q.e(f"v_mul_u32_u24 v{vRW0}, 336, v5\nv_lshl_add_u32 v{vRW0}, v6, 4, v{vRW0}\nv_add_u32 v{vRW0}, s{sB}, v{vRW0}")
    Q.e(f"v_min_u32 v{vRW1}, 1, v5\nv_mul_u32_u24 v{vRW1}, 320, v{vRW1}\nv_sub_u32 v{vRW1}, v{vRW0}, v{vRW1}")
    Q.e(f"v_lshlrev_b32 v{vAT}, 2, v0\nv_add_u32 v{vRR}, {RED}, v{vAT}\nv_cmp_gt_u32 vcc, 72, v0\nv_cndmask_b32 v{vATM}, v{vT}, v{vAT}, vcc")
    Q.e(f"s_lshl_b32 s{sB}, s{sWAVE}, 7\ns_add_u32 s{sB}, s{sB}, {BNC}\nv_lshl_add_u32 v{vBW}, v6, 2, s{sB}\nv_lshl_add_u32 v{vBR}, v5, 4, s{sB}")
    mk = lanemask(lambda g, i: i < 8)
    Q.e(f"s_mov_b32 s{sM8}, 0x{mk & 0xffffffff:08x}\ns_mov_b32 s{sM8+1}, 0x{mk >> 32:08x}")
    for n, (i, j) in enumerate(PAIRS):
        mk = red_mask(i, j)
        Q.e(f"s_mov_b32 s{sMASK+2*n}, 0x{mk & 0xffffffff:08x}\ns_mov_b32 s{sMASK+2*n+1}, 0x{mk >> 32:08x}")
    a, b, c, d, e = PV, PV + 1, PV + 2, PV + 3, PV + 4
    Q.e(f"s_lshr_b32 s{sA}, s{sWAVE}, 1\ns_and_b32 s{sB}, s{sWAVE}, 1\ns_lshl_b32 s{sB}, s{sB}, 6\nv_add_u32 v{a}, s{sB}, v1")
    Q.e(f"v_mul_u32_u24 v{b}, 3121, v{a}\nv_lshrrev_b32 v{b}, 16, v{b}\nv_mul_u32_u24 v{c}, 21, v{b}\nv_sub_u32 v{c}, v{a}, v{c}")
    Q.e(f"s_mul_i32 s{sB}, s{sA}, 1680\nv_lshl_add_u32 v{vKVL}, v{a}, 4, s{sB}")
    Q.e(f"v_add_u32 v{b}, s{sA}, v{b}\nv_lshrrev_b32 v{d}, 1, v{b}\nv_and_b32 v{b}, 1, v{b}")
    Q.e(f"v_lshlrev_b32 v{e}, 8, v{d}\nv_lshlrev_b32 v{d}, 7, v{d}\nv_add_u32 v{d}, 512, v{d}\nv_cmp_gt_u32 vcc, 16, v{c}\nv_cndmask_b32 v{d}, v{d}, v{e}, vcc")
    Q.e(f"v_lshl_add_u32 v{d}, v{c}, 4, v{d}\nv_lshl_add_u32 v{d}, v{b}, 3, v{d}")
    Q.e(f"v_cmp_gt_u32 vcc, 105, v{a}\nv_mov_b32 v{e}, 1152\nv_cndmask_b32 v{d}, v{e}, v{d}, vcc\nv_cndmask_b32 v{vKVL}, v{vT}, v{vKVL}, vcc")
    Q.e(f"s_mul_i32 s{sB}, s{sA}, 1280\ns_add_u32 s{sB}, s{sB}, {KVT}\nv_add_u32 v{vKVW}, s{sB}, v{d}")
    Q.e(f"v_lshlrev_b32 v{vZF}, 4, v0\nv_add_u32 v{vZF}, {KVT}, v{vZF}")
    Q.e(f"v_and_b32 v{c}, 7, v6\nv_lshlrev_b32 v{c}, 4, v{c}\nv_add_u32 v{c}, 1152, v{c}")
    Q.e(f"v_and_b32 v{b}, 3, v6\nv_lshrrev_b32 v{d}, 2, v6\nv_cmp_eq_u32 vcc, 0, v{b}\nv_cndmask_b32 v{b}, 4, v{d}, vcc")
    Q.e(f"v_lshlrev_b32 v{b}, 4, v{b}\nv_lshl_add_u32 v{b}, v5, 7, v{b}\nv_add_u32 v{b}, 768, v{b}")
    Q.e(f"v_cmp_eq_u32 vcc, 3, v5\nv_cndmask_b32 v{b}, v{b}, v{c}, vcc\nv_add_u32 v{vE1}, {KVT}, v{b}")
    Q.e(f"v_cndmask_b32 v{b}, v2, v{c}, vcc\nv_add_u32 v{vE0}, {KVT}, v{b}")
    Q.e(f"v_mov_b32 v{CE}, 0\nv_mov_b32 v{CE+1}, s{sEPS}\nv_mov_b32 v{CE+2}, 0\nv_mov_b32 v{CE+3}, 0")
    for r in range(4):
        Q.e(f"v_mov_b32 v{ONES+r}, 0x3f803f80")
    P = Prog()
    P.e(".p2align 6\nL_layer:")
    for c in order:
        for i in range(5):
            P.add(Virtual(ch["p1"][c].tag))
    Sched.dma_ctx = None
    phase1(P, ch)
    phase2(P, ch)
    phase3(P, ch)
    phase4(P, ch)
    return Q, P


K0ST = ""


def k0_prologue(P, nwg):
    P.e(f"s_cmp_ge_u32 s2, {nwg}\ns_cbranch_scc1 L_exit")
    if STAMPS:
        P.raw(f"{STAMP_INS} s[70:71]")
    P.e("s_load_dwordx2 s[4:5], s[0:1], 72", tag="ka")
    P.e("v_lshrrev_b32 v7, 6, v0\nv_and_b32 v1, 63, v0\nv_readfirstlane_b32 s12, v7\nv_lshlrev_b32 v2, 4, v1\nv_lshrrev_b32 v5, 4, v1\nv_and_b32 v6, 15, v1")
    P.e(f"s_mov_b32 s6, {WS_USED}\ns_mov_b32 s7, 0x20000")
    if CFG.get("cpf"):
        P.e(f"s_getpc_b64 s[40:41]\nL_pc:\ns_add_u32 s40, s40, main_kernel-L_pc\ns_addc_u32 s41, s41, 0")
        P.e(f"s_lshr_b32 s42, s2, 3\ns_min_u32 s42, s42, {CFG['cpf']-1}\ns_lshl_b32 s42, s42, 12\nv_lshl_add_u32 v90, v0, 4, s42")
        P.e("global_load_dwordx4 v[92:95], v90, s[40:41]")


def k0_end(P):
    if STAMPS:
        P.e(f"s_waitcnt vmcnt(0)\n{STAMP_INS} s[72:73]\ns_mov_b64 exec, -1\ns_lshl_b32 s90, s2, 7\ns_add_u32 s90, s90, {STAMP}")
        P.e("s_cmp_lg_u32 s12, 0\ns_cselect_b32 s91, 0x40000000, 0\nv_mov_b32 v9, s91\ns_waitcnt lgkmcnt(0)")
        P.e("v_mov_b32 v10, s70\nv_mov_b32 v11, s71\nv_mov_b32 v12, s72\nv_mov_b32 v13, s73\nbuffer_store_dwordx4 v[10:13], v9, s[4:7], s90 offen")
    P.e("s_endpgm")


K0_LDS = 40 * 1024
NJ1, NJ3, NJB, NJC = 64, 128, 74, 64


def gen_k0():
    texts = []
    mx = {"v": 0, "s": 0}
    P = Prog()
    k0_prologue(P, NJ1 + NJ3 + NJB + NJC)
    P.e("s_load_dwordx4 s[52:55], s[0:1], 0", tag="ka")
    P.e("s_load_dwordx2 s[56:57], s[0:1], 16", tag="ka")
    P.e("s_load_dwordx4 s[60:63], s[0:1], 32", tag="ka")
    P.e("s_load_dwordx2 s[58:59], s[0:1], 48", tag="ka")
    P.e("s_mov_b32 s11, 0x20000")
    P.e("v_lshrrev_b32 v7, 2, v6\nv_and_b32 v8, 3, v6")
    P.e("v_and_b32 v9, 1, v5\nv_lshl_add_u32 v9, v9, 2, v7\nv_lshlrev_b32 v9, 1, v9")
    P.e("v_lshl_add_u32 v10, v5, 3, v7\nv_lshlrev_b32 v10, 8, v10")
    P.e("s_lshr_b32 s17, s12, 1\ns_lshl_b32 s17, s17, 3\nv_lshl_add_u32 v11, v5, 1, s17\nv_xor_b32 v11, v11, v6")
    P.wlg("ka")
    P.e("s_and_b32 s5, s5, 0xffff")
    P.e(f"s_cmp_lt_u32 s2, {NJ1 + NJ3}\ns_cbranch_scc1 L_k0_A")
    P.e(f"s_cmp_lt_u32 s2, {NJ1 + NJ3 + NJB}\ns_cbranch_scc1 L_k0_B")
    P.e("s_branch L_k0_C")
    texts.append(P)

    P = Prog()
    P.e("L_k0_A:")
    P.e(f"s_cmp_lt_u32 s2, {NJ1}\ns_cbranch_scc0 L_k0_A3")
    P.e("s_lshr_b32 s14, s2, 2\ns_and_b32 s15, s2, 3")
    P.e(f"s_mov_b32 s8, s54\ns_and_b32 s9, s55, 0xffff\ns_mov_b32 s10, {640*1920*2}\ns_mov_b32 s20, 3840")
    P.e("v_min_u32 v12, 14, v11\nv_mul_u32_u24 v13, 52, v12\nv_lshrrev_b32 v13, 8, v13")
    P.e("v_mul_u32_u24 v13, 1200, v13\nv_lshl_add_u32 v12, v12, 4, v13")
    P.e("s_mul_i32 s21, s14, 80")
    P.e("s_lshl_b32 s22, s12, 5\ns_add_u32 s22, s22, 80\ns_mov_b32 s23, 8\ns_mov_b32 s24, 3")
    P.e("s_mov_b32 s25, 208\ns_mov_b32 s26, 8\ns_mov_b32 s27, 3")
    P.e("s_cmp_eq_u32 s12, 1\ns_cselect_b32 s25, 0, s25\ns_cselect_b32 s26, 16, s26")
    P.e("s_cmp_eq_u32 s12, 2\ns_cselect_b32 s25, 8, s25\ns_cselect_b32 s26, 16, s26")
    P.e("s_cmp_eq_u32 s12, 3\ns_cselect_b32 s25, 64, s25\ns_cselect_b32 s27, 1, s27")
    P.e(f"s_mul_i32 s28, s14, {21*8*1024}\ns_add_u32 s28, s28, {WF1}\ns_lshl_b32 s17, s12, 10\ns_add_u32 s28, s28, s17")
    P.e(f"s_cmp_eq_u32 s12, 0\ns_mov_b32 s17, {104*1024}\ns_mov_b32 s36, 3072\ns_cselect_b32 s17, 4096, s17\ns_cselect_b32 s36, 5120, s36\ns_add_u32 s29, s28, s17\ns_mov_b32 s30, 5120")
    P.e("s_branch L_k0_Ac")
    P.e("L_k0_A3:")
    P.e(f"s_sub_u32 s16, s2, {NJ1}\ns_and_b32 s18, s16, 1\ns_lshr_b32 s15, s16, 1\ns_and_b32 s15, s15, 3\ns_lshr_b32 s14, s16, 3")
    P.e("s_cmp_eq_u32 s18, 0\ns_cselect_b32 s8, s60, s62\ns_cselect_b32 s9, s61, s63\ns_and_b32 s9, s9, 0xffff")
    P.e(f"s_mov_b32 s10, {640*1728*2}\ns_mov_b32 s20, 3456")
    P.e("s_cmp_lt_u32 s14, 12\ns_cselect_b32 s17, 13, 11")
    P.e("v_min_u32 v12, s17, v11\nv_lshlrev_b32 v12, 4, v12")
    P.e("s_mul_i32 s21, s14, 224\ns_mul_i32 s17, s14, 192\ns_add_u32 s17, s17, 384\ns_min_u32 s21, s21, s17")
    P.e("s_lshr_b32 s22, s12, 1\ns_lshl_b32 s22, s22, 6\ns_and_b32 s17, s12, 1\ns_lshl_b32 s17, s17, 3\ns_add_u32 s22, s22, s17")
    P.e("s_mov_b32 s23, 16\ns_mov_b32 s24, 3\ns_mov_b32 s27, 3")
    P.e("s_add_u32 s25, s17, 128\ns_cmp_lt_u32 s12, 2\ns_cselect_b32 s25, s25, 192\ns_cselect_b32 s26, 16, 8")
    P.e(f"s_mul_i32 s28, s14, {21*14*1024}\ns_add_u32 s28, s28, {WF3}\ns_lshl_b32 s17, s18, 10\ns_add_u32 s28, s28, s17")
    P.e(f"s_cmp_eq_u32 s12, 1\ns_mov_b32 s17, {252*1024}\ns_cselect_b32 s17, {210*1024}, s17\ns_cmp_eq_u32 s12, 0\ns_cselect_b32 s17, {128*1024}, s17\ns_mov_b32 s36, 2048\ns_cselect_b32 s36, 4096, s36\ns_add_u32 s29, s28, s17")
    P.e(f"s_lshl_b32 s17, s12, 11\ns_cmp_eq_u32 s12, 3\ns_cselect_b32 s17, {126*1024}, s17\ns_mov_b32 s30, 6144\ns_cselect_b32 s30, 4096, s30\ns_add_u32 s28, s28, s17")
    P.e("L_k0_Ac:")
    P.e("s_lshl_b32 s17, s12, 2\nv_add_u32 v13, s17, v5\nv_mul_lo_u32 v13, v13, s20\nv_add_u32 v12, v12, v13")
    P.e("s_mul_i32 s31, s15, 160\ns_mul_i32 s31, s31, s20\ns_add_u32 s31, s31, s21\ns_lshl_b32 s32, s20, 4")
    P.e("s_lshl_b32 s33, s12, 10")
    for k in range(10):
        P.e(f"s_add_u32 m0, s33, {k*4096}")
        if k:
            P.e("s_add_u32 s31, s31, s32")
        P.e("buffer_load_dwordx4 v12, s[8:11], s31 offen lds", tag="d")
    for tt, (sa, sb, sm) in enumerate(((22, 23, 24), (25, 26, 27))):
        a = 14 + tt
        P.e(f"v_min_u32 v{a}, s{sm}, v8\nv_mul_lo_u32 v{a}, v{a}, s{sb}\nv_add_u32 v{a}, s{sa}, v{a}")
        P.e(f"v_lshrrev_b32 v16, 4, v{a}\nv_xor_b32 v16, v16, v9\nv_and_b32 v{a}, 8, v{a}")
        P.e(f"v_lshl_add_u32 v{a}, v16, 4, v{a}\nv_add_u32 v{a}, v{a}, v10")
    for r in range(4):
        P.e(f"v_mov_b32 v{20+r}, 0x3f803f80")
    P.e("s_mul_i32 s18, s15, 5\ns_mul_i32 s17, s18, s30\ns_add_u32 s34, s28, s17\ns_mul_i32 s17, s18, s36\ns_add_u32 s35, s29, s17")
    P.wvm("d")
    P.e("s_barrier")
    for tt in range(2):
        for k in range(5):
            d = 32 + (tt * 5 + k) * 4
            P.e(f"ds_read_b64_tr_b16 {V(d, 2)}, v{14+tt} offset:{k*8192}", tag=f"t{tt}{k}")
            P.e(f"ds_read_b64_tr_b16 {V(d+2, 2)}, v{14+tt} offset:{k*8192+1024}", tag=f"t{tt}{k}")
            if tt == 1 and k == 1:
                P.wlg("t04")
    for tt in range(2):
        for k in range(5):
            d = 32 + (tt * 5 + k) * 4
            P.wlg(f"t{tt}{k}")
            P.e(f"buffer_store_dwordx4 {V(d, 4)}, v2, s[4:7], s{34+tt} offen{K0ST}")
            P.e(f"s_add_u32 s{34+tt}, s{34+tt}, s{36 if tt else 30}")
            c = V(24 + 4 * tt, 4)
            P.e(f"{MF} {c}, {V(20, 4)}, {V(d, 4)}, {'0' if k == 0 else c}")
    P.e("s_lshl_b32 s18, s15, 8\ns_mul_i32 s17, s30, 20\ns_add_u32 s17, s17, s18\ns_add_u32 s28, s28, s17\ns_mul_i32 s17, s36, 20\ns_add_u32 s17, s17, s18\ns_add_u32 s29, s29, s17")
    set_exec(P, 0xffff)
    for tt in range(2):
        c = 24 + 4 * tt
        e = 72 + 4 * tt
        P.e(f"v_cvt_pk_bf16_f32 v{e}, v{c}, v{c}\nv_and_b32 v16, 0xffff0000, v{e}\nv_sub_f32 v17, v{c}, v16")
        P.e(f"v_cvt_pk_bf16_f32 v{e+1}, v17, v17\nv_and_b32 v16, 0xffff0000, v{e+1}\nv_sub_f32 v17, v17, v16")
        P.e(f"v_cvt_pk_bf16_f32 v{e+2}, v17, v{c}\nv_mov_b32 v{e+3}, 0")
        P.e(f"buffer_store_dwordx4 {V(e, 4)}, v2, s[4:7], s{28+tt} offen{K0ST}")
    k0_end(P)
    texts.append(P)

    P = Prog()
    P.e("L_k0_B:")
    P.e(f"s_sub_u32 s16, s2, {NJ1 + NJ3}")
    P.e("s_cmp_lt_u32 s16, 20\ns_cbranch_scc1 L_k0_B2")
    P.e(f"s_sub_u32 s16, s16, 20\ns_mov_b32 s8, s58\ns_and_b32 s9, s59, 0xffff\ns_mov_b32 s10, {1728*640*2}")
    P.e(f"s_mov_b32 s20, {54*5*1024}\ns_mov_b32 s21, {WF4}")
    P.e("s_lshl_b32 s17, s16, 5\ns_lshl_b32 s18, s12, 2\ns_add_u32 s17, s17, s18\nv_add_u32 v12, s17, v5\nv_add_u32 v13, 16, v12")
    P.e("s_branch L_k0_Bc")
    P.e("L_k0_B2:")
    P.e(f"s_mov_b32 s8, s56\ns_and_b32 s9, s57, 0xffff\ns_mov_b32 s10, {640*640*2}")
    P.e(f"s_mov_b32 s20, {20*5*1024}\ns_mov_b32 s21, {WF2}")
    P.e("s_lshl_b32 s18, s12, 2\nv_add_u32 v14, s18, v5\nv_and_b32 v15, 7, v14\nv_lshrrev_b32 v14, 3, v14")
    P.e("s_lshl_b32 s17, s16, 3\nv_add_u32 v15, s17, v15\nv_mul_u32_u24 v16, 205, v15\nv_lshrrev_b32 v16, 10, v16")
    P.e("v_mul_u32_u24 v17, 5, v16\nv_sub_u32 v17, v15, v17\nv_mul_u32_u24 v16, 20, v16")
    P.e("v_cmp_gt_u32 vcc, 4, v17")
    for k in range(2):
        if k:
            P.e("v_add_u32 v14, 2, v14")
        P.e(f"v_lshl_add_u32 v18, v14, 2, v17\nv_add_u32 v19, 16, v14\nv_cndmask_b32 v18, v19, v18, vcc\nv_add_u32 v{12+k}, v16, v18")
    P.e("L_k0_Bc:")
    for k in range(2):
        P.e(f"v_mul_u32_u24 v{12+k}, 1280, v{12+k}\nv_lshl_add_u32 v{12+k}, v11, 4, v{12+k}")
    P.e("s_lshl_b32 s33, s12, 10")
    for pn in range(5):
        for k in range(2):
            P.e(f"s_add_u32 m0, s33, {pn*8192 + k*4096}\ns_mov_b32 s31, {pn*256}")
            P.e(f"buffer_load_dwordx4 v{12+k}, s[8:11], s31 offen lds", tag="d")
    P.e("s_mul_i32 s22, s12, 320")
    P.e("v_lshlrev_b32 v14, 4, v8\nv_add_u32 v14, s22, v14\nv_lshlrev_b32 v15, 3, v8\nv_add_u32 v15, s22, v15")
    for cq in range(2):
        for t in range(5):
            a = 20 + cq * 5 + t
            k0 = 160 * cq + (64 * (t // 2) + 8 * (t % 2) if t < 4 else 128)
            P.e(f"v_add_u32 v16, {k0}, {'v14' if t < 4 else 'v15'}")
            P.e("v_bfe_u32 v17, v16, 4, 4\nv_xor_b32 v17, v17, v9\nv_lshrrev_b32 v18, 8, v16\nv_and_b32 v16, 8, v16")
            P.e(f"v_lshl_add_u32 v16, v17, 4, v16\nv_lshl_add_u32 v16, v18, 13, v16\nv_add_u32 v{a}, v16, v10")
    P.e("s_lshl_b32 s17, s12, 1\ns_mul_i32 s17, s17, s20\ns_add_u32 s21, s21, s17\ns_mul_i32 s17, s16, 5120\ns_add_u32 s21, s21, s17")
    P.wvm("d")
    P.e("s_barrier")
    for n in range(10):
        d = 32 + 4 * n
        P.e(f"ds_read_b64_tr_b16 {V(d, 2)}, v{20+n}", tag=f"t{n}")
        P.e(f"ds_read_b64_tr_b16 {V(d+2, 2)}, v{20+n} offset:1024", tag=f"t{n}")
        if n == 6:
            P.wlg("t3")
    for n in range(10):
        d = 32 + 4 * n
        if n == 4:
            P.e("s_add_u32 s17, s21, 4096")
        if n == 5:
            P.e("s_add_u32 s21, s21, s20")
        if n == 9:
            P.e("s_add_u32 s17, s21, 4096")
        P.wlg(f"t{n}")
        t = n % 5
        P.e(f"buffer_store_dwordx4 {V(d, 4)}, v2, s[4:7], {'s21' if t < 4 else 's17'} offen offset:{(t % 4)*1024}{K0ST}")
    k0_end(P)
    texts.append(P)

    P = Prog()
    P.e("L_k0_C:")
    P.e(f"s_sub_u32 s16, s2, {NJ1 + NJ3 + NJB}")
    P.e(f"s_mov_b32 s8, s52\ns_and_b32 s9, s53, 0xffff\ns_mov_b32 s10, {XSZ}")
    P.e("s_lshl_b32 s17, s12, 2\nv_add_u32 v12, s17, v5\nv_xor_b32 v13, v12, v6\nv_mul_u32_u24 v12, 1280, v12\nv_lshl_add_u32 v12, v13, 4, v12")
    P.e("s_mul_i32 s20, s16, 40960\ns_lshl_b32 s33, s12, 10")
    for ml in range(2):
        for pn in range(5):
            P.e(f"s_add_u32 m0, s33, {ml*20480 + pn*4096}\ns_add_u32 s31, s20, {ml*20480 + pn*256}")
            P.e("buffer_load_dwordx4 v12, s[8:11], s31 offen lds", tag="d")
    for r in range(4):
        P.e(f"v_mov_b32 v{20+r}, 0")
    P.e(f"s_and_b32 s17, s16, 31\ns_mul_i32 s17, s17, {ZSZ//32}\ns_lshr_b32 s18, s16, 5\ns_mul_i32 s18, s18, {LB}\ns_add_u32 s17, s17, s18\ns_add_u32 s17, s17, {KVA}")
    P.e(f"v_lshlrev_b32 v14, 4, v0\nbuffer_store_dwordx4 {V(20, 4)}, v14, s[4:7], s17 offen{K0ST}")
    P.e(f"v_cmp_gt_u32 vcc, {(ZSZ//32 - 4096)//16}, v0\nv_mov_b32 v15, 0x40000000\nv_cndmask_b32 v14, v15, v14, vcc\ns_add_u32 s17, s17, 4096")
    P.e(f"buffer_store_dwordx4 {V(20, 4)}, v14, s[4:7], s17 offen{K0ST}")
    P.e("s_lshr_b32 s22, s12, 1\ns_and_b32 s23, s12, 1\ns_mul_i32 s24, s22, 20480\ns_mul_i32 s25, s23, 40")
    P.e("v_add_u32 v14, s25, v5\nv_lshlrev_b32 v15, 8, v6\nv_add_u32 v15, s24, v15")
    for k in range(10):
        P.e(f"v_add_u32 v16, {4*k}, v14\nv_lshrrev_b32 v17, 4, v16\nv_xor_b32 v16, v16, v6\nv_and_b32 v16, 15, v16")
        P.e(f"v_lshl_add_u32 v16, v16, 4, v15\nv_lshl_add_u32 v{72+k}, v17, 12, v16")
    P.e(f"s_add_u32 s26, s20, s24\ns_mul_i32 s17, s23, 10240\ns_add_u32 s26, s26, s17\ns_add_u32 s26, s26, {XA}")
    P.e("v_mov_b32 v24, 0\nv_mov_b32 v25, 0\nv_mov_b32 v26, 0x3f803f80")
    P.wvm("d")
    P.e("s_barrier")
    for k in range(10):
        P.e(f"ds_read_b128 {V(32+4*k, 4)}, v{72+k}", tag=f"t{k}")
    for k in range(10):
        if k and k % 4 == 0:
            P.e("s_add_u32 s26, s26, 4096")
        P.wlg(f"t{k}")
        P.e(f"buffer_store_dwordx4 {V(32+4*k, 4)}, v2, s[4:7], s26 offen offset:{(k % 4)*1024}{K0ST}")
        for r in range(4):
            P.e(f"v_dot2_f32_bf16 v24, v{32+4*k+r}, v26, v24")
            P.e(f"v_dot2_f32_bf16 v25, v{32+4*k+r}, v{32+4*k+r}, v25")
    P.add(allreduce_g(24, 27))
    P.add(allreduce_g(25, 28))
    P.e("v_cmp_eq_u32 vcc, 0, v5\nv_cndmask_b32 v24, 0, v24, vcc\nv_cndmask_b32 v25, 0, v25, vcc")
    P.e(f"s_lshl_b32 s17, s16, 1\ns_add_u32 s17, s17, s22\ns_lshl_b32 s17, s17, 10\ns_lshl_b32 s18, s23, 7\ns_add_u32 s17, s17, s18\ns_add_u32 s17, s17, {STA}")
    P.e("v_lshlrev_b32 v14, 8, v5\nv_lshl_add_u32 v14, v6, 3, v14")
    P.e(f"buffer_store_dwordx2 v[24:25], v14, s[4:7], s17 offen{K0ST}")
    k0_end(P)
    texts.append(P)
    return texts


def build():
    body, desc = [], []
    k0 = gen_k0()
    regs = {"v": 0, "a": -1, "s": 0}
    for p in k0:
        r = p.max_regs()
        for k in regs:
            regs[k] = max(regs[k], r[k])
    body.append(".globl k0_kernel\n.p2align 8\n.type k0_kernel,@function\nk0_kernel:\n" + "".join(p.finish() for p in k0).replace("L_exit", "L_exit_k0") + "L_exit_k0:\n  s_endpgm\n")
    desc.append(descriptor("k0_kernel", regs["v"] + 1, 0, max(regs["s"] + 1, 16)))
    Q, P = gen_main()
    rq, rp = Q.max_regs(), P.max_regs()
    print("main regs", rq, rp, file=sys.stderr)
    body.append(".globl main_kernel\n.p2align 8\n.type main_kernel,@function\nmain_kernel:\n" + Q.finish() + P.finish() + "L_exit:\n  s_endpgm\n")
    desc.append(descriptor("main_kernel", 256, 256, max(rq["s"], rp["s"]) + 1))
    L = [f"; @launch kernel=k0_kernel grid=({NJ1+NJ3+NJB+NJC},1,1) block=(256,1,1) lds={K0_LDS}",
         f"; @launch kernel=main_kernel grid=(256,1,1) block=(256,1,1) lds={8*SLOT}"]
    head = "; generated by tools/gen2.py: weight re-layout launch + persistent launch (qkv, attn-out, gate/up, down) x 2 layers\n"
    return head + "\n".join(L) + '\n.amdgcn_target "amdgcn-amd-amdhsa--gfx950"\n.text\n' + "".join(body) + "".join(desc)


if __name__ == "__main__":
    import argparse
    ap = argparse.ArgumentParser()
    ap.add_argument("-o", default="v2.s")
    ap.add_argument("--stamps", action="store_true")
    ap.add_argument("--clk", action="store_true")
    ap.add_argument("--cfg", default="")
    a = ap.parse_args()
    STAMPS = a.stamps
    if a.clk:
        STAMP_INS = "s_memtime"
    for kv in a.cfg.split(","):
        if kv:
            k, v = kv.split("=")
            CFG[k] = float(v) if "." in v else int(v)
    if CFG.get("k0sc1"):
        K0ST = " sc1"
    open(a.o, "w").write(build())
    print("written", a.o)
```

```python
import sys, struct
from collections import deque
from asmlib import Prog, Ins, Wait, Virtual, V, A, S, descriptor, TRANS
from gen import f32, LOG2E, MF, allreduce_g, stats_finish, lanemask, set_exec

WF1 = 0
WF2 = WF1 + 16 * 168 * 1024
WF3 = WF2 + 8 * 100 * 1024
WF4 = WF3 + 16 * 294 * 1024
L0 = WF4 + 8 * 270 * 1024 + 4096
XSZ = 2048 * 640 * 2
XA = L0
PQ = XA + XSZ
XB = PQ + XSZ
HB = XB + XSZ
STA = HB + 2048 * 1728 * 2
STB = STA + 128 * 1024
KVA = STB + 128 * 1024
F0 = KVA + 56 * 1024
F1 = F0 + 32768
F2 = F1 + 16384
F3 = F2 + 32768
ZSZ = F3 + 32768 - KVA
LB = F3 + 32768 - L0
STAMP = L0 + 2 * LB
WS_USED = STAMP + 4 * 512 * 128
assert ZSZ == 172032 and L0 % 4096 == 0 and LB % 4096 == 0
STAMPS = False
STAMP_INS = "s_memrealtime"
OOB = 0x40000000
SLOT = 20480
SPIN = 200000
CFG = dict(cpf=9, g1=1, g3=2, g4=2, b1=4, b3=3, b4=8, la=6)

vSTL, vHALF, vPQT, vSTS, vRW0, vRW1, vRR, vAT, vATM, vKVL, vKVW, vE0, vE1, vZF, vPQW, vFC, vFG, vPOLL, vONE, vBW, vBR, vH3, vO16, vO8, vT = range(7, 32)
XR, CE, ONES, PV = 32, 42, 46, 50
WP = 224
sWAVE, sRB, sCG, sMT0, sMT, sCG8, sLAY = 12, 13, 14, 15, 16, 17, 20
sW5, sW1, sW2, sW3, sW4 = 21, 22, 23, 24, 25
sFA, sFB, sFG, sEPS = 26, 27, 28, 29
sX0, sX1, sXT, sDT, sA, sB, sC, sSPIN = 30, 31, 32, 33, 34, 35, 36, 37
sM8, sMASK = 38, 40
sSTMP = 64
RED = 7 * SLOT
BNC = RED + 13440
KVT = 6 * SLOT


def cost(it):
    if isinstance(it, (Wait, Virtual)):
        return 0
    if isinstance(it, list):
        return sum(cost(x) for x in it)
    t = it.text
    if t.startswith("v_mfma"):
        return 12
    if t.startswith(TRANS):
        return 8
    return 4


def I(text, tag=None):
    return [Ins(x.strip(), tag) for x in text.split("\n") if x.strip()]


_nstamp = [0]


def stamp(P):
    if STAMPS:
        j = _nstamp[0]
        _nstamp[0] += 1
        P.raw(f"{STAMP_INS} s[{sSTMP+2*j}:{sSTMP+2*j+1}]\ns_waitcnt lgkmcnt(0)")


def stamp_flush(P):
    if STAMPS:
        P.raw(f"s_cmp_lg_u32 s{sWAVE}, 0\ns_cbranch_scc1 L_nost{len(P.items)}")
        lab = P.items[-1].text.split()[-1]
        P.raw(f"s_cmp_lg_u32 s{sLAY}, 0\ns_cselect_b32 s{sA}, {512*128}, 0\ns_lshl_b32 s{sB}, s2, 7\ns_add_u32 s{sA}, s{sA}, s{sB}\ns_add_u32 s{sA}, s{sA}, {STAMP + 512*128}")
        P.raw(f"v_mov_b32 v{vT}, 0")
        for j in range(_nstamp[0]):
            P.raw(f"v_mov_b32 v250, s{sSTMP+2*j}\nv_mov_b32 v251, s{sSTMP+2*j+1}\ns_nop 1")
            P.raw(f"buffer_store_dwordx2 v[250:251], v{vT}, s[4:7], s{sA} offen offset:{8*j}\ns_nop 1")
        P.raw(f"s_waitcnt vmcnt(0)\n{lab}:")


class Chunk:
    def __init__(self, name, sbase, foff, n, slot, event):
        self.name, self.sbase, self.foff, self.n, self.slot, self.event = name, sbase, foff, n, slot, event
        self.q = (n + 3) // 4
        self.tag = "W" + name


class Op:
    def __init__(self, fn, tag, prio, event=None, step=0):
        self.fn, self.tag, self.prio, self.event, self.step = fn, tag, prio, event, step


class Sched:
    dma_ctx = None
    x_ctx = None

    def __init__(self, P, name):
        self.P, self.name = P, name
        self.vq, self.aq = [], deque()
        self.events = {None}
        self.marks = set()
        self.now = 0

    def dma(self, ch, prio):
        for i in range(ch.q):
            def fn(ch=ch, i=i):
                L = []
                key = (ch.name, i // 4)
                if Sched.dma_ctx != key:
                    Sched.dma_ctx = key
                    o = (i // 4) * 4096
                    if ch.q == 5:
                        L += I(f"s_add_u32 m0, s{sW5}, {ch.slot*SLOT + o}\ns_add_u32 s{sDT}, s{ch.sbase}, {ch.foff*1024 + o}")
                    else:
                        L += I(f"s_mul_i32 s{sDT}, s{sWAVE}, {ch.q*1024}\ns_add_u32 m0, s{sDT}, {ch.slot*SLOT}\ns_sub_u32 s{sDT}, s{sDT}, s{sW5}")
                        L += I(f"s_add_u32 s{sDT}, s{sDT}, s{ch.sbase}\ns_add_u32 s{sDT}, s{sDT}, {ch.foff*1024}")
                L += I(f"buffer_load_dwordx4 v2, s[4:7], s{sDT} offen offset:{(i % 4)*1024} lds", ch.tag)
                return L
            self.vq.append(Op(fn, ch.tag, prio + i * 1e-3, ch.event))

    def load(self, dst, vaddr, sbase, off, tag, prio, w=4, event=None, step=0):
        def fn():
            L = []
            if off < 4096:
                so = f"s{sbase}"
            else:
                key = (sbase, off >> 12)
                if Sched.x_ctx != key:
                    Sched.x_ctx = key
                    L += I(f"s_add_u32 s{sXT}, s{sbase}, {off & ~4095}")
                so = f"s{sXT}"
            return L + I(f"buffer_load_dwordx{w} {dst}, v{vaddr}, s[4:7], {so} offen offset:{off & 4095} sc1", tag)
        self.vq.append(Op(fn, tag, prio, event, step))

    def alu(self, items, step=0, event=None):
        for it in items:
            if isinstance(it, str):
                for x in I(it):
                    self.aq.append((x, step, event))
            else:
                self.aq.append((it, step, event))

    def mark(self, name):
        self.aq.append((name, 0, None))

    def emit_op(self, op):
        self.vq.remove(op)
        L = op.fn()
        self.P.add(L)
        return cost(L)

    def next_op(self):
        el = [o for o in self.vq if o.event in self.events and o.step <= self.now]
        return min(el, key=lambda o: o.prio) if el else None

    def burst(self, n):
        for _ in range(n):
            op = self.next_op()
            if op is None:
                break
            self.emit_op(op)

    def force(self, tag):
        ops = sorted([o for o in self.vq if o.tag == tag], key=lambda o: o.prio)
        if ops:
            print(f"  [{self.name}] forced {len(ops)} x {tag} at step {self.now}", file=sys.stderr)
        for o in ops:
            assert o.event in self.events, (tag, o.event)
            self.emit_op(o)

    def pop_alu(self):
        it, _, _ = self.aq.popleft()
        if isinstance(it, str):
            self.marks.add(it)
            return 0
        if isinstance(it, Wait) and it.cls == "vm":
            self.force(it.tag)
        self.P.add(it)
        return cost(it)

    def drain_to(self, mark):
        while mark not in self.marks:
            self.pop_alu()

    def drain(self):
        while self.aq:
            self.pop_alu()

    def run(self, steps, chunks, vgap, extra=0, nobar=()):
        P, LA = self.P, CFG["la"]
        seen = set()

        def rd(m):
            st = steps[m]
            dst = A(WP + 4 * (m % 8), 4)
            if "fr" in st:
                c, f = st["fr"]
                ch = chunks[c]
                if c not in seen:
                    seen.add(c)
                    if c not in nobar:
                        self.force(ch.tag)
                        P.wvm(ch.tag)
                        P.e("s_barrier")
                    self.events.add(f"{self.name}:{c}")
                off = ch.slot * SLOT + f * 1024
                P.e(f"ds_read_b128 {dst}, v{2 + (off >> 16)} offset:{off & 0xffff}", tag=f"R{m}")
            else:
                P.e(st["rd"](dst), tag=f"R{m}")

        n = len(steps)
        self.now = 0
        for m in range(min(LA, n)):
            rd(m)
        credit, lastv = 0, -100
        for i, st in enumerate(steps):
            self.now = i
            if "aw" in st:
                self.drain_to(st["aw"])
            for t in st.get("xw", []):
                self.force(t)
                P.wvm(t)
            P.wlg(f"R{i}")
            mfs = st["mf"](A(WP + 4 * (i % 8), 4))
            for k, t in enumerate(mfs):
                P.e(t)
                credit = min(credit, 0) + 8 + extra
                if k == len(mfs) - 1 and i + LA < n:
                    rd(i + LA)
                    credit -= 4
                if k == 0 and i - lastv >= vgap:
                    op = self.next_op()
                    if op is not None:
                        credit -= self.emit_op(op)
                        lastv = i
                while credit > 0 and self.aq and self.aq[0][1] <= i and self.aq[0][2] in self.events:
                    credit -= self.pop_alu()
        self.now = n
        P.e("s_barrier")
        self.events.add(f"{self.name}:end")
        stamp(P)

    def late(self):
        n = len(self.vq)
        self.burst(10 ** 6)
        assert not self.vq
        print(f"  [{self.name}] late ops {n}", file=sys.stderr)


def mk_chunks():
    ch = {}
    s1 = [6, 7, 0, 1, 2, 3, 4, 5, 6]
    e1 = ["p4:9", "p4:10", "p4:11", "p4:12", "p4:13", "p4:end", "p4:end", "p4:8", "p1:2"]
    ch["p1"] = [Chunk(f"1_{c}", sW1, 20 * c, 20 if c < 8 else 8, s1[c], e1[c]) for c in range(9)]
    ch["p2"] = [Chunk(f"2_{c}", sW2, 20 * c, 20, 1 + c, f"p1:{5+c}" if c < 4 else "p1:end") for c in range(5)]
    e3 = ["p1:4", "p2:2", "p2:3", "p2:4"] + ["p2:end"] * 4 + [f"p3:{c-6}" for c in range(8, 15)]
    ch["p3"] = [Chunk(f"3_{c}", sW3, 20 * c, 20 if c < 14 else 14, c % 8, e3[c]) for c in range(15)]
    e4 = [f"p3:{c+9}" for c in range(6)] + ["p3:end"] * 2 + [f"p4:{c-6}" for c in range(8, 14)]
    ch["p4"] = [Chunk(f"4_{c}", sW4, 20 * c, 20 if c < 13 else 10, (15 + c) % 8, e4[c]) for c in range(14)]
    return ch


def handoff(P, sc, wtag, wr, stride_reg, uid):
    sc.late()
    P.e(wr)
    P.wvm(wtag)
    P.e("s_barrier")
    P.raw(f"s_cmp_lg_u32 s{sWAVE}, 0\ns_cbranch_scc1 L_nf{uid}\nbuffer_store_dword v{vONE}, v{stride_reg}, s[4:7], s{sA} offen sc1\nL_nf{uid}:")
    stamp(P)


def poll(P, rdoff, uid, wide=False, label=None):
    P.e(rdoff)
    P.raw(f"s_cmp_lg_u32 s{sWAVE}, 0\ns_cbranch_scc1 L_pd{uid}\ns_mov_b32 s{sSPIN}, {SPIN}\nL_pl{uid}:")
    if wide:
        P.raw(f"buffer_load_dwordx4 v[252:255], v2, s[4:7], s{sB} offen sc1\ns_waitcnt vmcnt(0)\nv_min_u32 v252, v252, v253\nv_min3_u32 v252, v252, v254, v255")
    else:
        P.raw(f"buffer_load_dword v252, v{vPOLL}, s[4:7], s{sB} offen sc1\ns_waitcnt vmcnt(0)")
    P.raw(f"v_cmp_eq_u32 vcc, 0, v252\ns_nop 1\ns_cbranch_vccz L_pd{uid}")
    P.raw(f"s_sub_u32 s{sSPIN}, s{sSPIN}, 1\ns_cmp_lg_u32 s{sSPIN}, 0\ns_cbranch_scc1 L_pl{uid}\nL_pd{uid}:")
    P.e("s_barrier")
    if label:
        P.e(label)
    stamp(P)


def x_phase_loads(sc, P, xbuf, stbuf, VST, nt1):
    P.e(f"s_mul_i32 s{sX0}, s{sMT0}, 20480\ns_add_u32 s{sX0}, s{sX0}, s{sLAY}\ns_add_u32 s{sX0}, s{sX0}, {xbuf}\ns_add_u32 s{sX1}, s{sX0}, 20480")
    P.e(f"s_lshl_b32 s{sC}, s{sMT0}, 10\ns_add_u32 s{sC}, s{sC}, s{sLAY}\ns_add_u32 s{sC}, s{sC}, {stbuf}")
    Sched.x_ctx = None
    for k0 in range(0, 20, 2):
        for m in range(2):
            for kb in (k0, k0 + 1):
                sc.load(A((m * 20 + kb) * 4, 4), 2, sX0 + m, kb * 1024, f"X{k0}", k0 * nt1 - 100 + m + (kb - k0) * 0.1)
    for m in range(2):
        for j in range(2):
            sc.load(V(VST + 4 * m + 2 * j, 2), vSTL, sC, m * 1024 + j * 128, "st", 8 * nt1 - 101, w=2)


def phi4(xs, rs, cs, ts, outs):
    L = [f"v_mul_f32 v{t}, v{x}, v{c}" for x, c, t in zip(xs, cs, ts)]
    L += [f"v_fma_f32 v{o}, v{x}, v{r}, s{sEPS}" for x, r, o in zip(xs, rs, outs)]
    L += [f"v_exp_f32 v{t}, v{t} clamp" for t in ts]
    L += [f"v_max_f32 v{o}, s{sEPS}, v{o}" for o in outs]
    L += [f"v_add_f32 v{o}, v{o}, v{t}" for o, t in zip(outs, ts)]
    return L


PAIRS = [(0, 2), (0, 3), (1, 2), (1, 3), (1, 4), (2, 3), (2, 4), (0, None), (1, None), (2, None)]


def red_mask(i, j):
    def valid(g, nn):
        kk = 4 * i + g
        if kk >= 10:
            return False
        if j is None:
            return nn == 0
        cv = 16 * j + nn - 40
        return 0 <= cv < 40 and cv // 20 == kk // 5
    return lanemask(valid)


def phase1(P, ch):
    sc = Sched(P, "p1")
    ACC, ACQ, VST, VRS, VSD, VC, VEXT, RST, CT, T, PF, QO = PV, PV + 40, PV + 64, PV + 72, PV + 74, PV + 76, PV + 78, PV + 86, PV + 94, PV + 102, PV + 126, PV + 146
    GD = ACC
    x_phase_loads(sc, P, XA, STA, VST, 5)
    P.e(f"s_cmp_eq_u32 s{sLAY}, 0\ns_cbranch_scc1 L_first")
    poll(P, f"s_lshl_b32 s{sB}, s{sFA}, 7\ns_add_u32 s{sB}, s{sB}, {F0 + LB}", "1", label="L_first:")
    sc.burst(2 * CFG["b1"])
    sc.dma(ch["p1"][8], 120)
    sc.dma(ch["p3"][0], 1000)
    for c in range(5):
        sc.dma(ch["p2"][c], 500 + c)
    steps = []
    for t0, nt in ((0, 5), (5, 3)):
        for kb in range(21):
            for t in range(t0, t0 + nt):
                def mf(w, kb=kb, t=t):
                    L = []
                    for m in range(2):
                        x = A((m * 20 + kb) * 4, 4) if kb < 20 else V(VEXT + 4 * m, 4)
                        d = V(ACC + (m * 5 + t) * 4, 4) if t < 5 else V(ACQ + (m * 3 + t - 5) * 4, 4)
                        cc = "0" if kb == 0 else d
                        L.append(f"{MF} {d}, {x}, {w}, {cc}" if t < 5 else f"{MF} {d}, {w}, {x}, {cc}")
                    return L
                st = dict(fr=divmod(len(steps), 20), mf=mf)
                if t == 0 and kb % 2 == 0 and kb < 20:
                    st["xw"] = [f"X{kb}"]
                if t == 0 and kb == 20:
                    st["aw"] = "ext"
                steps.append(st)
    sc.alu([Wait("vm", "st")], step=52)
    for m in range(2):
        sc.alu(stats_finish(VST, m, VRS + m, VSD + m, VEXT + 4 * m, T) + [f"v_mul_f32 v{VC+m}, {f32(LOG2E)}, v{VRS+m}"])
    sc.alu([Ins(f"ds_write_b32 v{vBW}, v{VRS+m} offset:{m*64}", "bw") for m in range(2)], event="p1:3")
    sc.mark("ext")
    sc.alu([Wait("lgkm", "bw")], step=88)
    sc.alu([Ins(f"ds_read_b128 {V(RST+4*m, 4)}, v{vBR} offset:{m*64}", "br") for m in range(2)])
    sc.alu([Wait("lgkm", "br")], step=94)
    sc.alu([f"v_mul_f32 v{CT+k}, {f32(LOG2E)}, v{RST+k}" for k in range(8)])
    first = True
    for t in range(5):
        for m in range(2):
            x = [ACC + (m * 5 + t) * 4 + r for r in range(4)]
            rs = [RST + 4 * m + r for r in range(4)]
            cs = [CT + 4 * m + r for r in range(4)]
            ts = [T + 4 * m + r for r in range(4)]
            L = []
            if t < 2:
                L += phi4(x, rs, cs, ts, x)
            elif t == 2:
                o = [T + 8 + 4 * m + r for r in range(4)]
                L += phi4(x, rs, cs, ts, o)
                L += [f"v_mul_f32 v{a}, v{a}, v{r}" for a, r in zip(x, rs)]
                L += [f"v_cndmask_b32 v{a}, v{a}, v{b}, s[{sM8}:{sM8+1}]" for a, b in zip(x, o)]
            else:
                L += [f"v_mul_f32 v{a}, v{a}, v{r}" for a, r in zip(x, rs)]
            L += [f"v_cvt_pk_bf16_f32 v{PF+4*t+2*m}, v{x[0]}, v{x[1]}", f"v_cvt_pk_bf16_f32 v{PF+4*t+2*m+1}, v{x[2]}, v{x[3]}"]
            sc.alu(L, step=106 if first else 0)
            first = False
    for n, (i, j) in enumerate(PAIRS):
        b = V(PF + 4 * j, 4) if j is not None else V(ONES, 4)
        sc.alu([f"{MF} {V(GD+4*n, 4)}, {V(PF+4*i, 4)}, {b}, 0"])
    for n0 in range(0, 10, 2):
        grp = []
        for n in (n0, n0 + 1):
            i, j = PAIRS[n]
            grp += I(f"s_mov_b64 exec, s[{sMASK+2*n}:{sMASK+2*n+1}]")
            if j is None:
                grp += I(f"ds_write_b128 v{vRW0}, {V(GD+4*n, 4)} offset:{640 + i*1344 + 320}", "gw")
            else:
                off = 640 + i * 1344 + (16 * j - 40) * 16 - (320 if i == 2 else 0)
                grp += I(f"ds_write_b128 v{vRW1 if i == 1 else vRW0}, {V(GD+4*n, 4)} offset:{off}", "gw")
        grp += I("s_mov_b64 exec, -1")
        sc.alu([grp])
    sc.alu([Wait("lgkm", "gw"), "s_barrier"])
    for q in range(4):
        sc.alu([Ins(f"ds_read_b32 v{T+4*q+w}, v{vRR} offset:{w*3360 + q*1024}", f"rr{q}") for w in range(4)])
    sc.alu([f"s_mul_i32 s{sC}, s{sCG}, 3360\ns_add_u32 s{sC}, s{sC}, s{sLAY}\ns_add_u32 s{sC}, s{sC}, {KVA}"])
    for q in range(4):
        a = T + 4 * q
        sc.alu([Wait("lgkm", f"rr{q}"), f"v_add_f32 v{a}, v{a}, v{a+1}\nv_add_f32 v{a+2}, v{a+2}, v{a+3}\nv_add_f32 v{a}, v{a}, v{a+2}",
                Ins(f"buffer_atomic_add_f32 v{a}, v{vATM if q == 3 else vAT}, s[4:7], s{sC} offen offset:{q*1024}", "out")])
    sc.run(steps, ch["p1"], CFG["g1"])
    print(f"  [p1] alu left {len(sc.aq)}", file=sys.stderr)
    sc.drain()
    P.e(f"s_mul_i32 s{sC}, s{sCG}, 1280\ns_add_u32 s{sC}, s{sC}, s{sX0}\ns_add_u32 s{sC}, s{sC}, {PQ - XA}")
    for m in range(2):
        q = QO + 6 * m
        for tq in range(3):
            x = [ACQ + (m * 3 + tq) * 4 + r for r in range(4)]
            P.add(phi4(x, [VRS + m] * 4, [VC + m] * 4, [T + 16 + 4 * (tq % 2) + r for r in range(4)], x))
            P.e(f"v_cvt_pk_bf16_f32 v{q+2*tq}, v{x[0]}, v{x[1]}\nv_cvt_pk_bf16_f32 v{q+2*tq+1}, v{x[2]}, v{x[3]}")
            if tq == 1:
                if m == 1:
                    P.e(f"s_add_u32 s{sC}, s{sC}, 20480")
                P.e(f"buffer_store_dwordx4 {V(q, 4)}, v2, s[4:7], s{sC} offen sc1", tag="out")
        P.e(f"buffer_store_dwordx2 {V(q+4, 2)}, v{vPQT}, s[4:7], s{sC} offen offset:1024 sc1", tag="out")
    handoff(P, sc, "out", f"s_lshl_b32 s{sA}, s{sFA}, 2\ns_add_u32 s{sA}, s{sA}, s{sLAY}\ns_add_u32 s{sA}, s{sA}, {F1}", vFG, "1")


def resid_epilogue(P, ACC, T, xbuf, stbuf, final=False):
    P.e(f"s_mul_i32 s{sC}, s{sMT}, 20480\ns_mul_i32 s{sA}, s{sCG8}, 2560\ns_add_u32 s{sC}, s{sC}, s{sA}\ns_add_u32 s{sC}, s{sC}, s{sLAY}\ns_add_u32 s{sC}, s{sC}, {xbuf}")
    P.e(f"s_lshl_b32 s{sB}, s{sMT}, 10\ns_lshl_b32 s{sA}, s{sCG8}, 7\ns_add_u32 s{sB}, s{sB}, s{sA}\ns_add_u32 s{sB}, s{sB}, s{sLAY}\ns_add_u32 s{sB}, s{sB}, {stbuf}")
    P.e(f"v_mov_b32 v{T}, 0\nv_mov_b32 v{T+1}, 0")
    for k0 in (0, 4, 8):
        ks = range(k0, min(k0 + 4, 10))
        for k in ks:
            P.e(f"v_lshlrev_b32 v{T+4+2*(k%4)}, 16, v{XR+k}\nv_and_b32 v{T+5+2*(k%4)}, 0xffff0000, v{XR+k}")
        for k in ks:
            P.e(f"v_pk_add_f32 {V(T+4+2*(k%4), 2)}, {V(T+4+2*(k%4), 2)}, {V(ACC+2*k, 2)}")
        for k in ks:
            P.e(f"v_cvt_pk_bf16_f32 v{XR+k}, v{T+4+2*(k%4)}, v{T+5+2*(k%4)}")
        if final:
            continue
        if k0 < 8:
            P.e(f"buffer_store_dwordx4 {V(XR+k0, 4)}, v2, s[4:7], s{sC} offen offset:{k0*256} sc1", tag="out")
        else:
            P.e(f"buffer_store_dwordx2 {V(XR+8, 2)}, v{vHALF}, s[4:7], s{sC} offen offset:2048 sc1", tag="out")
    if final:
        P.e(f"s_mul_i32 s{sA}, s{sMT}, 20480\ns_mul_i32 s{sB}, s{sCG8}, 160\ns_add_u32 s{sA}, s{sA}, s{sB}")
        P.e(f"buffer_store_dwordx4 {V(XR, 4)}, v{vO16}, s[8:11], s{sA} offen")
        P.e(f"buffer_store_dwordx4 {V(XR+4, 4)}, v{vO16}, s[8:11], s{sA} offen offset:64")
        P.e(f"buffer_store_dwordx2 {V(XR+8, 2)}, v{vO8}, s[8:11], s{sA} offen offset:128")
        return
    for k in range(10):
        P.e(f"v_dot2_f32_bf16 v{T}, v{XR+k}, v{ONES}, v{T}")
        P.e(f"v_dot2_f32_bf16 v{T+1}, v{XR+k}, v{XR+k}, v{T+1}")
    a, b = allreduce_g(T, T + 2), allreduce_g(T + 1, T + 3)
    for x, y in zip(a, b):
        P.e(x)
        P.e(y)
    P.e(f"buffer_store_dwordx2 {V(T, 2)}, v{vSTS}, s[4:7], s{sB} offen sc1", tag="out")


def wr_cluster(sf, F):
    return (f"s_lshr_b32 s{sA}, s{sf}, 4\ns_lshl_b32 s{sA}, s{sA}, 11\ns_and_b32 s{sB}, s{sf}, 15\ns_lshl_b32 s{sB}, s{sB}, 2\n"
            f"s_add_u32 s{sA}, s{sA}, s{sB}\ns_add_u32 s{sA}, s{sA}, s{sLAY}\ns_add_u32 s{sA}, s{sA}, {F}")


def rd_cluster(sf, F):
    return f"s_lshl_b32 s{sB}, s{sf}, 7\ns_add_u32 s{sB}, s{sB}, s{sLAY}\ns_add_u32 s{sB}, s{sB}, {F}"


def phase2(P, ch):
    sc = Sched(P, "p2")
    OR, ACC, DT, T = PV, PV + 80, PV + 100, PV + 132
    for r in range(4):
        P.e(f"v_mov_b32 v{DT+r}, 0")
    for k in range(10):
        P.e(f"ds_write_b128 v{vZF}, {V(DT, 4)} offset:{k*4096}", tag="z")
    P.e(f"s_add_u32 s{sX0}, s{sLAY}, {KVA}")
    P.e(f"s_mul_i32 s{sX1}, s{sMT}, 20480\ns_add_u32 s{sX1}, s{sX1}, s{sLAY}\ns_add_u32 s{sX1}, s{sX1}, {PQ}")
    P.wlg("z")
    poll(P, f"s_add_u32 s{sB}, s{sFG}, s{sLAY}\ns_add_u32 s{sB}, s{sB}, {F1}", "2", wide=True)
    for rr in range(16):
        if rr:
            P.e(f"s_add_u32 s{sX0}, s{sX0}, 3360")
        P.e(f"buffer_load_dwordx4 {V(OR+4*rr, 4)}, v{vKVL}, s[4:7], s{sX0} offen sc1", tag=f"kv{rr}")
    Sched.x_ctx = None
    for h in range(32):
        sc.load(A(4 * h, 4), vPQW, sX1, (5 * h // 2) * 256, f"pq{h}", h)
    sc.burst(8)
    for rr in range(16):
        P.wvm(f"kv{rr}")
        a = OR + 4 * rr
        P.e(f"v_cvt_pk_bf16_f32 v{a}, v{a}, v{a+1}\nv_cvt_pk_bf16_f32 v{a+1}, v{a+2}, v{a+3}")
        P.e(f"ds_write_b64 v{vKVW}, {V(a, 2)} offset:{rr*2560}", tag="kw")
        if rr % 2:
            sc.burst(1)
    P.wlg("kw")
    P.e("s_barrier")
    stamp(P)
    for c in range(1, 8):
        sc.dma(ch["p3"][c], 1000 + c)
    steps = []
    nw = 0

    def wstep(n):
        kb, t = divmod(n, 5)

        def mf(w):
            d = V(ACC + 4 * t, 4)
            return [f"{MF} {d}, {w}, {V(OR+4*kb, 4)}, {'0' if kb == 0 else d}"]
        st = dict(fr=divmod(n, 20), mf=mf)
        if t == 0:
            st["aw"] = f"o{(8*kb+7)//5}"
        return st

    for h in range(32):
        d = DT + 8 * (h % 4)
        for j in range(2):
            st = dict(rd=lambda dst, h=h, j=j: f"ds_read_b128 {dst}, v{vE0+j} offset:{h*1280}",
                      mf=lambda w, h=h, j=j, d=d: [f"{MF} {V(d+4*j, 4)}, {w}, {A(4*h, 4)}, {V(CE, 4) if j else '0'}"])
            if j == 0:
                st["xw"] = [f"pq{h}"]
                if h >= 3:
                    st["aw"] = f"o{h-3}"
            steps.append(st)
        L = [f"v_rcp_f32 v{d+5}, v{d+5}"] + [f"v_mul_f32 v{d+i}, v{d+i}, v{d+5}" for i in range(5)]
        n0 = 5 * h
        if h % 2 == 0:
            L += [f"v_cvt_pk_bf16_f32 v{OR+n0//2}, v{d}, v{d+1}", f"v_cvt_pk_bf16_f32 v{OR+n0//2+1}, v{d+2}, v{d+3}"]
        else:
            dp = DT + 8 * ((h - 1) % 4)
            L += [f"v_cvt_pk_bf16_f32 v{OR+n0//2}, v{dp+4}, v{d}", f"v_cvt_pk_bf16_f32 v{OR+n0//2+1}, v{d+1}, v{d+2}",
                  f"v_cvt_pk_bf16_f32 v{OR+n0//2+2}, v{d+3}, v{d+4}"]
        sc.alu(L, step=len(steps) + 1)
        sc.mark(f"o{h}")
        lim = min(100, int(round((h - 1) * 100 / 32)))
        while nw < lim and (8 * (nw // 5) + 7) // 5 <= h - 2:
            steps.append(wstep(nw))
            nw += 1
    while nw < 100:
        steps.append(wstep(nw))
        nw += 1
    sc.run(steps, ch["p2"], 2, extra=5, nobar=(0, 1))
    sc.drain()
    resid_epilogue(P, ACC, T, XB, STB)
    handoff(P, sc, "out", wr_cluster(sFB, F2), vFC, "2")


def phase3(P, ch):
    sc = Sched(P, "p3")
    ACC, VST, VRS, VSD, VC, VEXT, T, HO = PV, PV + 112, PV + 120, PV + 122, PV + 124, PV + 126, PV + 134, PV + 142
    x_phase_loads(sc, P, XB, STB, VST, 6)
    poll(P, rd_cluster(sFA, F2), "3")
    sc.burst(2 * CFG["b3"])
    for c in range(8, 15):
        sc.dma(ch["p3"][c], 20 * c - 60)
    for c in range(8):
        sc.dma(ch["p4"][c], 1000 + c)
    steps = []
    gend = {}
    for p0, npair in ((0, 3), (3, 2), (5, 1), (6, 1)):
        for kb in range(21):
            for t in range(2 * p0, 2 * (p0 + npair)):
                def mf(w, kb=kb, t=t):
                    L = []
                    for m in range(2):
                        x = A((m * 20 + kb) * 4, 4) if kb < 20 else V(VEXT + 4 * m, 4)
                        d = V(ACC + m * 56 + t * 4, 4)
                        L.append(f"{MF} {d}, {w}, {x}, {'0' if kb == 0 else d}")
                    return L
                st = dict(fr=divmod(len(steps), 20), mf=mf)
                if t == 0 and kb % 2 == 0 and kb < 20:
                    st["xw"] = [f"X{kb}"]
                if t == 0 and kb == 20:
                    st["aw"] = "ext"
                steps.append(st)
        for p in range(p0, p0 + npair):
            gend[p] = len(steps)
    sc.alu([Wait("vm", "st")], step=64)
    for m in range(2):
        sc.alu(stats_finish(VST, m, VRS + m, VSD + m, VEXT + 4 * m, T) + [f"v_mul_f32 v{VC+m}, {f32(-LOG2E)}, v{VRS+m}"])
    sc.mark("ext")
    sc.alu([f"s_mul_i32 s{sA}, s{sCG}, 14\ns_mul_i32 s{sB}, s{sCG}, 12\ns_add_u32 s{sB}, s{sB}, 24\ns_min_u32 s{sA}, s{sA}, s{sB}\ns_lshl_b32 s{sA}, s{sA}, 8",
            f"s_mul_i32 s{sC}, s{sMT0}, 55296\ns_add_u32 s{sC}, s{sC}, s{sA}\ns_add_u32 s{sC}, s{sC}, s{sLAY}\ns_add_u32 s{sC}, s{sC}, {HB}\ns_add_u32 s{sB}, s{sC}, 55296"])

    def epi(p, m):
        g = ACC + m * 56 + 8 * p
        u = g + 4
        L = [f"v_mul_f32 v{g+r}, v{g+r}, v{VC+m}" for r in range(4)]
        L += [f"v_exp_f32 v{g+r}, v{g+r}" for r in range(4)]
        L += [f"v_fma_f32 v{g+r}, v{g+r}, v{VSD+m}, v{VSD+m}" for r in range(4)]
        L += [f"v_rcp_f32 v{g+r}, v{g+r}" for r in range(4)]
        L += [f"v_mul_f32 v{u+r}, v{u+r}, v{g+r}" for r in range(4)]
        o = HO + m * 14 + 2 * p
        L += [f"v_cvt_pk_bf16_f32 v{o}, v{u}, v{u+1}", f"v_cvt_pk_bf16_f32 v{o+1}, v{u+2}, v{u+3}"]
        L = [Ins(x) for x in L]
        so = sB if m else sC
        if p % 2 == 1:
            L.append(Ins(f"buffer_store_dwordx4 {V(o-2, 4)}, v2, s[4:7], s{so} offen offset:{(p//2)*1024} sc1", "out"))
        if p == 6:
            L.append(Ins(f"buffer_store_dwordx2 {V(o, 2)}, v{vH3}, s[4:7], s{so} offen offset:3072 sc1", "out"))
        return L

    for p in range(6):
        for m in range(2):
            sc.alu(epi(p, m), step=gend[p] + 1)
    sc.run(steps, ch["p3"], CFG["g3"])
    print(f"  [p3] alu left {len(sc.aq)}", file=sys.stderr)
    sc.drain()
    a, b = epi(6, 0), epi(6, 1)
    for k in range(0, 20, 4):
        P.add(a[k:k + 4] + b[k:k + 4])
    P.add(a[20:] + b[20:])
    handoff(P, sc, "out", wr_cluster(sFA, F3), vFC, "3")


def phase4(P, ch):
    sc = Sched(P, "p4")
    ACC, T = PV, PV + 20
    P.e(f"s_mul_i32 s{sX0}, s{sMT}, 55296\ns_add_u32 s{sX0}, s{sX0}, s{sLAY}\ns_add_u32 s{sX0}, s{sX0}, {HB}")
    Sched.x_ctx = None
    for kb in range(54):
        sc.load(A(kb * 4, 4), 2, sX0, kb * 1024, f"X{kb}", kb * 5 - 50)
    poll(P, rd_cluster(sFB, F3), "4")
    sc.burst(CFG["b4"])
    for c in range(8, 14):
        sc.dma(ch["p4"][c], 20 * c - 60)
    for c in range(8):
        sc.dma(ch["p1"][c], 1000 + c)
    steps = []
    for kb in range(54):
        for t in range(5):
            def mf(w, kb=kb, t=t):
                d = V(ACC + 4 * t, 4)
                return [f"{MF} {d}, {w}, {A(kb*4, 4)}, {'0' if kb == 0 else d}"]
            st = dict(fr=divmod(len(steps), 20), mf=mf)
            if t == 0:
                st["xw"] = [f"X{kb}"]
            steps.append(st)
    sc.run(steps, ch["p4"], CFG["g4"])
    P.e(f"s_cmp_lg_u32 s{sLAY}, 0\ns_cbranch_scc1 L_final")
    resid_epilogue(P, ACC, T, XA + LB, STA + LB)
    handoff(P, sc, "out", wr_cluster(sFB, F0 + LB), vFC, "4")
    stamp_flush(P)
    P.e(f"s_mov_b32 s{sLAY}, {LB}\ns_branch L_layer\nL_final:")
    resid_epilogue(P, ACC, T, 0, 0, final=True)
    P.e("s_waitcnt vmcnt(0)")
    stamp_flush(P)
    P.e("s_endpgm")


def gen_main():
    ch = mk_chunks()
    _nstamp[0] = 0
    Q = Prog()
    Q.e("s_cmp_ge_u32 s2, 256\ns_cbranch_scc1 L_exit")
    stamp(Q)
    Q.e("s_load_dwordx2 s[4:5], s[0:1], 72", tag="ka")
    Q.e("s_load_dwordx2 s[8:9], s[0:1], 56", tag="ka")
    Q.e("v_lshrrev_b32 v7, 6, v0\nv_and_b32 v1, 63, v0\nv_readfirstlane_b32 s12, v7\nv_lshlrev_b32 v2, 4, v1\nv_lshrrev_b32 v5, 4, v1\nv_and_b32 v6, 15, v1")
    Q.e(f"s_mov_b32 s6, {WS_USED}\ns_mov_b32 s7, 0x20000\ns_mov_b32 s10, {XSZ}\ns_mov_b32 s11, 0x20000")
    Q.e(f"s_and_b32 s{sA}, s2, 7\ns_lshr_b32 s{sB}, s2, 3\ns_and_b32 s{sC}, s{sB}, 3\ns_lshr_b32 s{sCG8}, s{sB}, 2")
    Q.e(f"s_lshr_b32 s{sRB}, s{sA}, 1\ns_lshl_b32 s{sRB}, s{sRB}, 2\ns_add_u32 s{sRB}, s{sRB}, s{sC}")
    Q.e(f"s_and_b32 s{sCG}, s{sA}, 1\ns_lshl_b32 s{sCG}, s{sCG}, 3\ns_add_u32 s{sCG}, s{sCG}, s{sCG8}")
    Q.e(f"s_mul_i32 s{sW5}, s{sWAVE}, 5120\ns_mul_i32 s{sW1}, s{sCG}, {168*1024}\ns_add_u32 s{sW1}, s{sW1}, s{sW5}")
    Q.wlg("ka")
    Q.e("s_and_b32 s5, s5, 0xffff\ns_and_b32 s9, s9, 0xffff")
    sc = Sched(Q, "pro")
    Sched.dma_ctx = None
    order = [0, 1, 2, 3, 4, 7, 5, 6]
    for n, c in enumerate(order):
        ev, ch["p1"][c].event = ch["p1"][c].event, None
        sc.dma(ch["p1"][c], n)
        ch["p1"][c].event = ev
    sc.burst(40)
    Q.e(f"s_lshl_b32 s{sA}, s{sA}, 2\ns_add_u32 s{sA}, s{sA}, s{sC}")
    Q.e(f"s_lshl_b32 s{sMT}, s{sA}, 2\ns_add_u32 s{sMT}, s{sMT}, s{sWAVE}")
    Q.e(f"s_lshl_b32 s{sFB}, s{sA}, 3\ns_add_u32 s{sFB}, s{sFB}, s{sCG8}")
    Q.e(f"s_lshl_b32 s{sFA}, s{sRB}, 4\ns_add_u32 s{sFA}, s{sFA}, s{sCG}")
    Q.e(f"s_lshl_b32 s{sMT0}, s{sRB}, 3\ns_lshl_b32 s{sB}, s{sWAVE}, 1\ns_add_u32 s{sMT0}, s{sMT0}, s{sB}")
    Q.e(f"s_and_b32 s{sFG}, s2, 15\ns_lshl_b32 s{sFG}, s{sFG}, 10\ns_mov_b32 s{sEPS}, {f32(1e-6)}\ns_mov_b32 s{sLAY}, 0")
    for r, base, n, cg in ((sW2, WF2, 100, sCG8), (sW3, WF3, 294, sCG), (sW4, WF4, 270, sCG8)):
        Q.e(f"s_mul_i32 s{r}, s{cg}, {n*1024}\ns_add_u32 s{r}, s{r}, {base}\ns_add_u32 s{r}, s{r}, s{sW5}")
    Q.e("v_add_u32 v3, 0x10000, v2\nv_add_u32 v4, 0x20000, v2")
    Q.e(f"v_mov_b32 v{vT}, {OOB}")
    Q.e(f"v_lshlrev_b32 v{vSTL}, 8, v5\nv_lshl_add_u32 v{vSTL}, v6, 3, v{vSTL}")
    Q.e(f"v_lshrrev_b32 v{vHALF}, 1, v5\nv_lshlrev_b32 v{vHALF}, 8, v{vHALF}\nv_lshl_add_u32 v{vHALF}, v6, 4, v{vHALF}")
    Q.e(f"v_and_b32 v{vPQT}, 1, v5\nv_lshl_add_u32 v{vHALF}, v{vPQT}, 3, v{vHALF}")
    Q.e(f"s_mul_i32 s{sC}, s{sMT}, 20480\ns_mul_i32 s{sB}, s{sCG8}, 2560\ns_add_u32 s{sC}, s{sC}, s{sB}\ns_add_u32 s{sC}, s{sC}, {XA}")
    Q.e(f"buffer_load_dwordx4 {V(XR, 4)}, v2, s[4:7], s{sC} offen\nbuffer_load_dwordx4 {V(XR+4, 4)}, v2, s[4:7], s{sC} offen offset:1024")
    Q.e(f"buffer_load_dwordx2 {V(XR+8, 2)}, v{vHALF}, s[4:7], s{sC} offen offset:2048")
    Q.e(f"v_cmp_gt_u32 vcc, 32, v1\nv_cndmask_b32 v{vPQT}, v{vT}, v{vHALF}, vcc")
    Q.e(f"v_cmp_gt_u32 vcc, 16, v1\nv_lshlrev_b32 v{vSTS}, 3, v6\nv_cndmask_b32 v{vSTS}, v{vT}, v{vSTS}, vcc")
    Q.e(f"v_lshlrev_b32 v{vFC}, 7, v1\nv_cndmask_b32 v{vFC}, v{vT}, v{vFC}, vcc\nv_lshlrev_b32 v{vFG}, 10, v1\nv_cndmask_b32 v{vFG}, v{vT}, v{vFG}, vcc")
    Q.e(f"v_lshlrev_b32 v{vPOLL}, 2, v6\nv_mov_b32 v{vONE}, 1")
    Q.e(f"v_cmp_gt_u32 vcc, 48, v1\nv_cndmask_b32 v{vPQW}, v{vT}, v2, vcc")
    Q.e(f"s_cmp_lt_u32 s{sCG}, 12\ns_cselect_b32 s{sB}, 0, {OOB}\nv_add_u32 v{vH3}, s{sB}, v{vHALF}")
    Q.e(f"v_mul_u32_u24 v{vO8}, 1280, v6\nv_lshl_add_u32 v{vO16}, v5, 4, v{vO8}\nv_lshl_add_u32 v{vO8}, v5, 3, v{vO8}")
    Q.e(f"s_mul_i32 s{sB}, s{sWAVE}, 3360\ns_add_u32 s{sB}, s{sB}, {RED - 640}")
    Q.e(f"v_mul_u32_u24 v{vRW0}, 336, v5\nv_lshl_add_u32 v{vRW0}, v6, 4, v{vRW0}\nv_add_u32 v{vRW0}, s{sB}, v{vRW0}")
    Q.e(f"v_min_u32 v{vRW1}, 1, v5\nv_mul_u32_u24 v{vRW1}, 320, v{vRW1}\nv_sub_u32 v{vRW1}, v{vRW0}, v{vRW1}")
    Q.e(f"v_lshlrev_b32 v{vAT}, 2, v0\nv_add_u32 v{vRR}, {RED}, v{vAT}\nv_cmp_gt_u32 vcc, 72, v0\nv_cndmask_b32 v{vATM}, v{vT}, v{vAT}, vcc")
    Q.e(f"s_lshl_b32 s{sB}, s{sWAVE}, 7\ns_add_u32 s{sB}, s{sB}, {BNC}\nv_lshl_add_u32 v{vBW}, v6, 2, s{sB}\nv_lshl_add_u32 v{vBR}, v5, 4, s{sB}")
    mk = lanemask(lambda g, i: i < 8)
    Q.e(f"s_mov_b32 s{sM8}, 0x{mk & 0xffffffff:08x}\ns_mov_b32 s{sM8+1}, 0x{mk >> 32:08x}")
    for n, (i, j) in enumerate(PAIRS):
        mk = red_mask(i, j)
        Q.e(f"s_mov_b32 s{sMASK+2*n}, 0x{mk & 0xffffffff:08x}\ns_mov_b32 s{sMASK+2*n+1}, 0x{mk >> 32:08x}")
    a, b, c, d, e = PV, PV + 1, PV + 2, PV + 3, PV + 4
    Q.e(f"s_lshr_b32 s{sA}, s{sWAVE}, 1\ns_and_b32 s{sB}, s{sWAVE}, 1\ns_lshl_b32 s{sB}, s{sB}, 6\nv_add_u32 v{a}, s{sB}, v1")
    Q.e(f"v_mul_u32_u24 v{b}, 3121, v{a}\nv_lshrrev_b32 v{b}, 16, v{b}\nv_mul_u32_u24 v{c}, 21, v{b}\nv_sub_u32 v{c}, v{a}, v{c}")
    Q.e(f"s_mul_i32 s{sB}, s{sA}, 1680\nv_lshl_add_u32 v{vKVL}, v{a}, 4, s{sB}")
    Q.e(f"v_add_u32 v{b}, s{sA}, v{b}\nv_lshrrev_b32 v{d}, 1, v{b}\nv_and_b32 v{b}, 1, v{b}")
    Q.e(f"v_lshlrev_b32 v{e}, 8, v{d}\nv_lshlrev_b32 v{d}, 7, v{d}\nv_add_u32 v{d}, 512, v{d}\nv_cmp_gt_u32 vcc, 16, v{c}\nv_cndmask_b32 v{d}, v{d}, v{e}, vcc")
    Q.e(f"v_lshl_add_u32 v{d}, v{c}, 4, v{d}\nv_lshl_add_u32 v{d}, v{b}, 3, v{d}")
    Q.e(f"v_cmp_gt_u32 vcc, 105, v{a}\nv_mov_b32 v{e}, 1152\nv_cndmask_b32 v{d}, v{e}, v{d}, vcc\nv_cndmask_b32 v{vKVL}, v{vT}, v{vKVL}, vcc")
    Q.e(f"s_mul_i32 s{sB}, s{sA}, 1280\ns_add_u32 s{sB}, s{sB}, {KVT}\nv_add_u32 v{vKVW}, s{sB}, v{d}")
    Q.e(f"v_lshlrev_b32 v{vZF}, 4, v0\nv_add_u32 v{vZF}, {KVT}, v{vZF}")
    Q.e(f"v_and_b32 v{c}, 7, v6\nv_lshlrev_b32 v{c}, 4, v{c}\nv_add_u32 v{c}, 1152, v{c}")
    Q.e(f"v_and_b32 v{b}, 3, v6\nv_lshrrev_b32 v{d}, 2, v6\nv_cmp_eq_u32 vcc, 0, v{b}\nv_cndmask_b32 v{b}, 4, v{d}, vcc")
    Q.e(f"v_lshlrev_b32 v{b}, 4, v{b}\nv_lshl_add_u32 v{b}, v5, 7, v{b}\nv_add_u32 v{b}, 768, v{b}")
    Q.e(f"v_cmp_eq_u32 vcc, 3, v5\nv_cndmask_b32 v{b}, v{b}, v{c}, vcc\nv_add_u32 v{vE1}, {KVT}, v{b}")
    Q.e(f"v_cndmask_b32 v{b}, v2, v{c}, vcc\nv_add_u32 v{vE0}, {KVT}, v{b}")
    Q.e(f"v_mov_b32 v{CE}, 0\nv_mov_b32 v{CE+1}, s{sEPS}\nv_mov_b32 v{CE+2}, 0\nv_mov_b32 v{CE+3}, 0")
    for r in range(4):
        Q.e(f"v_mov_b32 v{ONES+r}, 0x3f803f80")
    P = Prog()
    P.e(".p2align 6\nL_layer:")
    for c in order:
        for i in range(5):
            P.add(Virtual(ch["p1"][c].tag))
    Sched.dma_ctx = None
    phase1(P, ch)
    phase2(P, ch)
    phase3(P, ch)
    phase4(P, ch)
    return Q, P


K0ST = ""


def k0_prologue(P, nwg):
    P.e(f"s_cmp_ge_u32 s2, {nwg}\ns_cbranch_scc1 L_exit")
    if STAMPS:
        P.raw(f"{STAMP_INS} s[70:71]")
    P.e("s_load_dwordx2 s[4:5], s[0:1], 72", tag="ka")
    P.e("v_lshrrev_b32 v7, 6, v0\nv_and_b32 v1, 63, v0\nv_readfirstlane_b32 s12, v7\nv_lshlrev_b32 v2, 4, v1\nv_lshrrev_b32 v5, 4, v1\nv_and_b32 v6, 15, v1")
    P.e(f"s_mov_b32 s6, {WS_USED}\ns_mov_b32 s7, 0x20000")
    if CFG.get("cpf"):
        P.e(f"s_getpc_b64 s[40:41]\nL_pc:\ns_add_u32 s40, s40, main_kernel-L_pc\ns_addc_u32 s41, s41, 0")
        P.e(f"s_lshr_b32 s42, s2, 3\ns_min_u32 s42, s42, {CFG['cpf']-1}\ns_lshl_b32 s42, s42, 12\nv_lshl_add_u32 v90, v0, 4, s42")
        P.e("global_load_dwordx4 v[92:95], v90, s[40:41]")


def k0_end(P):
    if STAMPS:
        P.e(f"s_waitcnt vmcnt(0)\n{STAMP_INS} s[72:73]\ns_mov_b64 exec, -1\ns_lshl_b32 s90, s2, 7\ns_add_u32 s90, s90, {STAMP}")
        P.e("s_cmp_lg_u32 s12, 0\ns_cselect_b32 s91, 0x40000000, 0\nv_mov_b32 v9, s91\ns_waitcnt lgkmcnt(0)")
        P.e("v_mov_b32 v10, s70\nv_mov_b32 v11, s71\nv_mov_b32 v12, s72\nv_mov_b32 v13, s73\nbuffer_store_dwordx4 v[10:13], v9, s[4:7], s90 offen")
    P.e("s_endpgm")


K0_LDS = 40 * 1024
NJ1, NJ3, NJB, NJC = 64, 128, 74, 64


def gen_k0():
    texts = []
    mx = {"v": 0, "s": 0}
    P = Prog()
    k0_prologue(P, NJ1 + NJ3 + NJB + NJC)
    P.e("s_load_dwordx4 s[52:55], s[0:1], 0", tag="ka")
    P.e("s_load_dwordx2 s[56:57], s[0:1], 16", tag="ka")
    P.e("s_load_dwordx4 s[60:63], s[0:1], 32", tag="ka")
    P.e("s_load_dwordx2 s[58:59], s[0:1], 48", tag="ka")
    if CFG.get("tlb"):
        P.e("s_load_dwordx2 s[64:65], s[0:1], 56", tag="ka")
    P.e("s_mov_b32 s11, 0x20000")
    P.e("v_lshrrev_b32 v7, 2, v6\nv_and_b32 v8, 3, v6")
    P.e("v_and_b32 v9, 1, v5\nv_lshl_add_u32 v9, v9, 2, v7\nv_lshlrev_b32 v9, 1, v9")
    P.e("v_lshl_add_u32 v10, v5, 3, v7\nv_lshlrev_b32 v10, 8, v10")
    P.e("s_lshr_b32 s17, s12, 1\ns_lshl_b32 s17, s17, 3\nv_lshl_add_u32 v11, v5, 1, s17\nv_xor_b32 v11, v11, v6")
    P.wlg("ka")
    P.e("s_and_b32 s5, s5, 0xffff")
    if CFG.get("tlb"):
        sh = CFG["tlb"]
        P.e(f"s_lshr_b32 s42, s2, 3\ns_lshl_b32 s42, s42, 8\nv_add_u32 v91, s42, v0\nv_min_u32 v91, 0x3ff, v91\nv_lshlrev_b32 v91, {sh}, v91")
        P.e("buffer_load_dword v96, v91, s[4:7], 0 offen")
        P.e(f"s_and_b32 s65, s65, 0xffff\ns_mov_b32 s66, {XSZ}\ns_mov_b32 s67, 0x20000\nbuffer_load_dword v97, v91, s[64:67], 0 offen")
    P.e(f"s_cmp_lt_u32 s2, {NJ1 + NJ3}\ns_cbranch_scc1 L_k0_A")
    P.e(f"s_cmp_lt_u32 s2, {NJ1 + NJ3 + NJB}\ns_cbranch_scc1 L_k0_B")
    P.e("s_branch L_k0_C")
    texts.append(P)

    P = Prog()
    P.e("L_k0_A:")
    P.e(f"s_cmp_lt_u32 s2, {NJ1}\ns_cbranch_scc0 L_k0_A3")
    P.e("s_lshr_b32 s14, s2, 2\ns_and_b32 s15, s2, 3")
    P.e(f"s_mov_b32 s8, s54\ns_and_b32 s9, s55, 0xffff\ns_mov_b32 s10, {640*1920*2}\ns_mov_b32 s20, 3840")
    P.e("v_min_u32 v12, 14, v11\nv_mul_u32_u24 v13, 52, v12\nv_lshrrev_b32 v13, 8, v13")
    P.e("v_mul_u32_u24 v13, 1200, v13\nv_lshl_add_u32 v12, v12, 4, v13")
    P.e("s_mul_i32 s21, s14, 80")
    P.e("s_lshl_b32 s22, s12, 5\ns_add_u32 s22, s22, 80\ns_mov_b32 s23, 8\ns_mov_b32 s24, 3")
    P.e("s_mov_b32 s25, 208\ns_mov_b32 s26, 8\ns_mov_b32 s27, 3")
    P.e("s_cmp_eq_u32 s12, 1\ns_cselect_b32 s25, 0, s25\ns_cselect_b32 s26, 16, s26")
    P.e("s_cmp_eq_u32 s12, 2\ns_cselect_b32 s25, 8, s25\ns_cselect_b32 s26, 16, s26")
    P.e("s_cmp_eq_u32 s12, 3\ns_cselect_b32 s25, 64, s25\ns_cselect_b32 s27, 1, s27")
    P.e(f"s_mul_i32 s28, s14, {21*8*1024}\ns_add_u32 s28, s28, {WF1}\ns_lshl_b32 s17, s12, 10\ns_add_u32 s28, s28, s17")
    P.e(f"s_cmp_eq_u32 s12, 0\ns_mov_b32 s17, {104*1024}\ns_mov_b32 s36, 3072\ns_cselect_b32 s17, 4096, s17\ns_cselect_b32 s36, 5120, s36\ns_add_u32 s29, s28, s17\ns_mov_b32 s30, 5120")
    P.e("s_branch L_k0_Ac")
    P.e("L_k0_A3:")
    P.e(f"s_sub_u32 s16, s2, {NJ1}\ns_and_b32 s18, s16, 1\ns_lshr_b32 s15, s16, 1\ns_and_b32 s15, s15, 3\ns_lshr_b32 s14, s16, 3")
    P.e("s_cmp_eq_u32 s18, 0\ns_cselect_b32 s8, s60, s62\ns_cselect_b32 s9, s61, s63\ns_and_b32 s9, s9, 0xffff")
    P.e(f"s_mov_b32 s10, {640*1728*2}\ns_mov_b32 s20, 3456")
    P.e("s_cmp_lt_u32 s14, 12\ns_cselect_b32 s17, 13, 11")
    P.e("v_min_u32 v12, s17, v11\nv_lshlrev_b32 v12, 4, v12")
    P.e("s_mul_i32 s21, s14, 224\ns_mul_i32 s17, s14, 192\ns_add_u32 s17, s17, 384\ns_min_u32 s21, s21, s17")
    P.e("s_lshr_b32 s22, s12, 1\ns_lshl_b32 s22, s22, 6\ns_and_b32 s17, s12, 1\ns_lshl_b32 s17, s17, 3\ns_add_u32 s22, s22, s17")
    P.e("s_mov_b32 s23, 16\ns_mov_b32 s24, 3\ns_mov_b32 s27, 3")
    P.e("s_add_u32 s25, s17, 128\ns_cmp_lt_u32 s12, 2\ns_cselect_b32 s25, s25, 192\ns_cselect_b32 s26, 16, 8")
    P.e(f"s_mul_i32 s28, s14, {21*14*1024}\ns_add_u32 s28, s28, {WF3}\ns_lshl_b32 s17, s18, 10\ns_add_u32 s28, s28, s17")
    P.e(f"s_cmp_eq_u32 s12, 1\ns_mov_b32 s17, {252*1024}\ns_cselect_b32 s17, {210*1024}, s17\ns_cmp_eq_u32 s12, 0\ns_cselect_b32 s17, {128*1024}, s17\ns_mov_b32 s36, 2048\ns_cselect_b32 s36, 4096, s36\ns_add_u32 s29, s28, s17")
    P.e(f"s_lshl_b32 s17, s12, 11\ns_cmp_eq_u32 s12, 3\ns_cselect_b32 s17, {126*1024}, s17\ns_mov_b32 s30, 6144\ns_cselect_b32 s30, 4096, s30\ns_add_u32 s28, s28, s17")
    P.e("L_k0_Ac:")
    P.e("s_lshl_b32 s17, s12, 2\nv_add_u32 v13, s17, v5\nv_mul_lo_u32 v13, v13, s20\nv_add_u32 v12, v12, v13")
    P.e("s_mul_i32 s31, s15, 160\ns_mul_i32 s31, s31, s20\ns_add_u32 s31, s31, s21\ns_lshl_b32 s32, s20, 4")
    P.e("s_lshl_b32 s33, s12, 10")
    for k in range(10):
        P.e(f"s_add_u32 m0, s33, {k*4096}")
        if k:
            P.e("s_add_u32 s31, s31, s32")
        P.e("buffer_load_dwordx4 v12, s[8:11], s31 offen lds", tag="d")
    for tt, (sa, sb, sm) in enumerate(((22, 23, 24), (25, 26, 27))):
        a = 14 + tt
        P.e(f"v_min_u32 v{a}, s{sm}, v8\nv_mul_lo_u32 v{a}, v{a}, s{sb}\nv_add_u32 v{a}, s{sa}, v{a}")
        P.e(f"v_lshrrev_b32 v16, 4, v{a}\nv_xor_b32 v16, v16, v9\nv_and_b32 v{a}, 8, v{a}")
        P.e(f"v_lshl_add_u32 v{a}, v16, 4, v{a}\nv_add_u32 v{a}, v{a}, v10")
    for r in range(4):
        P.e(f"v_mov_b32 v{20+r}, 0x3f803f80")
    P.e("s_mul_i32 s18, s15, 5\ns_mul_i32 s17, s18, s30\ns_add_u32 s34, s28, s17\ns_mul_i32 s17, s18, s36\ns_add_u32 s35, s29, s17")
    P.wvm("d")
    P.e("s_barrier")
    for tt in range(2):
        for k in range(5):
            d = 32 + (tt * 5 + k) * 4
            P.e(f"ds_read_b64_tr_b16 {V(d, 2)}, v{14+tt} offset:{k*8192}", tag=f"t{tt}{k}")
            P.e(f"ds_read_b64_tr_b16 {V(d+2, 2)}, v{14+tt} offset:{k*8192+1024}", tag=f"t{tt}{k}")
            if tt == 1 and k == 1:
                P.wlg("t04")
    for tt in range(2):
        for k in range(5):
            d = 32 + (tt * 5 + k) * 4
            P.wlg(f"t{tt}{k}")
            P.e(f"buffer_store_dwordx4 {V(d, 4)}, v2, s[4:7], s{34+tt} offen{K0ST}")
            P.e(f"s_add_u32 s{34+tt}, s{34+tt}, s{36 if tt else 30}")
            c = V(24 + 4 * tt, 4)
            P.e(f"{MF} {c}, {V(20, 4)}, {V(d, 4)}, {'0' if k == 0 else c}")
    P.e("s_lshl_b32 s18, s15, 8\ns_mul_i32 s17, s30, 20\ns_add_u32 s17, s17, s18\ns_add_u32 s28, s28, s17\ns_mul_i32 s17, s36, 20\ns_add_u32 s17, s17, s18\ns_add_u32 s29, s29, s17")
    set_exec(P, 0xffff)
    for tt in range(2):
        c = 24 + 4 * tt
        e = 72 + 4 * tt
        P.e(f"v_cvt_pk_bf16_f32 v{e}, v{c}, v{c}\nv_and_b32 v16, 0xffff0000, v{e}\nv_sub_f32 v17, v{c}, v16")
        P.e(f"v_cvt_pk_bf16_f32 v{e+1}, v17, v17\nv_and_b32 v16, 0xffff0000, v{e+1}\nv_sub_f32 v17, v17, v16")
        P.e(f"v_cvt_pk_bf16_f32 v{e+2}, v17, v{c}\nv_mov_b32 v{e+3}, 0")
        P.e(f"buffer_store_dwordx4 {V(e, 4)}, v2, s[4:7], s{28+tt} offen{K0ST}")
    k0_end(P)
    texts.append(P)

    P = Prog()
    P.e("L_k0_B:")
    P.e(f"s_sub_u32 s16, s2, {NJ1 + NJ3}")
    P.e("s_cmp_lt_u32 s16, 20\ns_cbranch_scc1 L_k0_B2")
    P.e(f"s_sub_u32 s16, s16, 20\ns_mov_b32 s8, s58\ns_and_b32 s9, s59, 0xffff\ns_mov_b32 s10, {1728*640*2}")
    P.e(f"s_mov_b32 s20, {54*5*1024}\ns_mov_b32 s21, {WF4}")
    P.e("s_lshl_b32 s17, s16, 5\ns_lshl_b32 s18, s12, 2\ns_add_u32 s17, s17, s18\nv_add_u32 v12, s17, v5\nv_add_u32 v13, 16, v12")
    P.e("s_branch L_k0_Bc")
    P.e("L_k0_B2:")
    P.e(f"s_mov_b32 s8, s56\ns_and_b32 s9, s57, 0xffff\ns_mov_b32 s10, {640*640*2}")
    P.e(f"s_mov_b32 s20, {20*5*1024}\ns_mov_b32 s21, {WF2}")
    P.e("s_lshl_b32 s18, s12, 2\nv_add_u32 v14, s18, v5\nv_and_b32 v15, 7, v14\nv_lshrrev_b32 v14, 3, v14")
    P.e("s_lshl_b32 s17, s16, 3\nv_add_u32 v15, s17, v15\nv_mul_u32_u24 v16, 205, v15\nv_lshrrev_b32 v16, 10, v16")
    P.e("v_mul_u32_u24 v17, 5, v16\nv_sub_u32 v17, v15, v17\nv_mul_u32_u24 v16, 20, v16")
    P.e("v_cmp_gt_u32 vcc, 4, v17")
    for k in range(2):
        if k:
            P.e("v_add_u32 v14, 2, v14")
        P.e(f"v_lshl_add_u32 v18, v14, 2, v17\nv_add_u32 v19, 16, v14\nv_cndmask_b32 v18, v19, v18, vcc\nv_add_u32 v{12+k}, v16, v18")
    P.e("L_k0_Bc:")
    for k in range(2):
        P.e(f"v_mul_u32_u24 v{12+k}, 1280, v{12+k}\nv_lshl_add_u32 v{12+k}, v11, 4, v{12+k}")
    P.e("s_lshl_b32 s33, s12, 10")
    for pn in range(5):
        for k in range(2):
            P.e(f"s_add_u32 m0, s33, {pn*8192 + k*4096}\ns_mov_b32 s31, {pn*256}")
            P.e(f"buffer_load_dwordx4 v{12+k}, s[8:11], s31 offen lds", tag="d")
    P.e("s_mul_i32 s22, s12, 320")
    P.e("v_lshlrev_b32 v14, 4, v8\nv_add_u32 v14, s22, v14\nv_lshlrev_b32 v15, 3, v8\nv_add_u32 v15, s22, v15")
    for cq in range(2):
        for t in range(5):
            a = 20 + cq * 5 + t
            k0 = 160 * cq + (64 * (t // 2) + 8 * (t % 2) if t < 4 else 128)
            P.e(f"v_add_u32 v16, {k0}, {'v14' if t < 4 else 'v15'}")
            P.e("v_bfe_u32 v17, v16, 4, 4\nv_xor_b32 v17, v17, v9\nv_lshrrev_b32 v18, 8, v16\nv_and_b32 v16, 8, v16")
            P.e(f"v_lshl_add_u32 v16, v17, 4, v16\nv_lshl_add_u32 v16, v18, 13, v16\nv_add_u32 v{a}, v16, v10")
    P.e("s_lshl_b32 s17, s12, 1\ns_mul_i32 s17, s17, s20\ns_add_u32 s21, s21, s17\ns_mul_i32 s17, s16, 5120\ns_add_u32 s21, s21, s17")
    P.wvm("d")
    P.e("s_barrier")
    for n in range(10):
        d = 32 + 4 * n
        P.e(f"ds_read_b64_tr_b16 {V(d, 2)}, v{20+n}", tag=f"t{n}")
        P.e(f"ds_read_b64_tr_b16 {V(d+2, 2)}, v{20+n} offset:1024", tag=f"t{n}")
        if n == 6:
            P.wlg("t3")
    for n in range(10):
        d = 32 + 4 * n
        if n == 4:
            P.e("s_add_u32 s17, s21, 4096")
        if n == 5:
            P.e("s_add_u32 s21, s21, s20")
        if n == 9:
            P.e("s_add_u32 s17, s21, 4096")
        P.wlg(f"t{n}")
        t = n % 5
        P.e(f"buffer_store_dwordx4 {V(d, 4)}, v2, s[4:7], {'s21' if t < 4 else 's17'} offen offset:{(t % 4)*1024}{K0ST}")
    k0_end(P)
    texts.append(P)

    P = Prog()
    P.e("L_k0_C:")
    P.e(f"s_sub_u32 s16, s2, {NJ1 + NJ3 + NJB}")
    P.e(f"s_mov_b32 s8, s52\ns_and_b32 s9, s53, 0xffff\ns_mov_b32 s10, {XSZ}")
    P.e("s_lshl_b32 s17, s12, 2\nv_add_u32 v12, s17, v5\nv_xor_b32 v13, v12, v6\nv_mul_u32_u24 v12, 1280, v12\nv_lshl_add_u32 v12, v13, 4, v12")
    P.e("s_mul_i32 s20, s16, 40960\ns_lshl_b32 s33, s12, 10")
    for ml in range(2):
        for pn in range(5):
            P.e(f"s_add_u32 m0, s33, {ml*20480 + pn*4096}\ns_add_u32 s31, s20, {ml*20480 + pn*256}")
            P.e("buffer_load_dwordx4 v12, s[8:11], s31 offen lds", tag="d")
    for r in range(4):
        P.e(f"v_mov_b32 v{20+r}, 0")
    P.e(f"s_and_b32 s17, s16, 31\ns_mul_i32 s17, s17, {ZSZ//32}\ns_lshr_b32 s18, s16, 5\ns_mul_i32 s18, s18, {LB}\ns_add_u32 s17, s17, s18\ns_add_u32 s17, s17, {KVA}")
    P.e(f"v_lshlrev_b32 v14, 4, v0\nbuffer_store_dwordx4 {V(20, 4)}, v14, s[4:7], s17 offen{K0ST}")
    P.e(f"v_cmp_gt_u32 vcc, {(ZSZ//32 - 4096)//16}, v0\nv_mov_b32 v15, 0x40000000\nv_cndmask_b32 v14, v15, v14, vcc\ns_add_u32 s17, s17, 4096")
    P.e(f"buffer_store_dwordx4 {V(20, 4)}, v14, s[4:7], s17 offen{K0ST}")
    P.e("s_lshr_b32 s22, s12, 1\ns_and_b32 s23, s12, 1\ns_mul_i32 s24, s22, 20480\ns_mul_i32 s25, s23, 40")
    P.e("v_add_u32 v14, s25, v5\nv_lshlrev_b32 v15, 8, v6\nv_add_u32 v15, s24, v15")
    for k in range(10):
        P.e(f"v_add_u32 v16, {4*k}, v14\nv_lshrrev_b32 v17, 4, v16\nv_xor_b32 v16, v16, v6\nv_and_b32 v16, 15, v16")
        P.e(f"v_lshl_add_u32 v16, v16, 4, v15\nv_lshl_add_u32 v{72+k}, v17, 12, v16")
    P.e(f"s_add_u32 s26, s20, s24\ns_mul_i32 s17, s23, 10240\ns_add_u32 s26, s26, s17\ns_add_u32 s26, s26, {XA}")
    P.e("v_mov_b32 v24, 0\nv_mov_b32 v25, 0\nv_mov_b32 v26, 0x3f803f80")
    P.wvm("d")
    P.e("s_barrier")
    for k in range(10):
        P.e(f"ds_read_b128 {V(32+4*k, 4)}, v{72+k}", tag=f"t{k}")
    for k in range(10):
        if k and k % 4 == 0:
            P.e("s_add_u32 s26, s26, 4096")
        P.wlg(f"t{k}")
        P.e(f"buffer_store_dwordx4 {V(32+4*k, 4)}, v2, s[4:7], s26 offen offset:{(k % 4)*1024}{K0ST}")
        for r in range(4):
            P.e(f"v_dot2_f32_bf16 v24, v{32+4*k+r}, v26, v24")
            P.e(f"v_dot2_f32_bf16 v25, v{32+4*k+r}, v{32+4*k+r}, v25")
    P.add(allreduce_g(24, 27))
    P.add(allreduce_g(25, 28))
    P.e("v_cmp_eq_u32 vcc, 0, v5\nv_cndmask_b32 v24, 0, v24, vcc\nv_cndmask_b32 v25, 0, v25, vcc")
    P.e(f"s_lshl_b32 s17, s16, 1\ns_add_u32 s17, s17, s22\ns_lshl_b32 s17, s17, 10\ns_lshl_b32 s18, s23, 7\ns_add_u32 s17, s17, s18\ns_add_u32 s17, s17, {STA}")
    P.e("v_lshlrev_b32 v14, 8, v5\nv_lshl_add_u32 v14, v6, 3, v14")
    P.e(f"buffer_store_dwordx2 v[24:25], v14, s[4:7], s17 offen{K0ST}")
    k0_end(P)
    texts.append(P)
    return texts


def build():
    body, desc = [], []
    k0 = gen_k0()
    regs = {"v": 0, "a": -1, "s": 0}
    for p in k0:
        r = p.max_regs()
        for k in regs:
            regs[k] = max(regs[k], r[k])
    body.append(".globl k0_kernel\n.p2align 8\n.type k0_kernel,@function\nk0_kernel:\n" + "".join(p.finish() for p in k0).replace("L_exit", "L_exit_k0") + "L_exit_k0:\n  s_endpgm\n")
    desc.append(descriptor("k0_kernel", regs["v"] + 1, 0, max(regs["s"] + 1, 16)))
    Q, P = gen_main()
    rq, rp = Q.max_regs(), P.max_regs()
    print("main regs", rq, rp, file=sys.stderr)
    body.append(".globl main_kernel\n.p2align 8\n.type main_kernel,@function\nmain_kernel:\n" + Q.finish() + P.finish() + "L_exit:\n  s_endpgm\n")
    desc.append(descriptor("main_kernel", 256, 256, max(rq["s"], rp["s"]) + 1))
    L = [f"; @launch kernel=k0_kernel grid=({NJ1+NJ3+NJB+NJC},1,1) block=(256,1,1) lds={K0_LDS}",
         f"; @launch kernel=main_kernel grid=(256,1,1) block=(256,1,1) lds={8*SLOT}"]
    head = "; generated by tools/gen2.py: weight re-layout launch + persistent launch (qkv, attn-out, gate/up, down) x 2 layers\n"
    return head + "\n".join(L) + '\n.amdgcn_target "amdgcn-amd-amdhsa--gfx950"\n.text\n' + "".join(body) + "".join(desc)


if __name__ == "__main__":
    import argparse
    ap = argparse.ArgumentParser()
    ap.add_argument("-o", default="v2.s")
    ap.add_argument("--stamps", action="store_true")
    ap.add_argument("--clk", action="store_true")
    ap.add_argument("--cfg", default="")
    a = ap.parse_args()
    STAMPS = a.stamps
    if a.clk:
        STAMP_INS = "s_memtime"
    for kv in a.cfg.split(","):
        if kv:
            k, v = kv.split("=")
            CFG[k] = float(v) if "." in v else int(v)
    if CFG.get("k0sc1"):
        K0ST = " sc1"
    open(a.o, "w").write(build())
    print("written", a.o)
```

```python
import re

TRANS = ("v_exp_f32", "v_log_f32", "v_rcp_f32", "v_rsq_f32", "v_sqrt_f32", "v_sin_f32", "v_cos_f32")
NO_DST_SALU = ("s_cmp", "s_waitcnt", "s_barrier", "s_nop", "s_branch", "s_cbranch", "s_setprio", "s_sleep",
               "s_endpgm", "s_setpc", "s_bitcmp")
REG_RE = re.compile(r"^-?(?:abs\()?\|?([vas])(?:(\d+)|\[(\d+):(\d+)\])\)?\|?$")


def regs_of(tok):
    tok = tok.strip()
    if tok in ("vcc",):
        return {"vcc"}
    if tok in ("vcc_lo", "vcc_hi"):
        return {"vcc"}
    if tok in ("exec", "exec_lo", "exec_hi"):
        return {"exec"}
    if tok == "m0":
        return {"m0"}
    m = REG_RE.match(tok)
    if not m:
        return set()
    k = m.group(1)
    if m.group(2) is not None:
        return {f"{k}{int(m.group(2))}"}
    return {f"{k}{i}" for i in range(int(m.group(3)), int(m.group(4)) + 1)}


class Ins:
    __slots__ = ("text", "kind", "rd", "wr", "tag", "flags", "cregs", "abregs", "opaque")

    def __init__(self, text, tag=None, opaque=False):
        self.text = text
        self.opaque = opaque
        self.tag = tag
        self.flags = set()
        self.rd, self.wr = set(), set()
        self.cregs, self.abregs = set(), set()
        t = text.split(";")[0].strip()
        if t.endswith(":") or t.startswith(".") or t == "":
            self.kind = "label"
            return
        parts = t.split(None, 1)
        mn = parts[0]
        ops = []
        if len(parts) > 1:
            ops = [o.strip() for o in parts[1].split(",")]
            last = ops[-1].split()
            ops[-1] = last[0] if last else ""
        R = [regs_of(o) for o in ops]
        allr = set().union(*R) if R else set()
        rest = set().union(*R[1:]) if len(R) > 1 else set()
        if mn.startswith("v_mfma"):
            self.kind = "mfma"
            self.wr = R[0]
            self.abregs = R[1] | R[2]
            self.cregs = R[3]
            self.rd = R[1] | R[2] | R[3]
            self.flags.add("p8" if "32x32" in mn else "p4")
        elif mn.startswith("v_"):
            self.kind = "valu"
            self.wr = R[0]
            self.rd = rest
            if mn.startswith(("v_fmac", "v_dot2c", "v_pk_fmac")):
                self.rd |= R[0]
            if mn.startswith("v_permlane"):
                self.flags.add("perm")
                self.rd = allr
                self.wr = allr
            if mn.startswith(("v_readfirstlane", "v_readlane")):
                self.flags.add("rdlane")
            if mn.startswith(TRANS):
                self.flags.add("trans")
            if mn.startswith("v_dot"):
                self.flags.add("dot")
                self.cregs = R[3] if len(R) > 3 else R[0]
                self.abregs = R[1] | R[2]
            if "dpp" in mn or " row_" in t or "quad_perm" in t:
                self.flags.add("dpp")
            if mn.startswith(("v_add_co", "v_sub_co", "v_addc_co")):
                self.wr = R[0] | R[1]
                self.rd = set().union(*R[2:])
        elif mn.startswith("ds_"):
            self.kind = "ds"
            if mn.startswith(("ds_read", "ds_bpermute", "ds_permute", "ds_swizzle")):
                self.wr = R[0]
                self.rd = rest
            else:
                self.rd = allr
        elif mn.startswith(("buffer_", "global_")):
            self.kind = "vmem"
            if mn in ("buffer_wbl2", "buffer_inv"):
                pass
            elif " lds" in t or "_lds_" in mn:
                self.flags.add("dma")
                self.rd = allr | {"m0"}
            elif "load" in mn:
                self.wr = R[0]
                self.rd = rest
            else:
                self.rd = allr
                if "atomic" in mn and " sc0" in t:
                    self.wr = R[0]
                if mn.endswith(("x3", "x4")) and "store" in mn:
                    self.flags.add("widestore")
                    self.cregs = R[0] if mn.startswith("buffer_") else R[1]
        elif mn.startswith(("s_load", "s_memtime", "s_memrealtime")):
            self.kind = "smem"
            self.wr = R[0]
            self.rd = rest
        elif mn.startswith("s_"):
            self.kind = "salu"
            if mn.startswith(NO_DST_SALU):
                self.rd = allr
            else:
                self.wr = R[0]
                self.rd = rest
                if "saveexec" in mn:
                    self.wr = self.wr | {"exec"}
        else:
            raise ValueError("cannot classify: " + text)


class Wait:
    def __init__(self, cls, tag):
        self.cls, self.tag = cls, tag


class Virtual:
    def __init__(self, tag):
        self.tag = tag


class Prog:
    def raw(self, text):
        for ln in text.split("\n"):
            ln = ln.strip()
            if ln:
                self.items.append(Ins(ln, None, True))
        return self

    def __init__(self):
        self.items = []

    def e(self, text, tag=None):
        for ln in text.split("\n"):
            ln = ln.strip()
            if ln:
                self.items.append(Ins(ln, tag))
        return self

    def add(self, it):
        if isinstance(it, (list, tuple)):
            for x in it:
                self.add(x)
        elif isinstance(it, str):
            self.e(it)
        else:
            self.items.append(it)

    def wvm(self, tag):
        self.items.append(Wait("vm", tag))

    def wlg(self, tag):
        self.items.append(Wait("lgkm", tag))

    def resolve_waits(self):
        out = []
        cnt = {"vm": 0, "lgkm": 0}
        done = {"vm": 0, "lgkm": 0}
        last = {"vm": {}, "lgkm": {}}
        lim = {"vm": 63, "lgkm": 15}
        smem_out = False
        for it in self.items:
            if isinstance(it, Virtual):
                cnt["vm"] += 1
                last["vm"][it.tag] = cnt["vm"]
                continue
            if not isinstance(it, Wait) and it.opaque:
                out.append(it)
                continue
            if isinstance(it, Wait):
                c = it.cls
                if it.tag == "ALL":
                    idx = cnt[c]
                else:
                    assert it.tag in last[c], f"wait on unknown tag {it.tag}"
                    idx = last[c][it.tag]
                if idx <= done[c] and not (c == "lgkm" and smem_out):
                    continue
                n = cnt[c] - idx
                if c == "lgkm" and smem_out:
                    n = 0
                    smem_out = False
                n = min(n, lim[c])
                done[c] = max(done[c], cnt[c] - n)
                name = "vmcnt" if c == "vm" else "lgkmcnt"
                if out and out[-1].text.startswith("s_waitcnt") and not out[-1].opaque:
                    m = re.search(name + r"\((\d+)\)", out[-1].text)
                    if m:
                        out[-1] = Ins(out[-1].text.replace(m.group(0), f"{name}({min(n, int(m.group(1)))})"))
                    else:
                        out[-1] = Ins(out[-1].text + f" {name}({n})")
                else:
                    out.append(Ins(f"s_waitcnt {name}({n})"))
                continue
            if it.kind == "vmem":
                cnt["vm"] += 1
                if it.tag is not None:
                    last["vm"][it.tag] = cnt["vm"]
            elif it.kind == "ds":
                cnt["lgkm"] += 1
                if it.tag is not None:
                    last["lgkm"][it.tag] = cnt["lgkm"]
            elif it.kind == "smem":
                smem_out = True
                cnt["lgkm"] += 1
                if it.tag is not None:
                    last["lgkm"][it.tag] = cnt["lgkm"]
            elif it.kind == "salu" and it.text.startswith("s_waitcnt"):
                m = re.search(r"vmcnt\((\d+)\)", it.text)
                if m:
                    done["vm"] = max(done["vm"], cnt["vm"] - int(m.group(1)))
                m = re.search(r"lgkmcnt\((\d+)\)", it.text)
                if m:
                    done["lgkm"] = max(done["lgkm"], cnt["lgkm"] - int(m.group(1)))
                    if int(m.group(1)) == 0:
                        smem_out = False
            out.append(it)
        self.items = out

    def fix_hazards(self):
        out = []
        pos = 0
        valu_w, trans_w, mfma_w, mfma_c, dot_w, sg_w, store_d = {}, {}, {}, {}, {}, {}, {}
        m0_w = -100
        nnop = 0
        for it in self.items:
            if it.kind == "label":
                out.append(it)
                continue
            need = pos

            def req(p, n):
                nonlocal need
                need = max(need, p + n + 1)

            vregs_rd = [r for r in it.rd if r[0] in "va" and r != "vcc"]
            vregs_wr = [r for r in it.wr if r[0] in "va" and r != "vcc"]
            sregs_rd = [r for r in it.rd if r[0] == "s" or r == "vcc"]
            if it.kind == "mfma":
                for r in vregs_rd:
                    if r in valu_w:
                        req(valu_w[r], 2)
                    if r in dot_w:
                        req(dot_w[r][0], 3)
                for r in it.abregs:
                    if r in mfma_w:
                        p, n, _ = mfma_w[r]
                        req(p, 8 if n == 4 else 12)
                for r in it.cregs:
                    if r in mfma_w:
                        p, n, d = mfma_w[r]
                        if d != frozenset(it.cregs):
                            req(p, 6 if n == 4 else 10)
                for r in vregs_wr:
                    if r in mfma_w and r not in it.cregs:
                        p, n, d = mfma_w[r]
                        req(p, 6 if n == 4 else 10)
            else:
                for r in vregs_rd + vregs_wr:
                    if r in mfma_w:
                        p, n, _ = mfma_w[r]
                        req(p, 8 if n == 4 else 12)
                if it.kind == "valu":
                    for r in vregs_wr:
                        if r in mfma_c:
                            p, n = mfma_c[r]
                            req(p, 3 if n == 4 else 7)
                        if r in store_d:
                            req(store_d[r], 2)
                    for r in vregs_rd:
                        if r in trans_w and "trans" not in it.flags:
                            req(trans_w[r], 1)
                        if r in valu_w:
                            if "rdlane" in it.flags:
                                req(valu_w[r], 1)
                            if "perm" in it.flags or "dpp" in it.flags:
                                req(valu_w[r], 2)
                    for r in vregs_rd + vregs_wr:
                        if r in dot_w:
                            p, mn = dot_w[r]
                            same = it.text.split()[0] == mn
                            if same and r in it.cregs and r not in it.abregs:
                                pass
                            else:
                                req(p, 3)
                    for r in sregs_rd:
                        if r in sg_w:
                            req(sg_w[r], 2)
                else:
                    for r in vregs_wr:
                        if r in store_d:
                            req(store_d[r], 1)
                    for r in vregs_rd:
                        if r in dot_w:
                            req(dot_w[r][0], 3)
                        if r in trans_w:
                            req(trans_w[r], 1)
                    if it.kind == "vmem":
                        for r in sregs_rd:
                            if r in sg_w:
                                req(sg_w[r], 5)
                        if "dma" in it.flags:
                            req(m0_w, 1)
                    if it.kind in ("salu", "smem"):
                        for r in sregs_rd:
                            if r in sg_w:
                                req(sg_w[r], 2)
            while need > pos:
                k = min(need - pos, 16)
                out.append(Ins(f"s_nop {k-1}"))
                nnop += 1
                pos += k
            out.append(it)
            if it.kind == "mfma":
                n = 4 if "p4" in it.flags else 8
                d = frozenset(it.wr)
                for r in it.wr:
                    mfma_w[r] = (pos, n, d)
                    valu_w.pop(r, None)
                for r in it.cregs:
                    mfma_c[r] = (pos, n)
            elif it.kind == "valu":
                for r in it.wr:
                    if r[0] in "va" and r != "vcc":
                        valu_w[r] = pos
                        mfma_w.pop(r, None)
                        if "trans" in it.flags:
                            trans_w[r] = pos
                        else:
                            trans_w.pop(r, None)
                        if "dot" in it.flags:
                            dot_w[r] = (pos, it.text.split()[0])
                        else:
                            dot_w.pop(r, None)
                    else:
                        sg_w[r] = pos
            else:
                for r in it.wr:
                    if r == "m0":
                        m0_w = pos
                    sg_w.pop(r, None)
                    if r[0] in "va" and r != "vcc":
                        valu_w.pop(r, None)
                        mfma_w.pop(r, None)
                        trans_w.pop(r, None)
                        dot_w.pop(r, None)
                if "widestore" in it.flags:
                    for r in it.cregs:
                        store_d[r] = pos
            m = re.match(r"s_nop (\d+)", it.text)
            pos += (int(m.group(1)) + 1) if m else 1
        self.items = out
        return nnop

    def finish(self):
        self.resolve_waits()
        self.fix_hazards()
        return "\n".join(("" if it.kind == "label" else "  ") + it.text for it in self.items) + "\n"

    def max_regs(self):
        mx = {"v": -1, "a": -1, "s": -1}
        for it in self.items:
            if isinstance(it, (Wait, Virtual)) or it.kind == "label":
                continue
            for r in it.rd | it.wr:
                if r[0] in mx and r[1:].isdigit():
                    mx[r[0]] = max(mx[r[0]], int(r[1:]))
        return mx


def V(n, k=1):
    return f"v{n}" if k == 1 else f"v[{n}:{n+k-1}]"


def A(n, k=1):
    return f"a{n}" if k == 1 else f"a[{n}:{n+k-1}]"


def S(n, k=1):
    return f"s{n}" if k == 1 else f"s[{n}:{n+k-1}]"


def descriptor(name, nv, na, ns):
    acc = max(4, (nv + 3) // 4 * 4)
    total = acc + na if na else nv
    return f""".section .rodata,"a"
.p2align 6
.amdhsa_kernel {name}
  .amdhsa_next_free_vgpr {total}
  .amdhsa_next_free_sgpr {ns}
  .amdhsa_accum_offset {acc}
  .amdhsa_group_segment_fixed_size 0
  .amdhsa_kernarg_size 80
  .amdhsa_user_sgpr_count 2
  .amdhsa_user_sgpr_kernarg_segment_ptr 1
  .amdhsa_system_sgpr_workgroup_id_x 1
  .amdhsa_float_denorm_mode_32 3
.end_amdhsa_kernel
.text
"""
```

```python
import sys, struct
from collections import deque
from asmlib import Prog, Ins, Wait, Virtual, V, A, S, descriptor, TRANS
from gen import f32, LOG2E, MF, allreduce_g, stats_finish, lanemask, set_exec

WF1 = 0
WF2 = WF1 + 16 * 168 * 1024
WF3 = WF2 + 8 * 100 * 1024
WF4 = WF3 + 16 * 294 * 1024
L0 = WF4 + 8 * 270 * 1024 + 4096
XSZ = 2048 * 640 * 2
XA = L0
PQ = XA + XSZ
XB = PQ + XSZ
HB = XB + XSZ
STA = HB + 2048 * 1728 * 2
STB = STA + 128 * 1024
KVA = STB + 128 * 1024
F0 = KVA + 56 * 1024
F1 = F0 + 32768
F1C = F1 + 16384
F2 = F1C + 32768
F3 = F2 + 32768
ZSZ = F3 + 32768 - KVA
LB = F3 + 32768 - L0
STAMP = L0 + 2 * LB
WS_USED = STAMP + 4 * 512 * 256
PROF = None
assert ZSZ == 204800 and L0 % 4096 == 0 and LB % 4096 == 0
STAMPS = False
STAMP_INS = "s_memrealtime"
OOB = 0x40000000
SLOT = 20480
SPIN = 200000
CFG = dict(cpf=9, g1=2, g3=2, g4=2, b1=6, b3=6, b4=10, la=6, lead4=50, pf4=230, x2=1, x1=1, e3=240, c4=116, nowait3=1, f4=24)

vSTL, vHALF, vPQT, vSTS, vRW0, vRW1, vRR, vAT, vATM, vKVL, vKVW, vE0, vE1, vZF, vPQW, vFC, vFG, vPOLL, vONE, vBW, vBR, vH3, vO16, vO8, vT = range(7, 32)
XR, CE, ONES, PV = 32, 42, 46, 50
WP = 224
sWAVE, sRB, sCG, sMT0, sMT, sCG8, sLAY = 12, 13, 14, 15, 16, 17, 20
sW5, sW1, sW2, sW3, sW4 = 21, 22, 23, 24, 25
sFA, sFB, sFG, sEPS = 26, 27, 28, 29
sX0, sX1, sXT, sDT, sA, sB, sC, sSPIN = 30, 31, 32, 33, 34, 35, 36, 37
sFL, sD1, sD2 = 60, 61, 62
sM8, sMASK = 38, 40
sSTMP = 64
RED = 7 * SLOT
BNC = RED + 13440
KVT = 6 * SLOT


def cost(it):
    if isinstance(it, (Wait, Virtual)):
        return 0
    if isinstance(it, list):
        return sum(cost(x) for x in it)
    t = it.text
    if it.opaque:
        return 0
    if t.startswith("v_mfma"):
        return 12
    if t.startswith(TRANS):
        return 8
    return 4


def I(text, tag=None):
    return [Ins(x.strip(), tag) for x in text.split("\n") if x.strip()]


_nstamp = [0]


def stamp(P, ph=None, fine=False):
    if STAMPS and (PROF is None and not fine or PROF is not None and PROF == ph):
        j = _nstamp[0]
        _nstamp[0] += 1
        P.raw(f"{STAMP_INS} s[{sSTMP+2*j}:{sSTMP+2*j+1}]")


def stamp_flush(P):
    if STAMPS:
        P.raw(f"s_cmp_lg_u32 s{sWAVE}, 0\ns_cbranch_scc1 L_nost{len(P.items)}")
        lab = P.items[-1].text.split()[-1]
        P.raw(f"s_cmp_lg_u32 s{sLAY}, 0\ns_cselect_b32 s{sA}, {512*256}, 0\ns_lshl_b32 s{sB}, s2, 8\ns_add_u32 s{sA}, s{sA}, s{sB}\ns_add_u32 s{sA}, s{sA}, {STAMP + 512*256}")
        P.raw(f"v_mov_b32 v{vT}, 0\ns_waitcnt lgkmcnt(0)")
        for j in range(_nstamp[0]):
            P.raw(f"v_mov_b32 v250, s{sSTMP+2*j}\nv_mov_b32 v251, s{sSTMP+2*j+1}\ns_nop 1")
            P.raw(f"buffer_store_dwordx2 v[250:251], v{vT}, s[4:7], s{sA} offen offset:{8*j}\ns_nop 1")
        P.raw(f"s_waitcnt vmcnt(0)\n{lab}:")


class Chunk:
    def __init__(self, name, sbase, foff, n, slot, event):
        self.name, self.sbase, self.foff, self.n, self.slot, self.event = name, sbase, foff, n, slot, event
        self.q = (n + 3) // 4
        self.tag = "W" + name


class Op:
    def __init__(self, fn, tag, prio, event=None, step=0):
        self.fn, self.tag, self.prio, self.event, self.step = fn, tag, prio, event, step


class Sched:
    dma_ctx = None
    x_ctx = None
    log = []

    def __init__(self, P, name):
        self.P, self.name = P, name
        self.vq, self.aq = [], deque()
        self.events = {None}
        self.marks = set()
        self.now = 0
        self.pend, self.pend_tag, self.rdnext, self.over = [], None, None, 0
        self.lasttr, self.lastw = set(), set()

    def dma(self, ch, prio, step=0):
        for i in range(ch.q):
            def fn(ch=ch, i=i):
                L = []
                Sched.log.append((ch.name, i))
                key = (ch.name, i // 4)
                if Sched.dma_ctx != key:
                    Sched.dma_ctx = key
                    o = (i // 4) * 4096
                    if ch.q == 5:
                        L += I(f"s_add_u32 m0, s{sW5}, {ch.slot*SLOT + o}\ns_add_u32 s{sDT}, s{ch.sbase}, {ch.foff*1024 + o}")
                    else:
                        L += I(f"s_mul_i32 s{sDT}, s{sWAVE}, {ch.q*1024}\ns_add_u32 m0, s{sDT}, {ch.slot*SLOT}\ns_sub_u32 s{sDT}, s{sDT}, s{sW5}")
                        L += I(f"s_add_u32 s{sDT}, s{sDT}, s{ch.sbase}\ns_add_u32 s{sDT}, s{sDT}, {ch.foff*1024}")
                L += I(f"buffer_load_dwordx4 v2, s[4:7], s{sDT} offen offset:{(i % 4)*1024} lds", ch.tag)
                return L
            self.vq.append(Op(fn, ch.tag, prio(i) if callable(prio) else prio + i * 1e-3, ch.event, step))

    def load(self, dst, vaddr, sbase, off, tag, prio, w=4, event=None, step=0):
        def fn():
            L = []
            if off < 4096:
                so = f"s{sbase}"
            else:
                key = (sbase, off >> 12)
                if Sched.x_ctx != key:
                    Sched.x_ctx = key
                    L += I(f"s_add_u32 s{sXT}, s{sbase}, {off & ~4095}")
                so = f"s{sXT}"
            return L + I(f"buffer_load_dwordx{w} {dst}, v{vaddr}, s[4:7], {so} offen offset:{off & 4095} sc1", tag)
        self.vq.append(Op(fn, tag, prio, event, step))

    def alu(self, items, step=0, event=None):
        for it in items:
            if isinstance(it, str):
                for x in I(it):
                    self.aq.append((x, step, event))
            else:
                self.aq.append((it, step, event))

    def mark(self, name):
        self.aq.append((name, 0, None))

    def start_op(self, op):
        self.vq.remove(op)
        self.pend = op.fn()
        self.pend_tag = op.tag

    def flush_pend(self):
        self.P.add(self.pend)
        self.pend = []

    def emit_op(self, op):
        self.flush_pend()
        self.start_op(op)
        self.flush_pend()

    def next_op(self):
        el = [o for o in self.vq if o.event in self.events and o.step <= self.now]
        return min(el, key=lambda o: o.prio) if el else None

    def burst(self, n):
        self.flush_pend()
        for _ in range(n):
            el = [o for o in self.vq if o.event in self.events and o.prio < 1e5]
            if not el:
                break
            self.emit_op(min(el, key=lambda o: o.prio))

    def force(self, tag):
        if self.pend and self.pend_tag == tag:
            self.flush_pend()
        ops = sorted([o for o in self.vq if o.tag == tag], key=lambda o: o.prio)
        if ops:
            print(f"  [{self.name}] forced {len(ops)} x {tag} at step {self.now}", file=sys.stderr)
        for o in ops:
            assert o.event in self.events, (tag, o.event)
            self.emit_op(o)

    def pop_alu(self, k=0):
        it = self.aq[k][0]
        del self.aq[k]
        if isinstance(it, str):
            self.marks.add(it)
            self.events.add(it)
            return
        if isinstance(it, Wait) and it.cls == "vm":
            self.force(it.tag)
        self.P.add(it)

    def drain_to(self, mark):
        n = 0
        while mark not in self.marks:
            n += not isinstance(self.aq[0][0], (str, Wait))
            self.pop_alu()
        self.over += n

    def drain(self):
        self.flush_pend()
        while self.aq:
            self.pop_alu()

    def ready(self, k):
        return self.aq[k][1] <= self.now and self.aq[k][2] in self.events

    def head_is(self, kind):
        while self.aq and isinstance(self.aq[0][0], str):
            self.pop_alu()
        if not self.aq or not self.ready(0):
            return False
        it = self.aq[0][0]
        if kind == "wait":
            return isinstance(it, Wait)
        return isinstance(it, Ins) and it.kind == "salu"

    def pick(self, slots):
        best = None
        rd, wr = set(), set()
        for k in range(min(len(self.aq), 14)):
            it = self.aq[k][0]
            if not self.ready(k):
                break
            if isinstance(it, str):
                continue
            if isinstance(it, Wait):
                break
            if isinstance(it, list) or it.kind != "valu":
                if k == 0 or (best is None and not rd and not wr):
                    return k
                break
            if not (it.rd & wr or it.wr & wr or it.wr & rd):
                tr = "trans" in it.flags
                if tr and slots >= 2 and not (it.rd & self.lastw):
                    return k
                if not tr and best is None and not (it.rd & self.lasttr):
                    best = k
            rd |= it.rd
            wr |= it.wr
        return best

    def gap(self, scalar_free, slots, allow_v):
        P = self.P
        issued = False
        if allow_v and not self.pend:
            op = self.next_op()
            if op is not None:
                self.start_op(op)
        pre_m0 = False
        if scalar_free:
            if len(self.pend) > 1:
                it = self.pend.pop(0)
                pre_m0 = "m0" in it.wr
                P.add(it)
            elif self.head_is("wait") or self.head_is("salu"):
                self.pop_alu()
                while self.head_is("wait"):
                    self.pop_alu()
        if self.rdnext is not None:
            self.rdnext()
            self.rdnext = None
            slots -= 1
        if allow_v and len(self.pend) == 1 and not pre_m0:
            self.flush_pend()
            slots -= 2
            issued = True
        self.lasttr = set()
        self.lastw = set()
        while slots > 0:
            k = self.pick(slots)
            if k is None:
                break
            it = self.aq[k][0]
            slots -= cost(it) // 4
            if isinstance(it, Ins):
                self.lastw = set(it.wr)
                if "trans" in it.flags:
                    self.lasttr = set(it.wr)
            self.pop_alu(k)
        return issued

    def run(self, steps, chunks, vgap, extra=0, nobar=(), wevery=1):
        P, LA = self.P, CFG["la"]
        seen = set()

        def newchunk(m):
            st = steps[m]
            if "fr" not in st or st["fr"][0] in seen:
                return False
            c = st["fr"][0]
            seen.add(c)
            if c not in nobar:
                self.force(chunks[c].tag)
                P.wvm(chunks[c].tag)
                P.e("s_barrier")
            stamp(P, self.name, True)
            self.events.add(f"{self.name}:{c}")
            return c not in nobar

        def rd(m):
            st = steps[m]
            dst = A(WP + 4 * (m % 8), 4)
            if "fr" in st:
                c, f = st["fr"]
                off = chunks[c].slot * SLOT + f * 1024
                P.e(f"ds_read_b128 {dst}, v{2 + (off >> 16)} offset:{off & 0xffff}", tag=f"R{m}")
            else:
                P.e(st["rd"](dst), tag=f"R{m}")

        def waits(i, upto):
            st = steps[i]
            any_ = False
            if "aw" in st:
                self.drain_to(st["aw"])
            for t in st.get("xw", []):
                self.force(t)
                P.wvm(t)
                any_ = True
            if self.waited < i or any_:
                self.waited = min(upto, n - 1)
                P.wlg(f"R{self.waited}")
                any_ = True
            return any_

        n = len(steps)
        self.now = 0
        self.waited = -1
        for m in range(min(LA, n)):
            newchunk(m)
            rd(m)
        waits(0, 0)
        lastv = -100
        for i, st in enumerate(steps):
            self.now = i
            mfs = st["mf"](A(WP + 4 * (i % 8), 4))
            for k, t in enumerate(mfs):
                P.e(t)
                last = k == len(mfs) - 1
                free, slots = True, 2 + (extra(i) if callable(extra) else extra)
                if k == 0 and i + LA < n and newchunk(i + LA):
                    free, slots = False, slots - 1
                if last and i + 1 < n and waits(i + 1, i + wevery):
                    free = False
                if last and i + LA < n:
                    self.rdnext = lambda m=i + LA: rd(m)
                if self.gap(free, slots, k == 0 and i - lastv >= vgap):
                    lastv = i
        self.now = n
        P.e("s_barrier")
        self.events.add(f"{self.name}:end")
        stamp(P, self.name)
        print(f"  [{self.name}] overfill {self.over}, alu left {len(self.aq)}", file=sys.stderr)

    def late(self):
        n = len(self.vq)
        for o in self.vq:
            o.prio = min(o.prio, 9e4)
        self.burst(10 ** 6)
        assert not self.vq
        print(f"  [{self.name}] late ops {n}", file=sys.stderr)


def mk_chunks():
    ch = {}
    s1 = [6, 7, 0, 1, 2, 3, 4, 5, 6]
    e1 = ["p4:9", "p4:10", "p4:11", "p4:12", "p4:13", "p4:end", "p4:end", "p4:8", "p1:2"]
    ch["p1"] = [Chunk(f"1_{c}", sW1, 20 * c, 20 if c < 8 else 8, s1[c], e1[c]) for c in range(9)]
    ch["p2"] = [Chunk(f"2_{c}", sW2, 20 * c, 20, 1 + c, f"p1:{5+c}" if c < 4 else "p1:end") for c in range(5)]
    e3 = ["p1:4", "p2:2", "p2:3", "p2:4"] + ["p2:end"] * 4 + [f"p3:{c-6}" for c in range(8, 15)]
    ch["p3"] = [Chunk(f"3_{c}", sW3, 20 * c, 20 if c < 14 else 14, c % 8, e3[c]) for c in range(15)]
    e4 = [f"p3:{c+9}" for c in range(6)] + ["p3:end"] * 2 + [f"p4:{c-6}" for c in range(8, 14)]
    ch["p4"] = [Chunk(f"4_{c}", sW4, 20 * c, 20 if c < 13 else 10, (15 + c) % 8, e4[c]) for c in range(14)]
    return ch


def flag_items(wtag, wr, stride_reg, off=0):
    return I(wr) + [Wait("vm", wtag)] + I("s_barrier") + I(f"buffer_store_dword v{vONE}, v{stride_reg}, s[4:7], s{sA} offen offset:{off} sc1", "fl")


def handoff(P, sc, wtag, wr, stride_reg, uid, off=0):
    P.add(flag_items(wtag, wr, stride_reg, off))
    stamp(P, "p" + uid)
    sc.late()


def check_items(uid, off):
    R = Prog()
    R.e(f"v_cmp_eq_u32 vcc, 0, v253\ns_nop 1\ns_cbranch_vccz L_ok{uid}")
    R.raw(f"s_mov_b32 s{sSPIN}, {SPIN}\nL_sp{uid}:\nbuffer_load_dword v253, v{vPOLL}, s[4:7], s{sFL} offen offset:{off} sc1\ns_waitcnt vmcnt(0)")
    R.raw(f"v_cmp_eq_u32 vcc, 0, v253\ns_nop 1\ns_cbranch_vccz L_ok{uid}")
    R.raw(f"s_sub_u32 s{sSPIN}, s{sSPIN}, 1\ns_cmp_lg_u32 s{sSPIN}, 0\ns_cbranch_scc1 L_sp{uid}\nL_ok{uid}:")
    return [Wait("vm", "fp"), R.items]


def poll(P, rdoff, uid, wide=False, label=None):
    P.e(rdoff)
    P.raw(f"s_cmp_lg_u32 s{sWAVE}, 0\ns_cbranch_scc1 L_pd{uid}\ns_mov_b32 s{sSPIN}, {SPIN}\nL_pl{uid}:")
    if wide:
        P.raw(f"buffer_load_dwordx4 v[252:255], v2, s[4:7], s{sB} offen sc1\ns_waitcnt vmcnt(0)\nv_min_u32 v252, v252, v253\nv_min3_u32 v252, v252, v254, v255")
    else:
        P.raw(f"buffer_load_dword v252, v{vPOLL}, s[4:7], s{sB} offen sc1\ns_waitcnt vmcnt(0)")
    P.raw(f"v_cmp_eq_u32 vcc, 0, v252\ns_nop 1\ns_cbranch_vccz L_pd{uid}")
    P.raw(f"s_sub_u32 s{sSPIN}, s{sSPIN}, 1\ns_cmp_lg_u32 s{sSPIN}, 0\ns_cbranch_scc1 L_pl{uid}\nL_pd{uid}:")
    P.e("s_barrier")
    if label:
        P.e(label)
    stamp(P, "p" + uid)


def x_phase_loads(sc, P, xbuf, stbuf, VST, nt1):
    P.e(f"s_mul_i32 s{sX0}, s{sMT0}, 20480\ns_add_u32 s{sX0}, s{sX0}, s{sLAY}\ns_add_u32 s{sX0}, s{sX0}, {xbuf}\ns_add_u32 s{sX1}, s{sX0}, 20480")
    P.e(f"s_lshl_b32 s{sC}, s{sMT0}, 10\ns_add_u32 s{sC}, s{sC}, s{sLAY}\ns_add_u32 s{sC}, s{sC}, {stbuf}")
    Sched.x_ctx = None
    for k0 in range(0, 20, 2):
        for m in range(2):
            for kb in (k0, k0 + 1):
                sc.load(A((m * 20 + kb) * 4, 4), 2, sX0 + m, kb * 1024, f"X{k0}", k0 * nt1 - 100 + m + (kb - k0) * 0.1)
    for m in range(2):
        for j in range(2):
            sc.load(V(VST + 4 * m + 2 * j, 2), vSTL, sC, m * 1024 + j * 128, "st", 8 * nt1 - 101, w=2)


def phi4(xs, rs, cs, ts, outs):
    L = [f"v_mul_f32 v{t}, v{x}, v{c}" for x, c, t in zip(xs, cs, ts)]
    L += [f"v_fma_f32 v{o}, v{x}, v{r}, s{sEPS}" for x, r, o in zip(xs, rs, outs)]
    L += [f"v_exp_f32 v{t}, v{t} clamp" for t in ts]
    L += [f"v_max_f32 v{o}, s{sEPS}, v{o}" for o in outs]
    L += [f"v_add_f32 v{o}, v{o}, v{t}" for o, t in zip(outs, ts)]
    return L


PAIRS = [(0, 2), (0, 3), (1, 2), (1, 3), (1, 4), (2, 3), (2, 4), (0, None), (1, None), (2, None)]


def red_mask(i, j):
    def valid(g, nn):
        kk = 4 * i + g
        if kk >= 10:
            return False
        if j is None:
            return nn == 0
        cv = 16 * j + nn - 40
        return 0 <= cv < 40 and cv // 20 == kk // 5
    return lanemask(valid)


def phase1(P, ch):
    sc = Sched(P, "p1")
    ACC, ACQ, VST, VRS, VSD, VC, VEXT, RST, CT, T, PF, QO = PV, PV + 40, PV + 64, PV + 72, PV + 74, PV + 76, PV + 78, PV + 86, PV + 94, PV + 102, PV + 126, PV + 146
    GD = ACC
    x_phase_loads(sc, P, XA, STA, VST, 5)
    P.e(f"s_cmp_eq_u32 s{sLAY}, 0\ns_cbranch_scc1 L_first")
    poll(P, f"s_lshl_b32 s{sB}, s{sFA}, 7\ns_add_u32 s{sB}, s{sB}, {F0 + LB}", "1", label="L_first:")
    sc.burst(2 * CFG["b1"])
    sc.dma(ch["p1"][8], 120)
    sc.dma(ch["p3"][0], 1000)
    for c in range(5):
        sc.dma(ch["p2"][c], 500 + c)
    steps = []
    for t0, nt in ((0, 5), (5, 3)):
        for kb in range(21):
            for t in range(t0, t0 + nt):
                def mf(w, kb=kb, t=t):
                    L = []
                    for m in range(2):
                        x = A((m * 20 + kb) * 4, 4) if kb < 20 else V(VEXT + 4 * m, 4)
                        d = V(ACC + (m * 5 + t) * 4, 4) if t < 5 else V(ACQ + (m * 3 + t - 5) * 4, 4)
                        cc = "0" if kb == 0 else d
                        L.append(f"{MF} {d}, {x}, {w}, {cc}" if t < 5 else f"{MF} {d}, {w}, {x}, {cc}")
                    return L
                st = dict(fr=divmod(len(steps), 20), mf=mf)
                if t == 0 and kb % 2 == 0 and kb < 20:
                    st["xw"] = [f"X{kb}"]
                if t == 0 and kb == 20:
                    st["aw"] = "ext"
                steps.append(st)
    sc.alu([Wait("vm", "st")], step=52)
    for m in range(2):
        sc.alu(stats_finish(VST, m, VRS + m, VSD + m, VEXT + 4 * m, T) + [f"v_mul_f32 v{VC+m}, {f32(LOG2E)}, v{VRS+m}"])
    sc.alu([Ins(f"ds_write_b32 v{vBW}, v{VRS+m} offset:{m*64}", "bw") for m in range(2)], event="p1:3")
    sc.mark("ext")
    sc.alu([Wait("lgkm", "bw")], step=88)
    sc.alu([Ins(f"ds_read_b128 {V(RST+4*m, 4)}, v{vBR} offset:{m*64}", "br") for m in range(2)])
    sc.alu([Wait("lgkm", "br")], step=94)
    sc.alu([f"v_mul_f32 v{CT+k}, {f32(LOG2E)}, v{RST+k}" for k in range(8)])
    first = True
    for t in range(5):
        for m in range(2):
            x = [ACC + (m * 5 + t) * 4 + r for r in range(4)]
            rs = [RST + 4 * m + r for r in range(4)]
            cs = [CT + 4 * m + r for r in range(4)]
            ts = [T + 4 * m + r for r in range(4)]
            L = []
            if t < 2:
                L += phi4(x, rs, cs, ts, x)
            elif t == 2:
                o = [T + 8 + 4 * m + r for r in range(4)]
                L += phi4(x, rs, cs, ts, o)
                L += [f"v_mul_f32 v{a}, v{a}, v{r}" for a, r in zip(x, rs)]
                L += [f"v_cndmask_b32 v{a}, v{a}, v{b}, s[{sM8}:{sM8+1}]" for a, b in zip(x, o)]
            else:
                L += [f"v_mul_f32 v{a}, v{a}, v{r}" for a, r in zip(x, rs)]
            L += [f"v_cvt_pk_bf16_f32 v{PF+4*t+2*m}, v{x[0]}, v{x[1]}", f"v_cvt_pk_bf16_f32 v{PF+4*t+2*m+1}, v{x[2]}, v{x[3]}"]
            sc.alu(L, step=106 if first else 0)
            first = False
    for n, (i, j) in enumerate(PAIRS):
        b = V(PF + 4 * j, 4) if j is not None else V(ONES, 4)
        sc.alu([f"{MF} {V(GD+4*n, 4)}, {V(PF+4*i, 4)}, {b}, 0"])
    for n0 in range(0, 10, 2):
        grp = []
        for n in (n0, n0 + 1):
            i, j = PAIRS[n]
            grp += I(f"s_mov_b64 exec, s[{sMASK+2*n}:{sMASK+2*n+1}]")
            if j is None:
                grp += I(f"ds_write_b128 v{vRW0}, {V(GD+4*n, 4)} offset:{640 + i*1344 + 320}", "gw")
            else:
                off = 640 + i * 1344 + (16 * j - 40) * 16 - (320 if i == 2 else 0)
                grp += I(f"ds_write_b128 v{vRW1 if i == 1 else vRW0}, {V(GD+4*n, 4)} offset:{off}", "gw")
        grp += I("s_mov_b64 exec, -1")
        sc.alu([grp])
    sc.alu([Wait("lgkm", "gw"), "s_barrier"])
    for q in range(4):
        sc.alu([Ins(f"ds_read_b32 v{T+4*q+w}, v{vRR} offset:{w*3360 + q*1024}", f"rr{q}") for w in range(4)])
    sc.alu([f"s_mul_i32 s{sC}, s{sCG}, 3360\ns_add_u32 s{sC}, s{sC}, s{sLAY}\ns_add_u32 s{sC}, s{sC}, {KVA}"])
    for q in range(4):
        a = T + 4 * q
        sc.alu([Wait("lgkm", f"rr{q}"), f"v_add_f32 v{a}, v{a}, v{a+1}\nv_add_f32 v{a+2}, v{a+2}, v{a+3}\nv_add_f32 v{a}, v{a}, v{a+2}",
                Ins(f"buffer_atomic_add_f32 v{a}, v{vATM if q == 3 else vAT}, s[4:7], s{sC} offen offset:{q*1024}", "at")])
    sc.run(steps, ch["p1"], CFG["g1"], extra=lambda i: CFG["x1"] if i > 105 else 0)
    sc.drain()
    P.e(f"s_mul_i32 s{sC}, s{sCG}, 1280\ns_add_u32 s{sC}, s{sC}, s{sX0}\ns_add_u32 s{sC}, s{sC}, {PQ - XA}")
    for m in range(2):
        q = QO + 6 * m
        for tq in range(3):
            x = [ACQ + (m * 3 + tq) * 4 + r for r in range(4)]
            P.add(phi4(x, [VRS + m] * 4, [VC + m] * 4, [T + 16 + 4 * (tq % 2) + r for r in range(4)], x))
            P.e(f"v_cvt_pk_bf16_f32 v{q+2*tq}, v{x[0]}, v{x[1]}\nv_cvt_pk_bf16_f32 v{q+2*tq+1}, v{x[2]}, v{x[3]}")
            if tq == 1:
                if m == 1:
                    P.e(f"s_add_u32 s{sC}, s{sC}, 20480")
                P.e(f"buffer_store_dwordx4 {V(q, 4)}, v2, s[4:7], s{sC} offen sc1", tag="out")
        P.e(f"buffer_store_dwordx2 {V(q+4, 2)}, v{vPQT}, s[4:7], s{sC} offen offset:1024 sc1", tag="out")
    P.add(flag_items("at", f"s_lshl_b32 s{sA}, s{sFA}, 2\ns_add_u32 s{sA}, s{sA}, s{sLAY}\ns_add_u32 s{sA}, s{sA}, {F1}", vFG))
    handoff(P, sc, "out", wr_cluster(sFA, F1C), vFC, "1")


def resid_epilogue(P, ACC, T, xbuf, stbuf, final=False):
    P.e(f"s_mul_i32 s{sC}, s{sMT}, 20480\ns_mul_i32 s{sA}, s{sCG8}, 2560\ns_add_u32 s{sC}, s{sC}, s{sA}\ns_add_u32 s{sC}, s{sC}, s{sLAY}\ns_add_u32 s{sC}, s{sC}, {xbuf}")
    P.e(f"s_lshl_b32 s{sB}, s{sMT}, 10\ns_lshl_b32 s{sA}, s{sCG8}, 7\ns_add_u32 s{sB}, s{sB}, s{sA}\ns_add_u32 s{sB}, s{sB}, s{sLAY}\ns_add_u32 s{sB}, s{sB}, {stbuf}")
    P.e(f"v_mov_b32 v{T}, 0\nv_mov_b32 v{T+1}, 0")
    for k0 in (0, 4, 8):
        ks = range(k0, min(k0 + 4, 10))
        for k in ks:
            P.e(f"v_lshlrev_b32 v{T+4+2*(k%4)}, 16, v{XR+k}\nv_and_b32 v{T+5+2*(k%4)}, 0xffff0000, v{XR+k}")
        for k in ks:
            P.e(f"v_pk_add_f32 {V(T+4+2*(k%4), 2)}, {V(T+4+2*(k%4), 2)}, {V(ACC+2*k, 2)}")
        for k in ks:
            P.e(f"v_cvt_pk_bf16_f32 v{XR+k}, v{T+4+2*(k%4)}, v{T+5+2*(k%4)}")
        if final:
            continue
        if k0 < 8:
            P.e(f"buffer_store_dwordx4 {V(XR+k0, 4)}, v2, s[4:7], s{sC} offen offset:{k0*256} sc1", tag="out")
        else:
            P.e(f"buffer_store_dwordx2 {V(XR+8, 2)}, v{vHALF}, s[4:7], s{sC} offen offset:2048 sc1", tag="out")
    if final:
        P.e(f"s_mul_i32 s{sA}, s{sMT}, 20480\ns_mul_i32 s{sB}, s{sCG8}, 160\ns_add_u32 s{sA}, s{sA}, s{sB}")
        P.e(f"buffer_store_dwordx4 {V(XR, 4)}, v{vO16}, s[8:11], s{sA} offen")
        P.e(f"buffer_store_dwordx4 {V(XR+4, 4)}, v{vO16}, s[8:11], s{sA} offen offset:64")
        P.e(f"buffer_store_dwordx2 {V(XR+8, 2)}, v{vO8}, s[8:11], s{sA} offen offset:128")
        return
    for k in range(10):
        P.e(f"v_dot2_f32_bf16 v{T}, v{XR+k}, v{ONES}, v{T}")
        P.e(f"v_dot2_f32_bf16 v{T+1}, v{XR+k}, v{XR+k}, v{T+1}")
    a, b = allreduce_g(T, T + 2), allreduce_g(T + 1, T + 3)
    for x, y in zip(a, b):
        P.e(x)
        P.e(y)
    P.e(f"buffer_store_dwordx2 {V(T, 2)}, v{vSTS}, s[4:7], s{sB} offen sc1", tag="out")


def wr_cluster(sf, F):
    return (f"s_lshr_b32 s{sA}, s{sf}, 4\ns_lshl_b32 s{sA}, s{sA}, 11\ns_and_b32 s{sB}, s{sf}, 15\ns_lshl_b32 s{sB}, s{sB}, 2\n"
            f"s_add_u32 s{sA}, s{sA}, s{sB}\ns_add_u32 s{sA}, s{sA}, s{sLAY}\ns_add_u32 s{sA}, s{sA}, {F}")


def rd_cluster(sf, F):
    return f"s_lshl_b32 s{sB}, s{sf}, 7\ns_add_u32 s{sB}, s{sB}, s{sLAY}\ns_add_u32 s{sB}, s{sB}, {F}"


def phase2(P, ch):
    sc = Sched(P, "p2")
    OR, ACC, DT, T = PV, PV + 80, PV + 100, PV + 132
    for r in range(4):
        P.e(f"v_mov_b32 v{DT+r}, 0")
    for k in range(10):
        P.e(f"ds_write_b128 v{vZF}, {V(DT, 4)} offset:{k*4096}", tag="z")
    P.e(f"s_add_u32 s{sX0}, s{sLAY}, {KVA}")
    P.e(f"s_mul_i32 s{sX1}, s{sMT}, 20480\ns_add_u32 s{sX1}, s{sX1}, s{sLAY}\ns_add_u32 s{sX1}, s{sX1}, {PQ}")
    P.e(rd_cluster(sFB, F1C).replace(f"s{sB}", f"s{sFL}"))
    P.wlg("z")
    poll(P, f"s_add_u32 s{sB}, s{sFG}, s{sLAY}\ns_add_u32 s{sB}, s{sB}, {F1}", "2", wide=True)
    P.e(f"buffer_load_dword v253, v{vPOLL}, s[4:7], s{sFL} offen sc1", tag="fp")
    for rr in range(16):
        if rr:
            P.e(f"s_add_u32 s{sX0}, s{sX0}, 3360")
        P.e(f"buffer_load_dwordx4 {V(OR+4*rr, 4)}, v{vKVL}, s[4:7], s{sX0} offen sc1", tag=f"kv{rr}")
    Sched.x_ctx = None
    for h in range(32):
        sc.load(A(4 * h, 4), vPQW, sX1, (5 * h // 2) * 256, f"pq{h}", h)
    P.add(check_items("2", 0))
    sc.burst(8)
    for rr in range(16):
        P.wvm(f"kv{rr}")
        a = OR + 4 * rr
        P.e(f"v_cvt_pk_bf16_f32 v{a}, v{a}, v{a+1}\nv_cvt_pk_bf16_f32 v{a+1}, v{a+2}, v{a+3}")
        P.e(f"ds_write_b64 v{vKVW}, {V(a, 2)} offset:{rr*2560}", tag="kw")
        if rr % 2:
            sc.burst(1)
    P.wlg("kw")
    P.e("s_barrier")
    stamp(P, "p2")
    for c in range(1, 8):
        sc.dma(ch["p3"][c], 1000 + c)
    steps = []
    nw = 0

    def wstep(n):
        kb, t = divmod(n, 5)

        def mf(w):
            d = V(ACC + 4 * t, 4)
            return [f"{MF} {d}, {w}, {V(OR+4*kb, 4)}, {'0' if kb == 0 else d}"]
        st = dict(fr=divmod(n, 20), mf=mf)
        if t == 0:
            st["aw"] = f"o{(8*kb+7)//5}"
        return st

    for h in range(32):
        d = DT + 8 * (h % 4)
        for j in range(2):
            st = dict(rd=lambda dst, h=h, j=j: f"ds_read_b128 {dst}, v{vE0+j} offset:{h*1280}",
                      mf=lambda w, h=h, j=j, d=d: [f"{MF} {V(d+4*j, 4)}, {w}, {A(4*h, 4)}, {V(CE, 4) if j else '0'}"])
            if j == 0:
                st["xw"] = [f"pq{h}"]
                if h >= 3:
                    st["aw"] = f"o{h-3}"
            steps.append(st)
        L = [f"v_rcp_f32 v{d+5}, v{d+5}"] + [f"v_mul_f32 v{d+i}, v{d+i}, v{d+5}" for i in range(5)]
        n0 = 5 * h
        if h % 2 == 0:
            L += [f"v_cvt_pk_bf16_f32 v{OR+n0//2}, v{d}, v{d+1}", f"v_cvt_pk_bf16_f32 v{OR+n0//2+1}, v{d+2}, v{d+3}"]
        else:
            dp = DT + 8 * ((h - 1) % 4)
            L += [f"v_cvt_pk_bf16_f32 v{OR+n0//2}, v{dp+4}, v{d}", f"v_cvt_pk_bf16_f32 v{OR+n0//2+1}, v{d+1}, v{d+2}",
                  f"v_cvt_pk_bf16_f32 v{OR+n0//2+2}, v{d+3}, v{d+4}"]
        sc.alu(L, step=len(steps) + 1)
        sc.mark(f"o{h}")
        lim = min(100, int(round((h - 1) * 100 / 32)))
        while nw < lim and (8 * (nw // 5) + 7) // 5 <= h - 2:
            steps.append(wstep(nw))
            nw += 1
    while nw < 100:
        steps.append(wstep(nw))
        nw += 1
    sc.run(steps, ch["p2"], 2, extra=CFG["x2"], nobar=(0, 1), wevery=2)
    sc.drain()
    resid_epilogue(P, ACC, T, XB, STB)
    handoff(P, sc, "out", wr_cluster(sFB, F2), vFC, "2")


def phase3(P, ch):
    sc = Sched(P, "p3")
    ACC, VST, VRS, VSD, VC, VEXT, T, HO = PV, PV + 112, PV + 120, PV + 122, PV + 124, PV + 126, PV + 134, PV + 142
    x_phase_loads(sc, P, XB, STB, VST, 6)
    poll(P, rd_cluster(sFA, F2), "3")
    sc.burst(2 * CFG["b3"])
    for c in range(8, 15):
        sc.dma(ch["p3"][c], 20 * c - 60)
    for c in range(8):
        sc.dma(ch["p4"][c], 1000 + c)
    steps = []
    gend = {}
    for p0, npair in ((0, 3), (3, 1), (4, 2), (6, 1)):
        for kb in range(21):
            for t in range(2 * p0, 2 * (p0 + npair)):
                def mf(w, kb=kb, t=t):
                    L = []
                    for m in range(2):
                        x = A((m * 20 + kb) * 4, 4) if kb < 20 else V(VEXT + 4 * m, 4)
                        d = V(ACC + m * 56 + t * 4, 4)
                        L.append(f"{MF} {d}, {w}, {x}, {'0' if kb == 0 else d}")
                    return L
                st = dict(fr=divmod(len(steps), 20), mf=mf)
                if t == 0 and kb % 2 == 0 and kb < 20:
                    st["xw"] = [f"X{kb}"]
                if t == 0 and kb == 20:
                    st["aw"] = "ext"
                steps.append(st)
        for p in range(p0, p0 + npair):
            gend[p] = len(steps)
    sc.alu([Wait("vm", "st")], step=64)
    for m in range(2):
        sc.alu(stats_finish(VST, m, VRS + m, VSD + m, VEXT + 4 * m, T) + [f"v_mul_f32 v{VC+m}, {f32(-LOG2E)}, v{VRS+m}"])
    sc.mark("ext")
    sc.alu([f"s_lshl_b32 s{sA}, s{sCG}, 11\ns_mul_i32 s{sC}, s{sMT0}, 55296\ns_add_u32 s{sC}, s{sC}, s{sA}\ns_add_u32 s{sC}, s{sC}, s{sLAY}\ns_add_u32 s{sC}, s{sC}, {HB}\ns_add_u32 s{sD1}, s{sC}, 55296",
            f"s_lshl_b32 s{sA}, s{sCG}, 10\ns_sub_u32 s{sD2}, 32768, s{sA}"])

    def epi(p, m):
        g = ACC + m * 56 + 8 * p
        u = g + 4
        L = [f"v_mul_f32 v{g+r}, v{g+r}, v{VC+m}" for r in range(4)]
        L += [f"v_exp_f32 v{g+r}, v{g+r}" for r in range(4)]
        L += [f"v_fma_f32 v{g+r}, v{g+r}, v{VSD+m}, v{VSD+m}" for r in range(4)]
        L += [f"v_rcp_f32 v{g+r}, v{g+r}" for r in range(4)]
        L += [f"v_mul_f32 v{u+r}, v{u+r}, v{g+r}" for r in range(4)]
        o = HO + m * 14 + 2 * p
        L += [f"v_cvt_pk_bf16_f32 v{o}, v{u}, v{u+1}", f"v_cvt_pk_bf16_f32 v{o+1}, v{u+2}, v{u+3}"]
        L = [Ins(x) for x in L]
        so = sD1 if m else sC
        if p % 2 == 1:
            L.append(Ins(f"buffer_store_dwordx4 {V(o-2, 4)}, v2, s[4:7], s{so} offen offset:{1024 if p == 3 else 0} sc1", "outE" if p < 4 else "out"))
        if p == 6:
            L.append(Ins(f"buffer_store_dwordx2 {V(o, 2)}, v{vH3}, s[4:7], s{so} offen sc1", "out"))
        return L

    for p in range(6):
        for m in range(2):
            sc.alu(epi(p, m), step=gend[p] + 1)
        if p == 3:
            sc.alu([f"s_add_u32 s{sC}, s{sC}, s{sD2}\ns_add_u32 s{sD1}, s{sD1}, s{sD2}\ns_lshr_b32 s{sD2}, s{sD2}, 1"])
            fl = flag_items("outE", wr_cluster(sFA, F3), vFC)
            k = [isinstance(x, Wait) for x in fl].index(True)
            sc.alu(fl[:k])
            sc.alu(fl[k:], step=CFG["e3"])
    sc.alu([f"s_add_u32 s{sC}, s{sC}, s{sD2}\ns_add_u32 s{sD1}, s{sD1}, s{sD2}", rd_cluster(sFB, F3).replace(f"s{sB}", f"s{sFL}")])
    sc.run(steps, ch["p3"], CFG["g3"])
    sc.drain()
    P.e(f"buffer_load_dword v253, v{vPOLL}, s[4:7], s{sFL} offen sc1", tag="fp")
    a, b = epi(6, 0), epi(6, 1)
    for k in range(0, 20, 4):
        P.add(a[k:k + 4] + b[k:k + 4])
    P.add(a[20:] + b[20:])
    P.add(flag_items("out", "", vFC, 64)) if not CFG["nowait3"] else None
    stamp(P, "p3")
    return sc


def phase4(P, ch, prev):
    sc = Sched(P, "p4")
    sc.events.add("p3:end")
    for o in prev.vq:
        o.prio = 60 + (o.prio - 1000)
    sc.vq, sc.pend, sc.pend_tag = prev.vq, prev.pend, prev.pend_tag
    ACC, T = PV, PV + 20
    P.e(f"s_mul_i32 s{sX0}, s{sMT}, 55296\ns_add_u32 s{sX0}, s{sX0}, s{sLAY}\ns_add_u32 s{sX0}, s{sX0}, {HB}")
    Sched.x_ctx = None
    for kb in range(54):
        sc.load(A(kb * 4, 4), 2, sX0, kb * 1024, f"X{kb}", kb * 5 - 50, step=kb * 5 - CFG["lead4"], event="late" if kb >= 32 else None)
    P.add(check_items("4e", 0))
    stamp(P, "p4")
    sc.burst(CFG["b4"])
    if CFG["nowait3"]:
        sc.alu(flag_items("out", "", vFC, 64), step=CFG["f4"])
    sc.alu([Ins(f"buffer_load_dword v253, v{vPOLL}, s[4:7], s{sFL} offen offset:64 sc1", "fp")], step=CFG["c4"] - 24)
    sc.alu(check_items("4", 64), step=CFG["c4"])
    sc.mark("late")
    for c in range(8, 14):
        sc.dma(ch["p4"][c], 20 * c - 60)
    for c in range(8):
        sc.dma(ch["p1"][c], 1000 + c, step=CFG["pf4"])
    steps = []
    for kb in range(54):
        for t in range(5):
            def mf(w, kb=kb, t=t):
                d = V(ACC + 4 * t, 4)
                return [f"{MF} {d}, {w}, {A(kb*4, 4)}, {'0' if kb == 0 else d}"]
            st = dict(fr=divmod(len(steps), 20), mf=mf)
            if t == 0:
                st["xw"] = [f"X{kb}"]
            steps.append(st)
    sc.run(steps, ch["p4"], CFG["g4"], wevery=2)
    P.e(f"s_cmp_lg_u32 s{sLAY}, 0\ns_cbranch_scc1 L_final")
    resid_epilogue(P, ACC, T, XA + LB, STA + LB)
    handoff(P, sc, "out", wr_cluster(sFB, F0 + LB), vFC, "4")
    stamp_flush(P)
    P.e(f"s_mov_b32 s{sLAY}, {LB}\ns_branch L_layer\nL_final:")
    resid_epilogue(P, ACC, T, 0, 0, final=True)
    P.e("s_waitcnt vmcnt(0)")
    stamp_flush(P)
    P.e("s_endpgm")


def gen_main():
    ch = mk_chunks()
    _nstamp[0] = 0
    Q = Prog()
    Q.e("s_cmp_ge_u32 s2, 256\ns_cbranch_scc1 L_exit")
    stamp(Q)
    P = Prog()
    Sched.dma_ctx = None
    phase1(P, ch)
    phase2(P, ch)
    phase4(P, ch, phase3(P, ch))
    order = [x for x in Sched.log if x[0][0] == "1" and x[0] != "1_8"]
    assert len(order) == 40
    P.items = [Ins(".p2align 6"), Ins("L_layer:")] + [Virtual("W" + x[0]) for x in order] + P.items
    Q.e("s_load_dwordx2 s[4:5], s[0:1], 72", tag="ka")
    Q.e("s_load_dwordx2 s[8:9], s[0:1], 56", tag="ka")
    Q.e("v_lshrrev_b32 v7, 6, v0\nv_and_b32 v1, 63, v0\nv_readfirstlane_b32 s12, v7\nv_lshlrev_b32 v2, 4, v1\nv_lshrrev_b32 v5, 4, v1\nv_and_b32 v6, 15, v1")
    Q.e(f"s_mov_b32 s6, {WS_USED}\ns_mov_b32 s7, 0x20000\ns_mov_b32 s10, {XSZ}\ns_mov_b32 s11, 0x20000")
    Q.e(f"s_and_b32 s{sA}, s2, 7\ns_lshr_b32 s{sB}, s2, 3\ns_and_b32 s{sC}, s{sB}, 3\ns_lshr_b32 s{sCG8}, s{sB}, 2")
    Q.e(f"s_lshr_b32 s{sRB}, s{sA}, 1\ns_lshl_b32 s{sRB}, s{sRB}, 2\ns_add_u32 s{sRB}, s{sRB}, s{sC}")
    Q.e(f"s_and_b32 s{sCG}, s{sA}, 1\ns_lshl_b32 s{sCG}, s{sCG}, 3\ns_add_u32 s{sCG}, s{sCG}, s{sCG8}")
    Q.e(f"s_mul_i32 s{sW5}, s{sWAVE}, 5120\ns_mul_i32 s{sW1}, s{sCG}, {168*1024}\ns_add_u32 s{sW1}, s{sW1}, s{sW5}")
    Q.wlg("ka")
    Q.e("s_and_b32 s5, s5, 0xffff\ns_and_b32 s9, s9, 0xffff")
    sc = Sched(Q, "pro")
    Sched.dma_ctx = None
    for c in range(8):
        ch["p1"][c].event = None
        sc.dma(ch["p1"][c], lambda i, c=c: order.index((f"1_{c}", i)))
    sc.burst(40)
    Q.e(f"s_lshl_b32 s{sA}, s{sA}, 2\ns_add_u32 s{sA}, s{sA}, s{sC}")
    Q.e(f"s_lshl_b32 s{sMT}, s{sA}, 2\ns_add_u32 s{sMT}, s{sMT}, s{sWAVE}")
    Q.e(f"s_lshl_b32 s{sFB}, s{sA}, 3\ns_add_u32 s{sFB}, s{sFB}, s{sCG8}")
    Q.e(f"s_lshl_b32 s{sFA}, s{sRB}, 4\ns_add_u32 s{sFA}, s{sFA}, s{sCG}")
    Q.e(f"s_lshl_b32 s{sMT0}, s{sRB}, 3\ns_lshl_b32 s{sB}, s{sWAVE}, 1\ns_add_u32 s{sMT0}, s{sMT0}, s{sB}")
    Q.e(f"s_and_b32 s{sFG}, s2, 15\ns_lshl_b32 s{sFG}, s{sFG}, 10\ns_mov_b32 s{sEPS}, {f32(1e-6)}\ns_mov_b32 s{sLAY}, 0")
    for r, base, n, cg in ((sW2, WF2, 100, sCG8), (sW3, WF3, 294, sCG), (sW4, WF4, 270, sCG8)):
        Q.e(f"s_mul_i32 s{r}, s{cg}, {n*1024}\ns_add_u32 s{r}, s{r}, {base}\ns_add_u32 s{r}, s{r}, s{sW5}")
    Q.e("v_add_u32 v3, 0x10000, v2\nv_add_u32 v4, 0x20000, v2")
    Q.e(f"v_mov_b32 v{vT}, {OOB}")
    Q.e(f"v_lshlrev_b32 v{vSTL}, 8, v5\nv_lshl_add_u32 v{vSTL}, v6, 3, v{vSTL}")
    Q.e(f"v_lshrrev_b32 v{vHALF}, 1, v5\nv_lshlrev_b32 v{vHALF}, 8, v{vHALF}\nv_lshl_add_u32 v{vHALF}, v6, 4, v{vHALF}")
    Q.e(f"v_and_b32 v{vPQT}, 1, v5\nv_lshl_add_u32 v{vHALF}, v{vPQT}, 3, v{vHALF}")
    Q.e(f"s_mul_i32 s{sC}, s{sMT}, 20480\ns_mul_i32 s{sB}, s{sCG8}, 2560\ns_add_u32 s{sC}, s{sC}, s{sB}\ns_add_u32 s{sC}, s{sC}, {XA}")
    Q.e(f"buffer_load_dwordx4 {V(XR, 4)}, v2, s[4:7], s{sC} offen\nbuffer_load_dwordx4 {V(XR+4, 4)}, v2, s[4:7], s{sC} offen offset:1024")
    Q.e(f"buffer_load_dwordx2 {V(XR+8, 2)}, v{vHALF}, s[4:7], s{sC} offen offset:2048")
    Q.e(f"v_cmp_gt_u32 vcc, 32, v1\nv_cndmask_b32 v{vPQT}, v{vT}, v{vHALF}, vcc")
    Q.e(f"v_cmp_gt_u32 vcc, 16, v1\nv_lshlrev_b32 v{vSTS}, 3, v6\nv_cndmask_b32 v{vSTS}, v{vT}, v{vSTS}, vcc")
    Q.e("v_cmp_gt_u32 vcc, 16, v0")
    Q.e(f"v_lshlrev_b32 v{vFC}, 7, v1\nv_cndmask_b32 v{vFC}, v{vT}, v{vFC}, vcc\nv_lshlrev_b32 v{vFG}, 10, v1\nv_cndmask_b32 v{vFG}, v{vT}, v{vFG}, vcc")
    Q.e(f"v_lshlrev_b32 v{vPOLL}, 2, v6\nv_mov_b32 v{vONE}, 1")
    Q.e(f"v_cmp_gt_u32 vcc, 48, v1\nv_cndmask_b32 v{vPQW}, v{vT}, v2, vcc")
    Q.e(f"s_cmp_lt_u32 s{sCG}, 12\ns_cselect_b32 s{sB}, 0, {OOB}\nv_add_u32 v{vH3}, s{sB}, v{vHALF}")
    Q.e(f"v_mul_u32_u24 v{vO8}, 1280, v6\nv_lshl_add_u32 v{vO16}, v5, 4, v{vO8}\nv_lshl_add_u32 v{vO8}, v5, 3, v{vO8}")
    Q.e(f"s_mul_i32 s{sB}, s{sWAVE}, 3360\ns_add_u32 s{sB}, s{sB}, {RED - 640}")
    Q.e(f"v_mul_u32_u24 v{vRW0}, 336, v5\nv_lshl_add_u32 v{vRW0}, v6, 4, v{vRW0}\nv_add_u32 v{vRW0}, s{sB}, v{vRW0}")
    Q.e(f"v_min_u32 v{vRW1}, 1, v5\nv_mul_u32_u24 v{vRW1}, 320, v{vRW1}\nv_sub_u32 v{vRW1}, v{vRW0}, v{vRW1}")
    Q.e(f"v_lshlrev_b32 v{vAT}, 2, v0\nv_add_u32 v{vRR}, {RED}, v{vAT}\nv_cmp_gt_u32 vcc, 72, v0\nv_cndmask_b32 v{vATM}, v{vT}, v{vAT}, vcc")
    Q.e(f"s_lshl_b32 s{sB}, s{sWAVE}, 7\ns_add_u32 s{sB}, s{sB}, {BNC}\nv_lshl_add_u32 v{vBW}, v6, 2, s{sB}\nv_lshl_add_u32 v{vBR}, v5, 4, s{sB}")
    mk = lanemask(lambda g, i: i < 8)
    Q.e(f"s_mov_b32 s{sM8}, 0x{mk & 0xffffffff:08x}\ns_mov_b32 s{sM8+1}, 0x{mk >> 32:08x}")
    for n, (i, j) in enumerate(PAIRS):
        mk = red_mask(i, j)
        Q.e(f"s_mov_b32 s{sMASK+2*n}, 0x{mk & 0xffffffff:08x}\ns_mov_b32 s{sMASK+2*n+1}, 0x{mk >> 32:08x}")
    a, b, c, d, e = PV, PV + 1, PV + 2, PV + 3, PV + 4
    Q.e(f"s_lshr_b32 s{sA}, s{sWAVE}, 1\ns_and_b32 s{sB}, s{sWAVE}, 1\ns_lshl_b32 s{sB}, s{sB}, 6\nv_add_u32 v{a}, s{sB}, v1")
    Q.e(f"v_mul_u32_u24 v{b}, 3121, v{a}\nv_lshrrev_b32 v{b}, 16, v{b}\nv_mul_u32_u24 v{c}, 21, v{b}\nv_sub_u32 v{c}, v{a}, v{c}")
    Q.e(f"s_mul_i32 s{sB}, s{sA}, 1680\nv_lshl_add_u32 v{vKVL}, v{a}, 4, s{sB}")
    Q.e(f"v_add_u32 v{b}, s{sA}, v{b}\nv_lshrrev_b32 v{d}, 1, v{b}\nv_and_b32 v{b}, 1, v{b}")
    Q.e(f"v_lshlrev_b32 v{e}, 8, v{d}\nv_lshlrev_b32 v{d}, 7, v{d}\nv_add_u32 v{d}, 512, v{d}\nv_cmp_gt_u32 vcc, 16, v{c}\nv_cndmask_b32 v{d}, v{d}, v{e}, vcc")
    Q.e(f"v_lshl_add_u32 v{d}, v{c}, 4, v{d}\nv_lshl_add_u32 v{d}, v{b}, 3, v{d}")
    Q.e(f"v_cmp_gt_u32 vcc, 105, v{a}\nv_mov_b32 v{e}, 1152\nv_cndmask_b32 v{d}, v{e}, v{d}, vcc\nv_cndmask_b32 v{vKVL}, v{vT}, v{vKVL}, vcc")
    Q.e(f"s_mul_i32 s{sB}, s{sA}, 1280\ns_add_u32 s{sB}, s{sB}, {KVT}\nv_add_u32 v{vKVW}, s{sB}, v{d}")
    Q.e(f"v_lshlrev_b32 v{vZF}, 4, v0\nv_add_u32 v{vZF}, {KVT}, v{vZF}")
    Q.e(f"v_and_b32 v{c}, 7, v6\nv_lshlrev_b32 v{c}, 4, v{c}\nv_add_u32 v{c}, 1152, v{c}")
    Q.e(f"v_and_b32 v{b}, 3, v6\nv_lshrrev_b32 v{d}, 2, v6\nv_cmp_eq_u32 vcc, 0, v{b}\nv_cndmask_b32 v{b}, 4, v{d}, vcc")
    Q.e(f"v_lshlrev_b32 v{b}, 4, v{b}\nv_lshl_add_u32 v{b}, v5, 7, v{b}\nv_add_u32 v{b}, 768, v{b}")
    Q.e(f"v_cmp_eq_u32 vcc, 3, v5\nv_cndmask_b32 v{b}, v{b}, v{c}, vcc\nv_add_u32 v{vE1}, {KVT}, v{b}")
    Q.e(f"v_cndmask_b32 v{b}, v2, v{c}, vcc\nv_add_u32 v{vE0}, {KVT}, v{b}")
    Q.e(f"v_mov_b32 v{CE}, 0\nv_mov_b32 v{CE+1}, s{sEPS}\nv_mov_b32 v{CE+2}, 0\nv_mov_b32 v{CE+3}, 0")
    for r in range(4):
        Q.e(f"v_mov_b32 v{ONES+r}, 0x3f803f80")
    return Q, P


K0ST = ""


def k0_prologue(P, nwg):
    P.e(f"s_cmp_ge_u32 s2, {nwg}\ns_cbranch_scc1 L_exit")
    if STAMPS:
        P.raw(f"{STAMP_INS} s[70:71]")
    P.e("s_load_dwordx2 s[4:5], s[0:1], 72", tag="ka")
    P.e("v_lshrrev_b32 v7, 6, v0\nv_and_b32 v1, 63, v0\nv_readfirstlane_b32 s12, v7\nv_lshlrev_b32 v2, 4, v1\nv_lshrrev_b32 v5, 4, v1\nv_and_b32 v6, 15, v1")
    P.e(f"s_mov_b32 s6, {WS_USED}\ns_mov_b32 s7, 0x20000")
    if CFG.get("cpf"):
        P.e(f"s_getpc_b64 s[40:41]\nL_pc:\ns_add_u32 s40, s40, main_kernel-L_pc\ns_addc_u32 s41, s41, 0")
        P.e(f"s_lshr_b32 s42, s2, 3\ns_min_u32 s42, s42, {CFG['cpf']-1}\ns_lshl_b32 s42, s42, 12\nv_lshl_add_u32 v90, v0, 4, s42")
        P.e("global_load_dwordx4 v[92:95], v90, s[40:41]")


def k0_end(P):
    if STAMPS:
        P.e(f"s_waitcnt vmcnt(0)\n{STAMP_INS} s[72:73]\ns_mov_b64 exec, -1\ns_lshl_b32 s90, s2, 8\ns_add_u32 s90, s90, {STAMP}")
        P.e("s_cmp_lg_u32 s12, 0\ns_cselect_b32 s91, 0x40000000, 0\nv_mov_b32 v9, s91\ns_waitcnt lgkmcnt(0)")
        P.e("v_mov_b32 v10, s70\nv_mov_b32 v11, s71\nv_mov_b32 v12, s72\nv_mov_b32 v13, s73\nbuffer_store_dwordx4 v[10:13], v9, s[4:7], s90 offen")
    P.e("s_endpgm")


K0_LDS = 40 * 1024
NJ1, NJ3, NJB, NJC = 64, 128, 74, 64


def gen_k0():
    texts = []
    mx = {"v": 0, "s": 0}
    P = Prog()
    k0_prologue(P, NJ1 + NJ3 + NJB + NJC)
    P.e("s_load_dwordx4 s[52:55], s[0:1], 0", tag="ka")
    P.e("s_load_dwordx2 s[56:57], s[0:1], 16", tag="ka")
    P.e("s_load_dwordx4 s[60:63], s[0:1], 32", tag="ka")
    P.e("s_load_dwordx2 s[58:59], s[0:1], 48", tag="ka")
    if CFG.get("tlb"):
        P.e("s_load_dwordx2 s[64:65], s[0:1], 56", tag="ka")
    P.e("s_mov_b32 s11, 0x20000")
    P.e("v_lshrrev_b32 v7, 2, v6\nv_and_b32 v8, 3, v6")
    P.e("v_and_b32 v9, 1, v5\nv_lshl_add_u32 v9, v9, 2, v7\nv_lshlrev_b32 v9, 1, v9")
    P.e("v_lshl_add_u32 v10, v5, 3, v7\nv_lshlrev_b32 v10, 8, v10")
    P.e("s_lshr_b32 s17, s12, 1\ns_lshl_b32 s17, s17, 3\nv_lshl_add_u32 v11, v5, 1, s17\nv_xor_b32 v11, v11, v6")
    P.wlg("ka")
    P.e("s_and_b32 s5, s5, 0xffff")
    if CFG.get("tlb"):
        sh = CFG["tlb"]
        P.e(f"s_lshr_b32 s42, s2, 3\ns_lshl_b32 s42, s42, 8\nv_add_u32 v91, s42, v0\nv_min_u32 v91, 0x3ff, v91\nv_lshlrev_b32 v91, {sh}, v91")
        P.e("buffer_load_dword v96, v91, s[4:7], 0 offen")
        P.e(f"s_and_b32 s65, s65, 0xffff\ns_mov_b32 s66, {XSZ}\ns_mov_b32 s67, 0x20000\nbuffer_load_dword v97, v91, s[64:67], 0 offen")
    P.e(f"s_cmp_lt_u32 s2, {NJ1 + NJ3}\ns_cbranch_scc1 L_k0_A")
    P.e(f"s_cmp_lt_u32 s2, {NJ1 + NJ3 + NJB}\ns_cbranch_scc1 L_k0_B")
    P.e("s_branch L_k0_C")
    texts.append(P)

    P = Prog()
    P.e("L_k0_A:")
    P.e(f"s_cmp_lt_u32 s2, {NJ1}\ns_cbranch_scc0 L_k0_A3")
    P.e("s_lshr_b32 s14, s2, 2\ns_and_b32 s15, s2, 3")
    P.e(f"s_mov_b32 s8, s54\ns_and_b32 s9, s55, 0xffff\ns_mov_b32 s10, {640*1920*2}\ns_mov_b32 s20, 3840")
    P.e("v_min_u32 v12, 14, v11\nv_mul_u32_u24 v13, 52, v12\nv_lshrrev_b32 v13, 8, v13")
    P.e("v_mul_u32_u24 v13, 1200, v13\nv_lshl_add_u32 v12, v12, 4, v13")
    P.e("s_mul_i32 s21, s14, 80")
    P.e("s_lshl_b32 s22, s12, 5\ns_add_u32 s22, s22, 80\ns_mov_b32 s23, 8\ns_mov_b32 s24, 3")
    P.e("s_mov_b32 s25, 208\ns_mov_b32 s26, 8\ns_mov_b32 s27, 3")
    P.e("s_cmp_eq_u32 s12, 1\ns_cselect_b32 s25, 0, s25\ns_cselect_b32 s26, 16, s26")
    P.e("s_cmp_eq_u32 s12, 2\ns_cselect_b32 s25, 8, s25\ns_cselect_b32 s26, 16, s26")
    P.e("s_cmp_eq_u32 s12, 3\ns_cselect_b32 s25, 64, s25\ns_cselect_b32 s27, 1, s27")
    P.e(f"s_mul_i32 s28, s14, {21*8*1024}\ns_add_u32 s28, s28, {WF1}\ns_lshl_b32 s17, s12, 10\ns_add_u32 s28, s28, s17")
    P.e(f"s_cmp_eq_u32 s12, 0\ns_mov_b32 s17, {104*1024}\ns_mov_b32 s36, 3072\ns_cselect_b32 s17, 4096, s17\ns_cselect_b32 s36, 5120, s36\ns_add_u32 s29, s28, s17\ns_mov_b32 s30, 5120")
    P.e("s_branch L_k0_Ac")
    P.e("L_k0_A3:")
    P.e(f"s_sub_u32 s16, s2, {NJ1}\ns_and_b32 s18, s16, 1\ns_lshr_b32 s15, s16, 1\ns_and_b32 s15, s15, 3\ns_lshr_b32 s14, s16, 3")
    P.e("s_cmp_eq_u32 s18, 0\ns_cselect_b32 s8, s60, s62\ns_cselect_b32 s9, s61, s63\ns_and_b32 s9, s9, 0xffff")
    P.e(f"s_mov_b32 s10, {640*1728*2}\ns_mov_b32 s20, 3456")
    P.e("s_cmp_lt_u32 s14, 12\ns_cselect_b32 s17, 13, 11")
    P.e("v_min_u32 v12, s17, v11\nv_lshlrev_b32 v12, 4, v12")
    P.e("s_mul_i32 s21, s14, 224\ns_mul_i32 s17, s14, 192\ns_add_u32 s17, s17, 384\ns_min_u32 s21, s21, s17")
    P.e("s_lshr_b32 s22, s12, 1\ns_lshl_b32 s22, s22, 6\ns_and_b32 s17, s12, 1\ns_lshl_b32 s17, s17, 3\ns_add_u32 s22, s22, s17")
    P.e("s_mov_b32 s23, 16\ns_mov_b32 s24, 3\ns_mov_b32 s27, 3")
    P.e("s_add_u32 s25, s17, 128\ns_cmp_lt_u32 s12, 2\ns_cselect_b32 s25, s25, 192\ns_cselect_b32 s26, 16, 8")
    P.e(f"s_mul_i32 s28, s14, {21*14*1024}\ns_add_u32 s28, s28, {WF3}\ns_lshl_b32 s17, s18, 10\ns_add_u32 s28, s28, s17")
    P.e(f"s_cmp_eq_u32 s12, 1\ns_mov_b32 s17, {252*1024}\ns_cselect_b32 s17, {170*1024}, s17\ns_cmp_eq_u32 s12, 0\ns_cselect_b32 s17, {168*1024}, s17\ns_cmp_lt_u32 s12, 2\ns_mov_b32 s36, 2048\ns_cselect_b32 s36, 4096, s36\ns_add_u32 s29, s28, s17")
    P.e(f"s_lshl_b32 s17, s12, 11\ns_cmp_eq_u32 s12, 3\ns_cselect_b32 s17, {126*1024}, s17\ns_mov_b32 s30, 6144\ns_cselect_b32 s30, 2048, s30\ns_add_u32 s28, s28, s17")
    P.e("L_k0_Ac:")
    P.e("s_lshl_b32 s17, s12, 2\nv_add_u32 v13, s17, v5\nv_mul_lo_u32 v13, v13, s20\nv_add_u32 v12, v12, v13")
    P.e("s_mul_i32 s31, s15, 160\ns_mul_i32 s31, s31, s20\ns_add_u32 s31, s31, s21\ns_lshl_b32 s32, s20, 4")
    P.e("s_lshl_b32 s33, s12, 10")
    for k in range(10):
        P.e(f"s_add_u32 m0, s33, {k*4096}")
        if k:
            P.e("s_add_u32 s31, s31, s32")
        P.e("buffer_load_dwordx4 v12, s[8:11], s31 offen lds", tag="d")
    for tt, (sa, sb, sm) in enumerate(((22, 23, 24), (25, 26, 27))):
        a = 14 + tt
        P.e(f"v_min_u32 v{a}, s{sm}, v8\nv_mul_lo_u32 v{a}, v{a}, s{sb}\nv_add_u32 v{a}, s{sa}, v{a}")
        P.e(f"v_lshrrev_b32 v16, 4, v{a}\nv_xor_b32 v16, v16, v9\nv_and_b32 v{a}, 8, v{a}")
        P.e(f"v_lshl_add_u32 v{a}, v16, 4, v{a}\nv_add_u32 v{a}, v{a}, v10")
    for r in range(4):
        P.e(f"v_mov_b32 v{20+r}, 0x3f803f80")
    P.e("s_mul_i32 s18, s15, 5\ns_mul_i32 s17, s18, s30\ns_add_u32 s34, s28, s17\ns_mul_i32 s17, s18, s36\ns_add_u32 s35, s29, s17")
    P.wvm("d")
    P.e("s_barrier")
    for tt in range(2):
        for k in range(5):
            d = 32 + (tt * 5 + k) * 4
            P.e(f"ds_read_b64_tr_b16 {V(d, 2)}, v{14+tt} offset:{k*8192}", tag=f"t{tt}{k}")
            P.e(f"ds_read_b64_tr_b16 {V(d+2, 2)}, v{14+tt} offset:{k*8192+1024}", tag=f"t{tt}{k}")
            if tt == 1 and k == 1:
                P.wlg("t04")
    for tt in range(2):
        for k in range(5):
            d = 32 + (tt * 5 + k) * 4
            P.wlg(f"t{tt}{k}")
            P.e(f"buffer_store_dwordx4 {V(d, 4)}, v2, s[4:7], s{34+tt} offen{K0ST}")
            P.e(f"s_add_u32 s{34+tt}, s{34+tt}, s{36 if tt else 30}")
            c = V(24 + 4 * tt, 4)
            P.e(f"{MF} {c}, {V(20, 4)}, {V(d, 4)}, {'0' if k == 0 else c}")
    P.e("s_lshl_b32 s18, s15, 8\ns_mul_i32 s17, s30, 20\ns_add_u32 s17, s17, s18\ns_add_u32 s28, s28, s17\ns_mul_i32 s17, s36, 20\ns_add_u32 s17, s17, s18\ns_add_u32 s29, s29, s17")
    set_exec(P, 0xffff)
    for tt in range(2):
        c = 24 + 4 * tt
        e = 72 + 4 * tt
        P.e(f"v_cvt_pk_bf16_f32 v{e}, v{c}, v{c}\nv_and_b32 v16, 0xffff0000, v{e}\nv_sub_f32 v17, v{c}, v16")
        P.e(f"v_cvt_pk_bf16_f32 v{e+1}, v17, v17\nv_and_b32 v16, 0xffff0000, v{e+1}\nv_sub_f32 v17, v17, v16")
        P.e(f"v_cvt_pk_bf16_f32 v{e+2}, v17, v{c}\nv_mov_b32 v{e+3}, 0")
        P.e(f"buffer_store_dwordx4 {V(e, 4)}, v2, s[4:7], s{28+tt} offen{K0ST}")
    k0_end(P)
    texts.append(P)

    P = Prog()
    P.e("L_k0_B:")
    P.e(f"s_sub_u32 s16, s2, {NJ1 + NJ3}")
    P.e("s_cmp_lt_u32 s16, 20\ns_cbranch_scc1 L_k0_B2")
    P.e(f"s_sub_u32 s16, s16, 20\ns_mov_b32 s8, s58\ns_and_b32 s9, s59, 0xffff\ns_mov_b32 s10, {1728*640*2}")
    P.e(f"s_mov_b32 s20, {54*5*1024}\ns_mov_b32 s21, {WF4}")
    P.e("s_lshr_b32 s22, s16, 1\ns_and_b32 s23, s16, 1\ns_lshl_b32 s23, s23, 5\ns_mov_b32 s24, 16")
    P.e("s_sub_u32 s17, s16, 32\ns_cmp_ge_u32 s16, 32\ns_cselect_b32 s22, s17, s22\ns_cselect_b32 s23, 64, s23")
    P.e("s_sub_u32 s17, s16, 48\ns_lshl_b32 s17, s17, 1\ns_cmp_ge_u32 s16, 48\ns_cselect_b32 s22, s17, s22\ns_cselect_b32 s23, 96, s23\ns_cselect_b32 s24, 112, s24")
    P.e("s_mul_i32 s17, s22, 112\ns_mul_i32 s18, s22, 96\ns_add_u32 s18, s18, 192\ns_min_u32 s17, s17, s18\ns_add_u32 s17, s17, s23")
    P.e("s_lshl_b32 s18, s12, 2\ns_add_u32 s17, s17, s18\nv_add_u32 v12, s17, v5\nv_add_u32 v13, s24, v12")
    P.e("s_branch L_k0_Bc")
    P.e("L_k0_B2:")
    P.e(f"s_mov_b32 s8, s56\ns_and_b32 s9, s57, 0xffff\ns_mov_b32 s10, {640*640*2}")
    P.e(f"s_mov_b32 s20, {20*5*1024}\ns_mov_b32 s21, {WF2}")
    P.e("s_lshl_b32 s18, s12, 2\nv_add_u32 v14, s18, v5\nv_and_b32 v15, 7, v14\nv_lshrrev_b32 v14, 3, v14")
    P.e("s_lshl_b32 s17, s16, 3\nv_add_u32 v15, s17, v15\nv_mul_u32_u24 v16, 205, v15\nv_lshrrev_b32 v16, 10, v16")
    P.e("v_mul_u32_u24 v17, 5, v16\nv_sub_u32 v17, v15, v17\nv_mul_u32_u24 v16, 20, v16")
    P.e("v_cmp_gt_u32 vcc, 4, v17")
    for k in range(2):
        if k:
            P.e("v_add_u32 v14, 2, v14")
        P.e(f"v_lshl_add_u32 v18, v14, 2, v17\nv_add_u32 v19, 16, v14\nv_cndmask_b32 v18, v19, v18, vcc\nv_add_u32 v{12+k}, v16, v18")
    P.e("L_k0_Bc:")
    for k in range(2):
        P.e(f"v_mul_u32_u24 v{12+k}, 1280, v{12+k}\nv_lshl_add_u32 v{12+k}, v11, 4, v{12+k}")
    P.e("s_lshl_b32 s33, s12, 10")
    for pn in range(5):
        for k in range(2):
            P.e(f"s_add_u32 m0, s33, {pn*8192 + k*4096}\ns_mov_b32 s31, {pn*256}")
            P.e(f"buffer_load_dwordx4 v{12+k}, s[8:11], s31 offen lds", tag="d")
    P.e("s_mul_i32 s22, s12, 320")
    P.e("v_lshlrev_b32 v14, 4, v8\nv_add_u32 v14, s22, v14\nv_lshlrev_b32 v15, 3, v8\nv_add_u32 v15, s22, v15")
    for cq in range(2):
        for t in range(5):
            a = 20 + cq * 5 + t
            k0 = 160 * cq + (64 * (t // 2) + 8 * (t % 2) if t < 4 else 128)
            P.e(f"v_add_u32 v16, {k0}, {'v14' if t < 4 else 'v15'}")
            P.e("v_bfe_u32 v17, v16, 4, 4\nv_xor_b32 v17, v17, v9\nv_lshrrev_b32 v18, 8, v16\nv_and_b32 v16, 8, v16")
            P.e(f"v_lshl_add_u32 v16, v17, 4, v16\nv_lshl_add_u32 v16, v18, 13, v16\nv_add_u32 v{a}, v16, v10")
    P.e("s_lshl_b32 s17, s12, 1\ns_mul_i32 s17, s17, s20\ns_add_u32 s21, s21, s17\ns_mul_i32 s17, s16, 5120\ns_add_u32 s21, s21, s17")
    P.wvm("d")
    P.e("s_barrier")
    for n in range(10):
        d = 32 + 4 * n
        P.e(f"ds_read_b64_tr_b16 {V(d, 2)}, v{20+n}", tag=f"t{n}")
        P.e(f"ds_read_b64_tr_b16 {V(d+2, 2)}, v{20+n} offset:1024", tag=f"t{n}")
        if n == 6:
            P.wlg("t3")
    for n in range(10):
        d = 32 + 4 * n
        if n == 4:
            P.e("s_add_u32 s17, s21, 4096")
        if n == 5:
            P.e("s_add_u32 s21, s21, s20")
        if n == 9:
            P.e("s_add_u32 s17, s21, 4096")
        P.wlg(f"t{n}")
        t = n % 5
        P.e(f"buffer_store_dwordx4 {V(d, 4)}, v2, s[4:7], {'s21' if t < 4 else 's17'} offen offset:{(t % 4)*1024}{K0ST}")
    k0_end(P)
    texts.append(P)

    P = Prog()
    P.e("L_k0_C:")
    P.e(f"s_sub_u32 s16, s2, {NJ1 + NJ3 + NJB}")
    P.e(f"s_mov_b32 s8, s52\ns_and_b32 s9, s53, 0xffff\ns_mov_b32 s10, {XSZ}")
    P.e("s_lshl_b32 s17, s12, 2\nv_add_u32 v12, s17, v5\nv_xor_b32 v13, v12, v6\nv_mul_u32_u24 v12, 1280, v12\nv_lshl_add_u32 v12, v13, 4, v12")
    P.e("s_mul_i32 s20, s16, 40960\ns_lshl_b32 s33, s12, 10")
    for ml in range(2):
        for pn in range(5):
            P.e(f"s_add_u32 m0, s33, {ml*20480 + pn*4096}\ns_add_u32 s31, s20, {ml*20480 + pn*256}")
            P.e("buffer_load_dwordx4 v12, s[8:11], s31 offen lds", tag="d")
    for r in range(4):
        P.e(f"v_mov_b32 v{20+r}, 0")
    P.e(f"s_and_b32 s17, s16, 31\ns_mul_i32 s17, s17, {ZSZ//32}\ns_lshr_b32 s18, s16, 5\ns_mul_i32 s18, s18, {LB}\ns_add_u32 s17, s17, s18\ns_add_u32 s17, s17, {KVA}")
    P.e(f"v_lshlrev_b32 v14, 4, v0\nbuffer_store_dwordx4 {V(20, 4)}, v14, s[4:7], s17 offen{K0ST}")
    P.e(f"v_cmp_gt_u32 vcc, {(ZSZ//32 - 4096)//16}, v0\nv_mov_b32 v15, 0x40000000\nv_cndmask_b32 v14, v15, v14, vcc\ns_add_u32 s17, s17, 4096")
    P.e(f"buffer_store_dwordx4 {V(20, 4)}, v14, s[4:7], s17 offen{K0ST}")
    P.e("s_lshr_b32 s22, s12, 1\ns_and_b32 s23, s12, 1\ns_mul_i32 s24, s22, 20480\ns_mul_i32 s25, s23, 40")
    P.e("v_add_u32 v14, s25, v5\nv_lshlrev_b32 v15, 8, v6\nv_add_u32 v15, s24, v15")
    for k in range(10):
        P.e(f"v_add_u32 v16, {4*k}, v14\nv_lshrrev_b32 v17, 4, v16\nv_xor_b32 v16, v16, v6\nv_and_b32 v16, 15, v16")
        P.e(f"v_lshl_add_u32 v16, v16, 4, v15\nv_lshl_add_u32 v{72+k}, v17, 12, v16")
    P.e(f"s_add_u32 s26, s20, s24\ns_mul_i32 s17, s23, 10240\ns_add_u32 s26, s26, s17\ns_add_u32 s26, s26, {XA}")
    P.e("v_mov_b32 v24, 0\nv_mov_b32 v25, 0\nv_mov_b32 v26, 0x3f803f80")
    P.wvm("d")
    P.e("s_barrier")
    for k in range(10):
        P.e(f"ds_read_b128 {V(32+4*k, 4)}, v{72+k}", tag=f"t{k}")
    for k in range(10):
        if k and k % 4 == 0:
            P.e("s_add_u32 s26, s26, 4096")
        P.wlg(f"t{k}")
        P.e(f"buffer_store_dwordx4 {V(32+4*k, 4)}, v2, s[4:7], s26 offen offset:{(k % 4)*1024}{K0ST}")
        for r in range(4):
            P.e(f"v_dot2_f32_bf16 v24, v{32+4*k+r}, v26, v24")
            P.e(f"v_dot2_f32_bf16 v25, v{32+4*k+r}, v{32+4*k+r}, v25")
    P.add(allreduce_g(24, 27))
    P.add(allreduce_g(25, 28))
    P.e("v_cmp_eq_u32 vcc, 0, v5\nv_cndmask_b32 v24, 0, v24, vcc\nv_cndmask_b32 v25, 0, v25, vcc")
    P.e(f"s_lshl_b32 s17, s16, 1\ns_add_u32 s17, s17, s22\ns_lshl_b32 s17, s17, 10\ns_lshl_b32 s18, s23, 7\ns_add_u32 s17, s17, s18\ns_add_u32 s17, s17, {STA}")
    P.e("v_lshlrev_b32 v14, 8, v5\nv_lshl_add_u32 v14, v6, 3, v14")
    P.e(f"buffer_store_dwordx2 v[24:25], v14, s[4:7], s17 offen{K0ST}")
    k0_end(P)
    texts.append(P)
    return texts


def build():
    body, desc = [], []
    k0 = gen_k0()
    regs = {"v": 0, "a": -1, "s": 0}
    for p in k0:
        r = p.max_regs()
        for k in regs:
            regs[k] = max(regs[k], r[k])
    body.append(".globl k0_kernel\n.p2align 8\n.type k0_kernel,@function\nk0_kernel:\n" + "".join(p.finish() for p in k0).replace("L_exit", "L_exit_k0") + "L_exit_k0:\n  s_endpgm\n")
    desc.append(descriptor("k0_kernel", regs["v"] + 1, 0, max(regs["s"] + 1, 16)))
    Q, P = gen_main()
    rq, rp = Q.max_regs(), P.max_regs()
    print("main regs", rq, rp, file=sys.stderr)
    body.append(".globl main_kernel\n.p2align 8\n.type main_kernel,@function\nmain_kernel:\n" + Q.finish() + P.finish() + "L_exit:\n  s_endpgm\n")
    desc.append(descriptor("main_kernel", 256, 256, max(rq["s"], rp["s"]) + 1))
    L = [f"; @launch kernel=k0_kernel grid=({NJ1+NJ3+NJB+NJC},1,1) block=(256,1,1) lds={K0_LDS}",
         f"; @launch kernel=main_kernel grid=(256,1,1) block=(256,1,1) lds={8*SLOT}"]
    head = "; generated by tools/gen2.py: weight re-layout launch + persistent launch (qkv, attn-out, gate/up, down) x 2 layers\n"
    return head + "\n".join(L) + '\n.amdgcn_target "amdgcn-amd-amdhsa--gfx950"\n.text\n' + "".join(body) + "".join(desc)


if __name__ == "__main__":
    import argparse
    ap = argparse.ArgumentParser()
    ap.add_argument("-o", default="v2.s")
    ap.add_argument("--stamps", action="store_true")
    ap.add_argument("--clk", action="store_true")
    ap.add_argument("--cfg", default="")
    ap.add_argument("--prof", default=None)
    a = ap.parse_args()
    STAMPS = a.stamps or a.prof is not None
    PROF = a.prof
    if PROF:
        STAMP_INS = 's_memtime'
    if a.clk:
        STAMP_INS = "s_memtime"
    for kv in a.cfg.split(","):
        if kv:
            k, v = kv.split("=")
            CFG[k] = float(v) if "." in v else int(v)
    if CFG.get("k0sc1"):
        K0ST = " sc1"
    open(a.o, "w").write(build())
    print("written", a.o)
```

```python
import sys, struct
from collections import deque
from asmlib import Prog, Ins, Wait, Virtual, V, A, S, descriptor, TRANS
from gen import f32, LOG2E, MF, allreduce_g, stats_finish, lanemask, set_exec

WF1 = 0
WF2 = WF1 + 16 * 168 * 1024
WF3 = WF2 + 8 * 100 * 1024
WF4 = WF3 + 16 * 294 * 1024
L0 = WF4 + 8 * 270 * 1024 + 4096
XSZ = 2048 * 640 * 2
XA = L0
PQ = XA + XSZ
XB = PQ + XSZ
HB = XB + XSZ
STA = HB + 2048 * 1728 * 2
STB = STA + 128 * 1024
KVA = STB + 128 * 1024
F0 = KVA + 56 * 1024
F1 = F0 + 32768
F1C = F1 + 16384
F2 = F1C + 32768
F3 = F2 + 32768
ZSZ = F3 + 32768 - KVA
LB = F3 + 32768 - L0
STAMP = L0 + 2 * LB
WS_USED = STAMP + 4 * 512 * 256
PROF = None
assert ZSZ == 204800 and L0 % 4096 == 0 and LB % 4096 == 0
STAMPS = False
STAMP_INS = "s_memrealtime"
OOB = 0x40000000
SLOT = 20480
SPIN = 200000
CFG = dict(cpf=9, g1=2, g3=2, g4=2, b1=6, b3=6, b4=10, la=6, lead4=50, pf4=230, x2=1, x1=1, e3=240, c4=116, nowait3=1, f4=24)

vSTL, vHALF, vPQT, vSTS, vRW0, vRW1, vRR, vAT, vATM, vKVL, vKVW, vE0, vE1, vZF, vPQW, vFC, vFG, vPOLL, vONE, vBW, vBR, vH3, vO16, vO8, vT = range(7, 32)
XR, CE, ONES, PV = 32, 42, 46, 50
WP = 224
sWAVE, sRB, sCG, sMT0, sMT, sCG8, sLAY = 12, 13, 14, 15, 16, 17, 20
sW5, sW1, sW2, sW3, sW4 = 21, 22, 23, 24, 25
sFA, sFB, sFG, sEPS = 26, 27, 28, 29
sX0, sX1, sXT, sDT, sA, sB, sC, sSPIN = 30, 31, 32, 33, 34, 35, 36, 37
sFL, sD1, sD2 = 60, 61, 62
sM8, sMASK = 38, 40
sSTMP = 64
RED = 7 * SLOT
BNC = RED + 13440
KVT = 6 * SLOT


def cost(it):
    if isinstance(it, (Wait, Virtual)):
        return 0
    if isinstance(it, list):
        return sum(cost(x) for x in it)
    t = it.text
    if it.opaque:
        return 0
    if t.startswith("v_mfma"):
        return 12
    if t.startswith(TRANS):
        return 8
    return 4


def I(text, tag=None):
    return [Ins(x.strip(), tag) for x in text.split("\n") if x.strip()]


_nstamp = [0]


def stamp(P, ph=None, fine=False, j=None):
    if STAMPS and (PROF is None and not fine or PROF is not None and PROF == ph):
        if j is None:
            j = _nstamp[0]
            _nstamp[0] += 1
        P.raw(f"{STAMP_INS} s[{sSTMP+2*j}:{sSTMP+2*j+1}]")


def stamp_flush(P):
    if STAMPS:
        P.raw(f"s_cmp_lg_u32 s{sWAVE}, 0\ns_cbranch_scc1 L_nost{len(P.items)}")
        lab = P.items[-1].text.split()[-1]
        P.raw(f"s_cmp_lg_u32 s{sLAY}, 0\ns_cselect_b32 s{sA}, {512*256}, 0\ns_lshl_b32 s{sB}, s2, 8\ns_add_u32 s{sA}, s{sA}, s{sB}\ns_add_u32 s{sA}, s{sA}, {STAMP + 512*256}")
        P.raw(f"v_mov_b32 v{vT}, 0\ns_waitcnt lgkmcnt(0)")
        for j in range(_nstamp[0]):
            P.raw(f"v_mov_b32 v250, s{sSTMP+2*j}\nv_mov_b32 v251, s{sSTMP+2*j+1}\ns_nop 1")
            P.raw(f"buffer_store_dwordx2 v[250:251], v{vT}, s[4:7], s{sA} offen offset:{8*j}\ns_nop 1")
        P.raw(f"s_waitcnt vmcnt(0)\n{lab}:")


class Chunk:
    def __init__(self, name, sbase, foff, n, slot, event):
        self.name, self.sbase, self.foff, self.n, self.slot, self.event = name, sbase, foff, n, slot, event
        self.q = (n + 3) // 4
        self.tag = "W" + name


class Op:
    def __init__(self, fn, tag, prio, event=None, step=0):
        self.fn, self.tag, self.prio, self.event, self.step = fn, tag, prio, event, step


class Sched:
    dma_ctx = None
    x_ctx = None
    log = []

    def __init__(self, P, name):
        self.P, self.name = P, name
        self.vq, self.aq = [], deque()
        self.events = {None}
        self.marks = set()
        self.now = 0
        self.pend, self.pend_tag, self.rdnext, self.over = [], None, None, 0
        self.lasttr, self.lastw = set(), set()

    def dma(self, ch, prio, step=0):
        for i in range(ch.q):
            def fn(ch=ch, i=i):
                L = []
                Sched.log.append((ch.name, i))
                key = (ch.name, i // 4)
                if Sched.dma_ctx != key:
                    Sched.dma_ctx = key
                    o = (i // 4) * 4096
                    if ch.q == 5:
                        L += I(f"s_add_u32 m0, s{sW5}, {ch.slot*SLOT + o}\ns_add_u32 s{sDT}, s{ch.sbase}, {ch.foff*1024 + o}")
                    else:
                        L += I(f"s_mul_i32 s{sDT}, s{sWAVE}, {ch.q*1024}\ns_add_u32 m0, s{sDT}, {ch.slot*SLOT}\ns_sub_u32 s{sDT}, s{sDT}, s{sW5}")
                        L += I(f"s_add_u32 s{sDT}, s{sDT}, s{ch.sbase}\ns_add_u32 s{sDT}, s{sDT}, {ch.foff*1024}")
                L += I(f"buffer_load_dwordx4 v2, s[4:7], s{sDT} offen offset:{(i % 4)*1024} lds", ch.tag)
                return L
            self.vq.append(Op(fn, ch.tag, prio(i) if callable(prio) else prio + i * 1e-3, ch.event, step))

    def load(self, dst, vaddr, sbase, off, tag, prio, w=4, event=None, step=0):
        def fn():
            L = []
            if off < 4096:
                so = f"s{sbase}"
            else:
                key = (sbase, off >> 12)
                if Sched.x_ctx != key:
                    Sched.x_ctx = key
                    L += I(f"s_add_u32 s{sXT}, s{sbase}, {off & ~4095}")
                so = f"s{sXT}"
            return L + I(f"buffer_load_dwordx{w} {dst}, v{vaddr}, s[4:7], {so} offen offset:{off & 4095} sc1", tag)
        self.vq.append(Op(fn, tag, prio, event, step))

    def alu(self, items, step=0, event=None):
        for it in items:
            if isinstance(it, str):
                for x in I(it):
                    self.aq.append((x, step, event))
            else:
                self.aq.append((it, step, event))

    def mark(self, name):
        self.aq.append((name, 0, None))

    def start_op(self, op):
        self.vq.remove(op)
        self.pend = op.fn()
        self.pend_tag = op.tag

    def flush_pend(self):
        self.P.add(self.pend)
        self.pend = []

    def emit_op(self, op):
        self.flush_pend()
        self.start_op(op)
        self.flush_pend()

    def next_op(self):
        el = [o for o in self.vq if o.event in self.events and o.step <= self.now]
        return min(el, key=lambda o: o.prio) if el else None

    def burst(self, n):
        self.flush_pend()
        for _ in range(n):
            el = [o for o in self.vq if o.event in self.events and o.prio < 1e5]
            if not el:
                break
            self.emit_op(min(el, key=lambda o: o.prio))

    def force(self, tag):
        if self.pend and self.pend_tag == tag:
            self.flush_pend()
        ops = sorted([o for o in self.vq if o.tag == tag], key=lambda o: o.prio)
        if ops:
            print(f"  [{self.name}] forced {len(ops)} x {tag} at step {self.now}", file=sys.stderr)
        for o in ops:
            assert o.event in self.events, (tag, o.event)
            self.emit_op(o)

    def pop_alu(self, k=0):
        it = self.aq[k][0]
        del self.aq[k]
        if isinstance(it, str):
            self.marks.add(it)
            self.events.add(it)
            return
        if isinstance(it, Wait) and it.cls == "vm":
            self.force(it.tag)
        self.P.add(it)

    def drain_to(self, mark):
        n = 0
        while mark not in self.marks:
            n += not isinstance(self.aq[0][0], (str, Wait))
            self.pop_alu()
        self.over += n

    def drain(self):
        self.flush_pend()
        while self.aq:
            self.pop_alu()

    def ready(self, k):
        return self.aq[k][1] <= self.now and self.aq[k][2] in self.events

    def head_is(self, kind):
        while self.aq and isinstance(self.aq[0][0], str):
            self.pop_alu()
        if not self.aq or not self.ready(0):
            return False
        it = self.aq[0][0]
        if kind == "wait":
            return isinstance(it, Wait)
        return isinstance(it, Ins) and it.kind == "salu"

    def pick(self, slots):
        best = None
        rd, wr = set(), set()
        for k in range(min(len(self.aq), 14)):
            it = self.aq[k][0]
            if not self.ready(k):
                break
            if isinstance(it, str):
                continue
            if isinstance(it, Wait):
                break
            if isinstance(it, list) or it.kind != "valu":
                if k == 0 or (best is None and not rd and not wr):
                    return k
                break
            if not (it.rd & wr or it.wr & wr or it.wr & rd):
                tr = "trans" in it.flags
                if tr and slots >= 2 and not (it.rd & self.lastw):
                    return k
                if not tr and best is None and not (it.rd & self.lasttr):
                    best = k
            rd |= it.rd
            wr |= it.wr
        return best

    def gap(self, scalar_free, slots, allow_v):
        P = self.P
        issued = False
        if allow_v and not self.pend:
            op = self.next_op()
            if op is not None:
                self.start_op(op)
        pre_m0 = False
        if scalar_free:
            if len(self.pend) > 1:
                it = self.pend.pop(0)
                pre_m0 = "m0" in it.wr
                P.add(it)
            elif self.head_is("wait") or self.head_is("salu"):
                self.pop_alu()
                while self.head_is("wait"):
                    self.pop_alu()
        if self.rdnext is not None:
            self.rdnext()
            self.rdnext = None
            slots -= 1
        if allow_v and len(self.pend) == 1 and not pre_m0:
            self.flush_pend()
            slots -= 2
            issued = True
        self.lasttr = set()
        self.lastw = set()
        while slots > 0:
            k = self.pick(slots)
            if k is None:
                break
            it = self.aq[k][0]
            slots -= cost(it) // 4
            if isinstance(it, Ins):
                self.lastw = set(it.wr)
                if "trans" in it.flags:
                    self.lasttr = set(it.wr)
            self.pop_alu(k)
        return issued

    def run(self, steps, chunks, vgap, extra=0, nobar=(), wevery=1):
        P, LA = self.P, CFG["la"]
        seen = set()

        def newchunk(m):
            st = steps[m]
            if "fr" not in st or st["fr"][0] in seen:
                return False
            c = st["fr"][0]
            seen.add(c)
            if c not in nobar:
                self.force(chunks[c].tag)
                P.wvm(chunks[c].tag)
                P.e("s_barrier")
            stamp(P, self.name, True)
            self.events.add(f"{self.name}:{c}")
            return c not in nobar

        def rd(m):
            st = steps[m]
            dst = A(WP + 4 * (m % 8), 4)
            if "fr" in st:
                c, f = st["fr"]
                off = chunks[c].slot * SLOT + f * 1024
                P.e(f"ds_read_b128 {dst}, v{2 + (off >> 16)} offset:{off & 0xffff}", tag=f"R{m}")
            else:
                P.e(st["rd"](dst), tag=f"R{m}")

        def waits(i, upto):
            st = steps[i]
            any_ = False
            if "aw" in st:
                self.drain_to(st["aw"])
            for t in st.get("xw", []):
                self.force(t)
                P.wvm(t)
                any_ = True
            if self.waited < i or any_:
                self.waited = min(upto, n - 1)
                P.wlg(f"R{self.waited}")
                any_ = True
            return any_

        n = len(steps)
        self.now = 0
        self.waited = -1
        for m in range(min(LA, n)):
            newchunk(m)
            rd(m)
        waits(0, 0)
        lastv = -100
        for i, st in enumerate(steps):
            self.now = i
            mfs = st["mf"](A(WP + 4 * (i % 8), 4))
            for k, t in enumerate(mfs):
                P.e(t)
                last = k == len(mfs) - 1
                free, slots = True, 2 + (extra(i) if callable(extra) else extra)
                if k == 0 and i + LA < n and newchunk(i + LA):
                    free, slots = False, slots - 1
                if last and i + 1 < n and waits(i + 1, i + wevery):
                    free = False
                if last and i + LA < n:
                    self.rdnext = lambda m=i + LA: rd(m)
                if self.gap(free, slots, k == 0 and i - lastv >= vgap):
                    lastv = i
        self.now = n
        P.e("s_barrier")
        self.events.add(f"{self.name}:end")
        stamp(P, self.name)
        print(f"  [{self.name}] overfill {self.over}, alu left {len(self.aq)}", file=sys.stderr)

    def late(self):
        n = len(self.vq)
        for o in self.vq:
            o.prio = min(o.prio, 9e4)
        self.burst(10 ** 6)
        assert not self.vq
        print(f"  [{self.name}] late ops {n}", file=sys.stderr)


def mk_chunks():
    ch = {}
    s1 = [6, 7, 0, 1, 2, 3, 4, 5, 6]
    e1 = ["p4:9", "p4:10", "p4:11", "p4:12", "p4:13", "p4:end", "p4:end", "p4:8", "p1:2"]
    ch["p1"] = [Chunk(f"1_{c}", sW1, 20 * c, 20 if c < 8 else 8, s1[c], e1[c]) for c in range(9)]
    ch["p2"] = [Chunk(f"2_{c}", sW2, 20 * c, 20, 1 + c, f"p1:{5+c}" if c < 4 else "p1:end") for c in range(5)]
    e3 = ["p1:4", "p2:2", "p2:3", "p2:4"] + ["p2:end"] * 4 + [f"p3:{c-6}" for c in range(8, 15)]
    ch["p3"] = [Chunk(f"3_{c}", sW3, 20 * c, 20 if c < 14 else 14, c % 8, e3[c]) for c in range(15)]
    e4 = [f"p3:{c+9}" for c in range(6)] + ["p3:end"] * 2 + [f"p4:{c-6}" for c in range(8, 14)]
    ch["p4"] = [Chunk(f"4_{c}", sW4, 20 * c, 20 if c < 13 else 10, (15 + c) % 8, e4[c]) for c in range(14)]
    return ch


def flag_items(wtag, wr, stride_reg, off=0):
    return I(wr) + [Wait("vm", wtag)] + I("s_barrier") + I(f"buffer_store_dword v{vONE}, v{stride_reg}, s[4:7], s{sA} offen offset:{off} sc1", "fl")


def handoff(P, sc, wtag, wr, stride_reg, uid, off=0):
    P.add(flag_items(wtag, wr, stride_reg, off))
    stamp(P, "p" + uid)
    sc.late()


def check_items(uid, off):
    R = Prog()
    cmp_ = "v_cmp_eq_u32 vcc, 0, v253" if off is not None else "v_cmp_gt_u32 vcc, 0x100, v253"
    ld = (f"buffer_load_dword v253, v{vPOLL}, s[4:7], s{sFL} offen offset:{off} sc1" if off is not None
          else f"global_load_dword v253, v{vT}, s[{sDBG}:{sDBG+1}] offset:4 sc1")
    R.e(f"{cmp_}\ns_nop 1\ns_cbranch_vccz L_ok{uid}")
    R.raw(f"s_mov_b32 s{sSPIN}, {SPIN}\nL_sp{uid}:\n{ld}\ns_waitcnt vmcnt(0)")
    R.raw(f"{cmp_}\ns_nop 1\ns_cbranch_vccz L_ok{uid}")
    R.raw(f"s_sub_u32 s{sSPIN}, s{sSPIN}, 1\ns_cmp_lg_u32 s{sSPIN}, 0\ns_cbranch_scc1 L_sp{uid}\nL_ok{uid}:")
    return [Wait("vm", "fp"), R.items]


def poll(P, rdoff, uid, wide=False, label=None):
    P.e(rdoff)
    P.raw(f"s_cmp_lg_u32 s{sWAVE}, 0\ns_cbranch_scc1 L_pd{uid}\ns_mov_b32 s{sSPIN}, {SPIN}\nL_pl{uid}:")
    if wide:
        P.raw(f"buffer_load_dwordx4 v[252:255], v2, s[4:7], s{sB} offen sc1\ns_waitcnt vmcnt(0)\nv_min_u32 v252, v252, v253\nv_min3_u32 v252, v252, v254, v255")
    else:
        P.raw(f"buffer_load_dword v252, v{vPOLL}, s[4:7], s{sB} offen sc1\ns_waitcnt vmcnt(0)")
    P.raw(f"v_cmp_eq_u32 vcc, 0, v252\ns_nop 1\ns_cbranch_vccz L_pd{uid}")
    P.raw(f"s_sub_u32 s{sSPIN}, s{sSPIN}, 1\ns_cmp_lg_u32 s{sSPIN}, 0\ns_cbranch_scc1 L_pl{uid}\nL_pd{uid}:")
    P.e("s_barrier")
    if label:
        P.e(label)
    stamp(P, "p" + uid)


def x_phase_loads(sc, P, xbuf, stbuf, VST, nt1):
    P.e(f"s_mul_i32 s{sX0}, s{sMT0}, 20480\ns_add_u32 s{sX0}, s{sX0}, s{sLAY}\ns_add_u32 s{sX0}, s{sX0}, {xbuf}\ns_add_u32 s{sX1}, s{sX0}, 20480")
    P.e(f"s_lshl_b32 s{sC}, s{sMT0}, 10\ns_add_u32 s{sC}, s{sC}, s{sLAY}\ns_add_u32 s{sC}, s{sC}, {stbuf}")
    Sched.x_ctx = None
    for k0 in range(0, 20, 2):
        for m in range(2):
            for kb in (k0, k0 + 1):
                sc.load(A((m * 20 + kb) * 4, 4), 2, sX0 + m, kb * 1024, f"X{k0}", k0 * nt1 - 100 + m + (kb - k0) * 0.1)
    for m in range(2):
        for j in range(2):
            sc.load(V(VST + 4 * m + 2 * j, 2), vSTL, sC, m * 1024 + j * 128, "st", 8 * nt1 - 101, w=2)


def phi4(xs, rs, cs, ts, outs):
    L = [f"v_mul_f32 v{t}, v{x}, v{c}" for x, c, t in zip(xs, cs, ts)]
    L += [f"v_fma_f32 v{o}, v{x}, v{r}, s{sEPS}" for x, r, o in zip(xs, rs, outs)]
    L += [f"v_exp_f32 v{t}, v{t} clamp" for t in ts]
    L += [f"v_max_f32 v{o}, s{sEPS}, v{o}" for o in outs]
    L += [f"v_add_f32 v{o}, v{o}, v{t}" for o, t in zip(outs, ts)]
    return L


PAIRS = [(0, 2), (0, 3), (1, 2), (1, 3), (1, 4), (2, 3), (2, 4), (0, None), (1, None), (2, None)]


def red_mask(i, j):
    def valid(g, nn):
        kk = 4 * i + g
        if kk >= 10:
            return False
        if j is None:
            return nn == 0
        cv = 16 * j + nn - 40
        return 0 <= cv < 40 and cv // 20 == kk // 5
    return lanemask(valid)


def phase1(P, ch):
    sc = Sched(P, "p1")
    ACC, ACQ, VST, VRS, VSD, VC, VEXT, RST, CT, T, PF, QO = PV, PV + 40, PV + 64, PV + 72, PV + 74, PV + 76, PV + 78, PV + 86, PV + 94, PV + 102, PV + 126, PV + 146
    GD = ACC
    x_phase_loads(sc, P, XA, STA, VST, 5)
    P.e(f"s_cmp_eq_u32 s{sLAY}, 0\ns_cbranch_scc1 L_first")
    poll(P, f"s_lshl_b32 s{sB}, s{sFA}, 7\ns_add_u32 s{sB}, s{sB}, {F0 + LB}", "1", label="L_first:")
    sc.burst(2 * CFG["b1"])
    sc.dma(ch["p1"][8], 120)
    sc.dma(ch["p3"][0], 1000)
    for c in range(5):
        sc.dma(ch["p2"][c], 500 + c)
    steps = []
    for t0, nt in ((0, 5), (5, 3)):
        for kb in range(21):
            for t in range(t0, t0 + nt):
                def mf(w, kb=kb, t=t):
                    L = []
                    for m in range(2):
                        x = A((m * 20 + kb) * 4, 4) if kb < 20 else V(VEXT + 4 * m, 4)
                        d = V(ACC + (m * 5 + t) * 4, 4) if t < 5 else V(ACQ + (m * 3 + t - 5) * 4, 4)
                        cc = "0" if kb == 0 else d
                        L.append(f"{MF} {d}, {x}, {w}, {cc}" if t < 5 else f"{MF} {d}, {w}, {x}, {cc}")
                    return L
                st = dict(fr=divmod(len(steps), 20), mf=mf)
                if t == 0 and kb % 2 == 0 and kb < 20:
                    st["xw"] = [f"X{kb}"]
                if t == 0 and kb == 20:
                    st["aw"] = "ext"
                steps.append(st)
    sc.alu([Ins(f"global_load_dword v253, v{vT}, s[{sDBG}:{sDBG+1}] offset:4 sc1", "fp")], step=30)
    sc.alu(check_items("0", None), step=50)
    sc.mark("w2")
    sc.alu([Wait("vm", "st")], step=52)
    for m in range(2):
        sc.alu(stats_finish(VST, m, VRS + m, VSD + m, VEXT + 4 * m, T) + [f"v_mul_f32 v{VC+m}, {f32(LOG2E)}, v{VRS+m}"])
    sc.alu([Ins(f"ds_write_b32 v{vBW}, v{VRS+m} offset:{m*64}", "bw") for m in range(2)], event="p1:3")
    sc.mark("ext")
    sc.alu([Wait("lgkm", "bw")], step=88)
    sc.alu([Ins(f"ds_read_b128 {V(RST+4*m, 4)}, v{vBR} offset:{m*64}", "br") for m in range(2)])
    sc.alu([Wait("lgkm", "br")], step=94)
    sc.alu([f"v_mul_f32 v{CT+k}, {f32(LOG2E)}, v{RST+k}" for k in range(8)])
    first = True
    for t in range(5):
        for m in range(2):
            x = [ACC + (m * 5 + t) * 4 + r for r in range(4)]
            rs = [RST + 4 * m + r for r in range(4)]
            cs = [CT + 4 * m + r for r in range(4)]
            ts = [T + 4 * m + r for r in range(4)]
            L = []
            if t < 2:
                L += phi4(x, rs, cs, ts, x)
            elif t == 2:
                o = [T + 8 + 4 * m + r for r in range(4)]
                L += phi4(x, rs, cs, ts, o)
                L += [f"v_mul_f32 v{a}, v{a}, v{r}" for a, r in zip(x, rs)]
                L += [f"v_cndmask_b32 v{a}, v{a}, v{b}, s[{sM8}:{sM8+1}]" for a, b in zip(x, o)]
            else:
                L += [f"v_mul_f32 v{a}, v{a}, v{r}" for a, r in zip(x, rs)]
            L += [f"v_cvt_pk_bf16_f32 v{PF+4*t+2*m}, v{x[0]}, v{x[1]}", f"v_cvt_pk_bf16_f32 v{PF+4*t+2*m+1}, v{x[2]}, v{x[3]}"]
            sc.alu(L, step=106 if first else 0)
            first = False
    for n, (i, j) in enumerate(PAIRS):
        b = V(PF + 4 * j, 4) if j is not None else V(ONES, 4)
        sc.alu([f"{MF} {V(GD+4*n, 4)}, {V(PF+4*i, 4)}, {b}, 0"])
    for n0 in range(0, 10, 2):
        grp = []
        for n in (n0, n0 + 1):
            i, j = PAIRS[n]
            grp += I(f"s_mov_b64 exec, s[{sMASK+2*n}:{sMASK+2*n+1}]")
            if j is None:
                grp += I(f"ds_write_b128 v{vRW0}, {V(GD+4*n, 4)} offset:{640 + i*1344 + 320}", "gw")
            else:
                off = 640 + i * 1344 + (16 * j - 40) * 16 - (320 if i == 2 else 0)
                grp += I(f"ds_write_b128 v{vRW1 if i == 1 else vRW0}, {V(GD+4*n, 4)} offset:{off}", "gw")
        grp += I("s_mov_b64 exec, -1")
        sc.alu([grp])
    sc.alu([Wait("lgkm", "gw"), "s_barrier"])
    for q in range(4):
        sc.alu([Ins(f"ds_read_b32 v{T+4*q+w}, v{vRR} offset:{w*3360 + q*1024}", f"rr{q}") for w in range(4)])
    sc.alu([f"s_mul_i32 s{sC}, s{sCG}, 3360\ns_add_u32 s{sC}, s{sC}, s{sLAY}\ns_add_u32 s{sC}, s{sC}, {KVA}"])
    for q in range(4):
        a = T + 4 * q
        sc.alu([Wait("lgkm", f"rr{q}"), f"v_add_f32 v{a}, v{a}, v{a+1}\nv_add_f32 v{a+2}, v{a+2}, v{a+3}\nv_add_f32 v{a}, v{a}, v{a+2}",
                Ins(f"buffer_atomic_add_f32 v{a}, v{vATM if q == 3 else vAT}, s[4:7], s{sC} offen offset:{q*1024}", "at")])
    steps[60]["aw"] = "w2"
    sc.run(steps, ch["p1"], CFG["g1"], extra=lambda i: CFG["x1"] if i > 105 else 0)
    sc.drain()
    P.e(f"s_mul_i32 s{sC}, s{sCG}, 1280\ns_add_u32 s{sC}, s{sC}, s{sX0}\ns_add_u32 s{sC}, s{sC}, {PQ - XA}")
    for m in range(2):
        q = QO + 6 * m
        for tq in range(3):
            x = [ACQ + (m * 3 + tq) * 4 + r for r in range(4)]
            P.add(phi4(x, [VRS + m] * 4, [VC + m] * 4, [T + 16 + 4 * (tq % 2) + r for r in range(4)], x))
            P.e(f"v_cvt_pk_bf16_f32 v{q+2*tq}, v{x[0]}, v{x[1]}\nv_cvt_pk_bf16_f32 v{q+2*tq+1}, v{x[2]}, v{x[3]}")
            if tq == 1:
                if m == 1:
                    P.e(f"s_add_u32 s{sC}, s{sC}, 20480")
                P.e(f"buffer_store_dwordx4 {V(q, 4)}, v2, s[4:7], s{sC} offen sc1", tag="out")
        P.e(f"buffer_store_dwordx2 {V(q+4, 2)}, v{vPQT}, s[4:7], s{sC} offen offset:1024 sc1", tag="out")
    P.add(flag_items("at", f"s_lshl_b32 s{sA}, s{sFA}, 2\ns_add_u32 s{sA}, s{sA}, s{sLAY}\ns_add_u32 s{sA}, s{sA}, {F1}", vFG))
    handoff(P, sc, "out", wr_cluster(sFA, F1C), vFC, "1")


def resid_epilogue(P, ACC, T, xbuf, stbuf, final=False):
    P.e(f"s_mul_i32 s{sC}, s{sMT}, 20480\ns_mul_i32 s{sA}, s{sCG8}, 2560\ns_add_u32 s{sC}, s{sC}, s{sA}\ns_add_u32 s{sC}, s{sC}, s{sLAY}\ns_add_u32 s{sC}, s{sC}, {xbuf}")
    P.e(f"s_lshl_b32 s{sB}, s{sMT}, 10\ns_lshl_b32 s{sA}, s{sCG8}, 7\ns_add_u32 s{sB}, s{sB}, s{sA}\ns_add_u32 s{sB}, s{sB}, s{sLAY}\ns_add_u32 s{sB}, s{sB}, {stbuf}")
    P.e(f"v_mov_b32 v{T}, 0\nv_mov_b32 v{T+1}, 0")
    for k0 in (0, 4, 8):
        ks = range(k0, min(k0 + 4, 10))
        for k in ks:
            P.e(f"v_lshlrev_b32 v{T+4+2*(k%4)}, 16, v{XR+k}\nv_and_b32 v{T+5+2*(k%4)}, 0xffff0000, v{XR+k}")
        for k in ks:
            P.e(f"v_pk_add_f32 {V(T+4+2*(k%4), 2)}, {V(T+4+2*(k%4), 2)}, {V(ACC+2*k, 2)}")
        for k in ks:
            P.e(f"v_cvt_pk_bf16_f32 v{XR+k}, v{T+4+2*(k%4)}, v{T+5+2*(k%4)}")
        if final:
            continue
        if k0 < 8:
            P.e(f"buffer_store_dwordx4 {V(XR+k0, 4)}, v2, s[4:7], s{sC} offen offset:{k0*256} sc1", tag="out")
        else:
            P.e(f"buffer_store_dwordx2 {V(XR+8, 2)}, v{vHALF}, s[4:7], s{sC} offen offset:2048 sc1", tag="out")
    if final:
        P.e(f"s_mul_i32 s{sA}, s{sMT}, 20480\ns_mul_i32 s{sB}, s{sCG8}, 160\ns_add_u32 s{sA}, s{sA}, s{sB}")
        P.e(f"buffer_store_dwordx4 {V(XR, 4)}, v{vO16}, s[8:11], s{sA} offen")
        P.e(f"buffer_store_dwordx4 {V(XR+4, 4)}, v{vO16}, s[8:11], s{sA} offen offset:64")
        P.e(f"buffer_store_dwordx2 {V(XR+8, 2)}, v{vO8}, s[8:11], s{sA} offen offset:128")
        return
    for k in range(10):
        P.e(f"v_dot2_f32_bf16 v{T}, v{XR+k}, v{ONES}, v{T}")
        P.e(f"v_dot2_f32_bf16 v{T+1}, v{XR+k}, v{XR+k}, v{T+1}")
    a, b = allreduce_g(T, T + 2), allreduce_g(T + 1, T + 3)
    for x, y in zip(a, b):
        P.e(x)
        P.e(y)
    P.e(f"buffer_store_dwordx2 {V(T, 2)}, v{vSTS}, s[4:7], s{sB} offen sc1", tag="out")


def wr_cluster(sf, F):
    return (f"s_lshr_b32 s{sA}, s{sf}, 4\ns_lshl_b32 s{sA}, s{sA}, 11\ns_and_b32 s{sB}, s{sf}, 15\ns_lshl_b32 s{sB}, s{sB}, 2\n"
            f"s_add_u32 s{sA}, s{sA}, s{sB}\ns_add_u32 s{sA}, s{sA}, s{sLAY}\ns_add_u32 s{sA}, s{sA}, {F}")


def rd_cluster(sf, F):
    return f"s_lshl_b32 s{sB}, s{sf}, 7\ns_add_u32 s{sB}, s{sB}, s{sLAY}\ns_add_u32 s{sB}, s{sB}, {F}"


def phase2(P, ch):
    sc = Sched(P, "p2")
    OR, ACC, DT, T = PV, PV + 80, PV + 100, PV + 132
    for r in range(4):
        P.e(f"v_mov_b32 v{DT+r}, 0")
    for k in range(10):
        P.e(f"ds_write_b128 v{vZF}, {V(DT, 4)} offset:{k*4096}", tag="z")
    P.e(f"s_add_u32 s{sX0}, s{sLAY}, {KVA}")
    P.e(f"s_mul_i32 s{sX1}, s{sMT}, 20480\ns_add_u32 s{sX1}, s{sX1}, s{sLAY}\ns_add_u32 s{sX1}, s{sX1}, {PQ}")
    P.e(rd_cluster(sFB, F1C).replace(f"s{sB}", f"s{sFL}"))
    P.wlg("z")
    poll(P, f"s_add_u32 s{sB}, s{sFG}, s{sLAY}\ns_add_u32 s{sB}, s{sB}, {F1}", "2", wide=True)
    P.e(f"buffer_load_dword v253, v{vPOLL}, s[4:7], s{sFL} offen sc1", tag="fp")
    for rr in range(16):
        if rr:
            P.e(f"s_add_u32 s{sX0}, s{sX0}, 3360")
        P.e(f"buffer_load_dwordx4 {V(OR+4*rr, 4)}, v{vKVL}, s[4:7], s{sX0} offen sc1", tag=f"kv{rr}")
    Sched.x_ctx = None
    for h in range(32):
        sc.load(A(4 * h, 4), vPQW, sX1, (5 * h // 2) * 256, f"pq{h}", h)
    P.add(check_items("2", 0))
    sc.burst(8)
    for rr in range(16):
        P.wvm(f"kv{rr}")
        a = OR + 4 * rr
        P.e(f"v_cvt_pk_bf16_f32 v{a}, v{a}, v{a+1}\nv_cvt_pk_bf16_f32 v{a+1}, v{a+2}, v{a+3}")
        P.e(f"ds_write_b64 v{vKVW}, {V(a, 2)} offset:{rr*2560}", tag="kw")
        if rr % 2:
            sc.burst(1)
    P.wlg("kw")
    P.e("s_barrier")
    stamp(P, "p2")
    for c in range(1, 8):
        sc.dma(ch["p3"][c], 1000 + c)
    steps = []
    nw = 0

    def wstep(n):
        kb, t = divmod(n, 5)

        def mf(w):
            d = V(ACC + 4 * t, 4)
            return [f"{MF} {d}, {w}, {V(OR+4*kb, 4)}, {'0' if kb == 0 else d}"]
        st = dict(fr=divmod(n, 20), mf=mf)
        if t == 0:
            st["aw"] = f"o{(8*kb+7)//5}"
        return st

    for h in range(32):
        d = DT + 8 * (h % 4)
        for j in range(2):
            st = dict(rd=lambda dst, h=h, j=j: f"ds_read_b128 {dst}, v{vE0+j} offset:{h*1280}",
                      mf=lambda w, h=h, j=j, d=d: [f"{MF} {V(d+4*j, 4)}, {w}, {A(4*h, 4)}, {V(CE, 4) if j else '0'}"])
            if j == 0:
                st["xw"] = [f"pq{h}"]
                if h >= 3:
                    st["aw"] = f"o{h-3}"
            steps.append(st)
        L = [f"v_rcp_f32 v{d+5}, v{d+5}"] + [f"v_mul_f32 v{d+i}, v{d+i}, v{d+5}" for i in range(5)]
        n0 = 5 * h
        if h % 2 == 0:
            L += [f"v_cvt_pk_bf16_f32 v{OR+n0//2}, v{d}, v{d+1}", f"v_cvt_pk_bf16_f32 v{OR+n0//2+1}, v{d+2}, v{d+3}"]
        else:
            dp = DT + 8 * ((h - 1) % 4)
            L += [f"v_cvt_pk_bf16_f32 v{OR+n0//2}, v{dp+4}, v{d}", f"v_cvt_pk_bf16_f32 v{OR+n0//2+1}, v{d+1}, v{d+2}",
                  f"v_cvt_pk_bf16_f32 v{OR+n0//2+2}, v{d+3}, v{d+4}"]
        sc.alu(L, step=len(steps) + 1)
        sc.mark(f"o{h}")
        lim = min(100, int(round((h - 1) * 100 / 32)))
        while nw < lim and (8 * (nw // 5) + 7) // 5 <= h - 2:
            steps.append(wstep(nw))
            nw += 1
    while nw < 100:
        steps.append(wstep(nw))
        nw += 1
    sc.run(steps, ch["p2"], 2, extra=CFG["x2"], nobar=(0, 1), wevery=2)
    sc.drain()
    resid_epilogue(P, ACC, T, XB, STB)
    handoff(P, sc, "out", wr_cluster(sFB, F2), vFC, "2")


def phase3(P, ch):
    sc = Sched(P, "p3")
    ACC, VST, VRS, VSD, VC, VEXT, T, HO = PV, PV + 112, PV + 120, PV + 122, PV + 124, PV + 126, PV + 134, PV + 142
    x_phase_loads(sc, P, XB, STB, VST, 6)
    poll(P, rd_cluster(sFA, F2), "3")
    sc.burst(2 * CFG["b3"])
    for c in range(8, 15):
        sc.dma(ch["p3"][c], 20 * c - 60)
    for c in range(8):
        sc.dma(ch["p4"][c], 1000 + c)
    steps = []
    gend = {}
    for p0, npair in ((0, 3), (3, 1), (4, 2), (6, 1)):
        for kb in range(21):
            for t in range(2 * p0, 2 * (p0 + npair)):
                def mf(w, kb=kb, t=t):
                    L = []
                    for m in range(2):
                        x = A((m * 20 + kb) * 4, 4) if kb < 20 else V(VEXT + 4 * m, 4)
                        d = V(ACC + m * 56 + t * 4, 4)
                        L.append(f"{MF} {d}, {w}, {x}, {'0' if kb == 0 else d}")
                    return L
                st = dict(fr=divmod(len(steps), 20), mf=mf)
                if t == 0 and kb % 2 == 0 and kb < 20:
                    st["xw"] = [f"X{kb}"]
                if t == 0 and kb == 20:
                    st["aw"] = "ext"
                steps.append(st)
        for p in range(p0, p0 + npair):
            gend[p] = len(steps)
    sc.alu([Wait("vm", "st")], step=64)
    for m in range(2):
        sc.alu(stats_finish(VST, m, VRS + m, VSD + m, VEXT + 4 * m, T) + [f"v_mul_f32 v{VC+m}, {f32(-LOG2E)}, v{VRS+m}"])
    sc.mark("ext")
    sc.alu([f"s_lshl_b32 s{sA}, s{sCG}, 11\ns_mul_i32 s{sC}, s{sMT0}, 55296\ns_add_u32 s{sC}, s{sC}, s{sA}\ns_add_u32 s{sC}, s{sC}, s{sLAY}\ns_add_u32 s{sC}, s{sC}, {HB}\ns_add_u32 s{sD1}, s{sC}, 55296",
            f"s_lshl_b32 s{sA}, s{sCG}, 10\ns_sub_u32 s{sD2}, 32768, s{sA}"])

    def epi(p, m):
        g = ACC + m * 56 + 8 * p
        u = g + 4
        L = [f"v_mul_f32 v{g+r}, v{g+r}, v{VC+m}" for r in range(4)]
        L += [f"v_exp_f32 v{g+r}, v{g+r}" for r in range(4)]
        L += [f"v_fma_f32 v{g+r}, v{g+r}, v{VSD+m}, v{VSD+m}" for r in range(4)]
        L += [f"v_rcp_f32 v{g+r}, v{g+r}" for r in range(4)]
        L += [f"v_mul_f32 v{u+r}, v{u+r}, v{g+r}" for r in range(4)]
        o = HO + m * 14 + 2 * p
        L += [f"v_cvt_pk_bf16_f32 v{o}, v{u}, v{u+1}", f"v_cvt_pk_bf16_f32 v{o+1}, v{u+2}, v{u+3}"]
        L = [Ins(x) for x in L]
        so = sD1 if m else sC
        if p % 2 == 1:
            L.append(Ins(f"buffer_store_dwordx4 {V(o-2, 4)}, v2, s[4:7], s{so} offen offset:{1024 if p == 3 else 0} sc1", "outE" if p < 4 else "out"))
        if p == 6:
            L.append(Ins(f"buffer_store_dwordx2 {V(o, 2)}, v{vH3}, s[4:7], s{so} offen sc1", "out"))
        return L

    for p in range(6):
        for m in range(2):
            sc.alu(epi(p, m), step=gend[p] + 1)
        if p == 3:
            sc.alu([f"s_add_u32 s{sC}, s{sC}, s{sD2}\ns_add_u32 s{sD1}, s{sD1}, s{sD2}\ns_lshr_b32 s{sD2}, s{sD2}, 1"])
            fl = flag_items("outE", wr_cluster(sFA, F3), vFC)
            k = [isinstance(x, Wait) for x in fl].index(True)
            sc.alu(fl[:k])
            sc.alu(fl[k:], step=CFG["e3"])
    sc.alu([f"s_add_u32 s{sC}, s{sC}, s{sD2}\ns_add_u32 s{sD1}, s{sD1}, s{sD2}", rd_cluster(sFB, F3).replace(f"s{sB}", f"s{sFL}")])
    sc.run(steps, ch["p3"], CFG["g3"])
    sc.drain()
    P.e(f"buffer_load_dword v253, v{vPOLL}, s[4:7], s{sFL} offen sc1", tag="fp")
    a, b = epi(6, 0), epi(6, 1)
    for k in range(0, 20, 4):
        P.add(a[k:k + 4] + b[k:k + 4])
    P.add(a[20:] + b[20:])
    P.add(flag_items("out", "", vFC, 64)) if not CFG["nowait3"] else None
    stamp(P, "p3")
    return sc


def phase4(P, ch, prev):
    sc = Sched(P, "p4")
    sc.events.add("p3:end")
    for o in prev.vq:
        o.prio = 60 + (o.prio - 1000)
    sc.vq, sc.pend, sc.pend_tag = prev.vq, prev.pend, prev.pend_tag
    ACC, T = PV, PV + 20
    P.e(f"s_mul_i32 s{sX0}, s{sMT}, 55296\ns_add_u32 s{sX0}, s{sX0}, s{sLAY}\ns_add_u32 s{sX0}, s{sX0}, {HB}")
    Sched.x_ctx = None
    for kb in range(54):
        sc.load(A(kb * 4, 4), 2, sX0, kb * 1024, f"X{kb}", kb * 5 - 50, step=kb * 5 - CFG["lead4"], event="late" if kb >= 32 else None)
    P.add(check_items("4e", 0))
    stamp(P, "p4")
    sc.burst(CFG["b4"])
    if CFG["nowait3"]:
        sc.alu(flag_items("out", "", vFC, 64), step=CFG["f4"])
    sc.alu([Ins(f"buffer_load_dword v253, v{vPOLL}, s[4:7], s{sFL} offen offset:64 sc1", "fp")], step=CFG["c4"] - 24)
    sc.alu(check_items("4", 64), step=CFG["c4"])
    sc.mark("late")
    for c in range(8, 14):
        sc.dma(ch["p4"][c], 20 * c - 60)
    for c in range(8):
        sc.dma(ch["p1"][c], 1000 + c, step=CFG["pf4"])
    steps = []
    for kb in range(54):
        for t in range(5):
            def mf(w, kb=kb, t=t):
                d = V(ACC + 4 * t, 4)
                return [f"{MF} {d}, {w}, {A(kb*4, 4)}, {'0' if kb == 0 else d}"]
            st = dict(fr=divmod(len(steps), 20), mf=mf)
            if t == 0:
                st["xw"] = [f"X{kb}"]
            steps.append(st)
    sc.run(steps, ch["p4"], CFG["g4"], wevery=2)
    P.e(f"s_cmp_lg_u32 s{sLAY}, 0\ns_cbranch_scc1 L_final")
    resid_epilogue(P, ACC, T, XA + LB, STA + LB)
    handoff(P, sc, "out", wr_cluster(sFB, F0 + LB), vFC, "4")
    stamp_flush(P)
    P.e(f"s_mov_b32 s{sLAY}, {LB}\ns_branch L_layer\nL_final:")
    resid_epilogue(P, ACC, T, 0, 0, final=True)
    P.e("s_waitcnt vmcnt(0)")
    stamp_flush(P)
    P.e("s_endpgm")


def gen_main():
    ch = mk_chunks()
    Q = Prog()
    P = Prog()
    Sched.dma_ctx = None
    q0 = _nstamp[0]
    if PROF == "p0":
        _nstamp[0] += 3
    phase1(P, ch)
    phase2(P, ch)
    phase4(P, ch, phase3(P, ch))
    order = [x for x in Sched.log if x[0][0] == "1" and x[0] != "1_8"]
    assert len(order) == 40
    P.items = [Ins(".p2align 6"), Ins("L_layer:")] + [Virtual("W" + x[0]) for x in order] + P.items
    Q.e("L_join:")
    stamp(Q, "p0", True, q0)
    if CFG.get("cpf"):
        Q.e(f"s_getpc_b64 s[40:41]\nL_pc:\ns_add_u32 s40, s40, L_layer-L_pc\ns_addc_u32 s41, s41, 0")
        Q.e(f"s_lshr_b32 s42, s2, 3\ns_lshl_b32 s42, s42, 12\ns_min_u32 s42, s42, L_exit-L_layer-4096\nv_lshl_add_u32 v90, v0, 4, s42")
        Q.e("global_load_dwordx4 v[92:95], v90, s[40:41]")
    Q.e(f"s_mov_b32 s8, s44\ns_and_b32 s9, s45, 0xffff\ns_mov_b32 s10, {XSZ}\ns_mov_b64 s[{sDBG}:{sDBG+1}], s[46:47]")
    Q.e(f"s_and_b32 s{sA}, s2, 7\ns_lshr_b32 s{sB}, s2, 3\ns_and_b32 s{sC}, s{sB}, 3\ns_lshr_b32 s{sCG8}, s{sB}, 2")
    Q.e(f"s_lshr_b32 s{sRB}, s{sA}, 1\ns_lshl_b32 s{sRB}, s{sRB}, 2\ns_add_u32 s{sRB}, s{sRB}, s{sC}")
    Q.e(f"s_and_b32 s{sCG}, s{sA}, 1\ns_lshl_b32 s{sCG}, s{sCG}, 3\ns_add_u32 s{sCG}, s{sCG}, s{sCG8}")
    Q.e(f"s_mul_i32 s{sW5}, s{sWAVE}, 5120\ns_mul_i32 s{sW1}, s{sCG}, {168*1024}\ns_add_u32 s{sW1}, s{sW1}, s{sW5}")
    Q.e(f"s_lshl_b32 s{sA}, s{sA}, 2\ns_add_u32 s{sA}, s{sA}, s{sC}")
    Q.e(f"s_lshl_b32 s{sMT}, s{sA}, 2\ns_add_u32 s{sMT}, s{sMT}, s{sWAVE}")
    Q.e(f"s_lshl_b32 s{sFB}, s{sA}, 3\ns_add_u32 s{sFB}, s{sFB}, s{sCG8}")
    Q.e(f"s_lshl_b32 s{sFA}, s{sRB}, 4\ns_add_u32 s{sFA}, s{sFA}, s{sCG}")
    Q.e(f"s_lshl_b32 s{sMT0}, s{sRB}, 3\ns_lshl_b32 s{sB}, s{sWAVE}, 1\ns_add_u32 s{sMT0}, s{sMT0}, s{sB}")
    Q.e(f"s_and_b32 s{sFG}, s2, 15\ns_lshl_b32 s{sFG}, s{sFG}, 10\ns_mov_b32 s{sEPS}, {f32(1e-6)}\ns_mov_b32 s{sLAY}, 0")
    for r, base, n, cg in ((sW2, WF2, 100, sCG8), (sW3, WF3, 294, sCG), (sW4, WF4, 270, sCG8)):
        Q.e(f"s_mul_i32 s{r}, s{cg}, {n*1024}\ns_add_u32 s{r}, s{r}, {base}\ns_add_u32 s{r}, s{r}, s{sW5}")
    Q.e("v_add_u32 v3, 0x10000, v2\nv_add_u32 v4, 0x20000, v2")
    Q.e(f"v_mov_b32 v{vT}, {OOB}")
    Q.e(f"v_lshlrev_b32 v{vSTL}, 8, v5\nv_lshl_add_u32 v{vSTL}, v6, 3, v{vSTL}")
    Q.e(f"v_lshrrev_b32 v{vHALF}, 1, v5\nv_lshlrev_b32 v{vHALF}, 8, v{vHALF}\nv_lshl_add_u32 v{vHALF}, v6, 4, v{vHALF}")
    Q.e(f"v_and_b32 v{vPQT}, 1, v5\nv_lshl_add_u32 v{vHALF}, v{vPQT}, 3, v{vHALF}")
    Q.e(f"v_cmp_gt_u32 vcc, 32, v1\nv_cndmask_b32 v{vPQT}, v{vT}, v{vHALF}, vcc")
    Q.e(f"v_cmp_gt_u32 vcc, 16, v1\nv_lshlrev_b32 v{vSTS}, 3, v6\nv_cndmask_b32 v{vSTS}, v{vT}, v{vSTS}, vcc")
    Q.e("v_cmp_gt_u32 vcc, 16, v0")
    Q.e(f"v_lshlrev_b32 v{vFC}, 7, v1\nv_cndmask_b32 v{vFC}, v{vT}, v{vFC}, vcc\nv_lshlrev_b32 v{vFG}, 10, v1\nv_cndmask_b32 v{vFG}, v{vT}, v{vFG}, vcc")
    Q.e(f"v_lshlrev_b32 v{vPOLL}, 2, v6\nv_mov_b32 v{vONE}, 1")
    Q.e(f"v_cmp_gt_u32 vcc, 48, v1\nv_cndmask_b32 v{vPQW}, v{vT}, v2, vcc")
    Q.e(f"s_cmp_lt_u32 s{sCG}, 12\ns_cselect_b32 s{sB}, 0, {OOB}\nv_add_u32 v{vH3}, s{sB}, v{vHALF}")
    Q.e(f"v_mul_u32_u24 v{vO8}, 1280, v6\nv_lshl_add_u32 v{vO16}, v5, 4, v{vO8}\nv_lshl_add_u32 v{vO8}, v5, 3, v{vO8}")
    Q.e(f"s_mul_i32 s{sB}, s{sWAVE}, 3360\ns_add_u32 s{sB}, s{sB}, {RED - 640}")
    Q.e(f"v_mul_u32_u24 v{vRW0}, 336, v5\nv_lshl_add_u32 v{vRW0}, v6, 4, v{vRW0}\nv_add_u32 v{vRW0}, s{sB}, v{vRW0}")
    Q.e(f"v_min_u32 v{vRW1}, 1, v5\nv_mul_u32_u24 v{vRW1}, 320, v{vRW1}\nv_sub_u32 v{vRW1}, v{vRW0}, v{vRW1}")
    Q.e(f"v_lshlrev_b32 v{vAT}, 2, v0\nv_add_u32 v{vRR}, {RED}, v{vAT}\nv_cmp_gt_u32 vcc, 72, v0\nv_cndmask_b32 v{vATM}, v{vT}, v{vAT}, vcc")
    Q.e(f"s_lshl_b32 s{sB}, s{sWAVE}, 7\ns_add_u32 s{sB}, s{sB}, {BNC}\nv_lshl_add_u32 v{vBW}, v6, 2, s{sB}\nv_lshl_add_u32 v{vBR}, v5, 4, s{sB}")
    mk = lanemask(lambda g, i: i < 8)
    Q.e(f"s_mov_b32 s{sM8}, 0x{mk & 0xffffffff:08x}\ns_mov_b32 s{sM8+1}, 0x{mk >> 32:08x}")
    for n, (i, j) in enumerate(PAIRS):
        mk = red_mask(i, j)
        Q.e(f"s_mov_b32 s{sMASK+2*n}, 0x{mk & 0xffffffff:08x}\ns_mov_b32 s{sMASK+2*n+1}, 0x{mk >> 32:08x}")
    a, b, c, d, e = PV, PV + 1, PV + 2, PV + 3, PV + 4
    Q.e(f"s_lshr_b32 s{sA}, s{sWAVE}, 1\ns_and_b32 s{sB}, s{sWAVE}, 1\ns_lshl_b32 s{sB}, s{sB}, 6\nv_add_u32 v{a}, s{sB}, v1")
    Q.e(f"v_mul_u32_u24 v{b}, 3121, v{a}\nv_lshrrev_b32 v{b}, 16, v{b}\nv_mul_u32_u24 v{c}, 21, v{b}\nv_sub_u32 v{c}, v{a}, v{c}")
    Q.e(f"s_mul_i32 s{sB}, s{sA}, 1680\nv_lshl_add_u32 v{vKVL}, v{a}, 4, s{sB}")
    Q.e(f"v_add_u32 v{b}, s{sA}, v{b}\nv_lshrrev_b32 v{d}, 1, v{b}\nv_and_b32 v{b}, 1, v{b}")
    Q.e(f"v_lshlrev_b32 v{e}, 8, v{d}\nv_lshlrev_b32 v{d}, 7, v{d}\nv_add_u32 v{d}, 512, v{d}\nv_cmp_gt_u32 vcc, 16, v{c}\nv_cndmask_b32 v{d}, v{d}, v{e}, vcc")
    Q.e(f"v_lshl_add_u32 v{d}, v{c}, 4, v{d}\nv_lshl_add_u32 v{d}, v{b}, 3, v{d}")
    Q.e(f"v_cmp_gt_u32 vcc, 105, v{a}\nv_mov_b32 v{e}, 1152\nv_cndmask_b32 v{d}, v{e}, v{d}, vcc\nv_cndmask_b32 v{vKVL}, v{vT}, v{vKVL}, vcc")
    Q.e(f"s_mul_i32 s{sB}, s{sA}, 1280\ns_add_u32 s{sB}, s{sB}, {KVT}\nv_add_u32 v{vKVW}, s{sB}, v{d}")
    Q.e(f"v_lshlrev_b32 v{vZF}, 4, v0\nv_add_u32 v{vZF}, {KVT}, v{vZF}")
    Q.e(f"v_and_b32 v{c}, 7, v6\nv_lshlrev_b32 v{c}, 4, v{c}\nv_add_u32 v{c}, 1152, v{c}")
    Q.e(f"v_and_b32 v{b}, 3, v6\nv_lshrrev_b32 v{d}, 2, v6\nv_cmp_eq_u32 vcc, 0, v{b}\nv_cndmask_b32 v{b}, 4, v{d}, vcc")
    Q.e(f"v_lshlrev_b32 v{b}, 4, v{b}\nv_lshl_add_u32 v{b}, v5, 7, v{b}\nv_add_u32 v{b}, 768, v{b}")
    Q.e(f"v_cmp_eq_u32 vcc, 3, v5\nv_cndmask_b32 v{b}, v{b}, v{c}, vcc\nv_add_u32 v{vE1}, {KVT}, v{b}")
    Q.e(f"v_cndmask_b32 v{b}, v2, v{c}, vcc\nv_add_u32 v{vE0}, {KVT}, v{b}")
    Q.e(f"v_mov_b32 v{CE}, 0\nv_mov_b32 v{CE+1}, s{sEPS}\nv_mov_b32 v{CE+2}, 0\nv_mov_b32 v{CE+3}, 0")
    for r in range(4):
        Q.e(f"v_mov_b32 v{ONES+r}, 0x3f803f80")
    Q.e(f"v_mov_b32 v{vT}, 0")
    Q.raw(f"s_cmp_lg_u32 s{sWAVE}, 0\ns_cbranch_scc1 L_pd0\ns_mov_b32 s{sSPIN}, {SPIN}\nL_pl0:")
    Q.raw(f"global_load_dword v252, v{vT}, s[{sDBG}:{sDBG+1}] offset:128 sc1\ns_waitcnt vmcnt(0)\nv_cmp_eq_u32 vcc, 0, v252\ns_nop 1\ns_cbranch_vccz L_pd0")
    Q.raw(f"s_sub_u32 s{sSPIN}, s{sSPIN}, 1\ns_cmp_lg_u32 s{sSPIN}, 0\ns_cbranch_scc1 L_pl0\nL_pd0:")
    Q.e("s_waitcnt vmcnt(0)\ns_barrier")
    stamp(Q, "p0", True, q0 + 1)
    Q.raw(f"s_cmp_lg_u32 s{sWAVE}, 0\ns_cbranch_scc1 L_na\ns_mov_b64 exec, 1\nglobal_atomic_add v{vT}, v{vONE}, s[{sDBG}:{sDBG+1}] offset:4\ns_mov_b64 exec, -1\nL_na:")
    sc = Sched(Q, "pro")
    Sched.dma_ctx = None
    for c in range(8):
        ch["p1"][c].event = None
        sc.dma(ch["p1"][c], lambda i, c=c: order.index((f"1_{c}", i)))
    sc.burst(40)
    Q.e(f"s_mul_i32 s{sC}, s{sMT}, 20480\ns_mul_i32 s{sB}, s{sCG8}, 2560\ns_add_u32 s{sC}, s{sC}, s{sB}\ns_add_u32 s{sC}, s{sC}, {XA}")
    Q.e(f"buffer_load_dwordx4 {V(XR, 4)}, v2, s[4:7], s{sC} offen sc1\nbuffer_load_dwordx4 {V(XR+4, 4)}, v2, s[4:7], s{sC} offen offset:1024 sc1")
    Q.e(f"buffer_load_dwordx2 {V(XR+8, 2)}, v{vHALF}, s[4:7], s{sC} offen offset:2048 sc1")
    stamp(Q, "p0", True, q0 + 2)
    return Q, P


K0ST = " sc1"
sDBG = 18


def k0_prologue(P):
    P.e("s_cmp_ge_u32 s2, 256\ns_cbranch_scc1 L_exit")
    stamp(P)
    stamp(P, "p0", True)
    P.e("s_load_dwordx2 s[4:5], s[0:1], 72", tag="ka")
    P.e("v_lshrrev_b32 v7, 6, v0\nv_and_b32 v1, 63, v0\nv_readfirstlane_b32 s12, v7\nv_lshlrev_b32 v2, 4, v1\nv_lshrrev_b32 v5, 4, v1\nv_and_b32 v6, 15, v1")
    P.e(f"s_mov_b32 s6, {WS_USED}\ns_mov_b32 s7, 0x20000")


K0_LDS = 40 * 1024
NJ1, NJ3, NJB, NJC = 64, 128, 74, 64


def gen_k0():
    texts = []
    mx = {"v": 0, "s": 0}
    P = Prog()
    k0_prologue(P)
    P.e("s_load_dwordx4 s[52:55], s[0:1], 0", tag="ka")
    P.e("s_load_dwordx2 s[56:57], s[0:1], 16", tag="ka")
    P.e("s_load_dwordx4 s[60:63], s[0:1], 32", tag="ka")
    P.e("s_load_dwordx2 s[58:59], s[0:1], 48", tag="ka")
    P.e("s_load_dwordx4 s[44:47], s[0:1], 56", tag="ka")
    P.e("s_mov_b32 s11, 0x20000")
    P.e("v_lshrrev_b32 v7, 2, v6\nv_and_b32 v8, 3, v6")
    P.e("v_and_b32 v9, 1, v5\nv_lshl_add_u32 v9, v9, 2, v7\nv_lshlrev_b32 v9, 1, v9")
    P.e("v_lshl_add_u32 v10, v5, 3, v7\nv_lshlrev_b32 v10, 8, v10")
    P.e("s_lshr_b32 s17, s12, 1\ns_lshl_b32 s17, s17, 3\nv_lshl_add_u32 v11, v5, 1, s17\nv_xor_b32 v11, v11, v6")
    P.wlg("ka")
    P.e("s_and_b32 s5, s5, 0xffff")
    P.e("s_cmp_lt_u32 s2, 64\ns_cbranch_scc1 L_k0_A\ns_cmp_lt_u32 s2, 128\ns_cbranch_scc1 L_k0_C")
    texts.append(P)

    P = Prog()
    P.e("L_k0_A:")
    P.e(f"s_cmp_lt_u32 s2, {NJ1}\ns_cbranch_scc0 L_k0_A3")
    P.e("s_lshr_b32 s14, s2, 2\ns_and_b32 s15, s2, 3")
    P.e(f"s_mov_b32 s8, s54\ns_and_b32 s9, s55, 0xffff\ns_mov_b32 s10, {640*1920*2}\ns_mov_b32 s20, 3840")
    P.e("v_min_u32 v12, 14, v11\nv_mul_u32_u24 v13, 52, v12\nv_lshrrev_b32 v13, 8, v13")
    P.e("v_mul_u32_u24 v13, 1200, v13\nv_lshl_add_u32 v12, v12, 4, v13")
    P.e("s_mul_i32 s21, s14, 80")
    P.e("s_lshl_b32 s22, s12, 5\ns_add_u32 s22, s22, 80\ns_mov_b32 s23, 8\ns_mov_b32 s24, 3")
    P.e("s_mov_b32 s25, 208\ns_mov_b32 s26, 8\ns_mov_b32 s27, 3")
    P.e("s_cmp_eq_u32 s12, 1\ns_cselect_b32 s25, 0, s25\ns_cselect_b32 s26, 16, s26")
    P.e("s_cmp_eq_u32 s12, 2\ns_cselect_b32 s25, 8, s25\ns_cselect_b32 s26, 16, s26")
    P.e("s_cmp_eq_u32 s12, 3\ns_cselect_b32 s25, 64, s25\ns_cselect_b32 s27, 1, s27")
    P.e(f"s_mul_i32 s28, s14, {21*8*1024}\ns_add_u32 s28, s28, {WF1}\ns_lshl_b32 s17, s12, 10\ns_add_u32 s28, s28, s17")
    P.e(f"s_cmp_eq_u32 s12, 0\ns_mov_b32 s17, {104*1024}\ns_mov_b32 s36, 3072\ns_cselect_b32 s17, 4096, s17\ns_cselect_b32 s36, 5120, s36\ns_add_u32 s29, s28, s17\ns_mov_b32 s30, 5120")
    P.e("s_branch L_k0_Ac")
    P.e("L_k0_A3:")
    P.e(f"s_sub_u32 s16, s2, 128\ns_and_b32 s18, s16, 1\ns_lshr_b32 s15, s16, 1\ns_and_b32 s15, s15, 3\ns_lshr_b32 s14, s16, 3")
    P.e("s_cmp_eq_u32 s18, 0\ns_cselect_b32 s8, s60, s62\ns_cselect_b32 s9, s61, s63\ns_and_b32 s9, s9, 0xffff")
    P.e(f"s_mov_b32 s10, {640*1728*2}\ns_mov_b32 s20, 3456")
    P.e("s_cmp_lt_u32 s14, 12\ns_cselect_b32 s17, 13, 11")
    P.e("v_min_u32 v12, s17, v11\nv_lshlrev_b32 v12, 4, v12")
    P.e("s_mul_i32 s21, s14, 224\ns_mul_i32 s17, s14, 192\ns_add_u32 s17, s17, 384\ns_min_u32 s21, s21, s17")
    P.e("s_lshr_b32 s22, s12, 1\ns_lshl_b32 s22, s22, 6\ns_and_b32 s17, s12, 1\ns_lshl_b32 s17, s17, 3\ns_add_u32 s22, s22, s17")
    P.e("s_mov_b32 s23, 16\ns_mov_b32 s24, 3\ns_mov_b32 s27, 3")
    P.e("s_add_u32 s25, s17, 128\ns_cmp_lt_u32 s12, 2\ns_cselect_b32 s25, s25, 192\ns_cselect_b32 s26, 16, 8")
    P.e(f"s_mul_i32 s28, s14, {21*14*1024}\ns_add_u32 s28, s28, {WF3}\ns_lshl_b32 s17, s18, 10\ns_add_u32 s28, s28, s17")
    P.e(f"s_cmp_eq_u32 s12, 1\ns_mov_b32 s17, {252*1024}\ns_cselect_b32 s17, {170*1024}, s17\ns_cmp_eq_u32 s12, 0\ns_cselect_b32 s17, {168*1024}, s17\ns_cmp_lt_u32 s12, 2\ns_mov_b32 s36, 2048\ns_cselect_b32 s36, 4096, s36\ns_add_u32 s29, s28, s17")
    P.e(f"s_lshl_b32 s17, s12, 11\ns_cmp_eq_u32 s12, 3\ns_cselect_b32 s17, {126*1024}, s17\ns_mov_b32 s30, 6144\ns_cselect_b32 s30, 2048, s30\ns_add_u32 s28, s28, s17")
    P.e("L_k0_Ac:")
    P.e("s_lshl_b32 s17, s12, 2\nv_add_u32 v13, s17, v5\nv_mul_lo_u32 v13, v13, s20\nv_add_u32 v12, v12, v13")
    P.e("s_mul_i32 s31, s15, 160\ns_mul_i32 s31, s31, s20\ns_add_u32 s31, s31, s21\ns_lshl_b32 s32, s20, 4")
    P.e("s_lshl_b32 s33, s12, 10")
    for k in range(10):
        P.e(f"s_add_u32 m0, s33, {k*4096}")
        if k:
            P.e("s_add_u32 s31, s31, s32")
        P.e("buffer_load_dwordx4 v12, s[8:11], s31 offen lds", tag="d")
    for tt, (sa, sb, sm) in enumerate(((22, 23, 24), (25, 26, 27))):
        a = 14 + tt
        P.e(f"v_min_u32 v{a}, s{sm}, v8\nv_mul_lo_u32 v{a}, v{a}, s{sb}\nv_add_u32 v{a}, s{sa}, v{a}")
        P.e(f"v_lshrrev_b32 v16, 4, v{a}\nv_xor_b32 v16, v16, v9\nv_and_b32 v{a}, 8, v{a}")
        P.e(f"v_lshl_add_u32 v{a}, v16, 4, v{a}\nv_add_u32 v{a}, v{a}, v10")
    for r in range(4):
        P.e(f"v_mov_b32 v{20+r}, 0x3f803f80")
    P.e("s_mul_i32 s18, s15, 5\ns_mul_i32 s17, s18, s30\ns_add_u32 s34, s28, s17\ns_mul_i32 s17, s18, s36\ns_add_u32 s35, s29, s17")
    P.wvm("d")
    P.e("s_barrier")
    for tt in range(2):
        for k in range(5):
            d = 32 + (tt * 5 + k) * 4
            P.e(f"ds_read_b64_tr_b16 {V(d, 2)}, v{14+tt} offset:{k*8192}", tag=f"t{tt}{k}")
            P.e(f"ds_read_b64_tr_b16 {V(d+2, 2)}, v{14+tt} offset:{k*8192+1024}", tag=f"t{tt}{k}")
            if tt == 1 and k == 1:
                P.wlg("t04")
    for tt in range(2):
        for k in range(5):
            d = 32 + (tt * 5 + k) * 4
            P.wlg(f"t{tt}{k}")
            P.e(f"buffer_store_dwordx4 {V(d, 4)}, v2, s[4:7], s{34+tt} offen{K0ST}")
            P.e(f"s_add_u32 s{34+tt}, s{34+tt}, s{36 if tt else 30}")
            c = V(24 + 4 * tt, 4)
            P.e(f"{MF} {c}, {V(20, 4)}, {V(d, 4)}, {'0' if k == 0 else c}")
    P.e("s_lshl_b32 s18, s15, 8\ns_mul_i32 s17, s30, 20\ns_add_u32 s17, s17, s18\ns_add_u32 s28, s28, s17\ns_mul_i32 s17, s36, 20\ns_add_u32 s17, s17, s18\ns_add_u32 s29, s29, s17")
    set_exec(P, 0xffff)
    for tt in range(2):
        c = 24 + 4 * tt
        e = 72 + 4 * tt
        P.e(f"v_cvt_pk_bf16_f32 v{e}, v{c}, v{c}\nv_and_b32 v16, 0xffff0000, v{e}\nv_sub_f32 v17, v{c}, v16")
        P.e(f"v_cvt_pk_bf16_f32 v{e+1}, v17, v17\nv_and_b32 v16, 0xffff0000, v{e+1}\nv_sub_f32 v17, v17, v16")
        P.e(f"v_cvt_pk_bf16_f32 v{e+2}, v17, v{c}\nv_mov_b32 v{e+3}, 0")
        P.e(f"buffer_store_dwordx4 {V(e, 4)}, v2, s[4:7], s{28+tt} offen{K0ST}")
    P.e(f"s_mov_b64 exec, -1\ns_cmp_lt_u32 s2, 64\ns_cbranch_scc1 L_arrive\ns_cmp_ge_u32 s2, {128 + NJB}\ns_cbranch_scc1 L_join")
    texts.append(P)

    P = Prog()
    P.e("L_k0_B:")
    P.e("s_sub_u32 s16, s2, 128")
    P.e("s_cmp_lt_u32 s16, 20\ns_cbranch_scc1 L_k0_B2")
    P.e(f"s_sub_u32 s16, s16, 20\ns_mov_b32 s8, s58\ns_and_b32 s9, s59, 0xffff\ns_mov_b32 s10, {1728*640*2}")
    P.e(f"s_mov_b32 s20, {54*5*1024}\ns_mov_b32 s21, {WF4}")
    P.e("s_lshr_b32 s22, s16, 1\ns_and_b32 s23, s16, 1\ns_lshl_b32 s23, s23, 5\ns_mov_b32 s24, 16")
    P.e("s_sub_u32 s17, s16, 32\ns_cmp_ge_u32 s16, 32\ns_cselect_b32 s22, s17, s22\ns_cselect_b32 s23, 64, s23")
    P.e("s_sub_u32 s17, s16, 48\ns_lshl_b32 s17, s17, 1\ns_cmp_ge_u32 s16, 48\ns_cselect_b32 s22, s17, s22\ns_cselect_b32 s23, 96, s23\ns_cselect_b32 s24, 112, s24")
    P.e("s_mul_i32 s17, s22, 112\ns_mul_i32 s18, s22, 96\ns_add_u32 s18, s18, 192\ns_min_u32 s17, s17, s18\ns_add_u32 s17, s17, s23")
    P.e("s_lshl_b32 s18, s12, 2\ns_add_u32 s17, s17, s18\nv_add_u32 v12, s17, v5\nv_add_u32 v13, s24, v12")
    P.e("s_branch L_k0_Bc")
    P.e("L_k0_B2:")
    P.e(f"s_mov_b32 s8, s56\ns_and_b32 s9, s57, 0xffff\ns_mov_b32 s10, {640*640*2}")
    P.e(f"s_mov_b32 s20, {20*5*1024}\ns_mov_b32 s21, {WF2}")
    P.e("s_lshl_b32 s18, s12, 2\nv_add_u32 v14, s18, v5\nv_and_b32 v15, 7, v14\nv_lshrrev_b32 v14, 3, v14")
    P.e("s_lshl_b32 s17, s16, 3\nv_add_u32 v15, s17, v15\nv_mul_u32_u24 v16, 205, v15\nv_lshrrev_b32 v16, 10, v16")
    P.e("v_mul_u32_u24 v17, 5, v16\nv_sub_u32 v17, v15, v17\nv_mul_u32_u24 v16, 20, v16")
    P.e("v_cmp_gt_u32 vcc, 4, v17")
    for k in range(2):
        if k:
            P.e("v_add_u32 v14, 2, v14")
        P.e(f"v_lshl_add_u32 v18, v14, 2, v17\nv_add_u32 v19, 16, v14\nv_cndmask_b32 v18, v19, v18, vcc\nv_add_u32 v{12+k}, v16, v18")
    P.e("L_k0_Bc:")
    for k in range(2):
        P.e(f"v_mul_u32_u24 v{12+k}, 1280, v{12+k}\nv_lshl_add_u32 v{12+k}, v11, 4, v{12+k}")
    P.e("s_lshl_b32 s33, s12, 10")
    for pn in range(5):
        for k in range(2):
            P.e(f"s_add_u32 m0, s33, {40960 + pn*8192 + k*4096}\ns_mov_b32 s31, {pn*256}")
            P.e(f"buffer_load_dwordx4 v{12+k}, s[8:11], s31 offen lds", tag="d")
    P.e("s_mul_i32 s22, s12, 320")
    P.e("v_lshlrev_b32 v14, 4, v8\nv_add_u32 v14, s22, v14\nv_lshlrev_b32 v15, 3, v8\nv_add_u32 v15, s22, v15")
    for cq in range(2):
        for t in range(5):
            a = 20 + cq * 5 + t
            k0 = 160 * cq + (64 * (t // 2) + 8 * (t % 2) if t < 4 else 128)
            P.e(f"v_add_u32 v16, {k0}, {'v14' if t < 4 else 'v15'}")
            P.e("v_bfe_u32 v17, v16, 4, 4\nv_xor_b32 v17, v17, v9\nv_lshrrev_b32 v18, 8, v16\nv_and_b32 v16, 8, v16")
            P.e(f"v_lshl_add_u32 v16, v17, 4, v16\nv_lshl_add_u32 v16, v18, 13, v16\nv_add_u32 v{a}, v16, v10")
    P.e("s_lshl_b32 s17, s12, 1\ns_mul_i32 s17, s17, s20\ns_add_u32 s21, s21, s17\ns_mul_i32 s17, s16, 5120\ns_add_u32 s21, s21, s17")
    P.wvm("d")
    P.e("s_barrier")
    for n in range(10):
        d = 32 + 4 * n
        P.e(f"ds_read_b64_tr_b16 {V(d, 2)}, v{20+n} offset:40960", tag=f"t{n}")
        P.e(f"ds_read_b64_tr_b16 {V(d+2, 2)}, v{20+n} offset:41984", tag=f"t{n}")
        if n == 6:
            P.wlg("t3")
    for n in range(10):
        d = 32 + 4 * n
        if n == 4:
            P.e("s_add_u32 s17, s21, 4096")
        if n == 5:
            P.e("s_add_u32 s21, s21, s20")
        if n == 9:
            P.e("s_add_u32 s17, s21, 4096")
        P.wlg(f"t{n}")
        t = n % 5
        P.e(f"buffer_store_dwordx4 {V(d, 4)}, v2, s[4:7], {'s21' if t < 4 else 's17'} offen offset:{(t % 4)*1024}{K0ST}")
    P.e("s_branch L_join")
    texts.append(P)

    P = Prog()
    P.e("L_k0_C:")
    P.e("s_sub_u32 s16, s2, 64")
    P.e(f"s_mov_b32 s8, s52\ns_and_b32 s9, s53, 0xffff\ns_mov_b32 s10, {XSZ}")
    P.e("s_lshl_b32 s17, s12, 2\nv_add_u32 v12, s17, v5\nv_xor_b32 v13, v12, v6\nv_mul_u32_u24 v12, 1280, v12\nv_lshl_add_u32 v12, v13, 4, v12")
    P.e("s_mul_i32 s20, s16, 40960\ns_lshl_b32 s33, s12, 10")
    for ml in range(2):
        for pn in range(5):
            P.e(f"s_add_u32 m0, s33, {ml*20480 + pn*4096}\ns_add_u32 s31, s20, {ml*20480 + pn*256}")
            P.e("buffer_load_dwordx4 v12, s[8:11], s31 offen lds", tag="d")
    for r in range(4):
        P.e(f"v_mov_b32 v{20+r}, 0")
    P.e(f"s_and_b32 s17, s16, 31\ns_mul_i32 s17, s17, {ZSZ//32}\ns_lshr_b32 s18, s16, 5\ns_mul_i32 s18, s18, {LB}\ns_add_u32 s17, s17, s18\ns_add_u32 s17, s17, {KVA}")
    P.e(f"v_lshlrev_b32 v14, 4, v0\nbuffer_store_dwordx4 {V(20, 4)}, v14, s[4:7], s17 offen{K0ST}")
    P.e(f"v_cmp_gt_u32 vcc, {(ZSZ//32 - 4096)//16}, v0\nv_mov_b32 v15, 0x40000000\nv_cndmask_b32 v14, v15, v14, vcc\ns_add_u32 s17, s17, 4096")
    P.e(f"buffer_store_dwordx4 {V(20, 4)}, v14, s[4:7], s17 offen{K0ST}")
    P.e("s_lshr_b32 s22, s12, 1\ns_and_b32 s23, s12, 1\ns_mul_i32 s24, s22, 20480\ns_mul_i32 s25, s23, 40")
    P.e("v_add_u32 v14, s25, v5\nv_lshlrev_b32 v15, 8, v6\nv_add_u32 v15, s24, v15")
    for k in range(10):
        P.e(f"v_add_u32 v16, {4*k}, v14\nv_lshrrev_b32 v17, 4, v16\nv_xor_b32 v16, v16, v6\nv_and_b32 v16, 15, v16")
        P.e(f"v_lshl_add_u32 v16, v16, 4, v15\nv_lshl_add_u32 v{72+k}, v17, 12, v16")
    P.e(f"s_add_u32 s26, s20, s24\ns_mul_i32 s17, s23, 10240\ns_add_u32 s26, s26, s17\ns_add_u32 s26, s26, {XA}")
    P.e("v_mov_b32 v24, 0\nv_mov_b32 v25, 0\nv_mov_b32 v26, 0x3f803f80")
    P.wvm("d")
    P.e("s_barrier")
    for k in range(10):
        P.e(f"ds_read_b128 {V(32+4*k, 4)}, v{72+k}", tag=f"t{k}")
    for k in range(10):
        if k and k % 4 == 0:
            P.e("s_add_u32 s26, s26, 4096")
        P.wlg(f"t{k}")
        P.e(f"buffer_store_dwordx4 {V(32+4*k, 4)}, v2, s[4:7], s26 offen offset:{(k % 4)*1024}{K0ST}")
        for r in range(4):
            P.e(f"v_dot2_f32_bf16 v24, v{32+4*k+r}, v26, v24")
            P.e(f"v_dot2_f32_bf16 v25, v{32+4*k+r}, v{32+4*k+r}, v25")
    P.add(allreduce_g(24, 27))
    P.add(allreduce_g(25, 28))
    P.e("v_cmp_eq_u32 vcc, 0, v5\nv_cndmask_b32 v24, 0, v24, vcc\nv_cndmask_b32 v25, 0, v25, vcc")
    P.e(f"s_lshl_b32 s17, s16, 1\ns_add_u32 s17, s17, s22\ns_lshl_b32 s17, s17, 10\ns_lshl_b32 s18, s23, 7\ns_add_u32 s17, s17, s18\ns_add_u32 s17, s17, {STA}")
    P.e("v_lshlrev_b32 v14, 8, v5\nv_lshl_add_u32 v14, v6, 3, v14")
    P.e(f"buffer_store_dwordx2 v[24:25], v14, s[4:7], s17 offen{K0ST}")
    P.e("L_arrive:\ns_waitcnt vmcnt(0)\ns_barrier")
    stamp(P, "p0", True)
    P.e("s_cmp_lg_u32 s12, 0\ns_cbranch_scc1 L_join\nv_mov_b32 v20, 0\nv_mov_b32 v21, 1\ns_mov_b64 exec, 1")
    P.e("global_atomic_add v22, v20, v21, s[46:47] sc0\ns_waitcnt vmcnt(0)\nv_readfirstlane_b32 s17, v22\ns_mov_b64 exec, -1")
    P.e("s_cmp_lg_u32 s17, 127\ns_cbranch_scc1 L_join\ns_mov_b64 exec, 1\nglobal_store_dword v20, v21, s[46:47] offset:128 sc1\ns_mov_b64 exec, -1")
    texts.append(P)
    return texts


def build():
    _nstamp[0] = 0
    k0 = gen_k0()
    Q, P = gen_main()
    ns = max(p.max_regs()["s"] for p in k0 + [Q, P]) + 1
    K = "interleave_layers__linear_attn_block__glu_gated_glu__prompt_kernel"
    body = f".globl {K}\n.p2align 8\n.type {K},@function\n{K}:\n" + "".join(p.finish() for p in k0 + [Q, P]) + "L_exit:\n  s_endpgm\n"
    head = "; generated by tools/gen2.py: one persistent launch: weight re-layout, then (qkv, attn-out, gate/up, down) x 2 layers\n"
    return head + f"; @launch grid=(256,1,1) block=(256,1,1) lds={8*SLOT}" + '\n.amdgcn_target "amdgcn-amd-amdhsa--gfx950"\n.text\n' + body + descriptor(K, 256, 256, ns)


if __name__ == "__main__":
    import argparse
    ap = argparse.ArgumentParser()
    ap.add_argument("-o", default="v2.s")
    ap.add_argument("--stamps", action="store_true")
    ap.add_argument("--clk", action="store_true")
    ap.add_argument("--cfg", default="")
    ap.add_argument("--prof", default=None)
    a = ap.parse_args()
    STAMPS = a.stamps or a.prof is not None
    PROF = a.prof
    if PROF and PROF != "p0":
        STAMP_INS = 's_memtime'
    if a.clk:
        STAMP_INS = "s_memtime"
    for kv in a.cfg.split(","):
        if kv:
            k, v = kv.split("=")
            CFG[k] = float(v) if "." in v else int(v)
    open(a.o, "w").write(build())
    print("written", a.o)
```

```python
import sys, struct
from collections import deque
from asmlib import Prog, Ins, Wait, Virtual, V, A, S, descriptor, TRANS
from gen import f32, LOG2E, MF, allreduce_g, stats_finish, lanemask, set_exec

WF1 = 16384
WF2 = WF1 + 16 * 168 * 1024
WF3 = WF2 + 8 * 100 * 1024
WF4 = WF3 + 16 * 294 * 1024
L0 = WF4 + 8 * 270 * 1024 + 4096
XSZ = 2048 * 640 * 2
XA = L0
PQ = XA + XSZ
XB = PQ + XSZ
HB = XB + XSZ
STA = HB + 2048 * 1728 * 2
STB = STA + 128 * 1024
KVA = STB + 128 * 1024
F0 = KVA + 56 * 1024
F1 = F0 + 32768
F1C = F1 + 16384
F2 = F1C + 32768
F3 = F2 + 32768
ZSZ = F3 + 32768 - KVA
LB = F3 + 32768 - L0
STAMP = L0 + 2 * LB
WS_USED = STAMP + 4 * 512 * 256
PROF = None
assert ZSZ == 204800 and L0 % 4096 == 0 and LB % 4096 == 0
STAMPS = False
STAMP_INS = "s_memrealtime"
OOB = 0x40000000
SLOT = 20480
SPIN = 200000
CFG = dict(rep=1, r0=48, t0=0, t1=0, t2=0, t3=0, t4=0, ldsc=1, w0=2, b0=24, g0=1, cpf=9, g1=2, g3=2, g4=2, b1=6, b3=6, b4=10, la=6, lead4=50, pf4=230, x2=1, x1=1, e3=240, c4=116, nowait3=1, f4=24)

vSTL, vHALF, vPQT, vSTS, vRW0, vRW1, vRR, vAT, vATM, vKVL, vKVW, vE0, vE1, vZF, vPQW, vFC, vFG, vPOLL, vONE, vBW, vBR, vH3, vO16, vO8, vT = range(7, 32)
XR, CE, ONES, PV = 32, 42, 46, 50
WP = 224
sWAVE, sRB, sCG, sMT0, sMT, sCG8, sLAY = 12, 13, 14, 15, 16, 17, 20
sW5, sW1, sW2, sW3, sW4 = 21, 22, 23, 24, 25
sFA, sFB, sFG, sEPS = 26, 27, 28, 29
sX0, sX1, sXT, sDT, sA, sB, sC, sSPIN = 30, 31, 32, 33, 34, 35, 36, 37
sFL, sD1, sD2 = 60, 61, 62
sM8, sMASK = 38, 40
sSTMP = 64
RED = 7 * SLOT
BNC = RED + 13440
KVT = 6 * SLOT


def cost(it):
    if isinstance(it, (Wait, Virtual)):
        return 0
    if isinstance(it, list):
        return sum(cost(x) for x in it)
    t = it.text
    if it.opaque:
        return 0
    if t.startswith("v_mfma"):
        return 12
    if t.startswith(TRANS):
        return 8
    return 4


def I(text, tag=None):
    return [Ins(x.strip(), tag) for x in text.split("\n") if x.strip()]


_nstamp = [0]


def stamp(P, ph=None, fine=False, j=None):
    if STAMPS and (PROF is None and not fine or PROF is not None and PROF == ph):
        if j is None:
            j = _nstamp[0]
            _nstamp[0] += 1
        P.raw(f"{STAMP_INS} s[{sSTMP+2*j}:{sSTMP+2*j+1}]")


def stamp_flush(P):
    if STAMPS:
        P.raw(f"s_cmp_lg_u32 s{sWAVE}, 0\ns_cbranch_scc1 L_nost{len(P.items)}")
        lab = P.items[-1].text.split()[-1]
        P.raw(f"s_cmp_lg_u32 s{sLAY}, 0\ns_cselect_b32 s{sA}, {512*256}, 0\ns_lshl_b32 s{sB}, s2, 8\ns_add_u32 s{sA}, s{sA}, s{sB}\ns_add_u32 s{sA}, s{sA}, {STAMP + 512*256}")
        P.raw(f"v_mov_b32 v{vT}, 0\ns_waitcnt lgkmcnt(0)")
        for j in range(_nstamp[0]):
            P.raw(f"v_mov_b32 v250, s{sSTMP+2*j}\nv_mov_b32 v251, s{sSTMP+2*j+1}\ns_nop 1")
            P.raw(f"buffer_store_dwordx2 v[250:251], v{vT}, s[4:7], s{sA} offen offset:{8*j}\ns_nop 1")
        P.raw(f"s_waitcnt vmcnt(0)\n{lab}:")


class Chunk:
    def __init__(self, name, sbase, foff, n, slot, event):
        self.name, self.sbase, self.foff, self.n, self.slot, self.event = name, sbase, foff, n, slot, event
        self.q = (n + 3) // 4
        self.tag = "W" + name


class Op:
    def __init__(self, fn, tag, prio, event=None, step=0):
        self.fn, self.tag, self.prio, self.event, self.step = fn, tag, prio, event, step


class Sched:
    dma_ctx = None
    x_ctx = None
    log = []

    def __init__(self, P, name):
        self.P, self.name = P, name
        self.vq, self.aq = [], deque()
        self.events = {None}
        self.marks = set()
        self.now = 0
        self.pend, self.pend_tag, self.rdnext, self.over = [], None, None, 0
        self.lasttr, self.lastw = set(), set()

    def dma(self, ch, prio, step=0):
        for i in range(ch.q):
            def fn(ch=ch, i=i):
                L = []
                Sched.log.append((ch.name, i))
                key = (ch.name, i // 4)
                if Sched.dma_ctx != key:
                    Sched.dma_ctx = key
                    o = (i // 4) * 4096
                    if ch.q == 5:
                        L += I(f"s_add_u32 m0, s{sW5}, {ch.slot*SLOT + o}\ns_add_u32 s{sDT}, s{ch.sbase}, {ch.foff*1024 + o}")
                    else:
                        L += I(f"s_mul_i32 s{sDT}, s{sWAVE}, {ch.q*1024}\ns_add_u32 m0, s{sDT}, {ch.slot*SLOT}\ns_sub_u32 s{sDT}, s{sDT}, s{sW5}")
                        L += I(f"s_add_u32 s{sDT}, s{sDT}, s{ch.sbase}\ns_add_u32 s{sDT}, s{sDT}, {ch.foff*1024}")
                L += I(f"buffer_load_dwordx4 v2, s[4:7], s{sDT} offen offset:{(i % 4)*1024} lds", ch.tag)
                return L
            self.vq.append(Op(fn, ch.tag, prio(i) if callable(prio) else prio + i * 1e-3, ch.event, step))

    def load(self, dst, vaddr, sbase, off, tag, prio, w=4, event=None, step=0):
        def fn():
            L = []
            if off < 4096:
                so = f"s{sbase}"
            else:
                key = (sbase, off >> 12)
                if Sched.x_ctx != key:
                    Sched.x_ctx = key
                    L += I(f"s_add_u32 s{sXT}, s{sbase}, {off & ~4095}")
                so = f"s{sXT}"
            return L + I(f"buffer_load_dwordx{w} {dst}, v{vaddr}, s[4:7], {so} offen offset:{off & 4095}{['', ' sc1', ' sc0', ' nt'][CFG['ldsc']]}", tag)
        self.vq.append(Op(fn, tag, prio, event, step))

    def alu(self, items, step=0, event=None):
        for it in items:
            if isinstance(it, str):
                for x in I(it):
                    self.aq.append((x, step, event))
            else:
                self.aq.append((it, step, event))

    def mark(self, name):
        self.aq.append((name, 0, None))

    def start_op(self, op):
        self.vq.remove(op)
        self.pend = op.fn()
        self.pend_tag = op.tag

    def flush_pend(self):
        self.P.add(self.pend)
        self.pend = []

    def emit_op(self, op):
        self.flush_pend()
        self.start_op(op)
        self.flush_pend()

    def next_op(self):
        el = [o for o in self.vq if o.event in self.events and o.step <= self.now]
        return min(el, key=lambda o: o.prio) if el else None

    def burst(self, n):
        self.flush_pend()
        for _ in range(n):
            el = [o for o in self.vq if o.event in self.events and o.prio < 1e5]
            if not el:
                break
            self.emit_op(min(el, key=lambda o: o.prio))

    def force(self, tag):
        if self.pend and self.pend_tag == tag:
            self.flush_pend()
        ops = sorted([o for o in self.vq if o.tag == tag], key=lambda o: o.prio)
        if ops:
            print(f"  [{self.name}] forced {len(ops)} x {tag} at step {self.now}", file=sys.stderr)
        for o in ops:
            assert o.event in self.events, (tag, o.event)
            self.emit_op(o)

    def pop_alu(self, k=0):
        it = self.aq[k][0]
        del self.aq[k]
        if isinstance(it, str):
            self.marks.add(it)
            self.events.add(it)
            return
        if isinstance(it, Wait) and it.cls == "vm":
            self.force(it.tag)
        self.P.add(it)

    def drain_to(self, mark):
        n = 0
        while mark not in self.marks:
            n += not isinstance(self.aq[0][0], (str, Wait))
            self.pop_alu()
        self.over += n

    def drain(self):
        self.flush_pend()
        while self.aq:
            self.pop_alu()

    def ready(self, k):
        return self.aq[k][1] <= self.now and self.aq[k][2] in self.events

    def head_is(self, kind):
        while self.aq and isinstance(self.aq[0][0], str):
            self.pop_alu()
        if not self.aq or not self.ready(0):
            return False
        it = self.aq[0][0]
        if kind == "wait":
            return isinstance(it, Wait)
        return isinstance(it, Ins) and it.kind == "salu"

    def pick(self, slots):
        best = None
        rd, wr = set(), set()
        for k in range(min(len(self.aq), 14)):
            it = self.aq[k][0]
            if not self.ready(k):
                break
            if isinstance(it, str):
                continue
            if isinstance(it, Wait):
                break
            if isinstance(it, list) or it.kind != "valu":
                if k == 0 or (best is None and not rd and not wr):
                    return k
                break
            if not (it.rd & wr or it.wr & wr or it.wr & rd):
                tr = "trans" in it.flags
                if tr and slots >= 2 and not (it.rd & self.lastw):
                    return k
                if not tr and best is None and not (it.rd & self.lasttr):
                    best = k
            rd |= it.rd
            wr |= it.wr
        return best

    def gap(self, scalar_free, slots, allow_v):
        P = self.P
        issued = False
        if allow_v and not self.pend:
            op = self.next_op()
            if op is not None:
                self.start_op(op)
        pre_m0 = False
        if scalar_free:
            if len(self.pend) > 1:
                it = self.pend.pop(0)
                pre_m0 = "m0" in it.wr
                P.add(it)
            elif self.head_is("wait") or self.head_is("salu"):
                self.pop_alu()
                while self.head_is("wait"):
                    self.pop_alu()
        if self.rdnext is not None:
            self.rdnext()
            self.rdnext = None
            slots -= 1
        if allow_v and len(self.pend) == 1 and not pre_m0:
            self.flush_pend()
            slots -= 2
            issued = True
        self.lasttr = set()
        self.lastw = set()
        while slots > 0:
            k = self.pick(slots)
            if k is None:
                break
            it = self.aq[k][0]
            slots -= cost(it) // 4
            if isinstance(it, Ins):
                self.lastw = set(it.wr)
                if "trans" in it.flags:
                    self.lasttr = set(it.wr)
            self.pop_alu(k)
        return issued

    def run(self, steps, chunks, vgap, extra=0, nobar=(), wevery=1):
        P, LA = self.P, CFG["la"]
        seen = set()

        def newchunk(m):
            st = steps[m]
            if "fr" not in st or st["fr"][0] in seen:
                return False
            c = st["fr"][0]
            seen.add(c)
            if c not in nobar:
                self.force(chunks[c].tag)
                P.wvm(chunks[c].tag)
                P.e("s_barrier")
            stamp(P, self.name, True)
            self.events.add(f"{self.name}:{c}")
            return c not in nobar

        def rd(m):
            st = steps[m]
            dst = A(WP + 4 * (m % 8), 4)
            if "fr" in st:
                c, f = st["fr"]
                off = chunks[c].slot * SLOT + f * 1024
                P.e(f"ds_read_b128 {dst}, v{2 + (off >> 16)} offset:{off & 0xffff}", tag=f"R{m}")
            else:
                P.e(st["rd"](dst), tag=f"R{m}")

        def waits(i, upto):
            st = steps[i]
            any_ = False
            if "aw" in st:
                self.drain_to(st["aw"])
            for t in st.get("xw", []):
                self.force(t)
                P.wvm(t)
                any_ = True
            if self.waited < i or any_:
                self.waited = min(upto, n - 1)
                P.wlg(f"R{self.waited}")
                any_ = True
            return any_

        n = len(steps)
        self.now = 0
        self.waited = -1
        for m in range(min(LA, n)):
            newchunk(m)
            rd(m)
        waits(0, 0)
        lastv = -100
        for i, st in enumerate(steps):
            self.now = i
            mfs = st["mf"](A(WP + 4 * (i % 8), 4))
            for k, t in enumerate(mfs):
                P.e(t)
                last = k == len(mfs) - 1
                free, slots = True, 2 + (extra(i) if callable(extra) else extra)
                if k == 0 and i + LA < n and newchunk(i + LA):
                    free, slots = False, slots - 1
                if last and i + 1 < n and waits(i + 1, i + wevery):
                    free = False
                if last and i + LA < n:
                    self.rdnext = lambda m=i + LA: rd(m)
                if self.gap(free, slots, k == 0 and i - lastv >= vgap):
                    lastv = i
        self.now = n
        P.e("s_barrier")
        self.events.add(f"{self.name}:end")
        stamp(P, self.name)
        print(f"  [{self.name}] overfill {self.over}, alu left {len(self.aq)}", file=sys.stderr)

    def late(self):
        n = len(self.vq)
        for o in self.vq:
            o.prio = min(o.prio, 9e4)
        self.burst(10 ** 6)
        assert not self.vq
        print(f"  [{self.name}] late ops {n}", file=sys.stderr)


def mk_chunks():
    ch = {}
    s1 = [6, 7, 0, 1, 2, 3, 4, 5, 6]
    e1 = ["p4:9", "p4:10", "p4:11", "p4:12", "p4:13", "p4:end", "p4:end", "p4:8", "p1:2"]
    ch["p1"] = [Chunk(f"1_{c}", sW1, 20 * c, 20 if c < 8 else 8, s1[c], e1[c]) for c in range(9)]
    ch["p2"] = [Chunk(f"2_{c}", sW2, 20 * c, 20, 1 + c, f"p1:{5+c}" if c < 4 else "p1:end") for c in range(5)]
    e3 = ["p1:4", "p2:2", "p2:3", "p2:4"] + ["p2:end"] * 4 + [f"p3:{c-6}" for c in range(8, 15)]
    ch["p3"] = [Chunk(f"3_{c}", sW3, 20 * c, 20 if c < 14 else 14, c % 8, e3[c]) for c in range(15)]
    e4 = [f"p3:{c+9}" for c in range(6)] + ["p3:end"] * 2 + [f"p4:{c-6}" for c in range(8, 14)]
    ch["p4"] = [Chunk(f"4_{c}", sW4, 20 * c, 20 if c < 13 else 10, (15 + c) % 8, e4[c]) for c in range(14)]
    return ch


def flag_items(wtag, wr, stride_reg, off=0):
    return I(wr) + [Wait("vm", wtag)] + I("s_barrier") + I(f"buffer_store_dword v{vONE}, v{stride_reg}, s[4:7], s{sA} offen offset:{off} sc1", "fl")


def handoff(P, sc, wtag, wr, stride_reg, uid, off=0):
    P.add(flag_items(wtag, wr, stride_reg, off))
    stamp(P, "p" + uid)
    sc.late()


def check_items(uid, off):
    R = Prog()
    cmp_ = "v_cmp_eq_u32 vcc, 0, v253"
    if off is None:
        cmp_ = "v_min_u32 v253, v252, v253\nv_min3_u32 v253, v253, v254, v255\n" + cmp_
    ld = (f"buffer_load_dword v253, v{vPOLL}, s[4:7], s{sFL} offen offset:{off} sc1" if off is not None
          else f"buffer_load_dwordx4 v[252:255], v2, s[4:7], s{sFL} offen sc1")
    R.e(f"{cmp_}\ns_nop 1\ns_cbranch_vccz L_ok{uid}")
    R.raw(f"s_mov_b32 s{sSPIN}, {SPIN}\nL_sp{uid}:\n{ld}\ns_waitcnt vmcnt(0)")
    R.raw(f"{cmp_}\ns_nop 1\ns_cbranch_vccz L_ok{uid}")
    R.raw(f"s_sub_u32 s{sSPIN}, s{sSPIN}, 1\ns_cmp_lg_u32 s{sSPIN}, 0\ns_cbranch_scc1 L_sp{uid}\nL_ok{uid}:")
    return [Wait("vm", "fp"), R.items]


def poll(P, rdoff, uid, wide=False, label=None):
    P.e(rdoff)
    P.raw(f"s_cmp_lg_u32 s{sWAVE}, 0\ns_cbranch_scc1 L_pd{uid}\ns_mov_b32 s{sSPIN}, {SPIN}\nL_pl{uid}:")
    if wide:
        P.raw(f"buffer_load_dwordx4 v[252:255], v2, s[4:7], s{sB} offen sc1\ns_waitcnt vmcnt(0)\nv_min_u32 v252, v252, v253\nv_min3_u32 v252, v252, v254, v255")
    else:
        P.raw(f"buffer_load_dword v252, v{vPOLL}, s[4:7], s{sB} offen sc1\ns_waitcnt vmcnt(0)")
    P.raw(f"v_cmp_eq_u32 vcc, 0, v252\ns_nop 1\ns_cbranch_vccz L_pd{uid}")
    P.raw(f"s_sub_u32 s{sSPIN}, s{sSPIN}, 1\ns_cmp_lg_u32 s{sSPIN}, 0\ns_cbranch_scc1 L_pl{uid}\nL_pd{uid}:")
    P.e("s_barrier")
    if label:
        P.e(label)
    stamp(P, "p" + uid)


def x_phase_loads(sc, P, xbuf, stbuf, VST, nt1):
    P.e(f"s_mul_i32 s{sX0}, s{sMT0}, 20480\ns_add_u32 s{sX0}, s{sX0}, s{sLAY}\ns_add_u32 s{sX0}, s{sX0}, {xbuf}\ns_add_u32 s{sX1}, s{sX0}, 20480")
    P.e(f"s_lshl_b32 s{sC}, s{sMT0}, 10\ns_add_u32 s{sC}, s{sC}, s{sLAY}\ns_add_u32 s{sC}, s{sC}, {stbuf}")
    Sched.x_ctx = None
    for k0 in range(0, 20, 2):
        for m in range(2):
            for kb in (k0, k0 + 1):
                sc.load(A((m * 20 + kb) * 4, 4), 2, sX0 + m, kb * 1024, f"X{k0}", k0 * nt1 - 100 + m + (kb - k0) * 0.1)
    for m in range(2):
        for j in range(2):
            sc.load(V(VST + 4 * m + 2 * j, 2), vSTL, sC, m * 1024 + j * 128, "st", 8 * nt1 - 101, w=2)


vPF, vDUM = 248, 249


def touch(sc, sbase, kb, step, prio=-1000, dstep=2):
    n = kb // 2
    starts = list(range(0, n - 63, 64))
    if starts[-1] + 64 < n:
        starts.append(n - 64)
    for k, st in enumerate(starts):
        def fn(st=st):
            return I(f"s_add_i32 s{sD2+1}, s{sbase}, {st*2048 - 15360}") + I(f"buffer_load_dword v{vDUM}, v{vPF}, s[4:7], s{sD2+1} offen", "pf")
        sc.vq.append(Op(fn, "pf", prio + k, None, step + k * dstep))


def phi4(xs, rs, cs, ts, outs):
    L = [f"v_mul_f32 v{t}, v{x}, v{c}" for x, c, t in zip(xs, cs, ts)]
    L += [f"v_fma_f32 v{o}, v{x}, v{r}, s{sEPS}" for x, r, o in zip(xs, rs, outs)]
    L += [f"v_exp_f32 v{t}, v{t} clamp" for t in ts]
    L += [f"v_max_f32 v{o}, s{sEPS}, v{o}" for o in outs]
    L += [f"v_add_f32 v{o}, v{o}, v{t}" for o, t in zip(outs, ts)]
    return L


PAIRS = [(0, 2), (0, 3), (1, 2), (1, 3), (1, 4), (2, 3), (2, 4), (0, None), (1, None), (2, None)]


def red_mask(i, j):
    def valid(g, nn):
        kk = 4 * i + g
        if kk >= 10:
            return False
        if j is None:
            return nn == 0
        cv = 16 * j + nn - 40
        return 0 <= cv < 40 and cv // 20 == kk // 5
    return lanemask(valid)


def phase1(P, ch, first=False):
    sc = Sched(P, "p1")
    ACC, ACQ, VST, VRS, VSD, VC, VEXT, RST, CT, T, PF, QO = PV, PV + 40, PV + 64, PV + 72, PV + 74, PV + 76, PV + 78, PV + 86, PV + 94, PV + 102, PV + 126, PV + 146
    GD = ACC
    x_phase_loads(sc, P, XA, STA, VST, 5)
    if first:
        for c in range(8):
            ch["p1"][c].event = None
            sc.dma(ch["p1"][c], lambda i, c=c: 20 * c - 100 - CFG["w0"] + i * 1e-3)
        P.e(f"s_mul_i32 s{sD1}, s{sMT}, 20480\ns_mul_i32 s{sB}, s{sCG8}, 2560\ns_add_u32 s{sD1}, s{sD1}, s{sB}\ns_add_u32 s{sD1}, s{sD1}, {XA}")
        sc.load(V(XR, 4), 2, sD1, 0, "res", 130)
        sc.load(V(XR + 4, 4), 2, sD1, 1024, "res", 131)
        sc.load(V(XR + 8, 2), vHALF, sD1, 2048, "res", 132, w=2)
        if CFG["t0"]:
            touch(sc, sW1, 168, 0, -2000)
            P.e(f"s_lshl_b32 s{sB}, s{sCG8}, 2\ns_add_u32 s{sB}, s{sB}, s{sWAVE}\ns_mul_i32 s{sB}, s{sB}, 5120\nv_min_u32 v250, 39, v1\nv_lshl_add_u32 v250, v250, 7, s{sB}")
            P.e(f"s_mul_i32 s{sD2}, s{sRB}, {8*20480}\ns_add_u32 s{sD2}, s{sD2}, {XA}")
            sc.vq.append(Op(lambda: I(f"buffer_load_dword v{vDUM}, v250, s[4:7], s{sD2} offen sc1", "pf"), "pf", -1999.5))
        P.e(f"s_lshl_b32 s{sA}, s{sFA}, 2\ns_add_u32 s{sA}, s{sA}, {F0}\ns_and_b32 s{sFL}, s{sFG}, {(CFG['rep']-1)*1024}\ns_add_u32 s{sFL}, s{sFL}, {F0}")
        P.e(f"v_cmp_gt_u32 vcc, {CFG['rep']}, v0\nv_mov_b32 v251, {OOB}\nv_cndmask_b32 v251, v251, v{vFG}, vcc")
        start_wait(P)
        stamp(P, "p1")
        sc.burst(CFG["b0"])
        stamp(P, "p0", True, 6)
    else:
        poll(P, f"s_lshl_b32 s{sB}, s{sFA}, 7\ns_add_u32 s{sB}, s{sB}, {F0 + LB}", "1")
        sc.burst(2 * CFG["b1"])
    sc.dma(ch["p1"][8], 120)
    if CFG["t2"]:
        touch(sc, sW2, 128, max(CFG["t2"], 105))
    if CFG["t3"]:
        touch(sc, sW3, 294, max(CFG["t3"], 105))
    sc.dma(ch["p3"][0], 1000, step=105 if first else 0)
    for c in range(5):
        sc.dma(ch["p2"][c], 500 + c, step=105 if first else 0)
    steps = []
    for t0, nt in ((0, 5), (5, 3)):
        for kb in range(21):
            for t in range(t0, t0 + nt):
                def mf(w, kb=kb, t=t):
                    L = []
                    for m in range(2):
                        x = A((m * 20 + kb) * 4, 4) if kb < 20 else V(VEXT + 4 * m, 4)
                        d = V(ACC + (m * 5 + t) * 4, 4) if t < 5 else V(ACQ + (m * 3 + t - 5) * 4, 4)
                        cc = "0" if kb == 0 else d
                        L.append(f"{MF} {d}, {x}, {w}, {cc}" if t < 5 else f"{MF} {d}, {w}, {x}, {cc}")
                    return L
                st = dict(fr=divmod(len(steps), 20), mf=mf)
                if t == 0 and kb % 2 == 0 and kb < 20:
                    st["xw"] = [f"X{kb}"]
                if t == 0 and kb == 20:
                    st["aw"] = "ext"
                steps.append(st)
    if first:
        sc.alu([Ins(f"buffer_store_dword v{vONE}, v251, s[4:7], s{sA} offen sc1", "fl")], step=CFG["r0"])
    sc.alu([Wait("vm", "st")], step=52)
    for m in range(2):
        sc.alu(stats_finish(VST, m, VRS + m, VSD + m, VEXT + 4 * m, T) + [f"v_mul_f32 v{VC+m}, {f32(LOG2E)}, v{VRS+m}"])
    sc.alu([Ins(f"ds_write_b32 v{vBW}, v{VRS+m} offset:{m*64}", "bw") for m in range(2)], event="p1:3")
    if first:
        sc.alu([Ins(f"buffer_load_dwordx4 v[252:255], v2, s[4:7], s{sFL} offen sc1", "fp")], step=84)
    sc.mark("ext")
    sc.alu([Wait("lgkm", "bw")], step=88)
    sc.alu([Ins(f"ds_read_b128 {V(RST+4*m, 4)}, v{vBR} offset:{m*64}", "br") for m in range(2)])
    sc.alu([Wait("lgkm", "br")], step=94)
    sc.alu([f"v_mul_f32 v{CT+k}, {f32(LOG2E)}, v{RST+k}" for k in range(8)])
    if first:
        sc.alu(check_items("0", None), step=98)
        sc.mark("w2")
        steps[104]["aw"] = "w2"
    head = True
    for t in range(5):
        for m in range(2):
            x = [ACC + (m * 5 + t) * 4 + r for r in range(4)]
            rs = [RST + 4 * m + r for r in range(4)]
            cs = [CT + 4 * m + r for r in range(4)]
            ts = [T + 4 * m + r for r in range(4)]
            L = []
            if t < 2:
                L += phi4(x, rs, cs, ts, x)
            elif t == 2:
                o = [T + 8 + 4 * m + r for r in range(4)]
                L += phi4(x, rs, cs, ts, o)
                L += [f"v_mul_f32 v{a}, v{a}, v{r}" for a, r in zip(x, rs)]
                L += [f"v_cndmask_b32 v{a}, v{a}, v{b}, s[{sM8}:{sM8+1}]" for a, b in zip(x, o)]
            else:
                L += [f"v_mul_f32 v{a}, v{a}, v{r}" for a, r in zip(x, rs)]
            L += [f"v_cvt_pk_bf16_f32 v{PF+4*t+2*m}, v{x[0]}, v{x[1]}", f"v_cvt_pk_bf16_f32 v{PF+4*t+2*m+1}, v{x[2]}, v{x[3]}"]
            sc.alu(L, step=106 if head else 0)
            head = False
    for n, (i, j) in enumerate(PAIRS):
        b = V(PF + 4 * j, 4) if j is not None else V(ONES, 4)
        sc.alu([f"{MF} {V(GD+4*n, 4)}, {V(PF+4*i, 4)}, {b}, 0"])
    for n0 in range(0, 10, 2):
        grp = []
        for n in (n0, n0 + 1):
            i, j = PAIRS[n]
            grp += I(f"s_mov_b64 exec, s[{sMASK+2*n}:{sMASK+2*n+1}]")
            if j is None:
                grp += I(f"ds_write_b128 v{vRW0}, {V(GD+4*n, 4)} offset:{640 + i*1344 + 320}", "gw")
            else:
                off = 640 + i * 1344 + (16 * j - 40) * 16 - (320 if i == 2 else 0)
                grp += I(f"ds_write_b128 v{vRW1 if i == 1 else vRW0}, {V(GD+4*n, 4)} offset:{off}", "gw")
        grp += I("s_mov_b64 exec, -1")
        sc.alu([grp])
    sc.alu([Wait("lgkm", "gw"), "s_barrier"])
    for q in range(4):
        sc.alu([Ins(f"ds_read_b32 v{T+4*q+w}, v{vRR} offset:{w*3360 + q*1024}", f"rr{q}") for w in range(4)])
    sc.alu([f"s_mul_i32 s{sC}, s{sCG}, 3360\ns_add_u32 s{sC}, s{sC}, s{sLAY}\ns_add_u32 s{sC}, s{sC}, {KVA}"])
    for q in range(4):
        a = T + 4 * q
        sc.alu([Wait("lgkm", f"rr{q}"), f"v_add_f32 v{a}, v{a}, v{a+1}\nv_add_f32 v{a+2}, v{a+2}, v{a+3}\nv_add_f32 v{a}, v{a}, v{a+2}",
                Ins(f"buffer_atomic_add_f32 v{a}, v{vATM if q == 3 else vAT}, s[4:7], s{sC} offen offset:{q*1024}", "at")])
    sc.run(steps, ch["p1"], CFG["g0" if first else "g1"], extra=lambda i: CFG["x1"] if i > 105 else 0)
    sc.drain()
    sc.force("res")
    P.e(f"s_mul_i32 s{sC}, s{sCG}, 1280\ns_add_u32 s{sC}, s{sC}, s{sX0}\ns_add_u32 s{sC}, s{sC}, {PQ - XA}")
    for m in range(2):
        q = QO + 6 * m
        for tq in range(3):
            x = [ACQ + (m * 3 + tq) * 4 + r for r in range(4)]
            P.add(phi4(x, [VRS + m] * 4, [VC + m] * 4, [T + 16 + 4 * (tq % 2) + r for r in range(4)], x))
            P.e(f"v_cvt_pk_bf16_f32 v{q+2*tq}, v{x[0]}, v{x[1]}\nv_cvt_pk_bf16_f32 v{q+2*tq+1}, v{x[2]}, v{x[3]}")
            if tq == 1:
                if m == 1:
                    P.e(f"s_add_u32 s{sC}, s{sC}, 20480")
                P.e(f"buffer_store_dwordx4 {V(q, 4)}, v2, s[4:7], s{sC} offen sc1", tag="out")
        P.e(f"buffer_store_dwordx2 {V(q+4, 2)}, v{vPQT}, s[4:7], s{sC} offen offset:1024 sc1", tag="out")
    P.add(flag_items("at", f"s_lshl_b32 s{sA}, s{sFA}, 2\ns_add_u32 s{sA}, s{sA}, s{sLAY}\ns_add_u32 s{sA}, s{sA}, {F1}", vFG))
    handoff(P, sc, "out", wr_cluster(sFA, F1C), vFC, "1")


def resid_epilogue(P, ACC, T, xbuf, stbuf, final=False):
    P.e(f"s_mul_i32 s{sC}, s{sMT}, 20480\ns_mul_i32 s{sA}, s{sCG8}, 2560\ns_add_u32 s{sC}, s{sC}, s{sA}\ns_add_u32 s{sC}, s{sC}, s{sLAY}\ns_add_u32 s{sC}, s{sC}, {xbuf}")
    P.e(f"s_lshl_b32 s{sB}, s{sMT}, 10\ns_lshl_b32 s{sA}, s{sCG8}, 7\ns_add_u32 s{sB}, s{sB}, s{sA}\ns_add_u32 s{sB}, s{sB}, s{sLAY}\ns_add_u32 s{sB}, s{sB}, {stbuf}")
    P.e(f"v_mov_b32 v{T}, 0\nv_mov_b32 v{T+1}, 0")
    for k0 in (0, 4, 8):
        ks = range(k0, min(k0 + 4, 10))
        for k in ks:
            P.e(f"v_lshlrev_b32 v{T+4+2*(k%4)}, 16, v{XR+k}\nv_and_b32 v{T+5+2*(k%4)}, 0xffff0000, v{XR+k}")
        for k in ks:
            P.e(f"v_pk_add_f32 {V(T+4+2*(k%4), 2)}, {V(T+4+2*(k%4), 2)}, {V(ACC+2*k, 2)}")
        for k in ks:
            P.e(f"v_cvt_pk_bf16_f32 v{XR+k}, v{T+4+2*(k%4)}, v{T+5+2*(k%4)}")
        if final:
            continue
        if k0 < 8:
            P.e(f"buffer_store_dwordx4 {V(XR+k0, 4)}, v2, s[4:7], s{sC} offen offset:{k0*256} sc1", tag="out")
        else:
            P.e(f"buffer_store_dwordx2 {V(XR+8, 2)}, v{vHALF}, s[4:7], s{sC} offen offset:2048 sc1", tag="out")
    if final:
        P.e(f"s_mul_i32 s{sA}, s{sMT}, 20480\ns_mul_i32 s{sB}, s{sCG8}, 160\ns_add_u32 s{sA}, s{sA}, s{sB}")
        P.e(f"buffer_store_dwordx4 {V(XR, 4)}, v{vO16}, s[8:11], s{sA} offen")
        P.e(f"buffer_store_dwordx4 {V(XR+4, 4)}, v{vO16}, s[8:11], s{sA} offen offset:64")
        P.e(f"buffer_store_dwordx2 {V(XR+8, 2)}, v{vO8}, s[8:11], s{sA} offen offset:128")
        return
    for k in range(10):
        P.e(f"v_dot2_f32_bf16 v{T}, v{XR+k}, v{ONES}, v{T}")
        P.e(f"v_dot2_f32_bf16 v{T+1}, v{XR+k}, v{XR+k}, v{T+1}")
    a, b = allreduce_g(T, T + 2), allreduce_g(T + 1, T + 3)
    for x, y in zip(a, b):
        P.e(x)
        P.e(y)
    P.e(f"buffer_store_dwordx2 {V(T, 2)}, v{vSTS}, s[4:7], s{sB} offen sc1", tag="out")


def wr_cluster(sf, F):
    return (f"s_lshr_b32 s{sA}, s{sf}, 4\ns_lshl_b32 s{sA}, s{sA}, 11\ns_and_b32 s{sB}, s{sf}, 15\ns_lshl_b32 s{sB}, s{sB}, 2\n"
            f"s_add_u32 s{sA}, s{sA}, s{sB}\ns_add_u32 s{sA}, s{sA}, s{sLAY}\ns_add_u32 s{sA}, s{sA}, {F}")


def rd_cluster(sf, F):
    return f"s_lshl_b32 s{sB}, s{sf}, 7\ns_add_u32 s{sB}, s{sB}, s{sLAY}\ns_add_u32 s{sB}, s{sB}, {F}"


def phase2(P, ch):
    sc = Sched(P, "p2")
    OR, ACC, DT, T = PV, PV + 80, PV + 100, PV + 132
    for r in range(4):
        P.e(f"v_mov_b32 v{DT+r}, 0")
    for k in range(10):
        P.e(f"ds_write_b128 v{vZF}, {V(DT, 4)} offset:{k*4096}", tag="z")
    P.e(f"s_add_u32 s{sX0}, s{sLAY}, {KVA}")
    P.e(f"s_mul_i32 s{sX1}, s{sMT}, 20480\ns_add_u32 s{sX1}, s{sX1}, s{sLAY}\ns_add_u32 s{sX1}, s{sX1}, {PQ}")
    P.e(rd_cluster(sFB, F1C).replace(f"s{sB}", f"s{sFL}"))
    P.wlg("z")
    poll(P, f"s_add_u32 s{sB}, s{sFG}, s{sLAY}\ns_add_u32 s{sB}, s{sB}, {F1}", "2", wide=True)
    P.e(f"buffer_load_dword v253, v{vPOLL}, s[4:7], s{sFL} offen sc1", tag="fp")
    for rr in range(16):
        if rr:
            P.e(f"s_add_u32 s{sX0}, s{sX0}, 3360")
        P.e(f"buffer_load_dwordx4 {V(OR+4*rr, 4)}, v{vKVL}, s[4:7], s{sX0} offen sc1", tag=f"kv{rr}")
    Sched.x_ctx = None
    for h in range(32):
        sc.load(A(4 * h, 4), vPQW, sX1, (5 * h // 2) * 256, f"pq{h}", h)
    P.add(check_items("2", 0))
    sc.burst(8)
    for rr in range(16):
        P.wvm(f"kv{rr}")
        a = OR + 4 * rr
        P.e(f"v_cvt_pk_bf16_f32 v{a}, v{a}, v{a+1}\nv_cvt_pk_bf16_f32 v{a+1}, v{a+2}, v{a+3}")
        P.e(f"ds_write_b64 v{vKVW}, {V(a, 2)} offset:{rr*2560}", tag="kw")
        if rr % 2:
            sc.burst(1)
    P.wlg("kw")
    P.e("s_barrier")
    stamp(P, "p2")
    for c in range(1, 8):
        sc.dma(ch["p3"][c], 1000 + c)
    steps = []
    nw = 0

    def wstep(n):
        kb, t = divmod(n, 5)

        def mf(w):
            d = V(ACC + 4 * t, 4)
            return [f"{MF} {d}, {w}, {V(OR+4*kb, 4)}, {'0' if kb == 0 else d}"]
        st = dict(fr=divmod(n, 20), mf=mf)
        if t == 0:
            st["aw"] = f"o{(8*kb+7)//5}"
        return st

    for h in range(32):
        d = DT + 8 * (h % 4)
        for j in range(2):
            st = dict(rd=lambda dst, h=h, j=j: f"ds_read_b128 {dst}, v{vE0+j} offset:{h*1280}",
                      mf=lambda w, h=h, j=j, d=d: [f"{MF} {V(d+4*j, 4)}, {w}, {A(4*h, 4)}, {V(CE, 4) if j else '0'}"])
            if j == 0:
                st["xw"] = [f"pq{h}"]
                if h >= 3:
                    st["aw"] = f"o{h-3}"
            steps.append(st)
        L = [f"v_rcp_f32 v{d+5}, v{d+5}"] + [f"v_mul_f32 v{d+i}, v{d+i}, v{d+5}" for i in range(5)]
        n0 = 5 * h
        if h % 2 == 0:
            L += [f"v_cvt_pk_bf16_f32 v{OR+n0//2}, v{d}, v{d+1}", f"v_cvt_pk_bf16_f32 v{OR+n0//2+1}, v{d+2}, v{d+3}"]
        else:
            dp = DT + 8 * ((h - 1) % 4)
            L += [f"v_cvt_pk_bf16_f32 v{OR+n0//2}, v{dp+4}, v{d}", f"v_cvt_pk_bf16_f32 v{OR+n0//2+1}, v{d+1}, v{d+2}",
                  f"v_cvt_pk_bf16_f32 v{OR+n0//2+2}, v{d+3}, v{d+4}"]
        sc.alu(L, step=len(steps) + 1)
        sc.mark(f"o{h}")
        lim = min(100, int(round((h - 1) * 100 / 32)))
        while nw < lim and (8 * (nw // 5) + 7) // 5 <= h - 2:
            steps.append(wstep(nw))
            nw += 1
    while nw < 100:
        steps.append(wstep(nw))
        nw += 1
    sc.run(steps, ch["p2"], 2, extra=CFG["x2"], nobar=(0, 1), wevery=2)
    sc.drain()
    resid_epilogue(P, ACC, T, XB, STB)
    handoff(P, sc, "out", wr_cluster(sFB, F2), vFC, "2")


def phase3(P, ch):
    sc = Sched(P, "p3")
    ACC, VST, VRS, VSD, VC, VEXT, T, HO = PV, PV + 112, PV + 120, PV + 122, PV + 124, PV + 126, PV + 134, PV + 142
    x_phase_loads(sc, P, XB, STB, VST, 6)
    poll(P, rd_cluster(sFA, F2), "3")
    sc.burst(2 * CFG["b3"])
    for c in range(8, 15):
        sc.dma(ch["p3"][c], 20 * c - 60)
    for c in range(8):
        sc.dma(ch["p4"][c], 1000 + c)
    if CFG["t4"]:
        touch(sc, sW4, 270, CFG["t4"])
    steps = []
    gend = {}
    for p0, npair in ((0, 3), (3, 1), (4, 2), (6, 1)):
        for kb in range(21):
            for t in range(2 * p0, 2 * (p0 + npair)):
                def mf(w, kb=kb, t=t):
                    L = []
                    for m in range(2):
                        x = A((m * 20 + kb) * 4, 4) if kb < 20 else V(VEXT + 4 * m, 4)
                        d = V(ACC + m * 56 + t * 4, 4)
                        L.append(f"{MF} {d}, {w}, {x}, {'0' if kb == 0 else d}")
                    return L
                st = dict(fr=divmod(len(steps), 20), mf=mf)
                if t == 0 and kb % 2 == 0 and kb < 20:
                    st["xw"] = [f"X{kb}"]
                if t == 0 and kb == 20:
                    st["aw"] = "ext"
                steps.append(st)
        for p in range(p0, p0 + npair):
            gend[p] = len(steps)
    sc.alu([Wait("vm", "st")], step=64)
    for m in range(2):
        sc.alu(stats_finish(VST, m, VRS + m, VSD + m, VEXT + 4 * m, T) + [f"v_mul_f32 v{VC+m}, {f32(-LOG2E)}, v{VRS+m}"])
    sc.mark("ext")
    sc.alu([f"s_lshl_b32 s{sA}, s{sCG}, 11\ns_mul_i32 s{sC}, s{sMT0}, 55296\ns_add_u32 s{sC}, s{sC}, s{sA}\ns_add_u32 s{sC}, s{sC}, s{sLAY}\ns_add_u32 s{sC}, s{sC}, {HB}\ns_add_u32 s{sD1}, s{sC}, 55296",
            f"s_lshl_b32 s{sA}, s{sCG}, 10\ns_sub_u32 s{sD2}, 32768, s{sA}"])

    def epi(p, m):
        g = ACC + m * 56 + 8 * p
        u = g + 4
        L = [f"v_mul_f32 v{g+r}, v{g+r}, v{VC+m}" for r in range(4)]
        L += [f"v_exp_f32 v{g+r}, v{g+r}" for r in range(4)]
        L += [f"v_fma_f32 v{g+r}, v{g+r}, v{VSD+m}, v{VSD+m}" for r in range(4)]
        L += [f"v_rcp_f32 v{g+r}, v{g+r}" for r in range(4)]
        L += [f"v_mul_f32 v{u+r}, v{u+r}, v{g+r}" for r in range(4)]
        o = HO + m * 14 + 2 * p
        L += [f"v_cvt_pk_bf16_f32 v{o}, v{u}, v{u+1}", f"v_cvt_pk_bf16_f32 v{o+1}, v{u+2}, v{u+3}"]
        L = [Ins(x) for x in L]
        so = sD1 if m else sC
        if p % 2 == 1:
            L.append(Ins(f"buffer_store_dwordx4 {V(o-2, 4)}, v2, s[4:7], s{so} offen offset:{1024 if p == 3 else 0} sc1", "outE" if p < 4 else "out"))
        if p == 6:
            L.append(Ins(f"buffer_store_dwordx2 {V(o, 2)}, v{vH3}, s[4:7], s{so} offen sc1", "out"))
        return L

    for p in range(6):
        for m in range(2):
            sc.alu(epi(p, m), step=gend[p] + 1)
        if p == 3:
            sc.alu([f"s_add_u32 s{sC}, s{sC}, s{sD2}\ns_add_u32 s{sD1}, s{sD1}, s{sD2}\ns_lshr_b32 s{sD2}, s{sD2}, 1"])
            fl = flag_items("outE", wr_cluster(sFA, F3), vFC)
            k = [isinstance(x, Wait) for x in fl].index(True)
            sc.alu(fl[:k])
            sc.alu(fl[k:], step=CFG["e3"])
    sc.alu([f"s_add_u32 s{sC}, s{sC}, s{sD2}\ns_add_u32 s{sD1}, s{sD1}, s{sD2}", rd_cluster(sFB, F3).replace(f"s{sB}", f"s{sFL}")])
    sc.run(steps, ch["p3"], CFG["g3"])
    sc.drain()
    P.e(f"buffer_load_dword v253, v{vPOLL}, s[4:7], s{sFL} offen sc1", tag="fp")
    a, b = epi(6, 0), epi(6, 1)
    for k in range(0, 20, 4):
        P.add(a[k:k + 4] + b[k:k + 4])
    P.add(a[20:] + b[20:])
    P.add(flag_items("out", "", vFC, 64)) if not CFG["nowait3"] else None
    stamp(P, "p3")
    return sc


def phase4(P, ch, prev):
    sc = Sched(P, "p4")
    sc.events.add("p3:end")
    for o in prev.vq:
        o.prio = 60 + (o.prio - 1000)
    sc.vq, sc.pend, sc.pend_tag = prev.vq, prev.pend, prev.pend_tag
    ACC, T = PV, PV + 20
    P.e(f"s_mul_i32 s{sX0}, s{sMT}, 55296\ns_add_u32 s{sX0}, s{sX0}, s{sLAY}\ns_add_u32 s{sX0}, s{sX0}, {HB}")
    Sched.x_ctx = None
    for kb in range(54):
        sc.load(A(kb * 4, 4), 2, sX0, kb * 1024, f"X{kb}", kb * 5 - 50, step=kb * 5 - CFG["lead4"], event="late" if kb >= 32 else None)
    P.add(check_items("4e", 0))
    stamp(P, "p4")
    sc.burst(CFG["b4"])
    if CFG["nowait3"]:
        sc.alu(flag_items("out", "", vFC, 64), step=CFG["f4"])
    sc.alu([Ins(f"buffer_load_dword v253, v{vPOLL}, s[4:7], s{sFL} offen offset:64 sc1", "fp")], step=CFG["c4"] - 24)
    sc.alu(check_items("4", 64), step=CFG["c4"])
    sc.mark("late")
    for c in range(8, 14):
        sc.dma(ch["p4"][c], 20 * c - 60)
    for c in range(8):
        sc.dma(ch["p1"][c], 1000 + c, step=CFG["pf4"])
    if CFG["t1"]:
        touch(sc, sW1, 168, CFG["t1"])
    steps = []
    for kb in range(54):
        for t in range(5):
            def mf(w, kb=kb, t=t):
                d = V(ACC + 4 * t, 4)
                return [f"{MF} {d}, {w}, {A(kb*4, 4)}, {'0' if kb == 0 else d}"]
            st = dict(fr=divmod(len(steps), 20), mf=mf)
            if t == 0:
                st["xw"] = [f"X{kb}"]
            steps.append(st)
    sc.run(steps, ch["p4"], CFG["g4"], wevery=2)
    P.e(f"s_cmp_lg_u32 s{sLAY}, 0\ns_cbranch_scc1 L_final")
    resid_epilogue(P, ACC, T, XA + LB, STA + LB)
    handoff(P, sc, "out", wr_cluster(sFB, F0 + LB), vFC, "4")
    stamp_flush(P)
    P.e(f"s_mov_b32 s{sLAY}, {LB}\ns_branch L_layer\nL_final:")
    resid_epilogue(P, ACC, T, 0, 0, final=True)
    P.e("s_waitcnt vmcnt(0)")
    stamp_flush(P)
    P.e("s_endpgm")


def start_wait(Q):
    Q.raw(f"s_cmp_lg_u32 s{sWAVE}, 0\ns_cbranch_scc1 L_pd0\ns_mov_b32 s{sSPIN}, {SPIN}\nL_pl0:")
    Q.raw(f"global_load_dword v252, v{vT}, s[{sDBG}:{sDBG+1}] offset:128 sc1\ns_waitcnt vmcnt(0)\nv_cmp_eq_u32 vcc, 0, v252\ns_nop 1\ns_cbranch_vccz L_pd0")
    Q.raw(f"s_sub_u32 s{sSPIN}, s{sSPIN}, 1\ns_cmp_lg_u32 s{sSPIN}, 0\ns_cbranch_scc1 L_pl0\nL_pd0:")
    Q.e("s_waitcnt vmcnt(0)\ns_barrier")
    stamp(Q, "p0", True, 5)


def gen_main():
    ch = mk_chunks()
    Q = Prog()
    P = Prog()
    Sched.dma_ctx = None
    q0 = 4
    if PROF == "p0":
        _nstamp[0] = 7
    n0 = _nstamp[0]
    phase1(P, ch)
    np1 = len(P.items) + 42
    P.e("L_p2:")
    phase2(P, ch)
    phase4(P, ch, phase3(P, ch))
    order = [x for x in Sched.log if x[0][0] == "1" and x[0] != "1_8"]
    assert len(order) == 40
    P.items = [Ins(".p2align 6"), Ins("L_layer:")] + [Virtual("W" + x[0]) for x in order] + P.items
    Q.e("L_join:")
    stamp(Q, "p0", True, q0)
    Q.e(f"s_mov_b32 s8, s44\ns_and_b32 s9, s45, 0xffff\ns_mov_b32 s10, {XSZ}\ns_mov_b64 s[{sDBG}:{sDBG+1}], s[46:47]")
    Q.e(f"s_and_b32 s{sA}, s2, 7\ns_lshr_b32 s{sB}, s2, 3\ns_and_b32 s{sC}, s{sB}, 3\ns_lshr_b32 s{sCG8}, s{sB}, 2")
    Q.e(f"s_lshr_b32 s{sRB}, s{sA}, 1\ns_lshl_b32 s{sRB}, s{sRB}, 2\ns_add_u32 s{sRB}, s{sRB}, s{sC}")
    Q.e(f"s_and_b32 s{sCG}, s{sA}, 1\ns_lshl_b32 s{sCG}, s{sCG}, 3\ns_add_u32 s{sCG}, s{sCG}, s{sCG8}")
    Q.e(f"s_mul_i32 s{sW5}, s{sWAVE}, 5120\ns_mul_i32 s{sW1}, s{sCG}, {168*1024}\ns_add_u32 s{sW1}, s{sW1}, s{sW5}\ns_add_u32 s{sW1}, s{sW1}, {WF1}")
    Q.e(f"s_lshl_b32 s{sA}, s{sA}, 2\ns_add_u32 s{sA}, s{sA}, s{sC}")
    Q.e(f"s_lshl_b32 s{sMT}, s{sA}, 2\ns_add_u32 s{sMT}, s{sMT}, s{sWAVE}")
    Q.e(f"s_lshl_b32 s{sFB}, s{sA}, 3\ns_add_u32 s{sFB}, s{sFB}, s{sCG8}")
    Q.e(f"s_lshl_b32 s{sFA}, s{sRB}, 4\ns_add_u32 s{sFA}, s{sFA}, s{sCG}")
    Q.e(f"s_lshl_b32 s{sMT0}, s{sRB}, 3\ns_lshl_b32 s{sB}, s{sWAVE}, 1\ns_add_u32 s{sMT0}, s{sMT0}, s{sB}")
    Q.e(f"s_and_b32 s{sFG}, s2, 15\ns_lshl_b32 s{sFG}, s{sFG}, 10\ns_mov_b32 s{sEPS}, {f32(1e-6)}\ns_mov_b32 s{sLAY}, 0")
    for r, base, n, cg in ((sW2, WF2, 100, sCG8), (sW3, WF3, 294, sCG), (sW4, WF4, 270, sCG8)):
        Q.e(f"s_mul_i32 s{r}, s{cg}, {n*1024}\ns_add_u32 s{r}, s{r}, {base}\ns_add_u32 s{r}, s{r}, s{sW5}")
    Q.e("v_add_u32 v3, 0x10000, v2\nv_add_u32 v4, 0x20000, v2")
    Q.e(f"s_lshl_b32 s{sA}, s{sC}, 2\ns_add_u32 s{sA}, s{sA}, s{sWAVE}\ns_lshl_b32 s{sA}, s{sA}, 13\ns_add_u32 s{sA}, s{sA}, 15360\ns_sub_u32 s{sA}, s{sA}, s{sW5}\nv_lshl_add_u32 v{vPF}, v1, 7, s{sA}")
    Q.e(f"v_mov_b32 v{vT}, {OOB}")
    Q.e(f"v_lshlrev_b32 v{vSTL}, 8, v5\nv_lshl_add_u32 v{vSTL}, v6, 3, v{vSTL}")
    Q.e(f"v_lshrrev_b32 v{vHALF}, 1, v5\nv_lshlrev_b32 v{vHALF}, 8, v{vHALF}\nv_lshl_add_u32 v{vHALF}, v6, 4, v{vHALF}")
    Q.e(f"v_and_b32 v{vPQT}, 1, v5\nv_lshl_add_u32 v{vHALF}, v{vPQT}, 3, v{vHALF}")
    Q.e(f"v_cmp_gt_u32 vcc, 32, v1\nv_cndmask_b32 v{vPQT}, v{vT}, v{vHALF}, vcc")
    Q.e(f"v_cmp_gt_u32 vcc, 16, v1\nv_lshlrev_b32 v{vSTS}, 3, v6\nv_cndmask_b32 v{vSTS}, v{vT}, v{vSTS}, vcc")
    Q.e("v_cmp_gt_u32 vcc, 16, v0")
    Q.e(f"v_lshlrev_b32 v{vFC}, 7, v1\nv_cndmask_b32 v{vFC}, v{vT}, v{vFC}, vcc\nv_lshlrev_b32 v{vFG}, 10, v1\nv_cndmask_b32 v{vFG}, v{vT}, v{vFG}, vcc")
    Q.e(f"v_lshlrev_b32 v{vPOLL}, 2, v6\nv_mov_b32 v{vONE}, 1")
    Q.e(f"v_cmp_gt_u32 vcc, 48, v1\nv_cndmask_b32 v{vPQW}, v{vT}, v2, vcc")
    Q.e(f"s_cmp_lt_u32 s{sCG}, 12\ns_cselect_b32 s{sB}, 0, {OOB}\nv_add_u32 v{vH3}, s{sB}, v{vHALF}")
    Q.e(f"v_mul_u32_u24 v{vO8}, 1280, v6\nv_lshl_add_u32 v{vO16}, v5, 4, v{vO8}\nv_lshl_add_u32 v{vO8}, v5, 3, v{vO8}")
    Q.e(f"s_mul_i32 s{sB}, s{sWAVE}, 3360\ns_add_u32 s{sB}, s{sB}, {RED - 640}")
    Q.e(f"v_mul_u32_u24 v{vRW0}, 336, v5\nv_lshl_add_u32 v{vRW0}, v6, 4, v{vRW0}\nv_add_u32 v{vRW0}, s{sB}, v{vRW0}")
    Q.e(f"v_min_u32 v{vRW1}, 1, v5\nv_mul_u32_u24 v{vRW1}, 320, v{vRW1}\nv_sub_u32 v{vRW1}, v{vRW0}, v{vRW1}")
    Q.e(f"v_lshlrev_b32 v{vAT}, 2, v0\nv_add_u32 v{vRR}, {RED}, v{vAT}\nv_cmp_gt_u32 vcc, 72, v0\nv_cndmask_b32 v{vATM}, v{vT}, v{vAT}, vcc")
    Q.e(f"s_lshl_b32 s{sB}, s{sWAVE}, 7\ns_add_u32 s{sB}, s{sB}, {BNC}\nv_lshl_add_u32 v{vBW}, v6, 2, s{sB}\nv_lshl_add_u32 v{vBR}, v5, 4, s{sB}")
    mk = lanemask(lambda g, i: i < 8)
    Q.e(f"s_mov_b32 s{sM8}, 0x{mk & 0xffffffff:08x}\ns_mov_b32 s{sM8+1}, 0x{mk >> 32:08x}")
    for n, (i, j) in enumerate(PAIRS):
        mk = red_mask(i, j)
        Q.e(f"s_mov_b32 s{sMASK+2*n}, 0x{mk & 0xffffffff:08x}\ns_mov_b32 s{sMASK+2*n+1}, 0x{mk >> 32:08x}")
    a, b, c, d, e = PV, PV + 1, PV + 2, PV + 3, PV + 4
    Q.e(f"s_lshr_b32 s{sA}, s{sWAVE}, 1\ns_and_b32 s{sB}, s{sWAVE}, 1\ns_lshl_b32 s{sB}, s{sB}, 6\nv_add_u32 v{a}, s{sB}, v1")
    Q.e(f"v_mul_u32_u24 v{b}, 3121, v{a}\nv_lshrrev_b32 v{b}, 16, v{b}\nv_mul_u32_u24 v{c}, 21, v{b}\nv_sub_u32 v{c}, v{a}, v{c}")
    Q.e(f"s_mul_i32 s{sB}, s{sA}, 1680\nv_lshl_add_u32 v{vKVL}, v{a}, 4, s{sB}")
    Q.e(f"v_add_u32 v{b}, s{sA}, v{b}\nv_lshrrev_b32 v{d}, 1, v{b}\nv_and_b32 v{b}, 1, v{b}")
    Q.e(f"v_lshlrev_b32 v{e}, 8, v{d}\nv_lshlrev_b32 v{d}, 7, v{d}\nv_add_u32 v{d}, 512, v{d}\nv_cmp_gt_u32 vcc, 16, v{c}\nv_cndmask_b32 v{d}, v{d}, v{e}, vcc")
    Q.e(f"v_lshl_add_u32 v{d}, v{c}, 4, v{d}\nv_lshl_add_u32 v{d}, v{b}, 3, v{d}")
    Q.e(f"v_cmp_gt_u32 vcc, 105, v{a}\nv_mov_b32 v{e}, 1152\nv_cndmask_b32 v{d}, v{e}, v{d}, vcc\nv_cndmask_b32 v{vKVL}, v{vT}, v{vKVL}, vcc")
    Q.e(f"s_mul_i32 s{sB}, s{sA}, 1280\ns_add_u32 s{sB}, s{sB}, {KVT}\nv_add_u32 v{vKVW}, s{sB}, v{d}")
    Q.e(f"v_lshlrev_b32 v{vZF}, 4, v0\nv_add_u32 v{vZF}, {KVT}, v{vZF}")
    Q.e(f"v_and_b32 v{c}, 7, v6\nv_lshlrev_b32 v{c}, 4, v{c}\nv_add_u32 v{c}, 1152, v{c}")
    Q.e(f"v_and_b32 v{b}, 3, v6\nv_lshrrev_b32 v{d}, 2, v6\nv_cmp_eq_u32 vcc, 0, v{b}\nv_cndmask_b32 v{b}, 4, v{d}, vcc")
    Q.e(f"v_lshlrev_b32 v{b}, 4, v{b}\nv_lshl_add_u32 v{b}, v5, 7, v{b}\nv_add_u32 v{b}, 768, v{b}")
    Q.e(f"v_cmp_eq_u32 vcc, 3, v5\nv_cndmask_b32 v{b}, v{b}, v{c}, vcc\nv_add_u32 v{vE1}, {KVT}, v{b}")
    Q.e(f"v_cndmask_b32 v{b}, v2, v{c}, vcc\nv_add_u32 v{vE0}, {KVT}, v{b}")
    Q.e(f"v_mov_b32 v{CE}, 0\nv_mov_b32 v{CE+1}, s{sEPS}\nv_mov_b32 v{CE+2}, 0\nv_mov_b32 v{CE+3}, 0")
    for r in range(4):
        Q.e(f"v_mov_b32 v{ONES+r}, 0x3f803f80")
    Q.e(f"v_mov_b32 v{vT}, 0")
    Sched.dma_ctx = None
    n1 = _nstamp[0]
    _nstamp[0] = n0
    phase1(Q, ch, True)
    _nstamp[0] = n1
    tail = []
    for R, end in ((Q, len(Q.items)), (P, np1)):
        k = max(j for j in range(end) if isinstance(R.items[j], Wait) and R.items[j].tag == "out")
        tail.append([getattr(x, "text", None) or str(type(x)) for x in R.items[k + 1:end]])
    assert tail[0] == tail[1], tail
    Q.e("s_branch L_p2")
    return Q, P


K0ST = " sc1"
sDBG = 18


def k0_prologue(P):
    P.e("s_cmp_ge_u32 s2, 256\ns_cbranch_scc1 L_exit")
    stamp(P)
    stamp(P, "p0", True, 0)
    P.e("s_load_dwordx2 s[4:5], s[0:1], 72", tag="ka")
    P.e("v_lshrrev_b32 v7, 6, v0\nv_and_b32 v1, 63, v0\nv_readfirstlane_b32 s12, v7\nv_lshlrev_b32 v2, 4, v1\nv_lshrrev_b32 v5, 4, v1\nv_and_b32 v6, 15, v1")
    P.e(f"s_mov_b32 s6, {WS_USED}\ns_mov_b32 s7, 0x20000")
    if CFG.get("cpf"):
        P.e(f"s_getpc_b64 s[40:41]\nL_pc:\ns_add_u32 s40, s40, L_join-L_pc\ns_addc_u32 s41, s41, 0")
        P.e(f"s_lshr_b32 s42, s2, 3\ns_lshl_b32 s42, s42, 12\ns_min_u32 s42, s42, L_exit-L_join-4096\nv_lshl_add_u32 v90, v0, 4, s42")
        P.e("global_load_dwordx4 v[92:95], v90, s[40:41]")


K0_LDS = 40 * 1024
NJ1, NJ3, NJB, NJC = 64, 128, 74, 64


def gen_k0():
    texts = []
    mx = {"v": 0, "s": 0}
    P = Prog()
    k0_prologue(P)
    P.e("s_load_dwordx4 s[52:55], s[0:1], 0", tag="ka")
    P.e("s_load_dwordx2 s[56:57], s[0:1], 16", tag="ka")
    P.e("s_load_dwordx4 s[60:63], s[0:1], 32", tag="ka")
    P.e("s_load_dwordx2 s[58:59], s[0:1], 48", tag="ka")
    P.e("s_load_dwordx4 s[44:47], s[0:1], 56", tag="ka")
    P.e("s_mov_b32 s11, 0x20000")
    P.e("v_lshrrev_b32 v7, 2, v6\nv_and_b32 v8, 3, v6")
    P.e("v_and_b32 v9, 1, v5\nv_lshl_add_u32 v9, v9, 2, v7\nv_lshlrev_b32 v9, 1, v9")
    P.e("v_lshl_add_u32 v10, v5, 3, v7\nv_lshlrev_b32 v10, 8, v10")
    P.e("s_lshr_b32 s17, s12, 1\ns_lshl_b32 s17, s17, 3\nv_lshl_add_u32 v11, v5, 1, s17\nv_xor_b32 v11, v11, v6")
    P.wlg("ka")
    stamp(P, "p0", True, 1)
    P.e("s_and_b32 s5, s5, 0xffff")
    P.e("s_cmp_lt_u32 s2, 64\ns_cbranch_scc1 L_k0_A\ns_cmp_lt_u32 s2, 128\ns_cbranch_scc1 L_k0_C")
    texts.append(P)

    P = Prog()
    P.e("L_k0_A:")
    P.e(f"s_cmp_lt_u32 s2, {NJ1}\ns_cbranch_scc0 L_k0_A3")
    P.e("s_lshr_b32 s14, s2, 2\ns_and_b32 s15, s2, 3")
    P.e(f"s_mov_b32 s8, s54\ns_and_b32 s9, s55, 0xffff\ns_mov_b32 s10, {640*1920*2}\ns_mov_b32 s20, 3840")
    P.e("v_min_u32 v12, 14, v11\nv_mul_u32_u24 v13, 52, v12\nv_lshrrev_b32 v13, 8, v13")
    P.e("v_mul_u32_u24 v13, 1200, v13\nv_lshl_add_u32 v12, v12, 4, v13")
    P.e("s_mul_i32 s21, s14, 80")
    P.e("s_lshl_b32 s22, s12, 5\ns_add_u32 s22, s22, 80\ns_mov_b32 s23, 8\ns_mov_b32 s24, 3")
    P.e("s_mov_b32 s25, 208\ns_mov_b32 s26, 8\ns_mov_b32 s27, 3")
    P.e("s_cmp_eq_u32 s12, 1\ns_cselect_b32 s25, 0, s25\ns_cselect_b32 s26, 16, s26")
    P.e("s_cmp_eq_u32 s12, 2\ns_cselect_b32 s25, 8, s25\ns_cselect_b32 s26, 16, s26")
    P.e("s_cmp_eq_u32 s12, 3\ns_cselect_b32 s25, 64, s25\ns_cselect_b32 s27, 1, s27")
    P.e(f"s_mul_i32 s28, s14, {21*8*1024}\ns_add_u32 s28, s28, {WF1}\ns_lshl_b32 s17, s12, 10\ns_add_u32 s28, s28, s17")
    P.e(f"s_cmp_eq_u32 s12, 0\ns_mov_b32 s17, {104*1024}\ns_mov_b32 s36, 3072\ns_cselect_b32 s17, 4096, s17\ns_cselect_b32 s36, 5120, s36\ns_add_u32 s29, s28, s17\ns_mov_b32 s30, 5120")
    P.e("s_branch L_k0_Ac")
    P.e("L_k0_A3:")
    P.e(f"s_sub_u32 s16, s2, 128\ns_and_b32 s18, s16, 1\ns_lshr_b32 s15, s16, 1\ns_and_b32 s15, s15, 3\ns_lshr_b32 s14, s16, 3")
    P.e("s_cmp_eq_u32 s18, 0\ns_cselect_b32 s8, s60, s62\ns_cselect_b32 s9, s61, s63\ns_and_b32 s9, s9, 0xffff")
    P.e(f"s_mov_b32 s10, {640*1728*2}\ns_mov_b32 s20, 3456")
    P.e("s_cmp_lt_u32 s14, 12\ns_cselect_b32 s17, 13, 11")
    P.e("v_min_u32 v12, s17, v11\nv_lshlrev_b32 v12, 4, v12")
    P.e("s_mul_i32 s21, s14, 224\ns_mul_i32 s17, s14, 192\ns_add_u32 s17, s17, 384\ns_min_u32 s21, s21, s17")
    P.e("s_lshr_b32 s22, s12, 1\ns_lshl_b32 s22, s22, 6\ns_and_b32 s17, s12, 1\ns_lshl_b32 s17, s17, 3\ns_add_u32 s22, s22, s17")
    P.e("s_mov_b32 s23, 16\ns_mov_b32 s24, 3\ns_mov_b32 s27, 3")
    P.e("s_add_u32 s25, s17, 128\ns_cmp_lt_u32 s12, 2\ns_cselect_b32 s25, s25, 192\ns_cselect_b32 s26, 16, 8")
    P.e(f"s_mul_i32 s28, s14, {21*14*1024}\ns_add_u32 s28, s28, {WF3}\ns_lshl_b32 s17, s18, 10\ns_add_u32 s28, s28, s17")
    P.e(f"s_cmp_eq_u32 s12, 1\ns_mov_b32 s17, {252*1024}\ns_cselect_b32 s17, {170*1024}, s17\ns_cmp_eq_u32 s12, 0\ns_cselect_b32 s17, {168*1024}, s17\ns_cmp_lt_u32 s12, 2\ns_mov_b32 s36, 2048\ns_cselect_b32 s36, 4096, s36\ns_add_u32 s29, s28, s17")
    P.e(f"s_lshl_b32 s17, s12, 11\ns_cmp_eq_u32 s12, 3\ns_cselect_b32 s17, {126*1024}, s17\ns_mov_b32 s30, 6144\ns_cselect_b32 s30, 2048, s30\ns_add_u32 s28, s28, s17")
    P.e("L_k0_Ac:")
    P.e("s_lshl_b32 s17, s12, 2\nv_add_u32 v13, s17, v5\nv_mul_lo_u32 v13, v13, s20\nv_add_u32 v12, v12, v13")
    P.e("s_mul_i32 s31, s15, 160\ns_mul_i32 s31, s31, s20\ns_add_u32 s31, s31, s21\ns_lshl_b32 s32, s20, 4")
    P.e("s_lshl_b32 s33, s12, 10")
    for k in range(10):
        P.e(f"s_add_u32 m0, s33, {k*4096}")
        if k:
            P.e("s_add_u32 s31, s31, s32")
        P.e("buffer_load_dwordx4 v12, s[8:11], s31 offen lds", tag="d")
    for tt, (sa, sb, sm) in enumerate(((22, 23, 24), (25, 26, 27))):
        a = 14 + tt
        P.e(f"v_min_u32 v{a}, s{sm}, v8\nv_mul_lo_u32 v{a}, v{a}, s{sb}\nv_add_u32 v{a}, s{sa}, v{a}")
        P.e(f"v_lshrrev_b32 v16, 4, v{a}\nv_xor_b32 v16, v16, v9\nv_and_b32 v{a}, 8, v{a}")
        P.e(f"v_lshl_add_u32 v{a}, v16, 4, v{a}\nv_add_u32 v{a}, v{a}, v10")
    for r in range(4):
        P.e(f"v_mov_b32 v{20+r}, 0x3f803f80")
    P.e("s_mul_i32 s18, s15, 5\ns_mul_i32 s17, s18, s30\ns_add_u32 s34, s28, s17\ns_mul_i32 s17, s18, s36\ns_add_u32 s35, s29, s17")
    P.wvm("d")
    P.e("s_barrier")
    stamp(P, "p0", True, 2)
    for tt in range(2):
        for k in range(5):
            d = 32 + (tt * 5 + k) * 4
            P.e(f"ds_read_b64_tr_b16 {V(d, 2)}, v{14+tt} offset:{k*8192}", tag=f"t{tt}{k}")
            P.e(f"ds_read_b64_tr_b16 {V(d+2, 2)}, v{14+tt} offset:{k*8192+1024}", tag=f"t{tt}{k}")
            if tt == 1 and k == 1:
                P.wlg("t04")
    for tt in range(2):
        for k in range(5):
            d = 32 + (tt * 5 + k) * 4
            P.wlg(f"t{tt}{k}")
            P.e(f"buffer_store_dwordx4 {V(d, 4)}, v2, s[4:7], s{34+tt} offen{K0ST}")
            P.e(f"s_add_u32 s{34+tt}, s{34+tt}, s{36 if tt else 30}")
            c = V(24 + 4 * tt, 4)
            P.e(f"{MF} {c}, {V(20, 4)}, {V(d, 4)}, {'0' if k == 0 else c}")
    P.e("s_lshl_b32 s18, s15, 8\ns_mul_i32 s17, s30, 20\ns_add_u32 s17, s17, s18\ns_add_u32 s28, s28, s17\ns_mul_i32 s17, s36, 20\ns_add_u32 s17, s17, s18\ns_add_u32 s29, s29, s17")
    set_exec(P, 0xffff)
    for tt in range(2):
        c = 24 + 4 * tt
        e = 72 + 4 * tt
        P.e(f"v_cvt_pk_bf16_f32 v{e}, v{c}, v{c}\nv_and_b32 v16, 0xffff0000, v{e}\nv_sub_f32 v17, v{c}, v16")
        P.e(f"v_cvt_pk_bf16_f32 v{e+1}, v17, v17\nv_and_b32 v16, 0xffff0000, v{e+1}\nv_sub_f32 v17, v17, v16")
        P.e(f"v_cvt_pk_bf16_f32 v{e+2}, v17, v{c}\nv_mov_b32 v{e+3}, 0")
        P.e(f"buffer_store_dwordx4 {V(e, 4)}, v2, s[4:7], s{28+tt} offen{K0ST}")
    P.e(f"s_mov_b64 exec, -1\ns_cmp_lt_u32 s2, 64\ns_cbranch_scc1 L_arrive\ns_cmp_ge_u32 s2, {128 + NJB}\ns_cbranch_scc1 L_join")
    texts.append(P)

    P = Prog()
    P.e("L_k0_B:")
    P.e("s_sub_u32 s16, s2, 128")
    P.e("s_cmp_lt_u32 s16, 20\ns_cbranch_scc1 L_k0_B2")
    P.e(f"s_sub_u32 s16, s16, 20\ns_mov_b32 s8, s58\ns_and_b32 s9, s59, 0xffff\ns_mov_b32 s10, {1728*640*2}")
    P.e(f"s_mov_b32 s20, {54*5*1024}\ns_mov_b32 s21, {WF4}")
    P.e("s_lshr_b32 s22, s16, 1\ns_and_b32 s23, s16, 1\ns_lshl_b32 s23, s23, 5\ns_mov_b32 s24, 16")
    P.e("s_sub_u32 s17, s16, 32\ns_cmp_ge_u32 s16, 32\ns_cselect_b32 s22, s17, s22\ns_cselect_b32 s23, 64, s23")
    P.e("s_sub_u32 s17, s16, 48\ns_lshl_b32 s17, s17, 1\ns_cmp_ge_u32 s16, 48\ns_cselect_b32 s22, s17, s22\ns_cselect_b32 s23, 96, s23\ns_cselect_b32 s24, 112, s24")
    P.e("s_mul_i32 s17, s22, 112\ns_mul_i32 s18, s22, 96\ns_add_u32 s18, s18, 192\ns_min_u32 s17, s17, s18\ns_add_u32 s17, s17, s23")
    P.e("s_lshl_b32 s18, s12, 2\ns_add_u32 s17, s17, s18\nv_add_u32 v12, s17, v5\nv_add_u32 v13, s24, v12")
    P.e("s_branch L_k0_Bc")
    P.e("L_k0_B2:")
    P.e(f"s_mov_b32 s8, s56\ns_and_b32 s9, s57, 0xffff\ns_mov_b32 s10, {640*640*2}")
    P.e(f"s_mov_b32 s20, {20*5*1024}\ns_mov_b32 s21, {WF2}")
    P.e("s_lshl_b32 s18, s12, 2\nv_add_u32 v14, s18, v5\nv_and_b32 v15, 7, v14\nv_lshrrev_b32 v14, 3, v14")
    P.e("s_lshl_b32 s17, s16, 3\nv_add_u32 v15, s17, v15\nv_mul_u32_u24 v16, 205, v15\nv_lshrrev_b32 v16, 10, v16")
    P.e("v_mul_u32_u24 v17, 5, v16\nv_sub_u32 v17, v15, v17\nv_mul_u32_u24 v16, 20, v16")
    P.e("v_cmp_gt_u32 vcc, 4, v17")
    for k in range(2):
        if k:
            P.e("v_add_u32 v14, 2, v14")
        P.e(f"v_lshl_add_u32 v18, v14, 2, v17\nv_add_u32 v19, 16, v14\nv_cndmask_b32 v18, v19, v18, vcc\nv_add_u32 v{12+k}, v16, v18")
    P.e("L_k0_Bc:")
    for k in range(2):
        P.e(f"v_mul_u32_u24 v{12+k}, 1280, v{12+k}\nv_lshl_add_u32 v{12+k}, v11, 4, v{12+k}")
    P.e("s_lshl_b32 s33, s12, 10")
    for pn in range(5):
        for k in range(2):
            P.e(f"s_add_u32 m0, s33, {40960 + pn*8192 + k*4096}\ns_mov_b32 s31, {pn*256}")
            P.e(f"buffer_load_dwordx4 v{12+k}, s[8:11], s31 offen lds", tag="d")
    P.e("s_mul_i32 s22, s12, 320")
    P.e("v_lshlrev_b32 v14, 4, v8\nv_add_u32 v14, s22, v14\nv_lshlrev_b32 v15, 3, v8\nv_add_u32 v15, s22, v15")
    for cq in range(2):
        for t in range(5):
            a = 20 + cq * 5 + t
            k0 = 160 * cq + (64 * (t // 2) + 8 * (t % 2) if t < 4 else 128)
            P.e(f"v_add_u32 v16, {k0}, {'v14' if t < 4 else 'v15'}")
            P.e("v_bfe_u32 v17, v16, 4, 4\nv_xor_b32 v17, v17, v9\nv_lshrrev_b32 v18, 8, v16\nv_and_b32 v16, 8, v16")
            P.e(f"v_lshl_add_u32 v16, v17, 4, v16\nv_lshl_add_u32 v16, v18, 13, v16\nv_add_u32 v{a}, v16, v10")
    P.e("s_lshl_b32 s17, s12, 1\ns_mul_i32 s17, s17, s20\ns_add_u32 s21, s21, s17\ns_mul_i32 s17, s16, 5120\ns_add_u32 s21, s21, s17")
    P.wvm("d")
    P.e("s_barrier")
    stamp(P, "p0", True, 3)
    for n in range(10):
        d = 32 + 4 * n
        P.e(f"ds_read_b64_tr_b16 {V(d, 2)}, v{20+n} offset:40960", tag=f"t{n}")
        P.e(f"ds_read_b64_tr_b16 {V(d+2, 2)}, v{20+n} offset:41984", tag=f"t{n}")
        if n == 6:
            P.wlg("t3")
    for n in range(10):
        d = 32 + 4 * n
        if n == 4:
            P.e("s_add_u32 s17, s21, 4096")
        if n == 5:
            P.e("s_add_u32 s21, s21, s20")
        if n == 9:
            P.e("s_add_u32 s17, s21, 4096")
        P.wlg(f"t{n}")
        t = n % 5
        P.e(f"buffer_store_dwordx4 {V(d, 4)}, v2, s[4:7], {'s21' if t < 4 else 's17'} offen offset:{(t % 4)*1024}{K0ST}")
    P.e("s_branch L_join")
    texts.append(P)

    P = Prog()
    P.e("L_k0_C:")
    P.e("s_sub_u32 s16, s2, 64")
    P.e(f"s_mov_b32 s8, s52\ns_and_b32 s9, s53, 0xffff\ns_mov_b32 s10, {XSZ}")
    P.e("s_lshl_b32 s17, s12, 2\nv_add_u32 v12, s17, v5\nv_xor_b32 v13, v12, v6\nv_mul_u32_u24 v12, 1280, v12\nv_lshl_add_u32 v12, v13, 4, v12")
    P.e("s_mul_i32 s20, s16, 40960\ns_lshl_b32 s33, s12, 10")
    for ml in range(2):
        for pn in range(5):
            P.e(f"s_add_u32 m0, s33, {ml*20480 + pn*4096}\ns_add_u32 s31, s20, {ml*20480 + pn*256}")
            P.e("buffer_load_dwordx4 v12, s[8:11], s31 offen lds", tag="d")
    for r in range(4):
        P.e(f"v_mov_b32 v{20+r}, 0")
    P.e(f"s_and_b32 s17, s16, 31\ns_mul_i32 s17, s17, {ZSZ//32}\ns_lshr_b32 s18, s16, 5\ns_mul_i32 s18, s18, {LB}\ns_add_u32 s17, s17, s18\ns_add_u32 s17, s17, {KVA}")
    P.e(f"v_lshlrev_b32 v14, 4, v0\nbuffer_store_dwordx4 {V(20, 4)}, v14, s[4:7], s17 offen{K0ST}")
    P.e(f"v_cmp_gt_u32 vcc, {(ZSZ//32 - 4096)//16}, v0\nv_mov_b32 v15, 0x40000000\nv_cndmask_b32 v14, v15, v14, vcc\ns_add_u32 s17, s17, 4096")
    P.e(f"buffer_store_dwordx4 {V(20, 4)}, v14, s[4:7], s17 offen{K0ST}")
    P.e("s_lshr_b32 s22, s12, 1\ns_and_b32 s23, s12, 1\ns_mul_i32 s24, s22, 20480\ns_mul_i32 s25, s23, 40")
    P.e("v_add_u32 v14, s25, v5\nv_lshlrev_b32 v15, 8, v6\nv_add_u32 v15, s24, v15")
    for k in range(10):
        P.e(f"v_add_u32 v16, {4*k}, v14\nv_lshrrev_b32 v17, 4, v16\nv_xor_b32 v16, v16, v6\nv_and_b32 v16, 15, v16")
        P.e(f"v_lshl_add_u32 v16, v16, 4, v15\nv_lshl_add_u32 v{72+k}, v17, 12, v16")
    P.e(f"s_add_u32 s26, s20, s24\ns_mul_i32 s17, s23, 10240\ns_add_u32 s26, s26, s17\ns_add_u32 s26, s26, {XA}")
    P.e("v_mov_b32 v24, 0\nv_mov_b32 v25, 0\nv_mov_b32 v26, 0x3f803f80")
    P.wvm("d")
    P.e("s_barrier")
    stamp(P, "p0", True, 2)
    for k in range(10):
        P.e(f"ds_read_b128 {V(32+4*k, 4)}, v{72+k}", tag=f"t{k}")
    for k in range(10):
        if k and k % 4 == 0:
            P.e("s_add_u32 s26, s26, 4096")
        P.wlg(f"t{k}")
        P.e(f"buffer_store_dwordx4 {V(32+4*k, 4)}, v2, s[4:7], s26 offen offset:{(k % 4)*1024}{K0ST}")
        for r in range(4):
            P.e(f"v_dot2_f32_bf16 v24, v{32+4*k+r}, v26, v24")
            P.e(f"v_dot2_f32_bf16 v25, v{32+4*k+r}, v{32+4*k+r}, v25")
    P.add(allreduce_g(24, 27))
    P.add(allreduce_g(25, 28))
    P.e("v_cmp_eq_u32 vcc, 0, v5\nv_cndmask_b32 v24, 0, v24, vcc\nv_cndmask_b32 v25, 0, v25, vcc")
    P.e(f"s_lshl_b32 s17, s16, 1\ns_add_u32 s17, s17, s22\ns_lshl_b32 s17, s17, 10\ns_lshl_b32 s18, s23, 7\ns_add_u32 s17, s17, s18\ns_add_u32 s17, s17, {STA}")
    P.e("v_lshlrev_b32 v14, 8, v5\nv_lshl_add_u32 v14, v6, 3, v14")
    P.e(f"buffer_store_dwordx2 v[24:25], v14, s[4:7], s17 offen{K0ST}")
    P.e("L_arrive:\ns_waitcnt vmcnt(0)\ns_barrier")
    stamp(P, "p0", True, 3)
    P.e("s_cmp_lg_u32 s12, 0\ns_cbranch_scc1 L_join\nv_mov_b32 v20, 0\nv_mov_b32 v21, 1\ns_mov_b64 exec, 1")
    P.e("global_atomic_add v22, v20, v21, s[46:47] sc0\ns_waitcnt vmcnt(0)\nv_readfirstlane_b32 s17, v22\ns_mov_b64 exec, -1")
    P.e("s_cmp_lg_u32 s17, 127\ns_cbranch_scc1 L_join\ns_mov_b64 exec, 1\nglobal_store_dword v20, v21, s[46:47] offset:128 sc1\ns_mov_b64 exec, -1")
    texts.append(P)
    return texts


def build():
    _nstamp[0] = 0
    k0 = gen_k0()
    Q, P = gen_main()
    ns = max(p.max_regs()["s"] for p in k0 + [Q, P]) + 1
    K = "interleave_layers__linear_attn_block__glu_gated_glu__prompt_kernel"
    body = f".globl {K}\n.p2align 8\n.type {K},@function\n{K}:\n" + "".join(p.finish() for p in k0 + [Q, P]) + "L_exit:\n  s_endpgm\n"
    head = "; generated by tools/gen2.py: one persistent launch: weight re-layout, then (qkv, attn-out, gate/up, down) x 2 layers\n"
    return head + f"; @launch grid=(256,1,1) block=(256,1,1) lds={8*SLOT}" + '\n.amdgcn_target "amdgcn-amd-amdhsa--gfx950"\n.text\n' + body + descriptor(K, 256, 256, ns)


if __name__ == "__main__":
    import argparse
    ap = argparse.ArgumentParser()
    ap.add_argument("-o", default="v2.s")
    ap.add_argument("--stamps", action="store_true")
    ap.add_argument("--clk", action="store_true")
    ap.add_argument("--cfg", default="")
    ap.add_argument("--prof", default=None)
    a = ap.parse_args()
    STAMPS = a.stamps or a.prof is not None
    PROF = a.prof
    if PROF and PROF != "p0":
        STAMP_INS = 's_memtime'
    if a.clk:
        STAMP_INS = "s_memtime"
    for kv in a.cfg.split(","):
        if kv:
            k, v = kv.split("=")
            CFG[k] = float(v) if "." in v else int(v)
    open(a.o, "w").write(build())
    print("written", a.o)
```

```python
import sys, struct
from collections import deque
from asmlib import Prog, Ins, Wait, Virtual, V, A, S, descriptor, TRANS
from gen import f32, LOG2E, MF, allreduce_g, stats_finish, lanemask, set_exec

WF1 = 16384
WF2 = WF1 + 16 * 168 * 1024
WF3 = WF2 + 8 * 100 * 1024
WF4 = WF3 + 16 * 294 * 1024
L0 = WF4 + 8 * 270 * 1024 + 4096
XSZ = 2048 * 640 * 2
XA = L0
PQ = XA + XSZ
XB = PQ + XSZ
HB = XB + XSZ
STA = HB + 2048 * 1728 * 2
STB = STA + 128 * 1024
KVA = STB + 128 * 1024
F0 = KVA + 56 * 1024
F1 = F0 + 32768
F1C = F1 + 16384
F2 = F1C + 32768
F3 = F2 + 32768
ZSZ = F3 + 32768 - KVA
LB = F3 + 32768 - L0
STAMP = L0 + 2 * LB
WS_USED = STAMP + 4 * 512 * 256
PROF = None
assert ZSZ == 204800 and L0 % 4096 == 0 and LB % 4096 == 0
STAMPS = False
STAMP_INS = "s_memrealtime"
OOB = 0x40000000
SLOT = 20480
SPIN = 200000
CFG = dict(x3=170, y3=300, m1=7, n1=7, w1=40, h1=0, m3=6, hp=10, ce=263, pe=9, rep=1, r0=48, ldsc=1, w0=2, b0=24, g0=1, cpf=9, g1=2, g3=2, g4=2, b1=6, b3=6, b4=0, la=6, lead4=50, pf4=200, x2=1, x1=1, e3=232, c4=116, nowait3=1, f4=24)

vSTL, vHALF, vPQT, vSTS, vRW0, vRW1, vRR, vAT, vATM, vKVL, vKVW, vE0, vE1, vZF, vPQW, vFC, vFG, vPOLL, vONE, vBW, vBR, vH3, vO16, vO8, vT = range(7, 32)
XR, CE, ONES, PV = 32, 42, 46, 50
WP = 224
sWAVE, sRB, sCG, sMT0, sMT, sCG8, sLAY = 12, 13, 14, 15, 16, 17, 20
sW5, sW1, sW2, sW3, sW4 = 21, 22, 23, 24, 25
sFA, sFB, sFG, sEPS = 26, 27, 28, 29
sX0, sX1, sXT, sDT, sA, sB, sC, sSPIN = 30, 31, 32, 33, 34, 35, 36, 37
sFL, sD1, sD2 = 60, 61, 62
sM8, sMASK = 38, 40
sSTMP = 64
RED = 7 * SLOT
BNC = RED + 13440
KVT = 6 * SLOT


def cost(it):
    if isinstance(it, (Wait, Virtual)):
        return 0
    if isinstance(it, list):
        return sum(cost(x) for x in it)
    t = it.text
    if it.opaque:
        return 0
    if t.startswith("v_mfma"):
        return 12
    if t.startswith(TRANS):
        return 8
    return 4


def I(text, tag=None):
    return [Ins(x.strip(), tag) for x in text.split("\n") if x.strip()]


_nstamp = [0]


def stamp(P, ph=None, fine=False, j=None):
    if STAMPS and (PROF is None and not fine or PROF is not None and PROF == ph):
        if j is None:
            j = _nstamp[0]
            _nstamp[0] += 1
        P.raw(f"{STAMP_INS} s[{sSTMP+2*j}:{sSTMP+2*j+1}]")


def stamp_flush(P):
    if STAMPS:
        P.raw(f"s_cmp_lg_u32 s{sWAVE}, 0\ns_cbranch_scc1 L_nost{len(P.items)}")
        lab = P.items[-1].text.split()[-1]
        P.raw(f"s_cmp_lg_u32 s{sLAY}, 0\ns_cselect_b32 s100, {512*256}, 0\ns_lshl_b32 s101, s2, 8\ns_add_u32 s100, s100, s101\ns_add_u32 s100, s100, {STAMP + 512*256}")
        P.raw(f"v_mov_b32 v{vT}, 0\ns_waitcnt lgkmcnt(0)")
        for j in range(_nstamp[0]):
            P.raw(f"v_mov_b32 v250, s{sSTMP+2*j}\nv_mov_b32 v251, s{sSTMP+2*j+1}\ns_nop 1")
            P.raw(f"buffer_store_dwordx2 v[250:251], v{vT}, s[4:7], s100 offen offset:{8*j}\ns_nop 1")
        P.raw(f"s_waitcnt vmcnt(0)\n{lab}:")


class Chunk:
    def __init__(self, name, sbase, foff, n, slot, event):
        self.name, self.sbase, self.foff, self.n, self.slot, self.event = name, sbase, foff, n, slot, event
        self.q = (n + 3) // 4
        self.tag = "W" + name


class Op:
    def __init__(self, fn, tag, prio, event=None, step=0):
        self.fn, self.tag, self.prio, self.event, self.step = fn, tag, prio, event, step


class Sched:
    dma_ctx = None
    x_ctx = None
    log = []

    def __init__(self, P, name):
        self.P, self.name = P, name
        self.vq, self.aq = [], deque()
        self.events = {None}
        self.marks = set()
        self.now = 0
        self.pend, self.pend_tag, self.rdnext, self.over = [], None, None, 0
        self.lasttr, self.lastw = set(), set()

    def dma(self, ch, prio, step=0):
        for i in range(ch.q):
            def fn(ch=ch, i=i):
                L = []
                Sched.log.append((ch.name, i))
                key = (ch.name, i // 4)
                if Sched.dma_ctx != key:
                    Sched.dma_ctx = key
                    o = (i // 4) * 4096
                    if ch.q == 5:
                        L += I(f"s_add_u32 m0, s{sW5}, {ch.slot*SLOT + o}\ns_add_u32 s{sDT}, s{ch.sbase}, {ch.foff*1024 + o}")
                    else:
                        L += I(f"s_mul_i32 s{sDT}, s{sWAVE}, {ch.q*1024}\ns_add_u32 m0, s{sDT}, {ch.slot*SLOT}\ns_sub_u32 s{sDT}, s{sDT}, s{sW5}")
                        L += I(f"s_add_u32 s{sDT}, s{sDT}, s{ch.sbase}\ns_add_u32 s{sDT}, s{sDT}, {ch.foff*1024}")
                L += I(f"buffer_load_dwordx4 v2, s[4:7], s{sDT} offen offset:{(i % 4)*1024} lds", ch.tag)
                return L
            self.vq.append(Op(fn, ch.tag, prio(i) if callable(prio) else prio + i * 1e-3, ch.event, step))

    def load(self, dst, vaddr, sbase, off, tag, prio, w=4, event=None, step=0):
        def fn():
            L = []
            if off < 4096:
                so = f"s{sbase}"
            else:
                key = (sbase, off >> 12, tag[0])
                if Sched.x_ctx != key:
                    Sched.x_ctx = key
                    L += I(f"s_add_u32 s{sXT}, s{sbase}, {off & ~4095}")
                so = f"s{sXT}"
            return L + I(f"buffer_load_dwordx{w} {dst}, v{vaddr}, s[4:7], {so} offen offset:{off & 4095}{['', ' sc1', ' sc0', ' nt'][CFG['ldsc']]}", tag)
        self.vq.append(Op(fn, tag, prio, event, step))

    def alu(self, items, step=0, event=None):
        for it in items:
            if isinstance(it, str):
                for x in I(it):
                    self.aq.append((x, step, event))
            else:
                self.aq.append((it, step, event))

    def mark(self, name):
        self.aq.append((name, 0, None))

    def start_op(self, op):
        self.vq.remove(op)
        self.pend = op.fn()
        self.pend_tag = op.tag

    def flush_pend(self):
        self.P.add(self.pend)
        self.pend = []

    def emit_op(self, op):
        self.flush_pend()
        self.start_op(op)
        self.flush_pend()

    def next_op(self):
        el = [o for o in self.vq if o.event in self.events and o.step <= self.now]
        return min(el, key=lambda o: o.prio) if el else None

    def burst(self, n):
        self.flush_pend()
        for _ in range(n):
            el = [o for o in self.vq if o.event in self.events and o.prio < 1e5]
            if not el:
                break
            self.emit_op(min(el, key=lambda o: o.prio))

    def force(self, tag):
        if self.pend and self.pend_tag == tag:
            self.flush_pend()
        ops = sorted([o for o in self.vq if o.tag == tag], key=lambda o: o.prio)
        if ops:
            print(f"  [{self.name}] forced {len(ops)} x {tag} at step {self.now}", file=sys.stderr)
        for o in ops:
            assert o.event in self.events, (tag, o.event)
            self.emit_op(o)

    def pop_alu(self, k=0):
        it = self.aq[k][0]
        del self.aq[k]
        if isinstance(it, str):
            self.marks.add(it)
            self.events.add(it)
            return
        if isinstance(it, Wait) and it.cls == "vm":
            self.force(it.tag)
        self.P.add(it)

    def drain_to(self, mark):
        n = 0
        while mark not in self.marks:
            n += not isinstance(self.aq[0][0], (str, Wait))
            self.pop_alu()
        self.over += n

    def drain(self):
        self.flush_pend()
        while self.aq:
            self.pop_alu()

    def ready(self, k):
        return self.aq[k][1] <= self.now and self.aq[k][2] in self.events

    def head_is(self, kind):
        while self.aq and isinstance(self.aq[0][0], str):
            self.pop_alu()
        if not self.aq or not self.ready(0):
            return False
        it = self.aq[0][0]
        if kind == "wait":
            return isinstance(it, Wait)
        return isinstance(it, Ins) and it.kind == "salu"

    def pick(self, slots):
        best = None
        rd, wr = set(), set()
        for k in range(min(len(self.aq), 14)):
            it = self.aq[k][0]
            if not self.ready(k):
                break
            if isinstance(it, str):
                continue
            if isinstance(it, Wait):
                break
            if isinstance(it, list) or it.kind != "valu":
                if k == 0 or (best is None and not rd and not wr):
                    return k
                break
            if not (it.rd & wr or it.wr & wr or it.wr & rd):
                tr = "trans" in it.flags
                if tr and slots >= 2 and not (it.rd & self.lastw):
                    return k
                if not tr and best is None and not (it.rd & self.lasttr):
                    best = k
            rd |= it.rd
            wr |= it.wr
        return best

    def gap(self, scalar_free, slots, allow_v):
        P = self.P
        issued = False
        if allow_v and not self.pend:
            op = self.next_op()
            if op is not None:
                self.start_op(op)
        pre_m0 = False
        if scalar_free:
            if len(self.pend) > 1:
                it = self.pend.pop(0)
                pre_m0 = "m0" in it.wr
                P.add(it)
            elif self.head_is("wait") or self.head_is("salu"):
                self.pop_alu()
                while self.head_is("wait"):
                    self.pop_alu()
        if self.rdnext is not None:
            self.rdnext()
            self.rdnext = None
            slots -= 1
        if allow_v and len(self.pend) == 1 and not pre_m0:
            self.flush_pend()
            slots -= 2
            issued = True
        self.lasttr = set()
        self.lastw = set()
        while slots > 0:
            k = self.pick(slots)
            if k is None:
                break
            it = self.aq[k][0]
            slots -= cost(it) // 4
            if isinstance(it, Ins):
                self.lastw = set(it.wr)
                if "trans" in it.flags:
                    self.lasttr = set(it.wr)
            self.pop_alu(k)
        return issued

    def run(self, steps, chunks, vgap, extra=0, nobar=(), wevery=1):
        P, LA = self.P, CFG["la"]
        seen = set()

        def newchunk(m):
            st = steps[m]
            if "fr" not in st or st["fr"][0] in seen:
                return False
            c = st["fr"][0]
            seen.add(c)
            if c not in nobar:
                self.force(chunks[c].tag)
                P.wvm(chunks[c].tag)
                P.e("s_barrier")
            stamp(P, self.name, True)
            self.events.add(f"{self.name}:{c}")
            return c not in nobar

        def rd(m):
            st = steps[m]
            dst = A(WP + 4 * (m % 8), 4)
            if "fr" in st:
                c, f = st["fr"]
                off = chunks[c].slot * SLOT + f * 1024
                P.e(f"ds_read_b128 {dst}, v{2 + (off >> 16)} offset:{off & 0xffff}", tag=f"R{m}")
            else:
                P.e(st["rd"](dst), tag=f"R{m}")

        def waits(i, upto):
            st = steps[i]
            any_ = False
            if "aw" in st:
                self.drain_to(st["aw"])
            for t in st.get("xw", []):
                self.force(t)
                P.wvm(t)
                any_ = True
            if self.waited < i or any_:
                self.waited = min(upto, n - 1)
                P.wlg(f"R{self.waited}")
                any_ = True
            return any_

        n = len(steps)
        self.now = 0
        self.waited = -1
        for m in range(min(LA, n)):
            newchunk(m)
            rd(m)
        waits(0, 0)
        lastv = -100
        for i, st in enumerate(steps):
            self.now = i
            mfs = st["mf"](A(WP + 4 * (i % 8), 4))
            for k, t in enumerate(mfs):
                P.e(t)
                last = k == len(mfs) - 1
                free, slots = True, 2 + (extra(i) if callable(extra) else extra)
                if k == 0 and i + LA < n and newchunk(i + LA):
                    free, slots = False, slots - 1
                if last and i + 1 < n and waits(i + 1, i + wevery):
                    free = False
                if last and i + LA < n:
                    self.rdnext = lambda m=i + LA: rd(m)
                if self.gap(free, slots, k == 0 and i - lastv >= (vgap(i) if callable(vgap) else vgap)):
                    lastv = i
        self.now = n
        P.e("s_barrier")
        self.events.add(f"{self.name}:end")
        stamp(P, self.name)
        print(f"  [{self.name}] overfill {self.over}, alu left {len(self.aq)}", file=sys.stderr)

    def late(self):
        n = len(self.vq)
        for o in self.vq:
            o.prio = min(o.prio, 9e4)
        self.burst(10 ** 6)
        assert not self.vq
        print(f"  [{self.name}] late ops {n}", file=sys.stderr)


def mk_chunks():
    ch = {}
    s1 = [6, 7, 0, 1, 2, 3, 4, 5, 6]
    e1 = ["p4:9", "p4:10", "p4:11", "p4:12", "p4:13", "p4:end", "p4:end", "p4:8", "p1:2"]
    ch["p1"] = [Chunk(f"1_{c}", sW1, 20 * c, 20 if c < 8 else 8, s1[c], e1[c]) for c in range(9)]
    ch["p2"] = [Chunk(f"2_{c}", sW2, 20 * c, 20, 1 + c, f"p1:{5+c}" if c < 4 else "p1:end") for c in range(5)]
    e3 = ["p1:4", "p2:2", "p2:3", "p2:4"] + ["p2:end"] * 4 + [f"p3:{c-6}" for c in range(8, 15)]
    ch["p3"] = [Chunk(f"3_{c}", sW3, 20 * c, 20 if c < 14 else 14, c % 8, e3[c]) for c in range(15)]
    e4 = [f"p3:{c+9}" for c in range(6)] + ["p3:end"] * 2 + [f"p4:{c-6}" for c in range(8, 14)]
    ch["p4"] = [Chunk(f"4_{c}", sW4, 20 * c, 20 if c < 13 else 10, (15 + c) % 8, e4[c]) for c in range(14)]
    return ch


def flag_items(wtag, wr, stride_reg, off=0):
    return I(wr) + [Wait("vm", wtag)] + I("s_barrier") + I(f"buffer_store_dword v{vONE}, v{stride_reg}, s[4:7], s{sA} offen offset:{off} sc1", "fl")


def handoff(P, sc, wtag, wr, stride_reg, uid, off=0):
    P.add(flag_items(wtag, wr, stride_reg, off))
    stamp(P, "p" + uid)
    sc.late()


def check_items(uid, off):
    R = Prog()
    cmp_ = "v_cmp_eq_u32 vcc, 0, v253"
    if off is None:
        cmp_ = "v_min_u32 v253, v252, v253\nv_min3_u32 v253, v253, v254, v255\n" + cmp_
    ld = (f"buffer_load_dword v253, v{vPOLL}, s[4:7], s{sFL} offen offset:{off} sc1" if off is not None
          else f"buffer_load_dwordx4 v[252:255], v2, s[4:7], s{sFL} offen sc1")
    R.e(f"{cmp_}\ns_nop 1\ns_cbranch_vccz L_ok{uid}")
    R.raw(f"s_mov_b32 s{sSPIN}, {SPIN}\nL_sp{uid}:\n{ld}\ns_waitcnt vmcnt(0)")
    R.raw(f"{cmp_}\ns_nop 1\ns_cbranch_vccz L_ok{uid}")
    R.raw(f"s_sub_u32 s{sSPIN}, s{sSPIN}, 1\ns_cmp_lg_u32 s{sSPIN}, 0\ns_cbranch_scc1 L_sp{uid}\nL_ok{uid}:")
    return [Wait("vm", "fp"), R.items]


def poll(P, rdoff, uid, wide=False, label=None):
    P.e(rdoff)
    P.raw(f"s_cmp_lg_u32 s{sWAVE}, 0\ns_cbranch_scc1 L_pd{uid}\ns_mov_b32 s{sSPIN}, {SPIN}\nL_pl{uid}:")
    if wide:
        P.raw(f"buffer_load_dwordx4 v[252:255], v2, s[4:7], s{sB} offen sc1\ns_waitcnt vmcnt(0)\nv_min_u32 v252, v252, v253\nv_min3_u32 v252, v252, v254, v255")
    else:
        P.raw(f"buffer_load_dword v252, v{vPOLL}, s[4:7], s{sB} offen sc1\ns_waitcnt vmcnt(0)")
    P.raw(f"v_cmp_eq_u32 vcc, 0, v252\ns_nop 1\ns_cbranch_vccz L_pd{uid}")
    P.raw(f"s_sub_u32 s{sSPIN}, s{sSPIN}, 1\ns_cmp_lg_u32 s{sSPIN}, 0\ns_cbranch_scc1 L_pl{uid}\nL_pd{uid}:")
    P.e("s_barrier")
    if label:
        P.e(label)
    stamp(P, "p" + uid)


def x_phase_loads(sc, P, xbuf, stbuf, VST, nt1):
    P.e(f"s_mul_i32 s{sX0}, s{sMT0}, 20480\ns_add_u32 s{sX0}, s{sX0}, s{sLAY}\ns_add_u32 s{sX0}, s{sX0}, {xbuf}\ns_add_u32 s{sX1}, s{sX0}, 20480")
    P.e(f"s_lshl_b32 s{sC}, s{sMT0}, 10\ns_add_u32 s{sC}, s{sC}, s{sLAY}\ns_add_u32 s{sC}, s{sC}, {stbuf}")
    Sched.x_ctx = None
    for k0 in range(0, 20, 2):
        for m in range(2):
            for kb in (k0, k0 + 1):
                sc.load(A((m * 20 + kb) * 4, 4), 2, sX0 + m, kb * 1024, f"X{k0}", k0 * nt1 - 100 + m + (kb - k0) * 0.1)
    for m in range(2):
        for j in range(2):
            sc.load(V(VST + 4 * m + 2 * j, 2), vSTL, sC, m * 1024 + j * 128, "st", 8 * nt1 - 101, w=2)


def phi4(xs, rs, cs, ts, outs):
    L = [f"v_mul_f32 v{t}, v{x}, v{c}" for x, c, t in zip(xs, cs, ts)]
    L += [f"v_fma_f32 v{o}, v{x}, v{r}, s{sEPS}" for x, r, o in zip(xs, rs, outs)]
    L += [f"v_exp_f32 v{t}, v{t} clamp" for t in ts]
    L += [f"v_max_f32 v{o}, s{sEPS}, v{o}" for o in outs]
    L += [f"v_add_f32 v{o}, v{o}, v{t}" for o, t in zip(outs, ts)]
    return L


PAIRS = [(0, 2), (0, 3), (1, 2), (1, 3), (1, 4), (2, 3), (2, 4), (0, None), (1, None), (2, None)]


def red_mask(i, j):
    def valid(g, nn):
        kk = 4 * i + g
        if kk >= 10:
            return False
        if j is None:
            return nn == 0
        cv = 16 * j + nn - 40
        return 0 <= cv < 40 and cv // 20 == kk // 5
    return lanemask(valid)


def phase1(P, ch, first=False):
    sc = Sched(P, "p1")
    ACC, ACQ, VST, VRS, VSD, VC, VEXT, RST, CT, T, PF, QO = PV, PV + 40, PV + 64, PV + 72, PV + 74, PV + 76, PV + 78, PV + 86, PV + 94, PV + 102, PV + 126, PV + 146
    GD = ACC
    x_phase_loads(sc, P, XA, STA, VST, 5)
    if first:
        for c in range(8):
            ch["p1"][c].event = None
            sc.dma(ch["p1"][c], lambda i, c=c: 20 * c - 100 - CFG["w0"] + i * 1e-3)
        P.e(f"s_mul_i32 s{sD1}, s{sMT}, 20480\ns_mul_i32 s{sB}, s{sCG8}, 2560\ns_add_u32 s{sD1}, s{sD1}, s{sB}\ns_add_u32 s{sD1}, s{sD1}, {XA}")
        sc.load(V(XR, 4), 2, sD1, 0, "res", 130)
        sc.load(V(XR + 4, 4), 2, sD1, 1024, "res", 131)
        sc.load(V(XR + 8, 2), vHALF, sD1, 2048, "res", 132, w=2)
        P.e(f"s_lshl_b32 s{sA}, s{sFA}, 2\ns_add_u32 s{sA}, s{sA}, {F0}\ns_and_b32 s{sFL}, s{sFG}, {(CFG['rep']-1)*1024}\ns_add_u32 s{sFL}, s{sFL}, {F0}")
        P.e(f"v_cmp_gt_u32 vcc, {CFG['rep']}, v0\nv_mov_b32 v251, {OOB}\nv_cndmask_b32 v251, v251, v{vFG}, vcc")
        start_wait(P)
        stamp(P, "p1")
        sc.burst(CFG["b0"])
        stamp(P, "p0", True, 6)
    else:
        poll(P, f"s_lshl_b32 s{sB}, s{sFA}, 7\ns_add_u32 s{sB}, s{sB}, {F0 + LB}", "1")
        sc.burst(2 * CFG["b1"])
        for c in range(CFG["m1"], CFG["n1"]):
            ch["p1"][c].event = None
            sc.dma(ch["p1"][c], 20 * c - 100 + CFG["w1"])
    sc.dma(ch["p1"][8], 120)
    sc.dma(ch["p3"][0], 1000, step=105 if first else 0)
    for c in range(5):
        sc.dma(ch["p2"][c], 500 + c, step=105 if first else 0)
    steps = []
    for t0, nt in ((0, 5), (5, 3)):
        for kb in range(21):
            for t in range(t0, t0 + nt):
                def mf(w, kb=kb, t=t):
                    L = []
                    for m in range(2):
                        x = A((m * 20 + kb) * 4, 4) if kb < 20 else V(VEXT + 4 * m, 4)
                        d = V(ACC + (m * 5 + t) * 4, 4) if t < 5 else V(ACQ + (m * 3 + t - 5) * 4, 4)
                        cc = "0" if kb == 0 else d
                        L.append(f"{MF} {d}, {x}, {w}, {cc}" if t < 5 else f"{MF} {d}, {w}, {x}, {cc}")
                    return L
                st = dict(fr=divmod(len(steps), 20), mf=mf)
                if t == 0 and kb % 2 == 0 and kb < 20:
                    st["xw"] = [f"X{kb}"]
                if t == 0 and kb == 20:
                    st["aw"] = "ext"
                steps.append(st)
    if first:
        sc.alu([Ins(f"buffer_store_dword v{vONE}, v251, s[4:7], s{sA} offen sc1", "fl")], step=CFG["r0"])
    sc.alu([Wait("vm", "st")], step=52)
    for m in range(2):
        sc.alu(stats_finish(VST, m, VRS + m, VSD + m, VEXT + 4 * m, T) + [f"v_mul_f32 v{VC+m}, {f32(LOG2E)}, v{VRS+m}"])
    sc.alu([Ins(f"ds_write_b32 v{vBW}, v{VRS+m} offset:{m*64}", "bw") for m in range(2)], event="p1:3")
    if first:
        sc.alu([Ins(f"buffer_load_dwordx4 v[252:255], v2, s[4:7], s{sFL} offen sc1", "fp")], step=84)
    sc.mark("ext")
    sc.alu([Wait("lgkm", "bw")], step=88)
    sc.alu([Ins(f"ds_read_b128 {V(RST+4*m, 4)}, v{vBR} offset:{m*64}", "br") for m in range(2)])
    sc.alu([Wait("lgkm", "br")], step=94)
    sc.alu([f"v_mul_f32 v{CT+k}, {f32(LOG2E)}, v{RST+k}" for k in range(8)])
    if first:
        sc.alu(check_items("0", None), step=98)
        sc.mark("w2")
        steps[104]["aw"] = "w2"
    head = True
    for t in range(5):
        for m in range(2):
            x = [ACC + (m * 5 + t) * 4 + r for r in range(4)]
            rs = [RST + 4 * m + r for r in range(4)]
            cs = [CT + 4 * m + r for r in range(4)]
            ts = [T + 4 * m + r for r in range(4)]
            L = []
            if t < 2:
                L += phi4(x, rs, cs, ts, x)
            elif t == 2:
                o = [T + 8 + 4 * m + r for r in range(4)]
                L += phi4(x, rs, cs, ts, o)
                L += [f"v_mul_f32 v{a}, v{a}, v{r}" for a, r in zip(x, rs)]
                L += [f"v_cndmask_b32 v{a}, v{a}, v{b}, s[{sM8}:{sM8+1}]" for a, b in zip(x, o)]
            else:
                L += [f"v_mul_f32 v{a}, v{a}, v{r}" for a, r in zip(x, rs)]
            L += [f"v_cvt_pk_bf16_f32 v{PF+4*t+2*m}, v{x[0]}, v{x[1]}", f"v_cvt_pk_bf16_f32 v{PF+4*t+2*m+1}, v{x[2]}, v{x[3]}"]
            sc.alu(L, step=106 if head else 0)
            head = False
    for n, (i, j) in enumerate(PAIRS):
        b = V(PF + 4 * j, 4) if j is not None else V(ONES, 4)
        sc.alu([f"{MF} {V(GD+4*n, 4)}, {V(PF+4*i, 4)}, {b}, 0"])
    for n0 in range(0, 10, 2):
        grp = []
        for n in (n0, n0 + 1):
            i, j = PAIRS[n]
            grp += I(f"s_mov_b64 exec, s[{sMASK+2*n}:{sMASK+2*n+1}]")
            if j is None:
                grp += I(f"ds_write_b128 v{vRW0}, {V(GD+4*n, 4)} offset:{640 + i*1344 + 320}", "gw")
            else:
                off = 640 + i * 1344 + (16 * j - 40) * 16 - (320 if i == 2 else 0)
                grp += I(f"ds_write_b128 v{vRW1 if i == 1 else vRW0}, {V(GD+4*n, 4)} offset:{off}", "gw")
        grp += I("s_mov_b64 exec, -1")
        sc.alu([grp])
    sc.alu([Wait("lgkm", "gw"), "s_barrier"])
    for q in range(4):
        sc.alu([Ins(f"ds_read_b32 v{T+4*q+w}, v{vRR} offset:{w*3360 + q*1024}", f"rr{q}") for w in range(4)])
    sc.alu([f"s_mul_i32 s{sC}, s{sCG}, 3360\ns_add_u32 s{sC}, s{sC}, s{sLAY}\ns_add_u32 s{sC}, s{sC}, {KVA}"])
    for q in range(4):
        a = T + 4 * q
        sc.alu([Wait("lgkm", f"rr{q}"), f"v_add_f32 v{a}, v{a}, v{a+1}\nv_add_f32 v{a+2}, v{a+2}, v{a+3}\nv_add_f32 v{a}, v{a}, v{a+2}",
                Ins(f"buffer_atomic_add_f32 v{a}, v{vATM if q == 3 else vAT}, s[4:7], s{sC} offen offset:{q*1024}", "at")])
    sc.run(steps, ch["p1"], lambda i: 1 if first or i < CFG["h1"] else CFG["g1"], extra=lambda i: CFG["x1"] if i > 105 else 0)
    sc.drain()
    sc.force("res")
    P.e(f"s_mul_i32 s{sC}, s{sCG}, 1280\ns_add_u32 s{sC}, s{sC}, s{sX0}\ns_add_u32 s{sC}, s{sC}, {PQ - XA}")
    for m in range(2):
        q = QO + 6 * m
        for tq in range(3):
            x = [ACQ + (m * 3 + tq) * 4 + r for r in range(4)]
            P.add(phi4(x, [VRS + m] * 4, [VC + m] * 4, [T + 16 + 4 * (tq % 2) + r for r in range(4)], x))
            P.e(f"v_cvt_pk_bf16_f32 v{q+2*tq}, v{x[0]}, v{x[1]}\nv_cvt_pk_bf16_f32 v{q+2*tq+1}, v{x[2]}, v{x[3]}")
            if tq == 1:
                if m == 1:
                    P.e(f"s_add_u32 s{sC}, s{sC}, 20480")
                P.e(f"buffer_store_dwordx4 {V(q, 4)}, v2, s[4:7], s{sC} offen sc1", tag="out")
        P.e(f"buffer_store_dwordx2 {V(q+4, 2)}, v{vPQT}, s[4:7], s{sC} offen offset:1024 sc1", tag="out")
    P.add(flag_items("at", f"s_lshl_b32 s{sA}, s{sFA}, 2\ns_add_u32 s{sA}, s{sA}, s{sLAY}\ns_add_u32 s{sA}, s{sA}, {F1}", vFG))
    handoff(P, sc, "out", wr_cluster(sFA, F1C), vFC, "1")


def resid_epilogue(P, ACC, T, xbuf, stbuf, final=False):
    P.e(f"s_mul_i32 s{sC}, s{sMT}, 20480\ns_mul_i32 s{sA}, s{sCG8}, 2560\ns_add_u32 s{sC}, s{sC}, s{sA}\ns_add_u32 s{sC}, s{sC}, s{sLAY}\ns_add_u32 s{sC}, s{sC}, {xbuf}")
    P.e(f"s_lshl_b32 s{sB}, s{sMT}, 10\ns_lshl_b32 s{sA}, s{sCG8}, 7\ns_add_u32 s{sB}, s{sB}, s{sA}\ns_add_u32 s{sB}, s{sB}, s{sLAY}\ns_add_u32 s{sB}, s{sB}, {stbuf}")
    P.e(f"v_mov_b32 v{T}, 0\nv_mov_b32 v{T+1}, 0")
    for k0 in (0, 4, 8):
        ks = range(k0, min(k0 + 4, 10))
        for k in ks:
            P.e(f"v_lshlrev_b32 v{T+4+2*(k%4)}, 16, v{XR+k}\nv_and_b32 v{T+5+2*(k%4)}, 0xffff0000, v{XR+k}")
        for k in ks:
            P.e(f"v_pk_add_f32 {V(T+4+2*(k%4), 2)}, {V(T+4+2*(k%4), 2)}, {V(ACC+2*k, 2)}")
        for k in ks:
            P.e(f"v_cvt_pk_bf16_f32 v{XR+k}, v{T+4+2*(k%4)}, v{T+5+2*(k%4)}")
        if final:
            continue
        if k0 < 8:
            P.e(f"buffer_store_dwordx4 {V(XR+k0, 4)}, v2, s[4:7], s{sC} offen offset:{k0*256} sc1", tag="out")
        else:
            P.e(f"buffer_store_dwordx2 {V(XR+8, 2)}, v{vHALF}, s[4:7], s{sC} offen offset:2048 sc1", tag="out")
    if final:
        P.e(f"s_mul_i32 s{sA}, s{sMT}, 20480\ns_mul_i32 s{sB}, s{sCG8}, 160\ns_add_u32 s{sA}, s{sA}, s{sB}")
        P.e(f"buffer_store_dwordx4 {V(XR, 4)}, v{vO16}, s[8:11], s{sA} offen")
        P.e(f"buffer_store_dwordx4 {V(XR+4, 4)}, v{vO16}, s[8:11], s{sA} offen offset:64")
        P.e(f"buffer_store_dwordx2 {V(XR+8, 2)}, v{vO8}, s[8:11], s{sA} offen offset:128")
        return
    for k in range(10):
        P.e(f"v_dot2_f32_bf16 v{T}, v{XR+k}, v{ONES}, v{T}")
        P.e(f"v_dot2_f32_bf16 v{T+1}, v{XR+k}, v{XR+k}, v{T+1}")
    a, b = allreduce_g(T, T + 2), allreduce_g(T + 1, T + 3)
    for x, y in zip(a, b):
        P.e(x)
        P.e(y)
    P.e(f"buffer_store_dwordx2 {V(T, 2)}, v{vSTS}, s[4:7], s{sB} offen sc1", tag="out")


def wr_cluster(sf, F):
    return (f"s_lshr_b32 s{sA}, s{sf}, 4\ns_lshl_b32 s{sA}, s{sA}, 11\ns_and_b32 s{sB}, s{sf}, 15\ns_lshl_b32 s{sB}, s{sB}, 2\n"
            f"s_add_u32 s{sA}, s{sA}, s{sB}\ns_add_u32 s{sA}, s{sA}, s{sLAY}\ns_add_u32 s{sA}, s{sA}, {F}")


def rd_cluster(sf, F):
    return f"s_lshl_b32 s{sB}, s{sf}, 7\ns_add_u32 s{sB}, s{sB}, s{sLAY}\ns_add_u32 s{sB}, s{sB}, {F}"


def phase2(P, ch):
    sc = Sched(P, "p2")
    OR, ACC, DT, T = PV, PV + 80, PV + 100, PV + 132
    for r in range(4):
        P.e(f"v_mov_b32 v{DT+r}, 0")
    for k in range(10):
        P.e(f"ds_write_b128 v{vZF}, {V(DT, 4)} offset:{k*4096}", tag="z")
    P.e(f"s_add_u32 s{sX0}, s{sLAY}, {KVA}")
    P.e(f"s_mul_i32 s{sX1}, s{sMT}, 20480\ns_add_u32 s{sX1}, s{sX1}, s{sLAY}\ns_add_u32 s{sX1}, s{sX1}, {PQ}")
    P.e(rd_cluster(sFB, F1C).replace(f"s{sB}", f"s{sFL}"))
    P.wlg("z")
    poll(P, f"s_add_u32 s{sB}, s{sFG}, s{sLAY}\ns_add_u32 s{sB}, s{sB}, {F1}", "2", wide=True)
    P.e(f"buffer_load_dword v253, v{vPOLL}, s[4:7], s{sFL} offen sc1", tag="fp")
    for rr in range(16):
        if rr:
            P.e(f"s_add_u32 s{sX0}, s{sX0}, 3360")
        P.e(f"buffer_load_dwordx4 {V(OR+4*rr, 4)}, v{vKVL}, s[4:7], s{sX0} offen sc1", tag=f"kv{rr}")
    Sched.x_ctx = None
    for h in range(32):
        sc.load(A(4 * h, 4), vPQW, sX1, (5 * h // 2) * 256, f"pq{h}", h)
    P.add(check_items("2", 0))
    sc.burst(8)
    for rr in range(16):
        P.wvm(f"kv{rr}")
        a = OR + 4 * rr
        P.e(f"v_cvt_pk_bf16_f32 v{a}, v{a}, v{a+1}\nv_cvt_pk_bf16_f32 v{a+1}, v{a+2}, v{a+3}")
        P.e(f"ds_write_b64 v{vKVW}, {V(a, 2)} offset:{rr*2560}", tag="kw")
        if rr % 2:
            sc.burst(1)
    P.wlg("kw")
    P.e("s_barrier")
    stamp(P, "p2")
    for c in range(1, CFG["m3"]):
        sc.dma(ch["p3"][c], 1000 + c)
    steps = []
    nw = 0

    def wstep(n):
        kb, t = divmod(n, 5)

        def mf(w):
            d = V(ACC + 4 * t, 4)
            return [f"{MF} {d}, {w}, {V(OR+4*kb, 4)}, {'0' if kb == 0 else d}"]
        st = dict(fr=divmod(n, 20), mf=mf)
        if t == 0:
            st["aw"] = f"o{(8*kb+7)//5}"
        return st

    for h in range(32):
        d = DT + 8 * (h % 4)
        for j in range(2):
            st = dict(rd=lambda dst, h=h, j=j: f"ds_read_b128 {dst}, v{vE0+j} offset:{h*1280}",
                      mf=lambda w, h=h, j=j, d=d: [f"{MF} {V(d+4*j, 4)}, {w}, {A(4*h, 4)}, {V(CE, 4) if j else '0'}"])
            if j == 0:
                st["xw"] = [f"pq{h}"]
                if h >= 3:
                    st["aw"] = f"o{h-3}"
            steps.append(st)
        L = [f"v_rcp_f32 v{d+5}, v{d+5}"] + [f"v_mul_f32 v{d+i}, v{d+i}, v{d+5}" for i in range(5)]
        n0 = 5 * h
        if h % 2 == 0:
            L += [f"v_cvt_pk_bf16_f32 v{OR+n0//2}, v{d}, v{d+1}", f"v_cvt_pk_bf16_f32 v{OR+n0//2+1}, v{d+2}, v{d+3}"]
        else:
            dp = DT + 8 * ((h - 1) % 4)
            L += [f"v_cvt_pk_bf16_f32 v{OR+n0//2}, v{dp+4}, v{d}", f"v_cvt_pk_bf16_f32 v{OR+n0//2+1}, v{d+1}, v{d+2}",
                  f"v_cvt_pk_bf16_f32 v{OR+n0//2+2}, v{d+3}, v{d+4}"]
        sc.alu(L, step=len(steps) + 1)
        sc.mark(f"o{h}")
        lim = min(100, int(round((h - 1) * 100 / 32)))
        while nw < lim and (8 * (nw // 5) + 7) // 5 <= h - 2:
            steps.append(wstep(nw))
            nw += 1
    while nw < 100:
        steps.append(wstep(nw))
        nw += 1
    sc.run(steps, ch["p2"], 2, extra=CFG["x2"], nobar=(0, 1), wevery=2)
    sc.drain()
    resid_epilogue(P, ACC, T, XB, STB)
    handoff(P, sc, "out", wr_cluster(sFB, F2), vFC, "2")


def hreg(kb):
    n = CFG["hp"]
    return A(160 + 4 * kb if kb < n else 4 * (kb - n), 4)


def h_loads(sc, kbs, **kw):
    for kb in kbs:
        sc.load(hreg(kb), 2, sX0, kb * 1024, f"H{kb}", **dict(dict(prio=kb * 5 - 50, step=kb * 5 - CFG["lead4"], event="late" if kb >= 32 else None), **kw))


def phase3(P, ch):
    sc = Sched(P, "p3")
    ACC, VST, VRS, VSD, VC, VEXT, T, HO = PV, PV + 112, PV + 120, PV + 122, PV + 124, PV + 126, PV + 134, PV + 142
    x_phase_loads(sc, P, XB, STB, VST, 6)
    poll(P, rd_cluster(sFA, F2), "3")
    sc.burst(2 * CFG["b3"])
    sc.events.add("p2:end")
    for c in range(CFG["m3"], 15):
        sc.dma(ch["p3"][c], 20 * c - 60)
    for c in range(8):
        sc.dma(ch["p4"][c], 1000 + c)
    steps = []
    gend = {}
    for p0, npair in ((0, 3), (3, 1), (4, 2), (6, 1)):
        for kb in range(21):
            for t in range(2 * p0, 2 * (p0 + npair)):
                def mf(w, kb=kb, t=t):
                    L = []
                    for m in range(2):
                        x = A((m * 20 + kb) * 4, 4) if kb < 20 else V(VEXT + 4 * m, 4)
                        d = V(ACC + m * 56 + t * 4, 4)
                        L.append(f"{MF} {d}, {w}, {x}, {'0' if kb == 0 else d}")
                    return L
                st = dict(fr=divmod(len(steps), 20), mf=mf)
                if t == 0 and kb % 2 == 0 and kb < 20:
                    st["xw"] = [f"X{kb}"]
                if t == 0 and kb == 20:
                    st["aw"] = "ext"
                steps.append(st)
        for p in range(p0, p0 + npair):
            gend[p] = len(steps)
    sc.alu([Wait("vm", "st")], step=64)
    for m in range(2):
        sc.alu(stats_finish(VST, m, VRS + m, VSD + m, VEXT + 4 * m, T) + [f"v_mul_f32 v{VC+m}, {f32(-LOG2E)}, v{VRS+m}"])
    sc.mark("ext")
    sc.alu([f"s_lshl_b32 s{sA}, s{sCG}, 11\ns_mul_i32 s{sC}, s{sMT0}, 55296\ns_add_u32 s{sC}, s{sC}, s{sA}\ns_add_u32 s{sC}, s{sC}, s{sLAY}\ns_add_u32 s{sC}, s{sC}, {HB}\ns_add_u32 s{sD1}, s{sC}, 55296",
            f"s_lshl_b32 s{sA}, s{sCG}, 10\ns_sub_u32 s{sD2}, 32768, s{sA}"])

    def epi(p, m):
        g = ACC + m * 56 + 8 * p
        u = g + 4
        L = [f"v_mul_f32 v{g+r}, v{g+r}, v{VC+m}" for r in range(4)]
        L += [f"v_exp_f32 v{g+r}, v{g+r}" for r in range(4)]
        L += [f"v_fma_f32 v{g+r}, v{g+r}, v{VSD+m}, v{VSD+m}" for r in range(4)]
        L += [f"v_rcp_f32 v{g+r}, v{g+r}" for r in range(4)]
        L += [f"v_mul_f32 v{u+r}, v{u+r}, v{g+r}" for r in range(4)]
        o = HO + m * 14 + 2 * p
        L += [f"v_cvt_pk_bf16_f32 v{o}, v{u}, v{u+1}", f"v_cvt_pk_bf16_f32 v{o+1}, v{u+2}, v{u+3}"]
        L = [Ins(x) for x in L]
        so = sD1 if m else sC
        if p % 2 == 1:
            L.append(Ins(f"buffer_store_dwordx4 {V(o-2, 4)}, v2, s[4:7], s{so} offen offset:{1024 if p == 3 else 0} sc1", "outE" if p < 4 else "out"))
        if p == 6:
            L.append(Ins(f"buffer_store_dwordx2 {V(o, 2)}, v{vH3}, s[4:7], s{so} offen sc1", "out"))
        return L

    fp = Ins(f"buffer_load_dword v253, v{vPOLL}, s[4:7], s{sFL} offen sc1", "fp")
    for p in range(6):
        for m in range(2):
            if CFG["hp"] and 2 * p + m == CFG["pe"]:
                sc.alu([fp], step=CFG["ce"] - 10)
            if CFG["hp"] and 2 * p + m == CFG["pe"] + 1:
                sc.alu(check_items("4e", 0), step=CFG["ce"])
                sc.mark("early")
            sc.alu(epi(p, m), step=gend[p] + 1)
        if p == 3:
            sc.alu([f"s_add_u32 s{sC}, s{sC}, s{sD2}\ns_add_u32 s{sD1}, s{sD1}, s{sD2}\ns_lshr_b32 s{sD2}, s{sD2}, 1"])
            fl = flag_items("outE", wr_cluster(sFA, F3), vFC)
            k = [isinstance(x, Wait) for x in fl].index(True)
            sc.alu(fl[:k])
            sc.alu(fl[k:], step=CFG["e3"])
            sc.alu([rd_cluster(sFB, F3).replace(f"s{sB}", f"s{sFL}"), f"s_mul_i32 s{sX0}, s{sMT}, 55296\ns_add_u32 s{sX0}, s{sX0}, s{sLAY}\ns_add_u32 s{sX0}, s{sX0}, {HB}"])
    sc.alu([f"s_add_u32 s{sC}, s{sC}, s{sD2}\ns_add_u32 s{sD1}, s{sD1}, s{sD2}"])
    h_loads(sc, range(CFG["hp"]), prio=900, step=0, event="early")
    sc.run(steps, ch["p3"], lambda i: 1 if i > CFG["ce"] else CFG["g3"], extra=lambda i: 1 if 126 < i < CFG["x3"] or i > CFG["y3"] else 0)
    sc.drain()
    if CFG["hp"]:
        sc.burst(len([o for o in sc.vq if o.tag[0] == "H"]))
    else:
        P.add(fp)
    a, b = epi(6, 0), epi(6, 1)
    for k in range(0, 20, 4):
        P.add(a[k:k + 4] + b[k:k + 4])
    P.add(a[20:] + b[20:])
    P.add(flag_items("out", "", vFC, 64)) if not CFG["nowait3"] else None
    stamp(P, "p3")
    return sc


def phase4(P, ch, prev):
    sc = Sched(P, "p4")
    sc.events |= {e for e in prev.events if e and e.startswith("p3:")}
    for o in prev.vq:
        o.prio = 60 + (o.prio - 1000)
    sc.vq, sc.pend, sc.pend_tag = prev.vq, prev.pend, prev.pend_tag
    ACC, T = PV, PV + 20
    h_loads(sc, range(CFG["hp"], 54))
    if not CFG["hp"]:
        P.add(check_items("4e", 0))
    stamp(P, "p4")
    sc.burst(CFG["b4"])
    if CFG["nowait3"]:
        sc.alu(flag_items("out", "", vFC, 64), step=CFG["f4"])
    sc.alu([Ins(f"buffer_load_dword v253, v{vPOLL}, s[4:7], s{sFL} offen offset:64 sc1", "fp")], step=CFG["c4"] - 24)
    sc.alu(check_items("4", 64), step=CFG["c4"])
    sc.mark("late")
    for c in range(8, 14):
        sc.dma(ch["p4"][c], 20 * c - 60)
    for c in list(range(CFG["m1"])) + list(range(CFG["n1"], 8)):
        sc.dma(ch["p1"][c], 1000 + c, step=CFG["pf4"])
    steps = []
    for kb in range(54):
        for t in range(5):
            def mf(w, kb=kb, t=t):
                d = V(ACC + 4 * t, 4)
                return [f"{MF} {d}, {w}, {hreg(kb)}, {'0' if kb == 0 else d}"]
            st = dict(fr=divmod(len(steps), 20), mf=mf)
            if t == 0:
                st["xw"] = [f"H{kb}"]
            steps.append(st)
    sc.run(steps, ch["p4"], CFG["g4"], wevery=2)
    P.e(f"s_cmp_lg_u32 s{sLAY}, 0\ns_cbranch_scc1 L_final")
    resid_epilogue(P, ACC, T, XA + LB, STA + LB)
    handoff(P, sc, "out", wr_cluster(sFB, F0 + LB), vFC, "4")
    stamp_flush(P)
    P.e(f"s_mov_b32 s{sLAY}, {LB}\ns_branch L_layer\nL_final:")
    resid_epilogue(P, ACC, T, 0, 0, final=True)
    P.e("s_waitcnt vmcnt(0)")
    stamp_flush(P)
    P.e("s_endpgm")


def start_wait(Q):
    Q.raw(f"s_cmp_lg_u32 s{sWAVE}, 0\ns_cbranch_scc1 L_pd0\ns_mov_b32 s{sSPIN}, {SPIN}\nL_pl0:")
    Q.raw(f"global_load_dword v252, v{vT}, s[{sDBG}:{sDBG+1}] offset:128 sc1\ns_waitcnt vmcnt(0)\nv_cmp_eq_u32 vcc, 0, v252\ns_nop 1\ns_cbranch_vccz L_pd0")
    Q.raw(f"s_sub_u32 s{sSPIN}, s{sSPIN}, 1\ns_cmp_lg_u32 s{sSPIN}, 0\ns_cbranch_scc1 L_pl0\nL_pd0:")
    Q.e("s_waitcnt vmcnt(0)\ns_barrier")
    stamp(Q, "p0", True, 5)


def gen_main():
    ch = mk_chunks()
    Q = Prog()
    P = Prog()
    Sched.dma_ctx = None
    q0 = 4
    if PROF == "p0":
        _nstamp[0] = 7
    n0 = _nstamp[0]
    phase1(P, ch)
    np1 = len(P.items) + 2 + 5 * (8 - CFG['n1'] + CFG['m1'])
    P.e("L_p2:")
    phase2(P, ch)
    phase4(P, ch, phase3(P, ch))
    order = [x for x in Sched.log if x[0][0] == "1" and not CFG["m1"] <= int(x[0][2:]) < CFG["n1"] and x[0] != "1_8"]
    assert len(order) == 5 * (8 - CFG["n1"] + CFG["m1"])
    P.items = [Ins(".p2align 6"), Ins("L_layer:")] + [Virtual("W" + x[0]) for x in order] + P.items
    Q.e("L_join:")
    stamp(Q, "p0", True, q0)
    Q.e(f"s_mov_b32 s8, s44\ns_and_b32 s9, s45, 0xffff\ns_mov_b32 s10, {XSZ}\ns_mov_b64 s[{sDBG}:{sDBG+1}], s[46:47]")
    Q.e(f"s_and_b32 s{sA}, s2, 7\ns_lshr_b32 s{sB}, s2, 3\ns_and_b32 s{sC}, s{sB}, 3\ns_lshr_b32 s{sCG8}, s{sB}, 2")
    Q.e(f"s_lshr_b32 s{sRB}, s{sA}, 1\ns_lshl_b32 s{sRB}, s{sRB}, 2\ns_add_u32 s{sRB}, s{sRB}, s{sC}")
    Q.e(f"s_and_b32 s{sCG}, s{sA}, 1\ns_lshl_b32 s{sCG}, s{sCG}, 3\ns_add_u32 s{sCG}, s{sCG}, s{sCG8}")
    Q.e(f"s_mul_i32 s{sW5}, s{sWAVE}, 5120\ns_mul_i32 s{sW1}, s{sCG}, {168*1024}\ns_add_u32 s{sW1}, s{sW1}, s{sW5}\ns_add_u32 s{sW1}, s{sW1}, {WF1}")
    Q.e(f"s_lshl_b32 s{sA}, s{sA}, 2\ns_add_u32 s{sA}, s{sA}, s{sC}")
    Q.e(f"s_lshl_b32 s{sMT}, s{sA}, 2\ns_add_u32 s{sMT}, s{sMT}, s{sWAVE}")
    Q.e(f"s_lshl_b32 s{sFB}, s{sA}, 3\ns_add_u32 s{sFB}, s{sFB}, s{sCG8}")
    Q.e(f"s_lshl_b32 s{sFA}, s{sRB}, 4\ns_add_u32 s{sFA}, s{sFA}, s{sCG}")
    Q.e(f"s_lshl_b32 s{sMT0}, s{sRB}, 3\ns_lshl_b32 s{sB}, s{sWAVE}, 1\ns_add_u32 s{sMT0}, s{sMT0}, s{sB}")
    Q.e(f"s_and_b32 s{sFG}, s2, 15\ns_lshl_b32 s{sFG}, s{sFG}, 10\ns_mov_b32 s{sEPS}, {f32(1e-6)}\ns_mov_b32 s{sLAY}, 0")
    for r, base, n, cg in ((sW2, WF2, 100, sCG8), (sW3, WF3, 294, sCG), (sW4, WF4, 270, sCG8)):
        Q.e(f"s_mul_i32 s{r}, s{cg}, {n*1024}\ns_add_u32 s{r}, s{r}, {base}\ns_add_u32 s{r}, s{r}, s{sW5}")
    Q.e("v_add_u32 v3, 0x10000, v2\nv_add_u32 v4, 0x20000, v2")
    Q.e(f"v_mov_b32 v{vT}, {OOB}")
    Q.e(f"v_lshlrev_b32 v{vSTL}, 8, v5\nv_lshl_add_u32 v{vSTL}, v6, 3, v{vSTL}")
    Q.e(f"v_lshrrev_b32 v{vHALF}, 1, v5\nv_lshlrev_b32 v{vHALF}, 8, v{vHALF}\nv_lshl_add_u32 v{vHALF}, v6, 4, v{vHALF}")
    Q.e(f"v_and_b32 v{vPQT}, 1, v5\nv_lshl_add_u32 v{vHALF}, v{vPQT}, 3, v{vHALF}")
    Q.e(f"v_cmp_gt_u32 vcc, 32, v1\nv_cndmask_b32 v{vPQT}, v{vT}, v{vHALF}, vcc")
    Q.e(f"v_cmp_gt_u32 vcc, 16, v1\nv_lshlrev_b32 v{vSTS}, 3, v6\nv_cndmask_b32 v{vSTS}, v{vT}, v{vSTS}, vcc")
    Q.e("v_cmp_gt_u32 vcc, 16, v0")
    Q.e(f"v_lshlrev_b32 v{vFC}, 7, v1\nv_cndmask_b32 v{vFC}, v{vT}, v{vFC}, vcc\nv_lshlrev_b32 v{vFG}, 10, v1\nv_cndmask_b32 v{vFG}, v{vT}, v{vFG}, vcc")
    Q.e(f"v_lshlrev_b32 v{vPOLL}, 2, v6\nv_mov_b32 v{vONE}, 1")
    Q.e(f"v_cmp_gt_u32 vcc, 48, v1\nv_cndmask_b32 v{vPQW}, v{vT}, v2, vcc")
    Q.e(f"s_cmp_lt_u32 s{sCG}, 12\ns_cselect_b32 s{sB}, 0, {OOB}\nv_add_u32 v{vH3}, s{sB}, v{vHALF}")
    Q.e(f"v_mul_u32_u24 v{vO8}, 1280, v6\nv_lshl_add_u32 v{vO16}, v5, 4, v{vO8}\nv_lshl_add_u32 v{vO8}, v5, 3, v{vO8}")
    Q.e(f"s_mul_i32 s{sB}, s{sWAVE}, 3360\ns_add_u32 s{sB}, s{sB}, {RED - 640}")
    Q.e(f"v_mul_u32_u24 v{vRW0}, 336, v5\nv_lshl_add_u32 v{vRW0}, v6, 4, v{vRW0}\nv_add_u32 v{vRW0}, s{sB}, v{vRW0}")
    Q.e(f"v_min_u32 v{vRW1}, 1, v5\nv_mul_u32_u24 v{vRW1}, 320, v{vRW1}\nv_sub_u32 v{vRW1}, v{vRW0}, v{vRW1}")
    Q.e(f"v_lshlrev_b32 v{vAT}, 2, v0\nv_add_u32 v{vRR}, {RED}, v{vAT}\nv_cmp_gt_u32 vcc, 72, v0\nv_cndmask_b32 v{vATM}, v{vT}, v{vAT}, vcc")
    Q.e(f"s_lshl_b32 s{sB}, s{sWAVE}, 7\ns_add_u32 s{sB}, s{sB}, {BNC}\nv_lshl_add_u32 v{vBW}, v6, 2, s{sB}\nv_lshl_add_u32 v{vBR}, v5, 4, s{sB}")
    mk = lanemask(lambda g, i: i < 8)
    Q.e(f"s_mov_b32 s{sM8}, 0x{mk & 0xffffffff:08x}\ns_mov_b32 s{sM8+1}, 0x{mk >> 32:08x}")
    for n, (i, j) in enumerate(PAIRS):
        mk = red_mask(i, j)
        Q.e(f"s_mov_b32 s{sMASK+2*n}, 0x{mk & 0xffffffff:08x}\ns_mov_b32 s{sMASK+2*n+1}, 0x{mk >> 32:08x}")
    a, b, c, d, e = PV, PV + 1, PV + 2, PV + 3, PV + 4
    Q.e(f"s_lshr_b32 s{sA}, s{sWAVE}, 1\ns_and_b32 s{sB}, s{sWAVE}, 1\ns_lshl_b32 s{sB}, s{sB}, 6\nv_add_u32 v{a}, s{sB}, v1")
    Q.e(f"v_mul_u32_u24 v{b}, 3121, v{a}\nv_lshrrev_b32 v{b}, 16, v{b}\nv_mul_u32_u24 v{c}, 21, v{b}\nv_sub_u32 v{c}, v{a}, v{c}")
    Q.e(f"s_mul_i32 s{sB}, s{sA}, 1680\nv_lshl_add_u32 v{vKVL}, v{a}, 4, s{sB}")
    Q.e(f"v_add_u32 v{b}, s{sA}, v{b}\nv_lshrrev_b32 v{d}, 1, v{b}\nv_and_b32 v{b}, 1, v{b}")
    Q.e(f"v_lshlrev_b32 v{e}, 8, v{d}\nv_lshlrev_b32 v{d}, 7, v{d}\nv_add_u32 v{d}, 512, v{d}\nv_cmp_gt_u32 vcc, 16, v{c}\nv_cndmask_b32 v{d}, v{d}, v{e}, vcc")
    Q.e(f"v_lshl_add_u32 v{d}, v{c}, 4, v{d}\nv_lshl_add_u32 v{d}, v{b}, 3, v{d}")
    Q.e(f"v_cmp_gt_u32 vcc, 105, v{a}\nv_mov_b32 v{e}, 1152\nv_cndmask_b32 v{d}, v{e}, v{d}, vcc\nv_cndmask_b32 v{vKVL}, v{vT}, v{vKVL}, vcc")
    Q.e(f"s_mul_i32 s{sB}, s{sA}, 1280\ns_add_u32 s{sB}, s{sB}, {KVT}\nv_add_u32 v{vKVW}, s{sB}, v{d}")
    Q.e(f"v_lshlrev_b32 v{vZF}, 4, v0\nv_add_u32 v{vZF}, {KVT}, v{vZF}")
    Q.e(f"v_and_b32 v{c}, 7, v6\nv_lshlrev_b32 v{c}, 4, v{c}\nv_add_u32 v{c}, 1152, v{c}")
    Q.e(f"v_and_b32 v{b}, 3, v6\nv_lshrrev_b32 v{d}, 2, v6\nv_cmp_eq_u32 vcc, 0, v{b}\nv_cndmask_b32 v{b}, 4, v{d}, vcc")
    Q.e(f"v_lshlrev_b32 v{b}, 4, v{b}\nv_lshl_add_u32 v{b}, v5, 7, v{b}\nv_add_u32 v{b}, 768, v{b}")
    Q.e(f"v_cmp_eq_u32 vcc, 3, v5\nv_cndmask_b32 v{b}, v{b}, v{c}, vcc\nv_add_u32 v{vE1}, {KVT}, v{b}")
    Q.e(f"v_cndmask_b32 v{b}, v2, v{c}, vcc\nv_add_u32 v{vE0}, {KVT}, v{b}")
    Q.e(f"v_mov_b32 v{CE}, 0\nv_mov_b32 v{CE+1}, s{sEPS}\nv_mov_b32 v{CE+2}, 0\nv_mov_b32 v{CE+3}, 0")
    for r in range(4):
        Q.e(f"v_mov_b32 v{ONES+r}, 0x3f803f80")
    Q.e(f"v_mov_b32 v{vT}, 0")
    Sched.dma_ctx = None
    n1 = _nstamp[0]
    _nstamp[0] = n0
    phase1(Q, ch, True)
    _nstamp[0] = n1
    tail = []
    for R, end in ((Q, len(Q.items)), (P, np1)):
        k = max(j for j in range(end) if isinstance(R.items[j], Wait) and R.items[j].tag == "out")
        tail.append([getattr(x, "text", None) or str(type(x)) for x in R.items[k + 1:end]])
    assert tail[0] == tail[1], tail
    Q.e("s_branch L_p2")
    return Q, P


K0ST = " sc1"
sDBG = 18


def k0_prologue(P):
    P.e("s_cmp_ge_u32 s2, 256\ns_cbranch_scc1 L_exit")
    stamp(P)
    stamp(P, "p0", True, 0)
    P.e("s_load_dwordx2 s[4:5], s[0:1], 72", tag="ka")
    P.e("v_lshrrev_b32 v7, 6, v0\nv_and_b32 v1, 63, v0\nv_readfirstlane_b32 s12, v7\nv_lshlrev_b32 v2, 4, v1\nv_lshrrev_b32 v5, 4, v1\nv_and_b32 v6, 15, v1")
    P.e(f"s_mov_b32 s6, {WS_USED}\ns_mov_b32 s7, 0x20000")
    if CFG.get("cpf"):
        P.e(f"s_getpc_b64 s[40:41]\nL_pc:\ns_add_u32 s40, s40, L_join-L_pc\ns_addc_u32 s41, s41, 0")
        P.e(f"s_lshr_b32 s42, s2, 3\ns_lshl_b32 s42, s42, 12\ns_min_u32 s42, s42, L_exit-L_join-4096\nv_lshl_add_u32 v90, v0, 4, s42")
        P.e("global_load_dwordx4 v[92:95], v90, s[40:41]")


K0_LDS = 40 * 1024
NJ1, NJ3, NJB, NJC = 64, 128, 74, 64


def gen_k0():
    texts = []
    mx = {"v": 0, "s": 0}
    P = Prog()
    k0_prologue(P)
    P.e("s_load_dwordx4 s[52:55], s[0:1], 0", tag="ka")
    P.e("s_load_dwordx2 s[56:57], s[0:1], 16", tag="ka")
    P.e("s_load_dwordx4 s[60:63], s[0:1], 32", tag="ka")
    P.e("s_load_dwordx2 s[58:59], s[0:1], 48", tag="ka")
    P.e("s_load_dwordx4 s[44:47], s[0:1], 56", tag="ka")
    P.e("s_mov_b32 s11, 0x20000")
    P.e("v_lshrrev_b32 v7, 2, v6\nv_and_b32 v8, 3, v6")
    P.e("v_and_b32 v9, 1, v5\nv_lshl_add_u32 v9, v9, 2, v7\nv_lshlrev_b32 v9, 1, v9")
    P.e("v_lshl_add_u32 v10, v5, 3, v7\nv_lshlrev_b32 v10, 8, v10")
    P.e("s_lshr_b32 s17, s12, 1\ns_lshl_b32 s17, s17, 3\nv_lshl_add_u32 v11, v5, 1, s17\nv_xor_b32 v11, v11, v6")
    P.wlg("ka")
    stamp(P, "p0", True, 1)
    P.e("s_and_b32 s5, s5, 0xffff")
    P.e("s_cmp_lt_u32 s2, 64\ns_cbranch_scc1 L_k0_A\ns_cmp_lt_u32 s2, 128\ns_cbranch_scc1 L_k0_C")
    texts.append(P)

    P = Prog()
    P.e("L_k0_A:")
    P.e(f"s_cmp_lt_u32 s2, {NJ1}\ns_cbranch_scc0 L_k0_A3")
    P.e("s_lshr_b32 s14, s2, 2\ns_and_b32 s15, s2, 3")
    P.e(f"s_mov_b32 s8, s54\ns_and_b32 s9, s55, 0xffff\ns_mov_b32 s10, {640*1920*2}\ns_mov_b32 s20, 3840")
    P.e("v_min_u32 v12, 14, v11\nv_mul_u32_u24 v13, 52, v12\nv_lshrrev_b32 v13, 8, v13")
    P.e("v_mul_u32_u24 v13, 1200, v13\nv_lshl_add_u32 v12, v12, 4, v13")
    P.e("s_mul_i32 s21, s14, 80")
    P.e("s_lshl_b32 s22, s12, 5\ns_add_u32 s22, s22, 80\ns_mov_b32 s23, 8\ns_mov_b32 s24, 3")
    P.e("s_mov_b32 s25, 208\ns_mov_b32 s26, 8\ns_mov_b32 s27, 3")
    P.e("s_cmp_eq_u32 s12, 1\ns_cselect_b32 s25, 0, s25\ns_cselect_b32 s26, 16, s26")
    P.e("s_cmp_eq_u32 s12, 2\ns_cselect_b32 s25, 8, s25\ns_cselect_b32 s26, 16, s26")
    P.e("s_cmp_eq_u32 s12, 3\ns_cselect_b32 s25, 64, s25\ns_cselect_b32 s27, 1, s27")
    P.e(f"s_mul_i32 s28, s14, {21*8*1024}\ns_add_u32 s28, s28, {WF1}\ns_lshl_b32 s17, s12, 10\ns_add_u32 s28, s28, s17")
    P.e(f"s_cmp_eq_u32 s12, 0\ns_mov_b32 s17, {104*1024}\ns_mov_b32 s36, 3072\ns_cselect_b32 s17, 4096, s17\ns_cselect_b32 s36, 5120, s36\ns_add_u32 s29, s28, s17\ns_mov_b32 s30, 5120")
    P.e("s_branch L_k0_Ac")
    P.e("L_k0_A3:")
    P.e(f"s_sub_u32 s16, s2, 128\ns_and_b32 s18, s16, 1\ns_lshr_b32 s15, s16, 1\ns_and_b32 s15, s15, 3\ns_lshr_b32 s14, s16, 3")
    P.e("s_cmp_eq_u32 s18, 0\ns_cselect_b32 s8, s60, s62\ns_cselect_b32 s9, s61, s63\ns_and_b32 s9, s9, 0xffff")
    P.e(f"s_mov_b32 s10, {640*1728*2}\ns_mov_b32 s20, 3456")
    P.e("s_cmp_lt_u32 s14, 12\ns_cselect_b32 s17, 13, 11")
    P.e("v_min_u32 v12, s17, v11\nv_lshlrev_b32 v12, 4, v12")
    P.e("s_mul_i32 s21, s14, 224\ns_mul_i32 s17, s14, 192\ns_add_u32 s17, s17, 384\ns_min_u32 s21, s21, s17")
    P.e("s_lshr_b32 s22, s12, 1\ns_lshl_b32 s22, s22, 6\ns_and_b32 s17, s12, 1\ns_lshl_b32 s17, s17, 3\ns_add_u32 s22, s22, s17")
    P.e("s_mov_b32 s23, 16\ns_mov_b32 s24, 3\ns_mov_b32 s27, 3")
    P.e("s_add_u32 s25, s17, 128\ns_cmp_lt_u32 s12, 2\ns_cselect_b32 s25, s25, 192\ns_cselect_b32 s26, 16, 8")
    P.e(f"s_mul_i32 s28, s14, {21*14*1024}\ns_add_u32 s28, s28, {WF3}\ns_lshl_b32 s17, s18, 10\ns_add_u32 s28, s28, s17")
    P.e(f"s_cmp_eq_u32 s12, 1\ns_mov_b32 s17, {252*1024}\ns_cselect_b32 s17, {170*1024}, s17\ns_cmp_eq_u32 s12, 0\ns_cselect_b32 s17, {168*1024}, s17\ns_cmp_lt_u32 s12, 2\ns_mov_b32 s36, 2048\ns_cselect_b32 s36, 4096, s36\ns_add_u32 s29, s28, s17")
    P.e(f"s_lshl_b32 s17, s12, 11\ns_cmp_eq_u32 s12, 3\ns_cselect_b32 s17, {126*1024}, s17\ns_mov_b32 s30, 6144\ns_cselect_b32 s30, 2048, s30\ns_add_u32 s28, s28, s17")
    P.e("L_k0_Ac:")
    P.e("s_lshl_b32 s17, s12, 2\nv_add_u32 v13, s17, v5\nv_mul_lo_u32 v13, v13, s20\nv_add_u32 v12, v12, v13")
    P.e("s_mul_i32 s31, s15, 160\ns_mul_i32 s31, s31, s20\ns_add_u32 s31, s31, s21\ns_lshl_b32 s32, s20, 4")
    P.e("s_lshl_b32 s33, s12, 10")
    for k in range(10):
        P.e(f"s_add_u32 m0, s33, {k*4096}")
        if k:
            P.e("s_add_u32 s31, s31, s32")
        P.e("buffer_load_dwordx4 v12, s[8:11], s31 offen lds", tag="d")
    for tt, (sa, sb, sm) in enumerate(((22, 23, 24), (25, 26, 27))):
        a = 14 + tt
        P.e(f"v_min_u32 v{a}, s{sm}, v8\nv_mul_lo_u32 v{a}, v{a}, s{sb}\nv_add_u32 v{a}, s{sa}, v{a}")
        P.e(f"v_lshrrev_b32 v16, 4, v{a}\nv_xor_b32 v16, v16, v9\nv_and_b32 v{a}, 8, v{a}")
        P.e(f"v_lshl_add_u32 v{a}, v16, 4, v{a}\nv_add_u32 v{a}, v{a}, v10")
    for r in range(4):
        P.e(f"v_mov_b32 v{20+r}, 0x3f803f80")
    P.e("s_mul_i32 s18, s15, 5\ns_mul_i32 s17, s18, s30\ns_add_u32 s34, s28, s17\ns_mul_i32 s17, s18, s36\ns_add_u32 s35, s29, s17")
    P.wvm("d")
    P.e("s_barrier")
    stamp(P, "p0", True, 2)
    for tt in range(2):
        for k in range(5):
            d = 32 + (tt * 5 + k) * 4
            P.e(f"ds_read_b64_tr_b16 {V(d, 2)}, v{14+tt} offset:{k*8192}", tag=f"t{tt}{k}")
            P.e(f"ds_read_b64_tr_b16 {V(d+2, 2)}, v{14+tt} offset:{k*8192+1024}", tag=f"t{tt}{k}")
            if tt == 1 and k == 1:
                P.wlg("t04")
    for tt in range(2):
        for k in range(5):
            d = 32 + (tt * 5 + k) * 4
            P.wlg(f"t{tt}{k}")
            P.e(f"buffer_store_dwordx4 {V(d, 4)}, v2, s[4:7], s{34+tt} offen{K0ST}")
            P.e(f"s_add_u32 s{34+tt}, s{34+tt}, s{36 if tt else 30}")
            c = V(24 + 4 * tt, 4)
            P.e(f"{MF} {c}, {V(20, 4)}, {V(d, 4)}, {'0' if k == 0 else c}")
    P.e("s_lshl_b32 s18, s15, 8\ns_mul_i32 s17, s30, 20\ns_add_u32 s17, s17, s18\ns_add_u32 s28, s28, s17\ns_mul_i32 s17, s36, 20\ns_add_u32 s17, s17, s18\ns_add_u32 s29, s29, s17")
    set_exec(P, 0xffff)
    for tt in range(2):
        c = 24 + 4 * tt
        e = 72 + 4 * tt
        P.e(f"v_cvt_pk_bf16_f32 v{e}, v{c}, v{c}\nv_and_b32 v16, 0xffff0000, v{e}\nv_sub_f32 v17, v{c}, v16")
        P.e(f"v_cvt_pk_bf16_f32 v{e+1}, v17, v17\nv_and_b32 v16, 0xffff0000, v{e+1}\nv_sub_f32 v17, v17, v16")
        P.e(f"v_cvt_pk_bf16_f32 v{e+2}, v17, v{c}\nv_mov_b32 v{e+3}, 0")
        P.e(f"buffer_store_dwordx4 {V(e, 4)}, v2, s[4:7], s{28+tt} offen{K0ST}")
    P.e(f"s_mov_b64 exec, -1\ns_cmp_lt_u32 s2, 64\ns_cbranch_scc1 L_arrive\ns_cmp_ge_u32 s2, {128 + NJB}\ns_cbranch_scc1 L_join")
    texts.append(P)

    P = Prog()
    P.e("L_k0_B:")
    P.e("s_sub_u32 s16, s2, 128")
    P.e("s_cmp_lt_u32 s16, 20\ns_cbranch_scc1 L_k0_B2")
    P.e(f"s_sub_u32 s16, s16, 20\ns_mov_b32 s8, s58\ns_and_b32 s9, s59, 0xffff\ns_mov_b32 s10, {1728*640*2}")
    P.e(f"s_mov_b32 s20, {54*5*1024}\ns_mov_b32 s21, {WF4}")
    P.e("s_lshr_b32 s22, s16, 1\ns_and_b32 s23, s16, 1\ns_lshl_b32 s23, s23, 5\ns_mov_b32 s24, 16")
    P.e("s_sub_u32 s17, s16, 32\ns_cmp_ge_u32 s16, 32\ns_cselect_b32 s22, s17, s22\ns_cselect_b32 s23, 64, s23")
    P.e("s_sub_u32 s17, s16, 48\ns_lshl_b32 s17, s17, 1\ns_cmp_ge_u32 s16, 48\ns_cselect_b32 s22, s17, s22\ns_cselect_b32 s23, 96, s23\ns_cselect_b32 s24, 112, s24")
    P.e("s_mul_i32 s17, s22, 112\ns_mul_i32 s18, s22, 96\ns_add_u32 s18, s18, 192\ns_min_u32 s17, s17, s18\ns_add_u32 s17, s17, s23")
    P.e("s_lshl_b32 s18, s12, 2\ns_add_u32 s17, s17, s18\nv_add_u32 v12, s17, v5\nv_add_u32 v13, s24, v12")
    P.e("s_branch L_k0_Bc")
    P.e("L_k0_B2:")
    P.e(f"s_mov_b32 s8, s56\ns_and_b32 s9, s57, 0xffff\ns_mov_b32 s10, {640*640*2}")
    P.e(f"s_mov_b32 s20, {20*5*1024}\ns_mov_b32 s21, {WF2}")
    P.e("s_lshl_b32 s18, s12, 2\nv_add_u32 v14, s18, v5\nv_and_b32 v15, 7, v14\nv_lshrrev_b32 v14, 3, v14")
    P.e("s_lshl_b32 s17, s16, 3\nv_add_u32 v15, s17, v15\nv_mul_u32_u24 v16, 205, v15\nv_lshrrev_b32 v16, 10, v16")
    P.e("v_mul_u32_u24 v17, 5, v16\nv_sub_u32 v17, v15, v17\nv_mul_u32_u24 v16, 20, v16")
    P.e("v_cmp_gt_u32 vcc, 4, v17")
    for k in range(2):
        if k:
            P.e("v_add_u32 v14, 2, v14")
        P.e(f"v_lshl_add_u32 v18, v14, 2, v17\nv_add_u32 v19, 16, v14\nv_cndmask_b32 v18, v19, v18, vcc\nv_add_u32 v{12+k}, v16, v18")
    P.e("L_k0_Bc:")
    for k in range(2):
        P.e(f"v_mul_u32_u24 v{12+k}, 1280, v{12+k}\nv_lshl_add_u32 v{12+k}, v11, 4, v{12+k}")
    P.e("s_lshl_b32 s33, s12, 10")
    for pn in range(5):
        for k in range(2):
            P.e(f"s_add_u32 m0, s33, {40960 + pn*8192 + k*4096}\ns_mov_b32 s31, {pn*256}")
            P.e(f"buffer_load_dwordx4 v{12+k}, s[8:11], s31 offen lds", tag="d")
    P.e("s_mul_i32 s22, s12, 320")
    P.e("v_lshlrev_b32 v14, 4, v8\nv_add_u32 v14, s22, v14\nv_lshlrev_b32 v15, 3, v8\nv_add_u32 v15, s22, v15")
    for cq in range(2):
        for t in range(5):
            a = 20 + cq * 5 + t
            k0 = 160 * cq + (64 * (t // 2) + 8 * (t % 2) if t < 4 else 128)
            P.e(f"v_add_u32 v16, {k0}, {'v14' if t < 4 else 'v15'}")
            P.e("v_bfe_u32 v17, v16, 4, 4\nv_xor_b32 v17, v17, v9\nv_lshrrev_b32 v18, 8, v16\nv_and_b32 v16, 8, v16")
            P.e(f"v_lshl_add_u32 v16, v17, 4, v16\nv_lshl_add_u32 v16, v18, 13, v16\nv_add_u32 v{a}, v16, v10")
    P.e("s_lshl_b32 s17, s12, 1\ns_mul_i32 s17, s17, s20\ns_add_u32 s21, s21, s17\ns_mul_i32 s17, s16, 5120\ns_add_u32 s21, s21, s17")
    P.wvm("d")
    P.e("s_barrier")
    stamp(P, "p0", True, 3)
    for n in range(10):
        d = 32 + 4 * n
        P.e(f"ds_read_b64_tr_b16 {V(d, 2)}, v{20+n} offset:40960", tag=f"t{n}")
        P.e(f"ds_read_b64_tr_b16 {V(d+2, 2)}, v{20+n} offset:41984", tag=f"t{n}")
        if n == 6:
            P.wlg("t3")
    for n in range(10):
        d = 32 + 4 * n
        if n == 4:
            P.e("s_add_u32 s17, s21, 4096")
        if n == 5:
            P.e("s_add_u32 s21, s21, s20")
        if n == 9:
            P.e("s_add_u32 s17, s21, 4096")
        P.wlg(f"t{n}")
        t = n % 5
        P.e(f"buffer_store_dwordx4 {V(d, 4)}, v2, s[4:7], {'s21' if t < 4 else 's17'} offen offset:{(t % 4)*1024}{K0ST}")
    P.e("s_branch L_join")
    texts.append(P)

    P = Prog()
    P.e("L_k0_C:")
    P.e("s_sub_u32 s16, s2, 64")
    P.e(f"s_mov_b32 s8, s52\ns_and_b32 s9, s53, 0xffff\ns_mov_b32 s10, {XSZ}")
    P.e("s_lshl_b32 s17, s12, 2\nv_add_u32 v12, s17, v5\nv_xor_b32 v13, v12, v6\nv_mul_u32_u24 v12, 1280, v12\nv_lshl_add_u32 v12, v13, 4, v12")
    P.e("s_mul_i32 s20, s16, 40960\ns_lshl_b32 s33, s12, 10")
    for ml in range(2):
        for pn in range(5):
            P.e(f"s_add_u32 m0, s33, {ml*20480 + pn*4096}\ns_add_u32 s31, s20, {ml*20480 + pn*256}")
            P.e("buffer_load_dwordx4 v12, s[8:11], s31 offen lds", tag="d")
    for r in range(4):
        P.e(f"v_mov_b32 v{20+r}, 0")
    P.e(f"s_and_b32 s17, s16, 31\ns_mul_i32 s17, s17, {ZSZ//32}\ns_lshr_b32 s18, s16, 5\ns_mul_i32 s18, s18, {LB}\ns_add_u32 s17, s17, s18\ns_add_u32 s17, s17, {KVA}")
    P.e(f"v_lshlrev_b32 v14, 4, v0\nbuffer_store_dwordx4 {V(20, 4)}, v14, s[4:7], s17 offen{K0ST}")
    P.e(f"v_cmp_gt_u32 vcc, {(ZSZ//32 - 4096)//16}, v0\nv_mov_b32 v15, 0x40000000\nv_cndmask_b32 v14, v15, v14, vcc\ns_add_u32 s17, s17, 4096")
    P.e(f"buffer_store_dwordx4 {V(20, 4)}, v14, s[4:7], s17 offen{K0ST}")
    P.e("s_lshr_b32 s22, s12, 1\ns_and_b32 s23, s12, 1\ns_mul_i32 s24, s22, 20480\ns_mul_i32 s25, s23, 40")
    P.e("v_add_u32 v14, s25, v5\nv_lshlrev_b32 v15, 8, v6\nv_add_u32 v15, s24, v15")
    for k in range(10):
        P.e(f"v_add_u32 v16, {4*k}, v14\nv_lshrrev_b32 v17, 4, v16\nv_xor_b32 v16, v16, v6\nv_and_b32 v16, 15, v16")
        P.e(f"v_lshl_add_u32 v16, v16, 4, v15\nv_lshl_add_u32 v{72+k}, v17, 12, v16")
    P.e(f"s_add_u32 s26, s20, s24\ns_mul_i32 s17, s23, 10240\ns_add_u32 s26, s26, s17\ns_add_u32 s26, s26, {XA}")
    P.e("v_mov_b32 v24, 0\nv_mov_b32 v25, 0\nv_mov_b32 v26, 0x3f803f80")
    P.wvm("d")
    P.e("s_barrier")
    stamp(P, "p0", True, 2)
    for k in range(10):
        P.e(f"ds_read_b128 {V(32+4*k, 4)}, v{72+k}", tag=f"t{k}")
    for k in range(10):
        if k and k % 4 == 0:
            P.e("s_add_u32 s26, s26, 4096")
        P.wlg(f"t{k}")
        P.e(f"buffer_store_dwordx4 {V(32+4*k, 4)}, v2, s[4:7], s26 offen offset:{(k % 4)*1024}{K0ST}")
        for r in range(4):
            P.e(f"v_dot2_f32_bf16 v24, v{32+4*k+r}, v26, v24")
            P.e(f"v_dot2_f32_bf16 v25, v{32+4*k+r}, v{32+4*k+r}, v25")
    P.add(allreduce_g(24, 27))
    P.add(allreduce_g(25, 28))
    P.e("v_cmp_eq_u32 vcc, 0, v5\nv_cndmask_b32 v24, 0, v24, vcc\nv_cndmask_b32 v25, 0, v25, vcc")
    P.e(f"s_lshl_b32 s17, s16, 1\ns_add_u32 s17, s17, s22\ns_lshl_b32 s17, s17, 10\ns_lshl_b32 s18, s23, 7\ns_add_u32 s17, s17, s18\ns_add_u32 s17, s17, {STA}")
    P.e("v_lshlrev_b32 v14, 8, v5\nv_lshl_add_u32 v14, v6, 3, v14")
    P.e(f"buffer_store_dwordx2 v[24:25], v14, s[4:7], s17 offen{K0ST}")
    P.e("L_arrive:\ns_waitcnt vmcnt(0)\ns_barrier")
    stamp(P, "p0", True, 3)
    P.e("s_cmp_lg_u32 s12, 0\ns_cbranch_scc1 L_join\nv_mov_b32 v20, 0\nv_mov_b32 v21, 1\ns_mov_b64 exec, 1")
    P.e("global_atomic_add v22, v20, v21, s[46:47] sc0\ns_waitcnt vmcnt(0)\nv_readfirstlane_b32 s17, v22\ns_mov_b64 exec, -1")
    P.e("s_cmp_lg_u32 s17, 127\ns_cbranch_scc1 L_join\ns_mov_b64 exec, 1\nglobal_store_dword v20, v21, s[46:47] offset:128 sc1\ns_mov_b64 exec, -1")
    texts.append(P)
    return texts


def build():
    _nstamp[0] = 0
    k0 = gen_k0()
    Q, P = gen_main()
    ns = max(p.max_regs()["s"] for p in k0 + [Q, P]) + 1
    K = "interleave_layers__linear_attn_block__glu_gated_glu__prompt_kernel"
    body = f".globl {K}\n.p2align 8\n.type {K},@function\n{K}:\n" + "".join(p.finish() for p in k0 + [Q, P]) + "L_exit:\n  s_endpgm\n"
    head = "; generated by tools/gen2.py: one persistent launch: weight re-layout, then (qkv, attn-out, gate/up, down) x 2 layers\n"
    return head + f"; @launch grid=(256,1,1) block=(256,1,1) lds={8*SLOT}" + '\n.amdgcn_target "amdgcn-amd-amdhsa--gfx950"\n.text\n' + body + descriptor(K, 256, 256, ns)


if __name__ == "__main__":
    import argparse
    ap = argparse.ArgumentParser()
    ap.add_argument("-o", default="v2.s")
    ap.add_argument("--stamps", action="store_true")
    ap.add_argument("--clk", action="store_true")
    ap.add_argument("--cfg", default="")
    ap.add_argument("--prof", default=None)
    a = ap.parse_args()
    STAMPS = a.stamps or a.prof is not None
    PROF = a.prof
    if PROF and PROF != "p0":
        STAMP_INS = 's_memtime'
    if a.clk:
        STAMP_INS = "s_memtime"
    for kv in a.cfg.split(","):
        if kv:
            k, v = kv.split("=")
            CFG[k] = float(v) if "." in v else int(v)
    open(a.o, "w").write(build())
    print("written", a.o)
```

```python
import sys, struct
from collections import deque
from asmlib import Prog, Ins, Wait, Virtual, V, A, S, descriptor, TRANS
from gen import f32, LOG2E, MF, allreduce_g, stats_finish, lanemask, set_exec

WF1 = 16384
WF2 = WF1 + 16 * 168 * 1024
WF3 = WF2 + 8 * 100 * 1024
WF4 = WF3 + 16 * 294 * 1024
L0 = WF4 + 8 * 270 * 1024 + 4096
XSZ = 2048 * 640 * 2
XA = L0
PQ = XA + XSZ
XB = PQ + XSZ
HB = XB + XSZ
STA = HB + 2048 * 1728 * 2
STB = STA + 128 * 1024
KVA = STB + 128 * 1024
F0 = KVA + 56 * 1024
F1 = F0 + 32768
F1C = F1 + 16384
F2 = F1C + 32768
F3 = F2 + 32768
ZSZ = F3 + 32768 - KVA
LB = F3 + 32768 - L0
STAMP = L0 + 2 * LB
WS_USED = STAMP + 4 * 512 * 256
PROF = None
assert ZSZ == 204800 and L0 % 4096 == 0 and LB % 4096 == 0
STAMPS = False
STAMP_INS = "s_memrealtime"
OOB = 0x40000000
SLOT = 20480
SPIN = 200000
CFG = dict(pq=0, pc=8, b2=6, xa=8, na=170, fa=152, x3=170, y3=300, m1=7, n1=7, w1=40, h1=0, m3=6, hp=10, ce=263, pe=9, rep=1, r0=48, ldsc=1, w0=2, b0=24, g0=1, cpf=9, g1=2, g3=2, g4=2, b1=6, b3=6, b4=0, la=6, lead4=50, pf4=200, x2=1, x1=1, e3=232, c4=116, nowait3=1, f4=24)

vSTL, vHALF, vPQT, vSTS, vRW0, vRW1, vRR, vAT, vATM, vKVL, vKVW, vE0, vE1, vZF, vPQW, vFC, vFG, vPOLL, vONE, vBW, vBR, vH3, vO16, vO8, vT = range(7, 32)
XR, CE, ONES, PV = 32, 42, 46, 50
WP = 224
sWAVE, sRB, sCG, sMT0, sMT, sCG8, sLAY = 12, 13, 14, 15, 16, 17, 20
sW5, sW1, sW2, sW3, sW4 = 21, 22, 23, 24, 25
sFA, sFB, sFG, sEPS = 26, 27, 28, 29
sX0, sX1, sXT, sDT, sA, sB, sC, sSPIN = 30, 31, 32, 33, 34, 35, 36, 37
sFL, sD1, sD2 = 60, 61, 62
sM8, sMASK = 38, 40
sSTMP = 64
RED = 7 * SLOT
BNC = RED + 13440
KVT = 6 * SLOT


def cost(it):
    if isinstance(it, (Wait, Virtual)):
        return 0
    if isinstance(it, list):
        return sum(cost(x) for x in it)
    t = it.text
    if it.opaque:
        return 0
    if t.startswith("v_mfma"):
        return 12
    if t.startswith(TRANS):
        return 8
    return 4


def I(text, tag=None):
    return [Ins(x.strip(), tag) for x in text.split("\n") if x.strip()]


_nstamp = [0]


def stamp(P, ph=None, fine=False, j=None):
    if STAMPS and (PROF is None and not fine or PROF is not None and PROF == ph):
        if j is None:
            j = _nstamp[0]
            _nstamp[0] += 1
        P.raw(f"{STAMP_INS} s[{sSTMP+2*j}:{sSTMP+2*j+1}]")


def stamp_flush(P):
    if STAMPS:
        P.raw(f"s_cmp_lg_u32 s{sWAVE}, 0\ns_cbranch_scc1 L_nost{len(P.items)}")
        lab = P.items[-1].text.split()[-1]
        P.raw(f"s_cmp_lg_u32 s{sLAY}, 0\ns_cselect_b32 s100, {512*256}, 0\ns_lshl_b32 s101, s2, 8\ns_add_u32 s100, s100, s101\ns_add_u32 s100, s100, {STAMP + 512*256}")
        P.raw(f"v_mov_b32 v{vT}, 0\ns_waitcnt lgkmcnt(0)")
        for j in range(_nstamp[0]):
            P.raw(f"v_mov_b32 v250, s{sSTMP+2*j}\nv_mov_b32 v251, s{sSTMP+2*j+1}\ns_nop 1")
            P.raw(f"buffer_store_dwordx2 v[250:251], v{vT}, s[4:7], s100 offen offset:{8*j}\ns_nop 1")
        P.raw(f"s_waitcnt vmcnt(0)\n{lab}:")


class Chunk:
    def __init__(self, name, sbase, foff, n, slot, event):
        self.name, self.sbase, self.foff, self.n, self.slot, self.event = name, sbase, foff, n, slot, event
        self.q = (n + 3) // 4
        self.tag = "W" + name


class Op:
    def __init__(self, fn, tag, prio, event=None, step=0):
        self.fn, self.tag, self.prio, self.event, self.step = fn, tag, prio, event, step


class Sched:
    dma_ctx = None
    x_ctx = None
    log = []

    def __init__(self, P, name):
        self.P, self.name = P, name
        self.vq, self.aq = [], deque()
        self.events = {None}
        self.marks = set()
        self.now = 0
        self.pend, self.pend_tag, self.rdnext, self.over = [], None, None, 0
        self.lasttr, self.lastw = set(), set()

    def dma(self, ch, prio, step=0):
        for i in range(ch.q):
            def fn(ch=ch, i=i):
                L = []
                Sched.log.append((ch.name, i))
                key = (ch.name, i // 4)
                if Sched.dma_ctx != key:
                    Sched.dma_ctx = key
                    o = (i // 4) * 4096
                    if ch.q == 5:
                        L += I(f"s_add_u32 m0, s{sW5}, {ch.slot*SLOT + o}\ns_add_u32 s{sDT}, s{ch.sbase}, {ch.foff*1024 + o}")
                    else:
                        L += I(f"s_mul_i32 s{sDT}, s{sWAVE}, {ch.q*1024}\ns_add_u32 m0, s{sDT}, {ch.slot*SLOT}\ns_sub_u32 s{sDT}, s{sDT}, s{sW5}")
                        L += I(f"s_add_u32 s{sDT}, s{sDT}, s{ch.sbase}\ns_add_u32 s{sDT}, s{sDT}, {ch.foff*1024}")
                L += I(f"buffer_load_dwordx4 v2, s[4:7], s{sDT} offen offset:{(i % 4)*1024} lds", ch.tag)
                return L
            self.vq.append(Op(fn, ch.tag, prio(i) if callable(prio) else prio + i * 1e-3, ch.event, step))

    def load(self, dst, vaddr, sbase, off, tag, prio, w=4, event=None, step=0):
        def fn():
            L = []
            if off < 4096:
                so = f"s{sbase}"
            else:
                key = (sbase, off >> 12, tag[0])
                if Sched.x_ctx != key:
                    Sched.x_ctx = key
                    L += I(f"s_add_u32 s{sXT}, s{sbase}, {off & ~4095}")
                so = f"s{sXT}"
            return L + I(f"buffer_load_dwordx{w} {dst}, v{vaddr}, s[4:7], {so} offen offset:{off & 4095}{['', ' sc1', ' sc0', ' nt'][CFG['ldsc']]}", tag)
        self.vq.append(Op(fn, tag, prio, event, step))

    def alu(self, items, step=0, event=None):
        for it in items:
            if isinstance(it, str):
                for x in I(it):
                    self.aq.append((x, step, event))
            else:
                self.aq.append((it, step, event))

    def mark(self, name):
        self.aq.append((name, 0, None))

    def start_op(self, op):
        self.vq.remove(op)
        self.pend = op.fn()
        self.pend_tag = op.tag

    def flush_pend(self):
        self.P.add(self.pend)
        self.pend = []

    def emit_op(self, op):
        self.flush_pend()
        self.start_op(op)
        self.flush_pend()

    def next_op(self):
        el = [o for o in self.vq if o.event in self.events and o.step <= self.now]
        return min(el, key=lambda o: o.prio) if el else None

    def burst(self, n):
        self.flush_pend()
        for _ in range(n):
            el = [o for o in self.vq if o.event in self.events and o.prio < 1e5]
            if not el:
                break
            self.emit_op(min(el, key=lambda o: o.prio))

    def force(self, tag):
        if self.pend and self.pend_tag == tag:
            self.flush_pend()
        ops = sorted([o for o in self.vq if o.tag == tag], key=lambda o: o.prio)
        if ops:
            print(f"  [{self.name}] forced {len(ops)} x {tag} at step {self.now}", file=sys.stderr)
        for o in ops:
            assert o.event in self.events, (tag, o.event)
            self.emit_op(o)

    def pop_alu(self, k=0):
        it = self.aq[k][0]
        del self.aq[k]
        if isinstance(it, str):
            self.marks.add(it)
            self.events.add(it)
            return
        if isinstance(it, Wait) and it.cls == "vm":
            self.force(it.tag)
        self.P.add(it)

    def drain_to(self, mark):
        n = 0
        while mark not in self.marks:
            n += not isinstance(self.aq[0][0], (str, Wait))
            self.pop_alu()
        self.over += n

    def drain(self):
        self.flush_pend()
        while self.aq:
            self.pop_alu()

    def ready(self, k):
        return self.aq[k][1] <= self.now and self.aq[k][2] in self.events

    def head_is(self, kind):
        while self.aq and isinstance(self.aq[0][0], str):
            self.pop_alu()
        if not self.aq or not self.ready(0):
            return False
        it = self.aq[0][0]
        if kind == "wait":
            return isinstance(it, Wait)
        return isinstance(it, Ins) and it.kind == "salu"

    def pick(self, slots):
        best = None
        rd, wr = set(), set()
        for k in range(min(len(self.aq), 14)):
            it = self.aq[k][0]
            if not self.ready(k):
                break
            if isinstance(it, str):
                continue
            if isinstance(it, Wait):
                break
            if isinstance(it, list) or it.kind != "valu":
                if k == 0 or (best is None and not rd and not wr):
                    return k
                break
            if not (it.rd & wr or it.wr & wr or it.wr & rd):
                tr = "trans" in it.flags
                if tr and slots >= 2 and not (it.rd & self.lastw):
                    return k
                if not tr and best is None and not (it.rd & self.lasttr):
                    best = k
            rd |= it.rd
            wr |= it.wr
        return best

    def gap(self, scalar_free, slots, allow_v):
        P = self.P
        issued = False
        if allow_v and not self.pend:
            op = self.next_op()
            if op is not None:
                self.start_op(op)
        pre_m0 = False
        if scalar_free:
            if len(self.pend) > 1:
                it = self.pend.pop(0)
                pre_m0 = "m0" in it.wr
                P.add(it)
            elif self.head_is("wait") or self.head_is("salu"):
                self.pop_alu()
                while self.head_is("wait"):
                    self.pop_alu()
        if self.rdnext is not None:
            self.rdnext()
            self.rdnext = None
            slots -= 1
        if allow_v and len(self.pend) == 1 and not pre_m0:
            self.flush_pend()
            slots -= 2
            issued = True
        self.lasttr = set()
        self.lastw = set()
        while slots > 0:
            k = self.pick(slots)
            if k is None:
                break
            it = self.aq[k][0]
            slots -= cost(it) // 4
            if isinstance(it, Ins):
                self.lastw = set(it.wr)
                if "trans" in it.flags:
                    self.lasttr = set(it.wr)
            self.pop_alu(k)
        return issued

    def run(self, steps, chunks, vgap, extra=0, nobar=(), wevery=1):
        P, LA = self.P, CFG["la"]
        seen = set()

        def newchunk(m):
            st = steps[m]
            if "fr" not in st or st["fr"][0] in seen:
                return False
            c = st["fr"][0]
            seen.add(c)
            if c not in nobar:
                self.force(chunks[c].tag)
                P.wvm(chunks[c].tag)
                P.e("s_barrier")
            stamp(P, self.name, True)
            self.events.add(f"{self.name}:{c}")
            return c not in nobar

        def rd(m):
            st = steps[m]
            dst = A(WP + 4 * (m % 8), 4)
            if "fr" in st:
                c, f = st["fr"]
                off = chunks[c].slot * SLOT + f * 1024
                P.e(f"ds_read_b128 {dst}, v{2 + (off >> 16)} offset:{off & 0xffff}", tag=f"R{m}")
            else:
                P.e(st["rd"](dst), tag=f"R{m}")

        def waits(i, upto):
            st = steps[i]
            any_ = False
            if "aw" in st:
                self.drain_to(st["aw"])
            for t in st.get("xw", []):
                self.force(t)
                P.wvm(t)
                any_ = True
            if self.waited < i or any_:
                self.waited = min(upto, n - 1)
                P.wlg(f"R{self.waited}")
                any_ = True
            return any_

        n = len(steps)
        self.now = 0
        self.waited = -1
        for m in range(min(LA, n)):
            newchunk(m)
            rd(m)
        waits(0, 0)
        lastv = -100
        for i, st in enumerate(steps):
            self.now = i
            mfs = st["mf"](A(WP + 4 * (i % 8), 4))
            for k, t in enumerate(mfs):
                P.e(t)
                last = k == len(mfs) - 1
                free, slots = True, 2 + (extra(i) if callable(extra) else extra)
                if k == 0 and i + LA < n and newchunk(i + LA):
                    free, slots = False, slots - 1
                if last and i + 1 < n and waits(i + 1, i + wevery):
                    free = False
                if last and i + LA < n:
                    self.rdnext = lambda m=i + LA: rd(m)
                if self.gap(free, slots, k == 0 and i - lastv >= (vgap(i) if callable(vgap) else vgap)):
                    lastv = i
        self.now = n
        P.e("s_barrier")
        self.events.add(f"{self.name}:end")
        stamp(P, self.name)
        print(f"  [{self.name}] overfill {self.over}, alu left {len(self.aq)}", file=sys.stderr)

    def late(self):
        n = len(self.vq)
        for o in self.vq:
            o.prio = min(o.prio, 9e4)
        self.burst(10 ** 6)
        assert not self.vq
        print(f"  [{self.name}] late ops {n}", file=sys.stderr)


def mk_chunks():
    ch = {}
    s1 = [6, 7, 0, 1, 2, 3, 4, 5, 6]
    e1 = ["p4:9", "p4:10", "p4:11", "p4:12", "p4:13", "p4:end", "p4:end", "p4:8", "p1:2"]
    ch["p1"] = [Chunk(f"1_{c}", sW1, 20 * c, 20 if c < 8 else 8, s1[c], e1[c]) for c in range(9)]
    ch["p2"] = [Chunk(f"2_{c}", sW2, 20 * c, 20, 1 + c, f"p1:{5+c}" if c < 4 else "p1:end") for c in range(5)]
    e3 = ["p1:4", "p2:2", "p2:3", "p2:4"] + ["p2:end"] * 4 + [f"p3:{c-6}" for c in range(8, 15)]
    ch["p3"] = [Chunk(f"3_{c}", sW3, 20 * c, 20 if c < 14 else 14, c % 8, e3[c]) for c in range(15)]
    e4 = [f"p3:{c+9}" for c in range(6)] + ["p3:end"] * 2 + [f"p4:{c-6}" for c in range(8, 14)]
    ch["p4"] = [Chunk(f"4_{c}", sW4, 20 * c, 20 if c < 13 else 10, (15 + c) % 8, e4[c]) for c in range(14)]
    return ch


def flag_items(wtag, wr, stride_reg, off=0):
    return I(wr) + [Wait("vm", wtag)] + I("s_barrier") + I(f"buffer_store_dword v{vONE}, v{stride_reg}, s[4:7], s{sA} offen offset:{off} sc1", "fl")


def handoff(P, sc, wtag, wr, stride_reg, uid, off=0):
    P.add(flag_items(wtag, wr, stride_reg, off))
    stamp(P, "p" + uid)
    sc.late()


def check_items(uid, off, sFL=sFL):
    R = Prog()
    cmp_ = "v_cmp_eq_u32 vcc, 0, v253"
    if off is None:
        cmp_ = "v_min_u32 v253, v252, v253\nv_min3_u32 v253, v253, v254, v255\n" + cmp_
    ld = (f"buffer_load_dword v253, v{vPOLL}, s[4:7], s{sFL} offen offset:{off} sc1" if off is not None
          else f"buffer_load_dwordx4 v[252:255], v2, s[4:7], s{sFL} offen sc1")
    R.e(f"{cmp_}\ns_nop 1\ns_cbranch_vccz L_ok{uid}")
    R.raw(f"s_mov_b32 s{sSPIN}, {SPIN}\nL_sp{uid}:\n{ld}\ns_waitcnt vmcnt(0)")
    R.raw(f"{cmp_}\ns_nop 1\ns_cbranch_vccz L_ok{uid}")
    R.raw(f"s_sub_u32 s{sSPIN}, s{sSPIN}, 1\ns_cmp_lg_u32 s{sSPIN}, 0\ns_cbranch_scc1 L_sp{uid}\nL_ok{uid}:")
    return [Wait("vm", "fp"), R.items]


def poll(P, rdoff, uid, wide=False, label=None, wtag=None):
    P.e(rdoff)
    P.raw(f"s_cmp_lg_u32 s{sWAVE}, 0\ns_cbranch_scc1 L_pd{uid}\ns_mov_b32 s{sSPIN}, {SPIN}\nL_pl{uid}:")
    if wide:
        P.raw(f"buffer_load_dwordx4 v[252:255], v2, s[4:7], s{sB} offen sc1\ns_waitcnt vmcnt(0)\nv_min_u32 v252, v252, v253\nv_min3_u32 v252, v252, v254, v255")
    else:
        P.raw(f"buffer_load_dword v252, v{vPOLL}, s[4:7], s{sB} offen sc1\ns_waitcnt vmcnt(0)")
    P.raw(f"v_cmp_eq_u32 vcc, 0, v252\ns_nop 1\ns_cbranch_vccz L_pd{uid}")
    P.raw(f"s_sub_u32 s{sSPIN}, s{sSPIN}, 1\ns_cmp_lg_u32 s{sSPIN}, 0\ns_cbranch_scc1 L_pl{uid}\nL_pd{uid}:")
    if wtag:
        P.wvm(wtag)
    P.e("s_barrier")
    if label:
        P.e(label)
    stamp(P, "p" + uid)


def x_phase_loads(sc, P, xbuf, stbuf, VST, nt1):
    P.e(f"s_mul_i32 s{sX0}, s{sMT0}, 20480\ns_add_u32 s{sX0}, s{sX0}, s{sLAY}\ns_add_u32 s{sX0}, s{sX0}, {xbuf}\ns_add_u32 s{sX1}, s{sX0}, 20480")
    P.e(f"s_lshl_b32 s{sC}, s{sMT0}, 10\ns_add_u32 s{sC}, s{sC}, s{sLAY}\ns_add_u32 s{sC}, s{sC}, {stbuf}")
    Sched.x_ctx = None
    for k0 in range(0, 20, 2):
        for m in range(2):
            for kb in (k0, k0 + 1):
                sc.load(A((m * 20 + kb) * 4, 4), 2, sX0 + m, kb * 1024, f"X{k0}", k0 * nt1 - 100 + m + (kb - k0) * 0.1)
    for m in range(2):
        for j in range(2):
            sc.load(V(VST + 4 * m + 2 * j, 2), vSTL, sC, m * 1024 + j * 128, "st", 8 * nt1 - 101, w=2)


def phi4(xs, rs, cs, ts, outs):
    L = [f"v_mul_f32 v{t}, v{x}, v{c}" for x, c, t in zip(xs, cs, ts)]
    L += [f"v_fma_f32 v{o}, v{x}, v{r}, s{sEPS}" for x, r, o in zip(xs, rs, outs)]
    L += [f"v_exp_f32 v{t}, v{t} clamp" for t in ts]
    L += [f"v_max_f32 v{o}, s{sEPS}, v{o}" for o in outs]
    L += [f"v_add_f32 v{o}, v{o}, v{t}" for o, t in zip(outs, ts)]
    return L


PAIRS = [(0, 2), (0, 3), (1, 2), (1, 3), (1, 4), (2, 3), (2, 4), (0, None), (1, None), (2, None)]


def red_mask(i, j):
    def valid(g, nn):
        kk = 4 * i + g
        if kk >= 10:
            return False
        if j is None:
            return nn == 0
        cv = 16 * j + nn - 40
        return 0 <= cv < 40 and cv // 20 == kk // 5
    return lanemask(valid)


def phase1(P, ch, first=False):
    sc = Sched(P, "p1")
    ACC, ACQ, VST, VRS, VSD, VC, VEXT, RST, CT, T, PF, QO = PV, PV + 40, PV + 64, PV + 72, PV + 74, PV + 76, PV + 78, PV + 86, PV + 94, PV + 102, PV + 126, PV + 146
    GD = ACC
    x_phase_loads(sc, P, XA, STA, VST, 5)
    if first:
        for c in range(8):
            ch["p1"][c].event = None
            sc.dma(ch["p1"][c], lambda i, c=c: 20 * c - 100 - CFG["w0"] + i * 1e-3)
        P.e(f"s_mul_i32 s{sD1}, s{sMT}, 20480\ns_mul_i32 s{sB}, s{sCG8}, 2560\ns_add_u32 s{sD1}, s{sD1}, s{sB}\ns_add_u32 s{sD1}, s{sD1}, {XA}")
        sc.load(V(XR, 4), 2, sD1, 0, "res", 130)
        sc.load(V(XR + 4, 4), 2, sD1, 1024, "res", 131)
        sc.load(V(XR + 8, 2), vHALF, sD1, 2048, "res", 132, w=2)
        P.e(f"s_lshl_b32 s{sA}, s{sFA}, 2\ns_add_u32 s{sA}, s{sA}, {F0}\ns_and_b32 s{sFL}, s{sFG}, {(CFG['rep']-1)*1024}\ns_add_u32 s{sFL}, s{sFL}, {F0}")
        P.e(f"v_cmp_gt_u32 vcc, {CFG['rep']}, v0\nv_mov_b32 v251, {OOB}\nv_cndmask_b32 v251, v251, v{vFG}, vcc")
        start_wait(P)
        stamp(P, "p1")
        sc.burst(CFG["b0"])
        stamp(P, "p0", True, 6)
    else:
        poll(P, f"s_lshl_b32 s{sB}, s{sFA}, 7\ns_add_u32 s{sB}, s{sB}, {F0 + LB}", "1")
        sc.burst(2 * CFG["b1"])
        for c in range(CFG["m1"], CFG["n1"]):
            ch["p1"][c].event = None
            sc.dma(ch["p1"][c], 20 * c - 100 + CFG["w1"])
    sc.dma(ch["p1"][8], 120)
    sc.dma(ch["p3"][0], 1000, step=105 if first else 0)
    for c in range(5):
        sc.dma(ch["p2"][c], 500 + c, step=105 if first else 0)
    steps = []
    for t0, nt in ((0, 5), (5, 3)):
        for kb in range(21):
            for t in range(t0, t0 + nt):
                def mf(w, kb=kb, t=t):
                    L = []
                    for m in range(2):
                        x = A((m * 20 + kb) * 4, 4) if kb < 20 else V(VEXT + 4 * m, 4)
                        d = V(ACC + (m * 5 + t) * 4, 4) if t < 5 else V(ACQ + (m * 3 + t - 5) * 4, 4)
                        cc = "0" if kb == 0 else d
                        L.append(f"{MF} {d}, {x}, {w}, {cc}" if t < 5 else f"{MF} {d}, {w}, {x}, {cc}")
                    return L
                st = dict(fr=divmod(len(steps), 20), mf=mf)
                if t == 0 and kb % 2 == 0 and kb < 20:
                    st["xw"] = [f"X{kb}"]
                if t == 0 and kb == 20:
                    st["aw"] = "ext"
                steps.append(st)
    if first:
        sc.alu([Ins(f"buffer_store_dword v{vONE}, v251, s[4:7], s{sA} offen sc1", "fl")], step=CFG["r0"])
    sc.alu([Wait("vm", "st")], step=52)
    for m in range(2):
        sc.alu(stats_finish(VST, m, VRS + m, VSD + m, VEXT + 4 * m, T) + [f"v_mul_f32 v{VC+m}, {f32(LOG2E)}, v{VRS+m}"])
    sc.alu([Ins(f"ds_write_b32 v{vBW}, v{VRS+m} offset:{m*64}", "bw") for m in range(2)], event="p1:3")
    if first:
        sc.alu([Ins(f"buffer_load_dwordx4 v[252:255], v2, s[4:7], s{sFL} offen sc1", "fp")], step=84)
    sc.mark("ext")
    sc.alu([Wait("lgkm", "bw")], step=88)
    sc.alu([Ins(f"ds_read_b128 {V(RST+4*m, 4)}, v{vBR} offset:{m*64}", "br") for m in range(2)])
    sc.alu([Wait("lgkm", "br")], step=94)
    sc.alu([f"v_mul_f32 v{CT+k}, {f32(LOG2E)}, v{RST+k}" for k in range(8)])
    if first:
        sc.alu(check_items("0", None), step=98)
        sc.mark("w2")
        steps[104]["aw"] = "w2"
    head = True
    for t in range(5):
        for m in range(2):
            x = [ACC + (m * 5 + t) * 4 + r for r in range(4)]
            rs = [RST + 4 * m + r for r in range(4)]
            cs = [CT + 4 * m + r for r in range(4)]
            ts = [T + 4 * m + r for r in range(4)]
            L = []
            if t < 2:
                L += phi4(x, rs, cs, ts, x)
            elif t == 2:
                o = [T + 8 + 4 * m + r for r in range(4)]
                L += phi4(x, rs, cs, ts, o)
                L += [f"v_mul_f32 v{a}, v{a}, v{r}" for a, r in zip(x, rs)]
                L += [f"v_cndmask_b32 v{a}, v{a}, v{b}, s[{sM8}:{sM8+1}]" for a, b in zip(x, o)]
            else:
                L += [f"v_mul_f32 v{a}, v{a}, v{r}" for a, r in zip(x, rs)]
            L += [f"v_cvt_pk_bf16_f32 v{PF+4*t+2*m}, v{x[0]}, v{x[1]}", f"v_cvt_pk_bf16_f32 v{PF+4*t+2*m+1}, v{x[2]}, v{x[3]}"]
            sc.alu(L, step=106 if head else 0)
            head = False
    for n, (i, j) in enumerate(PAIRS):
        b = V(PF + 4 * j, 4) if j is not None else V(ONES, 4)
        sc.alu([f"{MF} {V(GD+4*n, 4)}, {V(PF+4*i, 4)}, {b}, 0"])
    for n0 in range(0, 10, 2):
        grp = []
        for n in (n0, n0 + 1):
            i, j = PAIRS[n]
            grp += I(f"s_mov_b64 exec, s[{sMASK+2*n}:{sMASK+2*n+1}]")
            if j is None:
                grp += I(f"ds_write_b128 v{vRW0}, {V(GD+4*n, 4)} offset:{640 + i*1344 + 320}", "gw")
            else:
                off = 640 + i * 1344 + (16 * j - 40) * 16 - (320 if i == 2 else 0)
                grp += I(f"ds_write_b128 v{vRW1 if i == 1 else vRW0}, {V(GD+4*n, 4)} offset:{off}", "gw")
        grp += I("s_mov_b64 exec, -1")
        sc.alu([grp])
    sc.alu([Wait("lgkm", "gw"), "s_barrier"])
    for q in range(4):
        sc.alu([Ins(f"ds_read_b32 v{T+4*q+w}, v{vRR} offset:{w*3360 + q*1024}", f"rr{q}") for w in range(4)])
    sc.alu([f"s_mul_i32 s{sC}, s{sCG}, 3360\ns_add_u32 s{sC}, s{sC}, s{sLAY}\ns_add_u32 s{sC}, s{sC}, {KVA}"])
    for q in range(4):
        a = T + 4 * q
        sc.alu([Wait("lgkm", f"rr{q}"), f"v_add_f32 v{a}, v{a}, v{a+1}\nv_add_f32 v{a+2}, v{a+2}, v{a+3}\nv_add_f32 v{a}, v{a}, v{a+2}",
                Ins(f"buffer_atomic_add_f32 v{a}, v{vATM if q == 3 else vAT}, s[4:7], s{sC} offen offset:{q*1024}", "at")])
    fat = flag_items("at", f"s_lshl_b32 s{sA}, s{sFA}, 2\ns_add_u32 s{sA}, s{sA}, s{sLAY}\ns_add_u32 s{sA}, s{sA}, {F1}", vFG)
    if CFG["fa"]:
        sc.alu(fat[:3])
        sc.alu(fat[3:], step=CFG["fa"])
    sc.run(steps, ch["p1"], lambda i: 1 if first or i < CFG["h1"] else CFG["g1"], extra=lambda i: 0 if i <= 105 else CFG["xa"] if i < CFG["na"] else CFG["x1"])
    sc.drain()
    sc.force("res")
    P.e(f"s_mul_i32 s{sC}, s{sCG}, 1280\ns_add_u32 s{sC}, s{sC}, s{sX0}\ns_add_u32 s{sC}, s{sC}, {PQ - XA}")
    for m in range(2):
        q = QO + 6 * m
        for tq in range(3):
            x = [ACQ + (m * 3 + tq) * 4 + r for r in range(4)]
            P.add(phi4(x, [VRS + m] * 4, [VC + m] * 4, [T + 16 + 4 * (tq % 2) + r for r in range(4)], x))
            P.e(f"v_cvt_pk_bf16_f32 v{q+2*tq}, v{x[0]}, v{x[1]}\nv_cvt_pk_bf16_f32 v{q+2*tq+1}, v{x[2]}, v{x[3]}")
            if tq == 1:
                if m == 1:
                    P.e(f"s_add_u32 s{sC}, s{sC}, 20480")
                P.e(f"buffer_store_dwordx4 {V(q, 4)}, v2, s[4:7], s{sC} offen sc1", tag="out")
        P.e(f"buffer_store_dwordx2 {V(q+4, 2)}, v{vPQT}, s[4:7], s{sC} offen offset:1024 sc1", tag="out")
    if not CFG["fa"]:
        P.add(fat)
    P.e(wr_cluster(sFA, F1C))
    stamp(P, "p1")
    assert not sc.pend
    return sc


def resid_epilogue(P, ACC, T, xbuf, stbuf, final=False):
    P.e(f"s_mul_i32 s{sC}, s{sMT}, 20480\ns_mul_i32 s{sA}, s{sCG8}, 2560\ns_add_u32 s{sC}, s{sC}, s{sA}\ns_add_u32 s{sC}, s{sC}, s{sLAY}\ns_add_u32 s{sC}, s{sC}, {xbuf}")
    P.e(f"s_lshl_b32 s{sB}, s{sMT}, 10\ns_lshl_b32 s{sA}, s{sCG8}, 7\ns_add_u32 s{sB}, s{sB}, s{sA}\ns_add_u32 s{sB}, s{sB}, s{sLAY}\ns_add_u32 s{sB}, s{sB}, {stbuf}")
    P.e(f"v_mov_b32 v{T}, 0\nv_mov_b32 v{T+1}, 0")
    for k0 in (0, 4, 8):
        ks = range(k0, min(k0 + 4, 10))
        for k in ks:
            P.e(f"v_lshlrev_b32 v{T+4+2*(k%4)}, 16, v{XR+k}\nv_and_b32 v{T+5+2*(k%4)}, 0xffff0000, v{XR+k}")
        for k in ks:
            P.e(f"v_pk_add_f32 {V(T+4+2*(k%4), 2)}, {V(T+4+2*(k%4), 2)}, {V(ACC+2*k, 2)}")
        for k in ks:
            P.e(f"v_cvt_pk_bf16_f32 v{XR+k}, v{T+4+2*(k%4)}, v{T+5+2*(k%4)}")
        if final:
            continue
        if k0 < 8:
            P.e(f"buffer_store_dwordx4 {V(XR+k0, 4)}, v2, s[4:7], s{sC} offen offset:{k0*256} sc1", tag="out")
        else:
            P.e(f"buffer_store_dwordx2 {V(XR+8, 2)}, v{vHALF}, s[4:7], s{sC} offen offset:2048 sc1", tag="out")
    if final:
        P.e(f"s_mul_i32 s{sA}, s{sMT}, 20480\ns_mul_i32 s{sB}, s{sCG8}, 160\ns_add_u32 s{sA}, s{sA}, s{sB}")
        P.e(f"buffer_store_dwordx4 {V(XR, 4)}, v{vO16}, s[8:11], s{sA} offen")
        P.e(f"buffer_store_dwordx4 {V(XR+4, 4)}, v{vO16}, s[8:11], s{sA} offen offset:64")
        P.e(f"buffer_store_dwordx2 {V(XR+8, 2)}, v{vO8}, s[8:11], s{sA} offen offset:128")
        return
    for k in range(10):
        P.e(f"v_dot2_f32_bf16 v{T}, v{XR+k}, v{ONES}, v{T}")
        P.e(f"v_dot2_f32_bf16 v{T+1}, v{XR+k}, v{XR+k}, v{T+1}")
    a, b = allreduce_g(T, T + 2), allreduce_g(T + 1, T + 3)
    for x, y in zip(a, b):
        P.e(x)
        P.e(y)
    P.e(f"buffer_store_dwordx2 {V(T, 2)}, v{vSTS}, s[4:7], s{sB} offen sc1", tag="out")


def wr_cluster(sf, F):
    return (f"s_lshr_b32 s{sA}, s{sf}, 4\ns_lshl_b32 s{sA}, s{sA}, 11\ns_and_b32 s{sB}, s{sf}, 15\ns_lshl_b32 s{sB}, s{sB}, 2\n"
            f"s_add_u32 s{sA}, s{sA}, s{sB}\ns_add_u32 s{sA}, s{sA}, s{sLAY}\ns_add_u32 s{sA}, s{sA}, {F}")


def rd_cluster(sf, F):
    return f"s_lshl_b32 s{sB}, s{sf}, 7\ns_add_u32 s{sB}, s{sB}, s{sLAY}\ns_add_u32 s{sB}, s{sB}, {F}"


def phase2(P, ch, prev):
    sc = Sched(P, "p2")
    OR, ACC, DT, T = PV, PV + 80, PV + 100, PV + 132
    for r in range(4):
        P.e(f"v_mov_b32 v{DT+r}, 0")
    for k in range(10):
        P.e(f"ds_write_b128 v{vZF}, {V(DT, 4)} offset:{k*4096}", tag="z")
    P.e(f"s_add_u32 s{sX0}, s{sLAY}, {KVA}")
    P.e(f"s_mul_i32 s{sX1}, s{sMT}, 20480\ns_add_u32 s{sX1}, s{sX1}, s{sLAY}\ns_add_u32 s{sX1}, s{sX1}, {PQ}")
    P.e(rd_cluster(sFB, F1C).replace(f"s{sB}", f"s{sFL}"))
    P.e(f"s_add_u32 s{sB}, s{sFG}, s{sLAY}\ns_add_u32 s{sB}, s{sB}, {F1}")
    P.e(f"buffer_load_dwordx4 v[252:255], v2, s[4:7], s{sB} offen sc1", tag="fp")
    P.wlg("z")
    P.wvm("out")
    P.e("s_barrier")
    P.e(f"buffer_store_dword v{vONE}, v{vFC}, s[4:7], s{sA} offen sc1", tag="fl")
    P.add(check_items("2k", None, sB))
    stamp(P, "p2")
    for rr in range(16):
        if rr:
            P.e(f"s_add_u32 s{sX0}, s{sX0}, 3360")
        P.e(f"buffer_load_dwordx4 {V(OR+4*rr, 4)}, v{vKVL}, s[4:7], s{sX0} offen sc1", tag=f"kv{rr}")
    Sched.dma_ctx = None
    for o in prev.vq:
        o.prio, o.event = 40 + o.prio % 1, None
    sc.vq = prev.vq
    Sched.x_ctx = None
    for h in range(32):
        sc.load(A(4 * h, 4), vPQW, sX1, (5 * h // 2) * 256, f"pq{h}", h)
    for rr in range(16):
        if rr == CFG["pq"]:
            P.e(f"buffer_load_dword v253, v{vPOLL}, s[4:7], s{sFL} offen sc1", tag="fp")
        if rr == CFG["pc"]:
            P.add(check_items("2", 0))
            sc.burst(CFG["b2"])
        P.wvm(f"kv{rr}")
        a = OR + 4 * rr
        P.e(f"v_cvt_pk_bf16_f32 v{a}, v{a}, v{a+1}\nv_cvt_pk_bf16_f32 v{a+1}, v{a+2}, v{a+3}")
        P.e(f"ds_write_b64 v{vKVW}, {V(a, 2)} offset:{rr*2560}", tag="kw")
        if rr >= CFG["pc"]:
            sc.burst(1)
    P.wlg("kw")
    P.e("s_barrier")
    stamp(P, "p2")
    for c in range(1, CFG["m3"]):
        sc.dma(ch["p3"][c], 1000 + c)
    steps = []
    nw = 0

    def wstep(n):
        kb, t = divmod(n, 5)

        def mf(w):
            d = V(ACC + 4 * t, 4)
            return [f"{MF} {d}, {w}, {V(OR+4*kb, 4)}, {'0' if kb == 0 else d}"]
        st = dict(fr=divmod(n, 20), mf=mf)
        if t == 0:
            st["aw"] = f"o{(8*kb+7)//5}"
        return st

    for h in range(32):
        d = DT + 8 * (h % 4)
        for j in range(2):
            st = dict(rd=lambda dst, h=h, j=j: f"ds_read_b128 {dst}, v{vE0+j} offset:{h*1280}",
                      mf=lambda w, h=h, j=j, d=d: [f"{MF} {V(d+4*j, 4)}, {w}, {A(4*h, 4)}, {V(CE, 4) if j else '0'}"])
            if j == 0:
                st["xw"] = [f"pq{h}"]
                if h >= 3:
                    st["aw"] = f"o{h-3}"
            steps.append(st)
        L = [f"v_rcp_f32 v{d+5}, v{d+5}"] + [f"v_mul_f32 v{d+i}, v{d+i}, v{d+5}" for i in range(5)]
        n0 = 5 * h
        if h % 2 == 0:
            L += [f"v_cvt_pk_bf16_f32 v{OR+n0//2}, v{d}, v{d+1}", f"v_cvt_pk_bf16_f32 v{OR+n0//2+1}, v{d+2}, v{d+3}"]
        else:
            dp = DT + 8 * ((h - 1) % 4)
            L += [f"v_cvt_pk_bf16_f32 v{OR+n0//2}, v{dp+4}, v{d}", f"v_cvt_pk_bf16_f32 v{OR+n0//2+1}, v{d+1}, v{d+2}",
                  f"v_cvt_pk_bf16_f32 v{OR+n0//2+2}, v{d+3}, v{d+4}"]
        sc.alu(L, step=len(steps) + 1)
        sc.mark(f"o{h}")
        lim = min(100, int(round((h - 1) * 100 / 32)))
        while nw < lim and (8 * (nw // 5) + 7) // 5 <= h - 2:
            steps.append(wstep(nw))
            nw += 1
    while nw < 100:
        steps.append(wstep(nw))
        nw += 1
    sc.run(steps, ch["p2"], 2, extra=CFG["x2"], nobar=(0, 1), wevery=2)
    sc.drain()
    resid_epilogue(P, ACC, T, XB, STB)
    handoff(P, sc, "out", wr_cluster(sFB, F2), vFC, "2")


def hreg(kb):
    n = CFG["hp"]
    return A(160 + 4 * kb if kb < n else 4 * (kb - n), 4)


def h_loads(sc, kbs, **kw):
    for kb in kbs:
        sc.load(hreg(kb), 2, sX0, kb * 1024, f"H{kb}", **dict(dict(prio=kb * 5 - 50, step=kb * 5 - CFG["lead4"], event="late" if kb >= 32 else None), **kw))


def phase3(P, ch):
    sc = Sched(P, "p3")
    ACC, VST, VRS, VSD, VC, VEXT, T, HO = PV, PV + 112, PV + 120, PV + 122, PV + 124, PV + 126, PV + 134, PV + 142
    x_phase_loads(sc, P, XB, STB, VST, 6)
    poll(P, rd_cluster(sFA, F2), "3")
    sc.burst(2 * CFG["b3"])
    sc.events.add("p2:end")
    for c in range(CFG["m3"], 15):
        sc.dma(ch["p3"][c], 20 * c - 60)
    for c in range(8):
        sc.dma(ch["p4"][c], 1000 + c)
    steps = []
    gend = {}
    for p0, npair in ((0, 3), (3, 1), (4, 2), (6, 1)):
        for kb in range(21):
            for t in range(2 * p0, 2 * (p0 + npair)):
                def mf(w, kb=kb, t=t):
                    L = []
                    for m in range(2):
                        x = A((m * 20 + kb) * 4, 4) if kb < 20 else V(VEXT + 4 * m, 4)
                        d = V(ACC + m * 56 + t * 4, 4)
                        L.append(f"{MF} {d}, {w}, {x}, {'0' if kb == 0 else d}")
                    return L
                st = dict(fr=divmod(len(steps), 20), mf=mf)
                if t == 0 and kb % 2 == 0 and kb < 20:
                    st["xw"] = [f"X{kb}"]
                if t == 0 and kb == 20:
                    st["aw"] = "ext"
                steps.append(st)
        for p in range(p0, p0 + npair):
            gend[p] = len(steps)
    sc.alu([Wait("vm", "st")], step=64)
    for m in range(2):
        sc.alu(stats_finish(VST, m, VRS + m, VSD + m, VEXT + 4 * m, T) + [f"v_mul_f32 v{VC+m}, {f32(-LOG2E)}, v{VRS+m}"])
    sc.mark("ext")
    sc.alu([f"s_lshl_b32 s{sA}, s{sCG}, 11\ns_mul_i32 s{sC}, s{sMT0}, 55296\ns_add_u32 s{sC}, s{sC}, s{sA}\ns_add_u32 s{sC}, s{sC}, s{sLAY}\ns_add_u32 s{sC}, s{sC}, {HB}\ns_add_u32 s{sD1}, s{sC}, 55296",
            f"s_lshl_b32 s{sA}, s{sCG}, 10\ns_sub_u32 s{sD2}, 32768, s{sA}"])

    def epi(p, m):
        g = ACC + m * 56 + 8 * p
        u = g + 4
        L = [f"v_mul_f32 v{g+r}, v{g+r}, v{VC+m}" for r in range(4)]
        L += [f"v_exp_f32 v{g+r}, v{g+r}" for r in range(4)]
        L += [f"v_fma_f32 v{g+r}, v{g+r}, v{VSD+m}, v{VSD+m}" for r in range(4)]
        L += [f"v_rcp_f32 v{g+r}, v{g+r}" for r in range(4)]
        L += [f"v_mul_f32 v{u+r}, v{u+r}, v{g+r}" for r in range(4)]
        o = HO + m * 14 + 2 * p
        L += [f"v_cvt_pk_bf16_f32 v{o}, v{u}, v{u+1}", f"v_cvt_pk_bf16_f32 v{o+1}, v{u+2}, v{u+3}"]
        L = [Ins(x) for x in L]
        so = sD1 if m else sC
        if p % 2 == 1:
            L.append(Ins(f"buffer_store_dwordx4 {V(o-2, 4)}, v2, s[4:7], s{so} offen offset:{1024 if p == 3 else 0} sc1", "outE" if p < 4 else "out"))
        if p == 6:
            L.append(Ins(f"buffer_store_dwordx2 {V(o, 2)}, v{vH3}, s[4:7], s{so} offen sc1", "out"))
        return L

    fp = Ins(f"buffer_load_dword v253, v{vPOLL}, s[4:7], s{sFL} offen sc1", "fp")
    for p in range(6):
        for m in range(2):
            if CFG["hp"] and 2 * p + m == CFG["pe"]:
                sc.alu([fp], step=CFG["ce"] - 10)
            if CFG["hp"] and 2 * p + m == CFG["pe"] + 1:
                sc.alu(check_items("4e", 0), step=CFG["ce"])
                sc.mark("early")
            sc.alu(epi(p, m), step=gend[p] + 1)
        if p == 3:
            sc.alu([f"s_add_u32 s{sC}, s{sC}, s{sD2}\ns_add_u32 s{sD1}, s{sD1}, s{sD2}\ns_lshr_b32 s{sD2}, s{sD2}, 1"])
            fl = flag_items("outE", wr_cluster(sFA, F3), vFC)
            k = [isinstance(x, Wait) for x in fl].index(True)
            sc.alu(fl[:k])
            sc.alu(fl[k:], step=CFG["e3"])
            sc.alu([rd_cluster(sFB, F3).replace(f"s{sB}", f"s{sFL}"), f"s_mul_i32 s{sX0}, s{sMT}, 55296\ns_add_u32 s{sX0}, s{sX0}, s{sLAY}\ns_add_u32 s{sX0}, s{sX0}, {HB}"])
    sc.alu([f"s_add_u32 s{sC}, s{sC}, s{sD2}\ns_add_u32 s{sD1}, s{sD1}, s{sD2}"])
    h_loads(sc, range(CFG["hp"]), prio=900, step=0, event="early")
    sc.run(steps, ch["p3"], lambda i: 1 if i > CFG["ce"] else CFG["g3"], extra=lambda i: 1 if 126 < i < CFG["x3"] or i > CFG["y3"] else 0)
    sc.drain()
    if CFG["hp"]:
        sc.burst(len([o for o in sc.vq if o.tag[0] == "H"]))
    else:
        P.add(fp)
    a, b = epi(6, 0), epi(6, 1)
    for k in range(0, 20, 4):
        P.add(a[k:k + 4] + b[k:k + 4])
    P.add(a[20:] + b[20:])
    P.add(flag_items("out", "", vFC, 64)) if not CFG["nowait3"] else None
    stamp(P, "p3")
    return sc


def phase4(P, ch, prev):
    sc = Sched(P, "p4")
    sc.events |= {e for e in prev.events if e and e.startswith("p3:")}
    for o in prev.vq:
        o.prio = 60 + (o.prio - 1000)
    sc.vq, sc.pend, sc.pend_tag = prev.vq, prev.pend, prev.pend_tag
    ACC, T = PV, PV + 20
    h_loads(sc, range(CFG["hp"], 54))
    if not CFG["hp"]:
        P.add(check_items("4e", 0))
    stamp(P, "p4")
    sc.burst(CFG["b4"])
    if CFG["nowait3"]:
        sc.alu(flag_items("out", "", vFC, 64), step=CFG["f4"])
    sc.alu([Ins(f"buffer_load_dword v253, v{vPOLL}, s[4:7], s{sFL} offen offset:64 sc1", "fp")], step=CFG["c4"] - 24)
    sc.alu(check_items("4", 64), step=CFG["c4"])
    sc.mark("late")
    for c in range(8, 14):
        sc.dma(ch["p4"][c], 20 * c - 60)
    for c in list(range(CFG["m1"])) + list(range(CFG["n1"], 8)):
        sc.dma(ch["p1"][c], 1000 + c, step=CFG["pf4"])
    steps = []
    for kb in range(54):
        for t in range(5):
            def mf(w, kb=kb, t=t):
                d = V(ACC + 4 * t, 4)
                return [f"{MF} {d}, {w}, {hreg(kb)}, {'0' if kb == 0 else d}"]
            st = dict(fr=divmod(len(steps), 20), mf=mf)
            if t == 0:
                st["xw"] = [f"H{kb}"]
            steps.append(st)
    sc.run(steps, ch["p4"], CFG["g4"], wevery=2)
    P.e(f"s_cmp_lg_u32 s{sLAY}, 0\ns_cbranch_scc1 L_final")
    resid_epilogue(P, ACC, T, XA + LB, STA + LB)
    handoff(P, sc, "out", wr_cluster(sFB, F0 + LB), vFC, "4")
    stamp_flush(P)
    P.e(f"s_mov_b32 s{sLAY}, {LB}\ns_branch L_layer\nL_final:")
    resid_epilogue(P, ACC, T, 0, 0, final=True)
    P.e("s_waitcnt vmcnt(0)")
    stamp_flush(P)
    P.e("s_endpgm")


def start_wait(Q):
    Q.raw(f"s_cmp_lg_u32 s{sWAVE}, 0\ns_cbranch_scc1 L_pd0\ns_mov_b32 s{sSPIN}, {SPIN}\nL_pl0:")
    Q.raw(f"global_load_dword v252, v{vT}, s[{sDBG}:{sDBG+1}] offset:128 sc1\ns_waitcnt vmcnt(0)\nv_cmp_eq_u32 vcc, 0, v252\ns_nop 1\ns_cbranch_vccz L_pd0")
    Q.raw(f"s_sub_u32 s{sSPIN}, s{sSPIN}, 1\ns_cmp_lg_u32 s{sSPIN}, 0\ns_cbranch_scc1 L_pl0\nL_pd0:")
    Q.e("s_waitcnt vmcnt(0)\ns_barrier")
    stamp(Q, "p0", True, 5)


def gen_main():
    ch = mk_chunks()
    Q = Prog()
    P = Prog()
    Sched.dma_ctx = None
    q0 = 4
    if PROF == "p0":
        _nstamp[0] = 7
    n0 = _nstamp[0]
    sc1 = phase1(P, ch)
    left = sorted(o.tag for o in sc1.vq)
    P.e("L_p2:")
    phase2(P, ch, sc1)
    phase4(P, ch, phase3(P, ch))
    order = [x for x in Sched.log if x[0][0] == "1" and not CFG["m1"] <= int(x[0][2:]) < CFG["n1"] and x[0] != "1_8"]
    assert len(order) == 5 * (8 - CFG["n1"] + CFG["m1"])
    P.items = [Ins(".p2align 6"), Ins("L_layer:")] + [Virtual("W" + x[0]) for x in order] + P.items
    Q.e("L_join:")
    stamp(Q, "p0", True, q0)
    Q.e(f"s_mov_b32 s8, s44\ns_and_b32 s9, s45, 0xffff\ns_mov_b32 s10, {XSZ}\ns_mov_b64 s[{sDBG}:{sDBG+1}], s[46:47]")
    Q.e(f"s_and_b32 s{sA}, s2, 7\ns_lshr_b32 s{sB}, s2, 3\ns_and_b32 s{sC}, s{sB}, 3\ns_lshr_b32 s{sCG8}, s{sB}, 2")
    Q.e(f"s_lshr_b32 s{sRB}, s{sA}, 1\ns_lshl_b32 s{sRB}, s{sRB}, 2\ns_add_u32 s{sRB}, s{sRB}, s{sC}")
    Q.e(f"s_and_b32 s{sCG}, s{sA}, 1\ns_lshl_b32 s{sCG}, s{sCG}, 3\ns_add_u32 s{sCG}, s{sCG}, s{sCG8}")
    Q.e(f"s_mul_i32 s{sW5}, s{sWAVE}, 5120\ns_mul_i32 s{sW1}, s{sCG}, {168*1024}\ns_add_u32 s{sW1}, s{sW1}, s{sW5}\ns_add_u32 s{sW1}, s{sW1}, {WF1}")
    Q.e(f"s_lshl_b32 s{sA}, s{sA}, 2\ns_add_u32 s{sA}, s{sA}, s{sC}")
    Q.e(f"s_lshl_b32 s{sMT}, s{sA}, 2\ns_add_u32 s{sMT}, s{sMT}, s{sWAVE}")
    Q.e(f"s_lshl_b32 s{sFB}, s{sA}, 3\ns_add_u32 s{sFB}, s{sFB}, s{sCG8}")
    Q.e(f"s_lshl_b32 s{sFA}, s{sRB}, 4\ns_add_u32 s{sFA}, s{sFA}, s{sCG}")
    Q.e(f"s_lshl_b32 s{sMT0}, s{sRB}, 3\ns_lshl_b32 s{sB}, s{sWAVE}, 1\ns_add_u32 s{sMT0}, s{sMT0}, s{sB}")
    Q.e(f"s_and_b32 s{sFG}, s2, 15\ns_lshl_b32 s{sFG}, s{sFG}, 10\ns_mov_b32 s{sEPS}, {f32(1e-6)}\ns_mov_b32 s{sLAY}, 0")
    for r, base, n, cg in ((sW2, WF2, 100, sCG8), (sW3, WF3, 294, sCG), (sW4, WF4, 270, sCG8)):
        Q.e(f"s_mul_i32 s{r}, s{cg}, {n*1024}\ns_add_u32 s{r}, s{r}, {base}\ns_add_u32 s{r}, s{r}, s{sW5}")
    Q.e("v_add_u32 v3, 0x10000, v2\nv_add_u32 v4, 0x20000, v2")
    Q.e(f"v_mov_b32 v{vT}, {OOB}")
    Q.e(f"v_lshlrev_b32 v{vSTL}, 8, v5\nv_lshl_add_u32 v{vSTL}, v6, 3, v{vSTL}")
    Q.e(f"v_lshrrev_b32 v{vHALF}, 1, v5\nv_lshlrev_b32 v{vHALF}, 8, v{vHALF}\nv_lshl_add_u32 v{vHALF}, v6, 4, v{vHALF}")
    Q.e(f"v_and_b32 v{vPQT}, 1, v5\nv_lshl_add_u32 v{vHALF}, v{vPQT}, 3, v{vHALF}")
    Q.e(f"v_cmp_gt_u32 vcc, 32, v1\nv_cndmask_b32 v{vPQT}, v{vT}, v{vHALF}, vcc")
    Q.e(f"v_cmp_gt_u32 vcc, 16, v1\nv_lshlrev_b32 v{vSTS}, 3, v6\nv_cndmask_b32 v{vSTS}, v{vT}, v{vSTS}, vcc")
    Q.e("v_cmp_gt_u32 vcc, 16, v0")
    Q.e(f"v_lshlrev_b32 v{vFC}, 7, v1\nv_cndmask_b32 v{vFC}, v{vT}, v{vFC}, vcc\nv_lshlrev_b32 v{vFG}, 10, v1\nv_cndmask_b32 v{vFG}, v{vT}, v{vFG}, vcc")
    Q.e(f"v_lshlrev_b32 v{vPOLL}, 2, v6\nv_mov_b32 v{vONE}, 1")
    Q.e(f"v_cmp_gt_u32 vcc, 48, v1\nv_cndmask_b32 v{vPQW}, v{vT}, v2, vcc")
    Q.e(f"s_cmp_lt_u32 s{sCG}, 12\ns_cselect_b32 s{sB}, 0, {OOB}\nv_add_u32 v{vH3}, s{sB}, v{vHALF}")
    Q.e(f"v_mul_u32_u24 v{vO8}, 1280, v6\nv_lshl_add_u32 v{vO16}, v5, 4, v{vO8}\nv_lshl_add_u32 v{vO8}, v5, 3, v{vO8}")
    Q.e(f"s_mul_i32 s{sB}, s{sWAVE}, 3360\ns_add_u32 s{sB}, s{sB}, {RED - 640}")
    Q.e(f"v_mul_u32_u24 v{vRW0}, 336, v5\nv_lshl_add_u32 v{vRW0}, v6, 4, v{vRW0}\nv_add_u32 v{vRW0}, s{sB}, v{vRW0}")
    Q.e(f"v_min_u32 v{vRW1}, 1, v5\nv_mul_u32_u24 v{vRW1}, 320, v{vRW1}\nv_sub_u32 v{vRW1}, v{vRW0}, v{vRW1}")
    Q.e(f"v_lshlrev_b32 v{vAT}, 2, v0\nv_add_u32 v{vRR}, {RED}, v{vAT}\nv_cmp_gt_u32 vcc, 72, v0\nv_cndmask_b32 v{vATM}, v{vT}, v{vAT}, vcc")
    Q.e(f"s_lshl_b32 s{sB}, s{sWAVE}, 7\ns_add_u32 s{sB}, s{sB}, {BNC}\nv_lshl_add_u32 v{vBW}, v6, 2, s{sB}\nv_lshl_add_u32 v{vBR}, v5, 4, s{sB}")
    mk = lanemask(lambda g, i: i < 8)
    Q.e(f"s_mov_b32 s{sM8}, 0x{mk & 0xffffffff:08x}\ns_mov_b32 s{sM8+1}, 0x{mk >> 32:08x}")
    for n, (i, j) in enumerate(PAIRS):
        mk = red_mask(i, j)
        Q.e(f"s_mov_b32 s{sMASK+2*n}, 0x{mk & 0xffffffff:08x}\ns_mov_b32 s{sMASK+2*n+1}, 0x{mk >> 32:08x}")
    a, b, c, d, e = PV, PV + 1, PV + 2, PV + 3, PV + 4
    Q.e(f"s_lshr_b32 s{sA}, s{sWAVE}, 1\ns_and_b32 s{sB}, s{sWAVE}, 1\ns_lshl_b32 s{sB}, s{sB}, 6\nv_add_u32 v{a}, s{sB}, v1")
    Q.e(f"v_mul_u32_u24 v{b}, 3121, v{a}\nv_lshrrev_b32 v{b}, 16, v{b}\nv_mul_u32_u24 v{c}, 21, v{b}\nv_sub_u32 v{c}, v{a}, v{c}")
    Q.e(f"s_mul_i32 s{sB}, s{sA}, 1680\nv_lshl_add_u32 v{vKVL}, v{a}, 4, s{sB}")
    Q.e(f"v_add_u32 v{b}, s{sA}, v{b}\nv_lshrrev_b32 v{d}, 1, v{b}\nv_and_b32 v{b}, 1, v{b}")
    Q.e(f"v_lshlrev_b32 v{e}, 8, v{d}\nv_lshlrev_b32 v{d}, 7, v{d}\nv_add_u32 v{d}, 512, v{d}\nv_cmp_gt_u32 vcc, 16, v{c}\nv_cndmask_b32 v{d}, v{d}, v{e}, vcc")
    Q.e(f"v_lshl_add_u32 v{d}, v{c}, 4, v{d}\nv_lshl_add_u32 v{d}, v{b}, 3, v{d}")
    Q.e(f"v_cmp_gt_u32 vcc, 105, v{a}\nv_mov_b32 v{e}, 1152\nv_cndmask_b32 v{d}, v{e}, v{d}, vcc\nv_cndmask_b32 v{vKVL}, v{vT}, v{vKVL}, vcc")
    Q.e(f"s_mul_i32 s{sB}, s{sA}, 1280\ns_add_u32 s{sB}, s{sB}, {KVT}\nv_add_u32 v{vKVW}, s{sB}, v{d}")
    Q.e(f"v_lshlrev_b32 v{vZF}, 4, v0\nv_add_u32 v{vZF}, {KVT}, v{vZF}")
    Q.e(f"v_and_b32 v{c}, 7, v6\nv_lshlrev_b32 v{c}, 4, v{c}\nv_add_u32 v{c}, 1152, v{c}")
    Q.e(f"v_and_b32 v{b}, 3, v6\nv_lshrrev_b32 v{d}, 2, v6\nv_cmp_eq_u32 vcc, 0, v{b}\nv_cndmask_b32 v{b}, 4, v{d}, vcc")
    Q.e(f"v_lshlrev_b32 v{b}, 4, v{b}\nv_lshl_add_u32 v{b}, v5, 7, v{b}\nv_add_u32 v{b}, 768, v{b}")
    Q.e(f"v_cmp_eq_u32 vcc, 3, v5\nv_cndmask_b32 v{b}, v{b}, v{c}, vcc\nv_add_u32 v{vE1}, {KVT}, v{b}")
    Q.e(f"v_cndmask_b32 v{b}, v2, v{c}, vcc\nv_add_u32 v{vE0}, {KVT}, v{b}")
    Q.e(f"v_mov_b32 v{CE}, 0\nv_mov_b32 v{CE+1}, s{sEPS}\nv_mov_b32 v{CE+2}, 0\nv_mov_b32 v{CE+3}, 0")
    for r in range(4):
        Q.e(f"v_mov_b32 v{ONES+r}, 0x3f803f80")
    Q.e(f"v_mov_b32 v{vT}, 0")
    Sched.dma_ctx = None
    n1 = _nstamp[0]
    _nstamp[0] = n0
    sc0 = phase1(Q, ch, True)
    _nstamp[0] = n1
    assert left == sorted(o.tag for o in sc0.vq), left
    Q.e("s_branch L_p2")
    return Q, P


K0ST = " sc1"
sDBG = 18


def k0_prologue(P):
    P.e("s_cmp_ge_u32 s2, 256\ns_cbranch_scc1 L_exit")
    stamp(P)
    stamp(P, "p0", True, 0)
    P.e("s_load_dwordx2 s[4:5], s[0:1], 72", tag="ka")
    P.e("v_lshrrev_b32 v7, 6, v0\nv_and_b32 v1, 63, v0\nv_readfirstlane_b32 s12, v7\nv_lshlrev_b32 v2, 4, v1\nv_lshrrev_b32 v5, 4, v1\nv_and_b32 v6, 15, v1")
    P.e(f"s_mov_b32 s6, {WS_USED}\ns_mov_b32 s7, 0x20000")
    if CFG.get("cpf"):
        P.e(f"s_getpc_b64 s[40:41]\nL_pc:\ns_add_u32 s40, s40, L_join-L_pc\ns_addc_u32 s41, s41, 0")
        P.e(f"s_lshr_b32 s42, s2, 3\ns_lshl_b32 s42, s42, 12\ns_min_u32 s42, s42, L_exit-L_join-4096\nv_lshl_add_u32 v90, v0, 4, s42")
        P.e("global_load_dwordx4 v[92:95], v90, s[40:41]")


K0_LDS = 40 * 1024
NJ1, NJ3, NJB, NJC = 64, 128, 74, 64


def gen_k0():
    texts = []
    mx = {"v": 0, "s": 0}
    P = Prog()
    k0_prologue(P)
    P.e("s_load_dwordx4 s[52:55], s[0:1], 0", tag="ka")
    P.e("s_load_dwordx2 s[56:57], s[0:1], 16", tag="ka")
    P.e("s_load_dwordx4 s[60:63], s[0:1], 32", tag="ka")
    P.e("s_load_dwordx2 s[58:59], s[0:1], 48", tag="ka")
    P.e("s_load_dwordx4 s[44:47], s[0:1], 56", tag="ka")
    P.e("s_mov_b32 s11, 0x20000")
    P.e("v_lshrrev_b32 v7, 2, v6\nv_and_b32 v8, 3, v6")
    P.e("v_and_b32 v9, 1, v5\nv_lshl_add_u32 v9, v9, 2, v7\nv_lshlrev_b32 v9, 1, v9")
    P.e("v_lshl_add_u32 v10, v5, 3, v7\nv_lshlrev_b32 v10, 8, v10")
    P.e("s_lshr_b32 s17, s12, 1\ns_lshl_b32 s17, s17, 3\nv_lshl_add_u32 v11, v5, 1, s17\nv_xor_b32 v11, v11, v6")
    P.wlg("ka")
    stamp(P, "p0", True, 1)
    P.e("s_and_b32 s5, s5, 0xffff")
    P.e("s_cmp_lt_u32 s2, 64\ns_cbranch_scc1 L_k0_A\ns_cmp_lt_u32 s2, 128\ns_cbranch_scc1 L_k0_C")
    texts.append(P)

    P = Prog()
    P.e("L_k0_A:")
    P.e(f"s_cmp_lt_u32 s2, {NJ1}\ns_cbranch_scc0 L_k0_A3")
    P.e("s_lshr_b32 s14, s2, 2\ns_and_b32 s15, s2, 3")
    P.e(f"s_mov_b32 s8, s54\ns_and_b32 s9, s55, 0xffff\ns_mov_b32 s10, {640*1920*2}\ns_mov_b32 s20, 3840")
    P.e("v_min_u32 v12, 14, v11\nv_mul_u32_u24 v13, 52, v12\nv_lshrrev_b32 v13, 8, v13")
    P.e("v_mul_u32_u24 v13, 1200, v13\nv_lshl_add_u32 v12, v12, 4, v13")
    P.e("s_mul_i32 s21, s14, 80")
    P.e("s_lshl_b32 s22, s12, 5\ns_add_u32 s22, s22, 80\ns_mov_b32 s23, 8\ns_mov_b32 s24, 3")
    P.e("s_mov_b32 s25, 208\ns_mov_b32 s26, 8\ns_mov_b32 s27, 3")
    P.e("s_cmp_eq_u32 s12, 1\ns_cselect_b32 s25, 0, s25\ns_cselect_b32 s26, 16, s26")
    P.e("s_cmp_eq_u32 s12, 2\ns_cselect_b32 s25, 8, s25\ns_cselect_b32 s26, 16, s26")
    P.e("s_cmp_eq_u32 s12, 3\ns_cselect_b32 s25, 64, s25\ns_cselect_b32 s27, 1, s27")
    P.e(f"s_mul_i32 s28, s14, {21*8*1024}\ns_add_u32 s28, s28, {WF1}\ns_lshl_b32 s17, s12, 10\ns_add_u32 s28, s28, s17")
    P.e(f"s_cmp_eq_u32 s12, 0\ns_mov_b32 s17, {104*1024}\ns_mov_b32 s36, 3072\ns_cselect_b32 s17, 4096, s17\ns_cselect_b32 s36, 5120, s36\ns_add_u32 s29, s28, s17\ns_mov_b32 s30, 5120")
    P.e("s_branch L_k0_Ac")
    P.e("L_k0_A3:")
    P.e(f"s_sub_u32 s16, s2, 128\ns_and_b32 s18, s16, 1\ns_lshr_b32 s15, s16, 1\ns_and_b32 s15, s15, 3\ns_lshr_b32 s14, s16, 3")
    P.e("s_cmp_eq_u32 s18, 0\ns_cselect_b32 s8, s60, s62\ns_cselect_b32 s9, s61, s63\ns_and_b32 s9, s9, 0xffff")
    P.e(f"s_mov_b32 s10, {640*1728*2}\ns_mov_b32 s20, 3456")
    P.e("s_cmp_lt_u32 s14, 12\ns_cselect_b32 s17, 13, 11")
    P.e("v_min_u32 v12, s17, v11\nv_lshlrev_b32 v12, 4, v12")
    P.e("s_mul_i32 s21, s14, 224\ns_mul_i32 s17, s14, 192\ns_add_u32 s17, s17, 384\ns_min_u32 s21, s21, s17")
    P.e("s_lshr_b32 s22, s12, 1\ns_lshl_b32 s22, s22, 6\ns_and_b32 s17, s12, 1\ns_lshl_b32 s17, s17, 3\ns_add_u32 s22, s22, s17")
    P.e("s_mov_b32 s23, 16\ns_mov_b32 s24, 3\ns_mov_b32 s27, 3")
    P.e("s_add_u32 s25, s17, 128\ns_cmp_lt_u32 s12, 2\ns_cselect_b32 s25, s25, 192\ns_cselect_b32 s26, 16, 8")
    P.e(f"s_mul_i32 s28, s14, {21*14*1024}\ns_add_u32 s28, s28, {WF3}\ns_lshl_b32 s17, s18, 10\ns_add_u32 s28, s28, s17")
    P.e(f"s_cmp_eq_u32 s12, 1\ns_mov_b32 s17, {252*1024}\ns_cselect_b32 s17, {170*1024}, s17\ns_cmp_eq_u32 s12, 0\ns_cselect_b32 s17, {168*1024}, s17\ns_cmp_lt_u32 s12, 2\ns_mov_b32 s36, 2048\ns_cselect_b32 s36, 4096, s36\ns_add_u32 s29, s28, s17")
    P.e(f"s_lshl_b32 s17, s12, 11\ns_cmp_eq_u32 s12, 3\ns_cselect_b32 s17, {126*1024}, s17\ns_mov_b32 s30, 6144\ns_cselect_b32 s30, 2048, s30\ns_add_u32 s28, s28, s17")
    P.e("L_k0_Ac:")
    P.e("s_lshl_b32 s17, s12, 2\nv_add_u32 v13, s17, v5\nv_mul_lo_u32 v13, v13, s20\nv_add_u32 v12, v12, v13")
    P.e("s_mul_i32 s31, s15, 160\ns_mul_i32 s31, s31, s20\ns_add_u32 s31, s31, s21\ns_lshl_b32 s32, s20, 4")
    P.e("s_lshl_b32 s33, s12, 10")
    for k in range(10):
        P.e(f"s_add_u32 m0, s33, {k*4096}")
        if k:
            P.e("s_add_u32 s31, s31, s32")
        P.e("buffer_load_dwordx4 v12, s[8:11], s31 offen lds", tag="d")
    for tt, (sa, sb, sm) in enumerate(((22, 23, 24), (25, 26, 27))):
        a = 14 + tt
        P.e(f"v_min_u32 v{a}, s{sm}, v8\nv_mul_lo_u32 v{a}, v{a}, s{sb}\nv_add_u32 v{a}, s{sa}, v{a}")
        P.e(f"v_lshrrev_b32 v16, 4, v{a}\nv_xor_b32 v16, v16, v9\nv_and_b32 v{a}, 8, v{a}")
        P.e(f"v_lshl_add_u32 v{a}, v16, 4, v{a}\nv_add_u32 v{a}, v{a}, v10")
    for r in range(4):
        P.e(f"v_mov_b32 v{20+r}, 0x3f803f80")
    P.e("s_mul_i32 s18, s15, 5\ns_mul_i32 s17, s18, s30\ns_add_u32 s34, s28, s17\ns_mul_i32 s17, s18, s36\ns_add_u32 s35, s29, s17")
    P.wvm("d")
    P.e("s_barrier")
    stamp(P, "p0", True, 2)
    for tt in range(2):
        for k in range(5):
            d = 32 + (tt * 5 + k) * 4
            P.e(f"ds_read_b64_tr_b16 {V(d, 2)}, v{14+tt} offset:{k*8192}", tag=f"t{tt}{k}")
            P.e(f"ds_read_b64_tr_b16 {V(d+2, 2)}, v{14+tt} offset:{k*8192+1024}", tag=f"t{tt}{k}")
            if tt == 1 and k == 1:
                P.wlg("t04")
    for tt in range(2):
        for k in range(5):
            d = 32 + (tt * 5 + k) * 4
            P.wlg(f"t{tt}{k}")
            P.e(f"buffer_store_dwordx4 {V(d, 4)}, v2, s[4:7], s{34+tt} offen{K0ST}")
            P.e(f"s_add_u32 s{34+tt}, s{34+tt}, s{36 if tt else 30}")
            c = V(24 + 4 * tt, 4)
            P.e(f"{MF} {c}, {V(20, 4)}, {V(d, 4)}, {'0' if k == 0 else c}")
    P.e("s_lshl_b32 s18, s15, 8\ns_mul_i32 s17, s30, 20\ns_add_u32 s17, s17, s18\ns_add_u32 s28, s28, s17\ns_mul_i32 s17, s36, 20\ns_add_u32 s17, s17, s18\ns_add_u32 s29, s29, s17")
    set_exec(P, 0xffff)
    for tt in range(2):
        c = 24 + 4 * tt
        e = 72 + 4 * tt
        P.e(f"v_cvt_pk_bf16_f32 v{e}, v{c}, v{c}\nv_and_b32 v16, 0xffff0000, v{e}\nv_sub_f32 v17, v{c}, v16")
        P.e(f"v_cvt_pk_bf16_f32 v{e+1}, v17, v17\nv_and_b32 v16, 0xffff0000, v{e+1}\nv_sub_f32 v17, v17, v16")
        P.e(f"v_cvt_pk_bf16_f32 v{e+2}, v17, v{c}\nv_mov_b32 v{e+3}, 0")
        P.e(f"buffer_store_dwordx4 {V(e, 4)}, v2, s[4:7], s{28+tt} offen{K0ST}")
    P.e(f"s_mov_b64 exec, -1\ns_cmp_lt_u32 s2, 64\ns_cbranch_scc1 L_arrive\ns_cmp_ge_u32 s2, {128 + NJB}\ns_cbranch_scc1 L_join")
    texts.append(P)

    P = Prog()
    P.e("L_k0_B:")
    P.e("s_sub_u32 s16, s2, 128")
    P.e("s_cmp_lt_u32 s16, 20\ns_cbranch_scc1 L_k0_B2")
    P.e(f"s_sub_u32 s16, s16, 20\ns_mov_b32 s8, s58\ns_and_b32 s9, s59, 0xffff\ns_mov_b32 s10, {1728*640*2}")
    P.e(f"s_mov_b32 s20, {54*5*1024}\ns_mov_b32 s21, {WF4}")
    P.e("s_lshr_b32 s22, s16, 1\ns_and_b32 s23, s16, 1\ns_lshl_b32 s23, s23, 5\ns_mov_b32 s24, 16")
    P.e("s_sub_u32 s17, s16, 32\ns_cmp_ge_u32 s16, 32\ns_cselect_b32 s22, s17, s22\ns_cselect_b32 s23, 64, s23")
    P.e("s_sub_u32 s17, s16, 48\ns_lshl_b32 s17, s17, 1\ns_cmp_ge_u32 s16, 48\ns_cselect_b32 s22, s17, s22\ns_cselect_b32 s23, 96, s23\ns_cselect_b32 s24, 112, s24")
    P.e("s_mul_i32 s17, s22, 112\ns_mul_i32 s18, s22, 96\ns_add_u32 s18, s18, 192\ns_min_u32 s17, s17, s18\ns_add_u32 s17, s17, s23")
    P.e("s_lshl_b32 s18, s12, 2\ns_add_u32 s17, s17, s18\nv_add_u32 v12, s17, v5\nv_add_u32 v13, s24, v12")
    P.e("s_branch L_k0_Bc")
    P.e("L_k0_B2:")
    P.e(f"s_mov_b32 s8, s56\ns_and_b32 s9, s57, 0xffff\ns_mov_b32 s10, {640*640*2}")
    P.e(f"s_mov_b32 s20, {20*5*1024}\ns_mov_b32 s21, {WF2}")
    P.e("s_lshl_b32 s18, s12, 2\nv_add_u32 v14, s18, v5\nv_and_b32 v15, 7, v14\nv_lshrrev_b32 v14, 3, v14")
    P.e("s_lshl_b32 s17, s16, 3\nv_add_u32 v15, s17, v15\nv_mul_u32_u24 v16, 205, v15\nv_lshrrev_b32 v16, 10, v16")
    P.e("v_mul_u32_u24 v17, 5, v16\nv_sub_u32 v17, v15, v17\nv_mul_u32_u24 v16, 20, v16")
    P.e("v_cmp_gt_u32 vcc, 4, v17")
    for k in range(2):
        if k:
            P.e("v_add_u32 v14, 2, v14")
        P.e(f"v_lshl_add_u32 v18, v14, 2, v17\nv_add_u32 v19, 16, v14\nv_cndmask_b32 v18, v19, v18, vcc\nv_add_u32 v{12+k}, v16, v18")
    P.e("L_k0_Bc:")
    for k in range(2):
        P.e(f"v_mul_u32_u24 v{12+k}, 1280, v{12+k}\nv_lshl_add_u32 v{12+k}, v11, 4, v{12+k}")
    P.e("s_lshl_b32 s33, s12, 10")
    for pn in range(5):
        for k in range(2):
            P.e(f"s_add_u32 m0, s33, {40960 + pn*8192 + k*4096}\ns_mov_b32 s31, {pn*256}")
            P.e(f"buffer_load_dwordx4 v{12+k}, s[8:11], s31 offen lds", tag="d")
    P.e("s_mul_i32 s22, s12, 320")
    P.e("v_lshlrev_b32 v14, 4, v8\nv_add_u32 v14, s22, v14\nv_lshlrev_b32 v15, 3, v8\nv_add_u32 v15, s22, v15")
    for cq in range(2):
        for t in range(5):
            a = 20 + cq * 5 + t
            k0 = 160 * cq + (64 * (t // 2) + 8 * (t % 2) if t < 4 else 128)
            P.e(f"v_add_u32 v16, {k0}, {'v14' if t < 4 else 'v15'}")
            P.e("v_bfe_u32 v17, v16, 4, 4\nv_xor_b32 v17, v17, v9\nv_lshrrev_b32 v18, 8, v16\nv_and_b32 v16, 8, v16")
            P.e(f"v_lshl_add_u32 v16, v17, 4, v16\nv_lshl_add_u32 v16, v18, 13, v16\nv_add_u32 v{a}, v16, v10")
    P.e("s_lshl_b32 s17, s12, 1\ns_mul_i32 s17, s17, s20\ns_add_u32 s21, s21, s17\ns_mul_i32 s17, s16, 5120\ns_add_u32 s21, s21, s17")
    P.wvm("d")
    P.e("s_barrier")
    stamp(P, "p0", True, 3)
    for n in range(10):
        d = 32 + 4 * n
        P.e(f"ds_read_b64_tr_b16 {V(d, 2)}, v{20+n} offset:40960", tag=f"t{n}")
        P.e(f"ds_read_b64_tr_b16 {V(d+2, 2)}, v{20+n} offset:41984", tag=f"t{n}")
        if n == 6:
            P.wlg("t3")
    for n in range(10):
        d = 32 + 4 * n
        if n == 4:
            P.e("s_add_u32 s17, s21, 4096")
        if n == 5:
            P.e("s_add_u32 s21, s21, s20")
        if n == 9:
            P.e("s_add_u32 s17, s21, 4096")
        P.wlg(f"t{n}")
        t = n % 5
        P.e(f"buffer_store_dwordx4 {V(d, 4)}, v2, s[4:7], {'s21' if t < 4 else 's17'} offen offset:{(t % 4)*1024}{K0ST}")
    P.e("s_branch L_join")
    texts.append(P)

    P = Prog()
    P.e("L_k0_C:")
    P.e("s_sub_u32 s16, s2, 64")
    P.e(f"s_mov_b32 s8, s52\ns_and_b32 s9, s53, 0xffff\ns_mov_b32 s10, {XSZ}")
    P.e("s_lshl_b32 s17, s12, 2\nv_add_u32 v12, s17, v5\nv_xor_b32 v13, v12, v6\nv_mul_u32_u24 v12, 1280, v12\nv_lshl_add_u32 v12, v13, 4, v12")
    P.e("s_mul_i32 s20, s16, 40960\ns_lshl_b32 s33, s12, 10")
    for ml in range(2):
        for pn in range(5):
            P.e(f"s_add_u32 m0, s33, {ml*20480 + pn*4096}\ns_add_u32 s31, s20, {ml*20480 + pn*256}")
            P.e("buffer_load_dwordx4 v12, s[8:11], s31 offen lds", tag="d")
    for r in range(4):
        P.e(f"v_mov_b32 v{20+r}, 0")
    P.e(f"s_and_b32 s17, s16, 31\ns_mul_i32 s17, s17, {ZSZ//32}\ns_lshr_b32 s18, s16, 5\ns_mul_i32 s18, s18, {LB}\ns_add_u32 s17, s17, s18\ns_add_u32 s17, s17, {KVA}")
    P.e(f"v_lshlrev_b32 v14, 4, v0\nbuffer_store_dwordx4 {V(20, 4)}, v14, s[4:7], s17 offen{K0ST}")
    P.e(f"v_cmp_gt_u32 vcc, {(ZSZ//32 - 4096)//16}, v0\nv_mov_b32 v15, 0x40000000\nv_cndmask_b32 v14, v15, v14, vcc\ns_add_u32 s17, s17, 4096")
    P.e(f"buffer_store_dwordx4 {V(20, 4)}, v14, s[4:7], s17 offen{K0ST}")
    P.e("s_lshr_b32 s22, s12, 1\ns_and_b32 s23, s12, 1\ns_mul_i32 s24, s22, 20480\ns_mul_i32 s25, s23, 40")
    P.e("v_add_u32 v14, s25, v5\nv_lshlrev_b32 v15, 8, v6\nv_add_u32 v15, s24, v15")
    for k in range(10):
        P.e(f"v_add_u32 v16, {4*k}, v14\nv_lshrrev_b32 v17, 4, v16\nv_xor_b32 v16, v16, v6\nv_and_b32 v16, 15, v16")
        P.e(f"v_lshl_add_u32 v16, v16, 4, v15\nv_lshl_add_u32 v{72+k}, v17, 12, v16")
    P.e(f"s_add_u32 s26, s20, s24\ns_mul_i32 s17, s23, 10240\ns_add_u32 s26, s26, s17\ns_add_u32 s26, s26, {XA}")
    P.e("v_mov_b32 v24, 0\nv_mov_b32 v25, 0\nv_mov_b32 v26, 0x3f803f80")
    P.wvm("d")
    P.e("s_barrier")
    stamp(P, "p0", True, 2)
    for k in range(10):
        P.e(f"ds_read_b128 {V(32+4*k, 4)}, v{72+k}", tag=f"t{k}")
    for k in range(10):
        if k and k % 4 == 0:
            P.e("s_add_u32 s26, s26, 4096")
        P.wlg(f"t{k}")
        P.e(f"buffer_store_dwordx4 {V(32+4*k, 4)}, v2, s[4:7], s26 offen offset:{(k % 4)*1024}{K0ST}")
        for r in range(4):
            P.e(f"v_dot2_f32_bf16 v24, v{32+4*k+r}, v26, v24")
            P.e(f"v_dot2_f32_bf16 v25, v{32+4*k+r}, v{32+4*k+r}, v25")
    P.add(allreduce_g(24, 27))
    P.add(allreduce_g(25, 28))
    P.e("v_cmp_eq_u32 vcc, 0, v5\nv_cndmask_b32 v24, 0, v24, vcc\nv_cndmask_b32 v25, 0, v25, vcc")
    P.e(f"s_lshl_b32 s17, s16, 1\ns_add_u32 s17, s17, s22\ns_lshl_b32 s17, s17, 10\ns_lshl_b32 s18, s23, 7\ns_add_u32 s17, s17, s18\ns_add_u32 s17, s17, {STA}")
    P.e("v_lshlrev_b32 v14, 8, v5\nv_lshl_add_u32 v14, v6, 3, v14")
    P.e(f"buffer_store_dwordx2 v[24:25], v14, s[4:7], s17 offen{K0ST}")
    P.e("L_arrive:\ns_waitcnt vmcnt(0)\ns_barrier")
    stamp(P, "p0", True, 3)
    P.e("s_cmp_lg_u32 s12, 0\ns_cbranch_scc1 L_join\nv_mov_b32 v20, 0\nv_mov_b32 v21, 1\ns_mov_b64 exec, 1")
    P.e("global_atomic_add v22, v20, v21, s[46:47] sc0\ns_waitcnt vmcnt(0)\nv_readfirstlane_b32 s17, v22\ns_mov_b64 exec, -1")
    P.e("s_cmp_lg_u32 s17, 127\ns_cbranch_scc1 L_join\ns_mov_b64 exec, 1\nglobal_store_dword v20, v21, s[46:47] offset:128 sc1\ns_mov_b64 exec, -1")
    texts.append(P)
    return texts


def build():
    _nstamp[0] = 0
    k0 = gen_k0()
    Q, P = gen_main()
    ns = max(p.max_regs()["s"] for p in k0 + [Q, P]) + 1
    K = "interleave_layers__linear_attn_block__glu_gated_glu__prompt_kernel"
    body = f".globl {K}\n.p2align 8\n.type {K},@function\n{K}:\n" + "".join(p.finish() for p in k0 + [Q, P]) + "L_exit:\n  s_endpgm\n"
    head = "; generated by tools/gen2.py: one persistent launch: weight re-layout, then (qkv, attn-out, gate/up, down) x 2 layers\n"
    return head + f"; @launch grid=(256,1,1) block=(256,1,1) lds={8*SLOT}" + '\n.amdgcn_target "amdgcn-amd-amdhsa--gfx950"\n.text\n' + body + descriptor(K, 256, 256, ns)


if __name__ == "__main__":
    import argparse
    ap = argparse.ArgumentParser()
    ap.add_argument("-o", default="v2.s")
    ap.add_argument("--stamps", action="store_true")
    ap.add_argument("--clk", action="store_true")
    ap.add_argument("--cfg", default="")
    ap.add_argument("--prof", default=None)
    a = ap.parse_args()
    STAMPS = a.stamps or a.prof is not None
    PROF = a.prof
    if PROF and PROF != "p0":
        STAMP_INS = 's_memtime'
    if a.clk:
        STAMP_INS = "s_memtime"
    for kv in a.cfg.split(","):
        if kv:
            k, v = kv.split("=")
            CFG[k] = float(v) if "." in v else int(v)
    open(a.o, "w").write(build())
    print("written", a.o)
```

```python
import sys, struct
from collections import deque
from asmlib import Prog, Ins, Wait, Virtual, V, A, S, descriptor, TRANS
from gen import f32, LOG2E, MF, allreduce_g, stats_finish, lanemask, set_exec

WF1 = 16384
WF2 = WF1 + 16 * 168 * 1024
WF3 = WF2 + 8 * 100 * 1024
WF4 = WF3 + 16 * 294 * 1024
L0 = WF4 + 8 * 270 * 1024 + 4096
XSZ = 2048 * 640 * 2
XA = L0
PQ = XA + XSZ
XB = PQ + XSZ
HB = XB + XSZ
STA = HB + 2048 * 1728 * 2
STB = STA + 128 * 1024
KVA = STB + 128 * 1024
F0 = KVA + 56 * 1024
F1 = F0 + 32768
F1C = F1 + 16384
F2 = F1C + 32768
F3 = F2 + 32768
ZSZ = F3 + 32768 - KVA
LB = F3 + 32768 - L0
STAMP = L0 + 2 * LB
WS_USED = STAMP + 4 * 512 * 256
PROF = None
assert ZSZ == 204800 and L0 % 4096 == 0 and LB % 4096 == 0
STAMPS = False
STAMP_INS = "s_memrealtime"
OOB = 0x40000000
SLOT = 20480
SPIN = 200000
CFG = dict(gh=1, pq=0, pc=8, b2=6, xa=6, na=170, fa=156, bup=0, x3=170, y3=300, m1=7, n1=7, w1=40, h1=0, m3=6, hp=10, ce=263, pe=9, rep=1, r0=48, ldsc=1, w0=2, b0=24, g0=1, cpf=9, g1=2, g3=2, g4=2, b1=6, b3=6, b4=0, la=6, lead4=50, pf4=200, x2=1, x1=1, e3=232, c4=116, nowait3=1, f4=24)

vSTL, vHALF, vPQT, vSTS, vRW0, vRW1, vRR, vAT, vATM, vKVL, vKVW, vE0, vE1, vZF, vPQW, vFC, vFG, vPOLL, vONE, vBW, vBR, vH3, vO16, vO8, vT = range(7, 32)
XR, CE, ONES, PV = 32, 42, 46, 50
WP = 224
sWAVE, sRB, sCG, sMT0, sMT, sCG8, sLAY = 12, 13, 14, 15, 16, 17, 20
sW5, sW1, sW2, sW3, sW4 = 21, 22, 23, 24, 25
sFA, sFB, sFG, sEPS = 26, 27, 28, 29
sX0, sX1, sXT, sDT, sA, sB, sC, sSPIN = 30, 31, 32, 33, 34, 35, 36, 37
sFL, sD1, sD2 = 60, 61, 62
sM8, sMASK = 38, 40
sSTMP = 64
RED = 7 * SLOT
BNC = RED + 13440
KVT = 6 * SLOT


def cost(it):
    if isinstance(it, (Wait, Virtual)):
        return 0
    if isinstance(it, list):
        return sum(cost(x) for x in it)
    t = it.text
    if it.opaque:
        return 0
    if t.startswith("v_mfma"):
        return 12
    if t.startswith(TRANS):
        return 8
    return 4


def I(text, tag=None):
    return [Ins(x.strip(), tag) for x in text.split("\n") if x.strip()]


_nstamp = [0]


def stamp(P, ph=None, fine=False, j=None):
    if STAMPS and (PROF is None and not fine or PROF is not None and PROF == ph):
        if j is None:
            j = _nstamp[0]
            _nstamp[0] += 1
        P.raw(f"{STAMP_INS} s[{sSTMP+2*j}:{sSTMP+2*j+1}]")


def stamp_flush(P):
    if STAMPS:
        P.raw(f"s_cmp_lg_u32 s{sWAVE}, 0\ns_cbranch_scc1 L_nost{len(P.items)}")
        lab = P.items[-1].text.split()[-1]
        P.raw(f"s_cmp_lg_u32 s{sLAY}, 0\ns_cselect_b32 s100, {512*256}, 0\ns_lshl_b32 s101, s2, 8\ns_add_u32 s100, s100, s101\ns_add_u32 s100, s100, {STAMP + 512*256}")
        P.raw(f"v_mov_b32 v{vT}, 0\ns_waitcnt lgkmcnt(0)")
        for j in range(_nstamp[0]):
            P.raw(f"v_mov_b32 v250, s{sSTMP+2*j}\nv_mov_b32 v251, s{sSTMP+2*j+1}\ns_nop 1")
            P.raw(f"buffer_store_dwordx2 v[250:251], v{vT}, s[4:7], s100 offen offset:{8*j}\ns_nop 1")
        P.raw(f"s_waitcnt vmcnt(0)\n{lab}:")


class Chunk:
    def __init__(self, name, sbase, foff, n, slot, event):
        self.name, self.sbase, self.foff, self.n, self.slot, self.event = name, sbase, foff, n, slot, event
        self.q = (n + 3) // 4
        self.tag = "W" + name


class Op:
    def __init__(self, fn, tag, prio, event=None, step=0):
        self.fn, self.tag, self.prio, self.event, self.step = fn, tag, prio, event, step


class Sched:
    dma_ctx = None
    x_ctx = None
    log = []

    def __init__(self, P, name):
        self.P, self.name = P, name
        self.vq, self.aq = [], deque()
        self.events = {None}
        self.marks = set()
        self.now = 0
        self.pend, self.pend_tag, self.rdnext, self.over = [], None, None, 0
        self.lasttr, self.lastw = set(), set()

    def dma(self, ch, prio, step=0):
        for i in range(ch.q):
            def fn(ch=ch, i=i):
                L = []
                Sched.log.append((ch.name, i))
                key = (ch.name, i // 4)
                if Sched.dma_ctx != key:
                    Sched.dma_ctx = key
                    o = (i // 4) * 4096
                    if ch.q == 5:
                        L += I(f"s_add_u32 m0, s{sW5}, {ch.slot*SLOT + o}\ns_add_u32 s{sDT}, s{ch.sbase}, {ch.foff*1024 + o}")
                    else:
                        L += I(f"s_mul_i32 s{sDT}, s{sWAVE}, {ch.q*1024}\ns_add_u32 m0, s{sDT}, {ch.slot*SLOT}\ns_sub_u32 s{sDT}, s{sDT}, s{sW5}")
                        L += I(f"s_add_u32 s{sDT}, s{sDT}, s{ch.sbase}\ns_add_u32 s{sDT}, s{sDT}, {ch.foff*1024}")
                L += I(f"buffer_load_dwordx4 v2, s[4:7], s{sDT} offen offset:{(i % 4)*1024} lds", ch.tag)
                return L
            self.vq.append(Op(fn, ch.tag, prio(i) if callable(prio) else prio + i * 1e-3, ch.event, step))

    def load(self, dst, vaddr, sbase, off, tag, prio, w=4, event=None, step=0):
        def fn():
            L = []
            if off < 4096:
                so = f"s{sbase}"
            else:
                key = (sbase, off >> 12, tag[0])
                if Sched.x_ctx != key:
                    Sched.x_ctx = key
                    L += I(f"s_add_u32 s{sXT}, s{sbase}, {off & ~4095}")
                so = f"s{sXT}"
            return L + I(f"buffer_load_dwordx{w} {dst}, v{vaddr}, s[4:7], {so} offen offset:{off & 4095}{['', ' sc1', ' sc0', ' nt'][CFG['ldsc']]}", tag)
        self.vq.append(Op(fn, tag, prio, event, step))

    def alu(self, items, step=0, event=None):
        for it in items:
            if isinstance(it, str):
                for x in I(it):
                    self.aq.append((x, step, event))
            else:
                self.aq.append((it, step, event))

    def mark(self, name):
        self.aq.append((name, 0, None))

    def start_op(self, op):
        self.vq.remove(op)
        self.pend = op.fn()
        self.pend_tag = op.tag

    def flush_pend(self):
        self.P.add(self.pend)
        self.pend = []

    def emit_op(self, op):
        self.flush_pend()
        self.start_op(op)
        self.flush_pend()

    def next_op(self):
        el = [o for o in self.vq if o.event in self.events and o.step <= self.now]
        return min(el, key=lambda o: o.prio) if el else None

    def burst(self, n):
        self.flush_pend()
        for _ in range(n):
            el = [o for o in self.vq if o.event in self.events and o.prio < 1e5]
            if not el:
                break
            self.emit_op(min(el, key=lambda o: o.prio))

    def force(self, tag):
        if self.pend and self.pend_tag == tag:
            self.flush_pend()
        ops = sorted([o for o in self.vq if o.tag == tag], key=lambda o: o.prio)
        if ops:
            print(f"  [{self.name}] forced {len(ops)} x {tag} at step {self.now}", file=sys.stderr)
        for o in ops:
            assert o.event in self.events, (tag, o.event)
            self.emit_op(o)

    def pop_alu(self, k=0):
        it = self.aq[k][0]
        del self.aq[k]
        if isinstance(it, str):
            self.marks.add(it)
            self.events.add(it)
            return
        if isinstance(it, Wait) and it.cls == "vm":
            self.force(it.tag)
        self.P.add(it)

    def drain_to(self, mark):
        n = 0
        while mark not in self.marks:
            n += not isinstance(self.aq[0][0], (str, Wait))
            self.pop_alu()
        self.over += n

    def drain(self):
        self.flush_pend()
        while self.aq:
            self.pop_alu()

    def ready(self, k):
        return self.aq[k][1] <= self.now and self.aq[k][2] in self.events

    def head_is(self, kind):
        while self.aq and isinstance(self.aq[0][0], str):
            self.pop_alu()
        if not self.aq or not self.ready(0):
            return False
        it = self.aq[0][0]
        if kind == "wait":
            return isinstance(it, Wait)
        return isinstance(it, Ins) and it.kind == "salu"

    def pick(self, slots):
        best = None
        rd, wr = set(), set()
        for k in range(min(len(self.aq), 14)):
            it = self.aq[k][0]
            if not self.ready(k):
                break
            if isinstance(it, str):
                continue
            if isinstance(it, Wait):
                break
            if isinstance(it, list) or it.kind != "valu":
                if k == 0 or (best is None and not rd and not wr):
                    return k
                break
            if not (it.rd & wr or it.wr & wr or it.wr & rd):
                tr = "trans" in it.flags
                if tr and slots >= 2 and not (it.rd & self.lastw):
                    return k
                if not tr and best is None and not (it.rd & self.lasttr):
                    best = k
            rd |= it.rd
            wr |= it.wr
        return best

    def gap(self, scalar_free, slots, allow_v):
        P = self.P
        issued = False
        if allow_v and not self.pend:
            op = self.next_op()
            if op is not None:
                self.start_op(op)
        pre_m0 = False
        if scalar_free:
            if len(self.pend) > 1:
                it = self.pend.pop(0)
                pre_m0 = "m0" in it.wr
                P.add(it)
            elif self.head_is("wait") or self.head_is("salu"):
                self.pop_alu()
                while self.head_is("wait"):
                    self.pop_alu()
        if self.rdnext is not None:
            self.rdnext()
            self.rdnext = None
            slots -= 1
        if allow_v and len(self.pend) == 1 and not pre_m0:
            self.flush_pend()
            slots -= 2
            issued = True
        self.lasttr = set()
        self.lastw = set()
        while slots > 0:
            k = self.pick(slots)
            if k is None:
                break
            it = self.aq[k][0]
            slots -= cost(it) // 4
            if isinstance(it, Ins):
                self.lastw = set(it.wr)
                if "trans" in it.flags:
                    self.lasttr = set(it.wr)
            self.pop_alu(k)
        return issued

    def run(self, steps, chunks, vgap, extra=0, nobar=(), wevery=1):
        P, LA = self.P, CFG["la"]
        seen = set()

        def newchunk(m):
            st = steps[m]
            if "fr" not in st or st["fr"][0] in seen:
                return False
            c = st["fr"][0]
            seen.add(c)
            if c not in nobar:
                self.force(chunks[c].tag)
                P.wvm(chunks[c].tag)
                P.e("s_barrier")
            stamp(P, self.name, True)
            self.events.add(f"{self.name}:{c}")
            return c not in nobar

        def rd(m):
            st = steps[m]
            dst = A(WP + 4 * (m % 8), 4)
            if "fr" in st:
                c, f = st["fr"]
                off = chunks[c].slot * SLOT + f * 1024
                P.e(f"ds_read_b128 {dst}, v{2 + (off >> 16)} offset:{off & 0xffff}", tag=f"R{m}")
            else:
                P.e(st["rd"](dst), tag=f"R{m}")

        def waits(i, upto):
            st = steps[i]
            any_ = False
            if "aw" in st:
                self.drain_to(st["aw"])
            for t in st.get("xw", []):
                self.force(t)
                P.wvm(t)
                any_ = True
            if self.waited < i or any_:
                self.waited = min(upto, n - 1)
                P.wlg(f"R{self.waited}")
                any_ = True
            return any_

        n = len(steps)
        self.now = 0
        self.waited = -1
        for m in range(min(LA, n)):
            newchunk(m)
            rd(m)
        waits(0, 0)
        lastv = -100
        for i, st in enumerate(steps):
            self.now = i
            mfs = st["mf"](A(WP + 4 * (i % 8), 4))
            for k, t in enumerate(mfs):
                P.e(t)
                last = k == len(mfs) - 1
                free, slots = True, 2 + (extra(i) if callable(extra) else extra)
                if k == 0 and i + LA < n and newchunk(i + LA):
                    free, slots = False, slots - 1
                if last and i + 1 < n and waits(i + 1, i + wevery):
                    free = False
                if last and i + LA < n:
                    self.rdnext = lambda m=i + LA: rd(m)
                if self.gap(free, slots, k == 0 and i - lastv >= (vgap(i) if callable(vgap) else vgap)):
                    lastv = i
        self.now = n
        P.e("s_barrier")
        self.events.add(f"{self.name}:end")
        stamp(P, self.name)
        print(f"  [{self.name}] overfill {self.over}, alu left {len(self.aq)}", file=sys.stderr)

    def late(self):
        n = len(self.vq)
        for o in self.vq:
            o.prio = min(o.prio, 9e4)
        self.burst(10 ** 6)
        assert not self.vq
        print(f"  [{self.name}] late ops {n}", file=sys.stderr)


def mk_chunks():
    ch = {}
    s1 = [6, 7, 0, 1, 2, 3, 4, 5, 6]
    e1 = ["p4:9", "p4:10", "p4:11", "p4:12", "p4:13", "p4:end", "p4:end", "p4:8", "p1:2"]
    ch["p1"] = [Chunk(f"1_{c}", sW1, 20 * c, 20 if c < 8 else 8, s1[c], e1[c]) for c in range(9)]
    ch["p2"] = [Chunk(f"2_{c}", sW2, 20 * c, 20, 1 + c, f"p1:{5+c}" if c < 4 else "p1:end") for c in range(5)]
    e3 = ["p1:4", "p2:2", "p2:3", "p2:4"] + ["p2:end"] * 4 + [f"p3:{c-6}" for c in range(8, 15)]
    ch["p3"] = [Chunk(f"3_{c}", sW3, 20 * c, 20 if c < 14 else 14, c % 8, e3[c]) for c in range(15)]
    e4 = [f"p3:{c+9}" for c in range(6)] + ["p3:end"] * 2 + [f"p4:{c-6}" for c in range(8, 14)]
    ch["p4"] = [Chunk(f"4_{c}", sW4, 20 * c, 20 if c < 13 else 10, (15 + c) % 8, e4[c]) for c in range(14)]
    return ch


def flag_items(wtag, wr, stride_reg, off=0):
    return I(wr) + [Wait("vm", wtag)] + I("s_barrier") + I(f"buffer_store_dword v{vONE}, v{stride_reg}, s[4:7], s{sA} offen offset:{off} sc1", "fl")


def handoff(P, sc, wtag, wr, stride_reg, uid, off=0):
    P.add(flag_items(wtag, wr, stride_reg, off))
    stamp(P, "p" + uid)
    sc.late()


def check_items(uid, off, sFL=sFL):
    R = Prog()
    cmp_ = "v_cmp_eq_u32 vcc, 0, v253"
    if off is None:
        cmp_ = "v_min_u32 v253, v252, v253\nv_min3_u32 v253, v253, v254, v255\n" + cmp_
    ld = (f"buffer_load_dword v253, v{vPOLL}, s[4:7], s{sFL} offen offset:{off} sc1" if off is not None
          else f"buffer_load_dwordx4 v[252:255], v2, s[4:7], s{sFL} offen sc1")
    R.e(f"{cmp_}\ns_nop 1\ns_cbranch_vccz L_ok{uid}")
    R.raw(f"s_mov_b32 s{sSPIN}, {SPIN}\nL_sp{uid}:\n{ld}\ns_waitcnt vmcnt(0)")
    R.raw(f"{cmp_}\ns_nop 1\ns_cbranch_vccz L_ok{uid}")
    R.raw(f"s_sub_u32 s{sSPIN}, s{sSPIN}, 1\ns_cmp_lg_u32 s{sSPIN}, 0\ns_cbranch_scc1 L_sp{uid}\nL_ok{uid}:")
    return [Wait("vm", "fp"), R.items]


def poll(P, rdoff, uid, wide=False, label=None, wtag=None):
    P.e(rdoff)
    P.raw(f"s_cmp_lg_u32 s{sWAVE}, 0\ns_cbranch_scc1 L_pd{uid}\ns_mov_b32 s{sSPIN}, {SPIN}\nL_pl{uid}:")
    if wide:
        P.raw(f"buffer_load_dwordx4 v[252:255], v2, s[4:7], s{sB} offen sc1\ns_waitcnt vmcnt(0)\nv_min_u32 v252, v252, v253\nv_min3_u32 v252, v252, v254, v255")
    else:
        P.raw(f"buffer_load_dword v252, v{vPOLL}, s[4:7], s{sB} offen sc1\ns_waitcnt vmcnt(0)")
    P.raw(f"v_cmp_eq_u32 vcc, 0, v252\ns_nop 1\ns_cbranch_vccz L_pd{uid}")
    P.raw(f"s_sub_u32 s{sSPIN}, s{sSPIN}, 1\ns_cmp_lg_u32 s{sSPIN}, 0\ns_cbranch_scc1 L_pl{uid}\nL_pd{uid}:")
    if wtag:
        P.wvm(wtag)
    P.e("s_barrier")
    if label:
        P.e(label)
    stamp(P, "p" + uid)


def x_phase_loads(sc, P, xbuf, stbuf, VST, nt1):
    P.e(f"s_mul_i32 s{sX0}, s{sMT0}, 20480\ns_add_u32 s{sX0}, s{sX0}, s{sLAY}\ns_add_u32 s{sX0}, s{sX0}, {xbuf}\ns_add_u32 s{sX1}, s{sX0}, 20480")
    P.e(f"s_lshl_b32 s{sC}, s{sMT0}, 10\ns_add_u32 s{sC}, s{sC}, s{sLAY}\ns_add_u32 s{sC}, s{sC}, {stbuf}")
    Sched.x_ctx = None
    for k0 in range(0, 20, 2):
        for m in range(2):
            for kb in (k0, k0 + 1):
                sc.load(A((m * 20 + kb) * 4, 4), 2, sX0 + m, kb * 1024, f"X{k0}", k0 * nt1 - 100 + m + (kb - k0) * 0.1)
    for m in range(2):
        for j in range(2):
            sc.load(V(VST + 4 * m + 2 * j, 2), vSTL, sC, m * 1024 + j * 128, "st", 8 * nt1 - 101, w=2)


def phi4(xs, rs, cs, ts, outs):
    L = [f"v_mul_f32 v{t}, v{x}, v{c}" for x, c, t in zip(xs, cs, ts)]
    L += [f"v_fma_f32 v{o}, v{x}, v{r}, s{sEPS}" for x, r, o in zip(xs, rs, outs)]
    L += [f"v_exp_f32 v{t}, v{t} clamp" for t in ts]
    L += [f"v_max_f32 v{o}, s{sEPS}, v{o}" for o in outs]
    L += [f"v_add_f32 v{o}, v{o}, v{t}" for o, t in zip(outs, ts)]
    return L


PAIRS = [(0, 2), (0, 3), (1, 2), (1, 3), (1, 4), (2, 3), (2, 4), (0, None), (1, None), (2, None)]


def red_mask(i, j):
    def valid(g, nn):
        kk = 4 * i + g
        if kk >= 10:
            return False
        if j is None:
            return nn == 0
        cv = 16 * j + nn - 40
        return 0 <= cv < 40 and cv // 20 == kk // 5
    return lanemask(valid)


def phase1(P, ch, first=False):
    sc = Sched(P, "p1")
    ACC, ACQ, VST, VRS, VSD, VC, VEXT, RST, CT, T, PF, QO = PV, PV + 40, PV + 64, PV + 72, PV + 74, PV + 76, PV + 78, PV + 86, PV + 94, PV + 102, PV + 126, PV + 146
    GD = ACC
    x_phase_loads(sc, P, XA, STA, VST, 5)
    if first:
        for c in range(8):
            ch["p1"][c].event = None
            sc.dma(ch["p1"][c], lambda i, c=c: 20 * c - 100 - CFG["w0"] + i * 1e-3)
        P.e(f"s_mul_i32 s{sD1}, s{sMT}, 20480\ns_mul_i32 s{sB}, s{sCG8}, 2560\ns_add_u32 s{sD1}, s{sD1}, s{sB}\ns_add_u32 s{sD1}, s{sD1}, {XA}")
        sc.load(V(XR, 4), 2, sD1, 0, "res", 130)
        sc.load(V(XR + 4, 4), 2, sD1, 1024, "res", 131)
        sc.load(V(XR + 8, 2), vHALF, sD1, 2048, "res", 132, w=2)
        P.e(f"s_lshl_b32 s{sA}, s{sFA}, 2\ns_add_u32 s{sA}, s{sA}, {F0}\ns_and_b32 s{sFL}, s{sFG}, {(CFG['rep']-1)*1024}\ns_add_u32 s{sFL}, s{sFL}, {F0}")
        P.e(f"v_cmp_gt_u32 vcc, {CFG['rep']}, v0\nv_mov_b32 v251, {OOB}\nv_cndmask_b32 v251, v251, v{vFG}, vcc")
        start_wait(P)
        stamp(P, "p1")
        sc.burst(CFG["b0"])
        stamp(P, "p0", True, 6)
    else:
        poll(P, f"s_lshl_b32 s{sB}, s{sFA}, 7\ns_add_u32 s{sB}, s{sB}, {F0 + LB}", "1")
        sc.burst(2 * CFG["b1"])
        for c in range(CFG["m1"], CFG["n1"]):
            ch["p1"][c].event = None
            sc.dma(ch["p1"][c], 20 * c - 100 + CFG["w1"])
    sc.dma(ch["p1"][8], 120)
    sc.dma(ch["p3"][0], 1000, step=105 if first else 0)
    for c in range(5):
        sc.dma(ch["p2"][c], 500 + c, step=105 if first else 0)
    steps = []
    for t0, nt in ((0, 5), (5, 3)):
        for kb in range(21):
            for t in range(t0, t0 + nt):
                def mf(w, kb=kb, t=t):
                    L = []
                    for m in range(2):
                        x = A((m * 20 + kb) * 4, 4) if kb < 20 else V(VEXT + 4 * m, 4)
                        d = V(ACC + (m * 5 + t) * 4, 4) if t < 5 else V(ACQ + (m * 3 + t - 5) * 4, 4)
                        cc = "0" if kb == 0 else d
                        L.append(f"{MF} {d}, {x}, {w}, {cc}" if t < 5 else f"{MF} {d}, {w}, {x}, {cc}")
                    return L
                st = dict(fr=divmod(len(steps), 20), mf=mf)
                if t == 0 and kb % 2 == 0 and kb < 20:
                    st["xw"] = [f"X{kb}"]
                if t == 0 and kb == 20:
                    st["aw"] = "ext"
                steps.append(st)
    if first:
        sc.alu([Ins(f"buffer_store_dword v{vONE}, v251, s[4:7], s{sA} offen sc1", "fl")], step=CFG["r0"])
    sc.alu([Wait("vm", "st")], step=52)
    for m in range(2):
        sc.alu(stats_finish(VST, m, VRS + m, VSD + m, VEXT + 4 * m, T) + [f"v_mul_f32 v{VC+m}, {f32(LOG2E)}, v{VRS+m}"])
    sc.alu([Ins(f"ds_write_b32 v{vBW}, v{VRS+m} offset:{m*64}", "bw") for m in range(2)], event="p1:3")
    if first:
        sc.alu([Ins(f"buffer_load_dwordx4 v[252:255], v2, s[4:7], s{sFL} offen sc1", "fp")], step=84)
    sc.mark("ext")
    sc.alu([Wait("lgkm", "bw")], step=88)
    sc.alu([Ins(f"ds_read_b128 {V(RST+4*m, 4)}, v{vBR} offset:{m*64}", "br") for m in range(2)])
    sc.alu([Wait("lgkm", "br")], step=94)
    sc.alu([f"v_mul_f32 v{CT+k}, {f32(LOG2E)}, v{RST+k}" for k in range(8)])
    if first:
        sc.alu(check_items("0", None), step=98)
        sc.mark("w2")
        steps[104]["aw"] = "w2"
    head = True
    for t in range(5):
        for m in range(2):
            x = [ACC + (m * 5 + t) * 4 + r for r in range(4)]
            rs = [RST + 4 * m + r for r in range(4)]
            cs = [CT + 4 * m + r for r in range(4)]
            ts = [T + 4 * m + r for r in range(4)]
            L = []
            if t < 2:
                L += phi4(x, rs, cs, ts, x)
            elif t == 2:
                o = [T + 8 + 4 * m + r for r in range(4)]
                L += phi4(x, rs, cs, ts, o)
                L += [f"v_mul_f32 v{a}, v{a}, v{r}" for a, r in zip(x, rs)]
                L += [f"v_cndmask_b32 v{a}, v{a}, v{b}, s[{sM8}:{sM8+1}]" for a, b in zip(x, o)]
            else:
                L += [f"v_mul_f32 v{a}, v{a}, v{r}" for a, r in zip(x, rs)]
            L += [f"v_cvt_pk_bf16_f32 v{PF+4*t+2*m}, v{x[0]}, v{x[1]}", f"v_cvt_pk_bf16_f32 v{PF+4*t+2*m+1}, v{x[2]}, v{x[3]}"]
            sc.alu(L, step=106 if head else 0)
            head = False
    for n, (i, j) in enumerate(PAIRS):
        b = V(PF + 4 * j, 4) if j is not None else V(ONES, 4)
        sc.alu([f"{MF} {V(GD+4*n, 4)}, {V(PF+4*i, 4)}, {b}, 0"])
    for n0 in range(0, 10, 2):
        grp = []
        for n in (n0, n0 + 1):
            i, j = PAIRS[n]
            grp += I(f"s_mov_b64 exec, s[{sMASK+2*n}:{sMASK+2*n+1}]")
            if j is None:
                grp += I(f"ds_write_b128 v{vRW0}, {V(GD+4*n, 4)} offset:{640 + i*1344 + 320}", "gw")
            else:
                off = 640 + i * 1344 + (16 * j - 40) * 16 - (320 if i == 2 else 0)
                grp += I(f"ds_write_b128 v{vRW1 if i == 1 else vRW0}, {V(GD+4*n, 4)} offset:{off}", "gw")
        grp += I("s_mov_b64 exec, -1")
        sc.alu([grp])
    sc.alu([Wait("lgkm", "gw"), "s_barrier"])
    for q in range(4):
        sc.alu([Ins(f"ds_read_b32 v{T+4*q+w}, v{vRR} offset:{w*3360 + q*1024}", f"rr{q}") for w in range(4)])
    sc.alu([f"s_mul_i32 s{sC}, s{sCG}, 3360\ns_add_u32 s{sC}, s{sC}, s{sLAY}\ns_add_u32 s{sC}, s{sC}, {KVA}"])
    for q in range(4):
        a = T + 4 * q
        sc.alu([Wait("lgkm", f"rr{q}"), f"v_add_f32 v{a}, v{a}, v{a+1}\nv_add_f32 v{a+2}, v{a+2}, v{a+3}\nv_add_f32 v{a}, v{a}, v{a+2}",
                Ins(f"buffer_atomic_add_f32 v{a}, v{vATM if q == 3 else vAT}, s[4:7], s{sC} offen offset:{q*1024}", "at")])
    fat = flag_items("at", f"s_lshl_b32 s{sA}, s{sFA}, 2\ns_add_u32 s{sA}, s{sA}, s{sLAY}\ns_add_u32 s{sA}, s{sA}, {F1}", vFG)
    if CFG["fa"]:
        sc.alu(fat[:3])
        sc.alu(fat[3:], step=CFG["fa"])
    sc.run(steps, ch["p1"], lambda i: 1 if first or i < CFG["h1"] else CFG["g1"], extra=lambda i: 0 if i <= 105 else CFG["xa"] if i < CFG["na"] else CFG["x1"])
    sc.drain()
    sc.force("res")
    P.e(f"s_mul_i32 s{sC}, s{sCG}, 1280\ns_add_u32 s{sC}, s{sC}, s{sX0}\ns_add_u32 s{sC}, s{sC}, {PQ - XA}")
    for m in range(2):
        q = QO + 6 * m
        for tq in range(3):
            x = [ACQ + (m * 3 + tq) * 4 + r for r in range(4)]
            P.add(phi4(x, [VRS + m] * 4, [VC + m] * 4, [T + 16 + 4 * (tq % 2) + r for r in range(4)], x))
            P.e(f"v_cvt_pk_bf16_f32 v{q+2*tq}, v{x[0]}, v{x[1]}\nv_cvt_pk_bf16_f32 v{q+2*tq+1}, v{x[2]}, v{x[3]}")
            if tq == 1:
                if m == 1:
                    P.e(f"s_add_u32 s{sC}, s{sC}, 20480")
                P.e(f"buffer_store_dwordx4 {V(q, 4)}, v2, s[4:7], s{sC} offen sc1", tag="out")
        P.e(f"buffer_store_dwordx2 {V(q+4, 2)}, v{vPQT}, s[4:7], s{sC} offen offset:1024 sc1", tag="out")
    if not CFG["fa"]:
        P.add(fat)
    P.e(wr_cluster(sFA, F1C))
    stamp(P, "p1")
    assert not sc.pend
    return sc


def resid_epilogue(P, ACC, T, xbuf, stbuf, final=False):
    P.e(f"s_mul_i32 s{sC}, s{sMT}, 20480\ns_mul_i32 s{sA}, s{sCG8}, 2560\ns_add_u32 s{sC}, s{sC}, s{sA}\ns_add_u32 s{sC}, s{sC}, s{sLAY}\ns_add_u32 s{sC}, s{sC}, {xbuf}")
    P.e(f"s_lshl_b32 s{sB}, s{sMT}, 10\ns_lshl_b32 s{sA}, s{sCG8}, 7\ns_add_u32 s{sB}, s{sB}, s{sA}\ns_add_u32 s{sB}, s{sB}, s{sLAY}\ns_add_u32 s{sB}, s{sB}, {stbuf}")
    P.e(f"v_mov_b32 v{T}, 0\nv_mov_b32 v{T+1}, 0")
    for k0 in (0, 4, 8):
        ks = range(k0, min(k0 + 4, 10))
        for k in ks:
            P.e(f"v_lshlrev_b32 v{T+4+2*(k%4)}, 16, v{XR+k}\nv_and_b32 v{T+5+2*(k%4)}, 0xffff0000, v{XR+k}")
        for k in ks:
            P.e(f"v_pk_add_f32 {V(T+4+2*(k%4), 2)}, {V(T+4+2*(k%4), 2)}, {V(ACC+2*k, 2)}")
        for k in ks:
            P.e(f"v_cvt_pk_bf16_f32 v{XR+k}, v{T+4+2*(k%4)}, v{T+5+2*(k%4)}")
        if final:
            continue
        if k0 < 8:
            P.e(f"buffer_store_dwordx4 {V(XR+k0, 4)}, v2, s[4:7], s{sC} offen offset:{k0*256} sc1", tag="out")
        else:
            P.e(f"buffer_store_dwordx2 {V(XR+8, 2)}, v{vHALF}, s[4:7], s{sC} offen offset:2048 sc1", tag="out")
    if final:
        P.e(f"s_mul_i32 s{sA}, s{sMT}, 20480\ns_mul_i32 s{sB}, s{sCG8}, 160\ns_add_u32 s{sA}, s{sA}, s{sB}")
        P.e(f"buffer_store_dwordx4 {V(XR, 4)}, v{vO16}, s[8:11], s{sA} offen")
        P.e(f"buffer_store_dwordx4 {V(XR+4, 4)}, v{vO16}, s[8:11], s{sA} offen offset:64")
        P.e(f"buffer_store_dwordx2 {V(XR+8, 2)}, v{vO8}, s[8:11], s{sA} offen offset:128")
        return
    for k in range(10):
        P.e(f"v_dot2_f32_bf16 v{T}, v{XR+k}, v{ONES}, v{T}")
        P.e(f"v_dot2_f32_bf16 v{T+1}, v{XR+k}, v{XR+k}, v{T+1}")
    a, b = allreduce_g(T, T + 2), allreduce_g(T + 1, T + 3)
    for x, y in zip(a, b):
        P.e(x)
        P.e(y)
    P.e(f"buffer_store_dwordx2 {V(T, 2)}, v{vSTS}, s[4:7], s{sB} offen sc1", tag="out")


def wr_cluster(sf, F):
    return (f"s_lshr_b32 s{sA}, s{sf}, 4\ns_lshl_b32 s{sA}, s{sA}, 11\ns_and_b32 s{sB}, s{sf}, 15\ns_lshl_b32 s{sB}, s{sB}, 2\n"
            f"s_add_u32 s{sA}, s{sA}, s{sB}\ns_add_u32 s{sA}, s{sA}, s{sLAY}\ns_add_u32 s{sA}, s{sA}, {F}")


def rd_cluster(sf, F):
    return f"s_lshl_b32 s{sB}, s{sf}, 7\ns_add_u32 s{sB}, s{sB}, s{sLAY}\ns_add_u32 s{sB}, s{sB}, {F}"


def phase2(P, ch, prev):
    sc = Sched(P, "p2")
    OR, ACC, DT, T = PV, PV + 80, PV + 100, PV + 132
    for r in range(4):
        P.e(f"v_mov_b32 v{DT+r}, 0")
    for k in range(10):
        P.e(f"ds_write_b128 v{vZF}, {V(DT, 4)} offset:{k*4096}", tag="z")
    P.e(f"s_add_u32 s{sX0}, s{sLAY}, {KVA}")
    P.e(f"s_mul_i32 s{sX1}, s{sMT}, 20480\ns_add_u32 s{sX1}, s{sX1}, s{sLAY}\ns_add_u32 s{sX1}, s{sX1}, {PQ}")
    P.e(rd_cluster(sFB, F1C).replace(f"s{sB}", f"s{sFL}"))
    P.e(f"s_add_u32 s{sB}, s{sFG}, s{sLAY}\ns_add_u32 s{sB}, s{sB}, {F1}")
    P.e(f"buffer_load_dwordx4 v[252:255], v2, s[4:7], s{sB} offen sc1", tag="fp")
    P.wlg("z")
    P.wvm("out")
    P.e("s_barrier")
    P.e(f"buffer_store_dword v{vONE}, v{vFC}, s[4:7], s{sA} offen sc1", tag="fl")
    P.add(check_items("2k", None, sB))
    stamp(P, "p2")
    for rr in range(16):
        if rr:
            P.e(f"s_add_u32 s{sX0}, s{sX0}, 3360")
        P.e(f"buffer_load_dwordx4 {V(OR+4*rr, 4)}, v{vKVL}, s[4:7], s{sX0} offen sc1", tag=f"kv{rr}")
    Sched.dma_ctx = None
    for o in prev.vq:
        o.prio, o.event = 40 + o.prio % 1, None
    sc.vq = prev.vq
    Sched.x_ctx = None
    for h in range(32):
        sc.load(A(4 * h, 4), vPQW, sX1, (5 * h // 2) * 256, f"pq{h}", h)
    for rr in range(16):
        if rr == CFG["pq"]:
            P.e(f"buffer_load_dword v253, v{vPOLL}, s[4:7], s{sFL} offen sc1", tag="fp")
        if rr == CFG["pc"]:
            P.add(check_items("2", 0))
            sc.burst(CFG["b2"])
        P.wvm(f"kv{rr}")
        a = OR + 4 * rr
        P.e(f"v_cvt_pk_bf16_f32 v{a}, v{a}, v{a+1}\nv_cvt_pk_bf16_f32 v{a+1}, v{a+2}, v{a+3}")
        P.e(f"ds_write_b64 v{vKVW}, {V(a, 2)} offset:{rr*2560}", tag="kw")
        if rr >= CFG["pc"]:
            sc.burst(1)
    P.wlg("kw")
    P.e("s_barrier")
    stamp(P, "p2")
    for c in range(1, CFG["m3"]):
        sc.dma(ch["p3"][c], 1000 + c)
    steps = []
    nw = 0

    def wstep(n):
        kb, t = divmod(n, 5)

        def mf(w):
            d = V(ACC + 4 * t, 4)
            return [f"{MF} {d}, {w}, {V(OR+4*kb, 4)}, {'0' if kb == 0 else d}"]
        st = dict(fr=divmod(n, 20), mf=mf)
        if t == 0:
            st["aw"] = f"o{(8*kb+7)//5}"
        return st

    for h in range(32):
        d = DT + 8 * (h % 4)
        for j in range(2):
            st = dict(rd=lambda dst, h=h, j=j: f"ds_read_b128 {dst}, v{vE0+j} offset:{h*1280}",
                      mf=lambda w, h=h, j=j, d=d: [f"{MF} {V(d+4*j, 4)}, {w}, {A(4*h, 4)}, {V(CE, 4) if j else '0'}"])
            if j == 0:
                st["xw"] = [f"pq{h}"]
                if h >= 3:
                    st["aw"] = f"o{h-3}"
            steps.append(st)
        L = [f"v_rcp_f32 v{d+5}, v{d+5}"] + [f"v_mul_f32 v{d+i}, v{d+i}, v{d+5}" for i in range(5)]
        n0 = 5 * h
        if h % 2 == 0:
            L += [f"v_cvt_pk_bf16_f32 v{OR+n0//2}, v{d}, v{d+1}", f"v_cvt_pk_bf16_f32 v{OR+n0//2+1}, v{d+2}, v{d+3}"]
        else:
            dp = DT + 8 * ((h - 1) % 4)
            L += [f"v_cvt_pk_bf16_f32 v{OR+n0//2}, v{dp+4}, v{d}", f"v_cvt_pk_bf16_f32 v{OR+n0//2+1}, v{d+1}, v{d+2}",
                  f"v_cvt_pk_bf16_f32 v{OR+n0//2+2}, v{d+3}, v{d+4}"]
        sc.alu(L, step=len(steps) + 1)
        sc.mark(f"o{h}")
        lim = min(100, int(round((h - 1) * 100 / 32)))
        while nw < lim and (8 * (nw // 5) + 7) // 5 <= h - 2:
            steps.append(wstep(nw))
            nw += 1
    while nw < 100:
        steps.append(wstep(nw))
        nw += 1
    sc.run(steps, ch["p2"], 2, extra=CFG["x2"], nobar=(0, 1), wevery=2)
    sc.drain()
    resid_epilogue(P, ACC, T, XB, STB)
    handoff(P, sc, "out", wr_cluster(sFB, F2), vFC, "2")


def hreg(kb):
    n = CFG["hp"]
    if kb >= n:
        return A(4 * (kb - n), 4)
    return A(160 + 4 * kb, 4) if kb < 16 else V(PV + 4 * (kb - 16) + (24 if kb >= 24 else 0), 4)


def h_loads(sc, kbs, **kw):
    for kb in kbs:
        sc.load(hreg(kb), 2, sX0, kb * 1024, f"H{kb}", **dict(dict(prio=kb * 5 - 50, step=kb * 5 - CFG["lead4"], event="late" if kb >= 32 else None), **kw))


def phase3(P, ch):
    sc = Sched(P, "p3")
    ACC, VST, VRS, VSD, VC, VEXT, T, HO = PV, PV + 112, PV + 120, PV + 122, PV + 124, PV + 126, PV + 134, PV + 142
    x_phase_loads(sc, P, XB, STB, VST, 6)
    poll(P, rd_cluster(sFA, F2), "3")
    sc.burst(2 * CFG["b3"])
    sc.events.add("p2:end")
    for c in range(CFG["m3"], 15):
        sc.dma(ch["p3"][c], 20 * c - 60)
    for c in range(8):
        sc.dma(ch["p4"][c], 1000 + c)
    steps = []
    gend = {}
    for p0, npair in ((0, 3), (3, 1), (4, 2), (6, 1)):
        for kb in range(21):
            for t in range(2 * p0, 2 * (p0 + npair)):
                def mf(w, kb=kb, t=t):
                    L = []
                    for m in range(2):
                        x = A((m * 20 + kb) * 4, 4) if kb < 20 else V(VEXT + 4 * m, 4)
                        d = V(ACC + m * 56 + t * 4, 4)
                        L.append(f"{MF} {d}, {w}, {x}, {'0' if kb == 0 else d}")
                    return L
                st = dict(fr=divmod(len(steps), 20), mf=mf)
                if t == 0 and kb % 2 == 0 and kb < 20:
                    st["xw"] = [f"X{kb}"]
                if t == 0 and kb == 20:
                    st["aw"] = "ext"
                steps.append(st)
        for p in range(p0, p0 + npair):
            gend[p] = len(steps)
    sc.alu([Wait("vm", "st")], step=64)
    for m in range(2):
        sc.alu(stats_finish(VST, m, VRS + m, VSD + m, VEXT + 4 * m, T) + [f"v_mul_f32 v{VC+m}, {f32(-LOG2E)}, v{VRS+m}"])
    sc.mark("ext")
    sc.alu([f"s_lshl_b32 s{sA}, s{sCG}, 11\ns_mul_i32 s{sC}, s{sMT0}, 55296\ns_add_u32 s{sC}, s{sC}, s{sA}\ns_add_u32 s{sC}, s{sC}, s{sLAY}\ns_add_u32 s{sC}, s{sC}, {HB}\ns_add_u32 s{sD1}, s{sC}, 55296",
            f"s_lshl_b32 s{sA}, s{sCG}, 10\ns_sub_u32 s{sD2}, 32768, s{sA}"])

    def epi(p, m):
        g = ACC + m * 56 + 8 * p
        u = g + 4
        L = [f"v_mul_f32 v{g+r}, v{g+r}, v{VC+m}" for r in range(4)]
        L += [f"v_exp_f32 v{g+r}, v{g+r}" for r in range(4)]
        L += [f"v_fma_f32 v{g+r}, v{g+r}, v{VSD+m}, v{VSD+m}" for r in range(4)]
        L += [f"v_rcp_f32 v{g+r}, v{g+r}" for r in range(4)]
        L += [f"v_mul_f32 v{u+r}, v{u+r}, v{g+r}" for r in range(4)]
        o = HO + m * 14 + 2 * p
        L += [f"v_cvt_pk_bf16_f32 v{o}, v{u}, v{u+1}", f"v_cvt_pk_bf16_f32 v{o+1}, v{u+2}, v{u+3}"]
        L = [Ins(x) for x in L]
        so = sD1 if m else sC
        if p % 2 == 1:
            L.append(Ins(f"buffer_store_dwordx4 {V(o-2, 4)}, v2, s[4:7], s{so} offen offset:{1024 if p == 3 else 0} sc1", "outE" if p < 4 else "out"))
        if p == 6:
            L.append(Ins(f"buffer_store_dwordx2 {V(o, 2)}, v{vH3}, s[4:7], s{so} offen sc1", "out"))
        return L

    fp = Ins(f"buffer_load_dword v253, v{vPOLL}, s[4:7], s{sFL} offen sc1", "fp")
    for p in range(6):
        for m in range(2):
            if CFG["pe"] and 2 * p + m == CFG["pe"]:
                sc.alu([fp], step=CFG["ce"] - 10)
            if CFG["pe"] and 2 * p + m == CFG["pe"] + 1:
                sc.alu(check_items("4e", 0), step=CFG["ce"])
                sc.mark("early")
            sc.alu(epi(p, m), step=gend[p] + 1)
        if p == 3:
            sc.alu([f"s_add_u32 s{sC}, s{sC}, s{sD2}\ns_add_u32 s{sD1}, s{sD1}, s{sD2}\ns_lshr_b32 s{sD2}, s{sD2}, 1"])
            fl = flag_items("outE", wr_cluster(sFA, F3), vFC)
            k = [isinstance(x, Wait) for x in fl].index(True)
            sc.alu(fl[:k])
            sc.alu(fl[k:], step=CFG["e3"])
            sc.alu([rd_cluster(sFB, F3).replace(f"s{sB}", f"s{sFL}"), f"s_mul_i32 s{sX0}, s{sMT}, 55296\ns_add_u32 s{sX0}, s{sX0}, s{sLAY}\ns_add_u32 s{sX0}, s{sX0}, {HB}"])
            if CFG["hp"] and CFG["pe"] == 0:
                sc.alu([fp], step=CFG["ce"] - 10)
                sc.alu(check_items("4e", 0), step=CFG["ce"])
                sc.mark("early")
    sc.alu([f"s_add_u32 s{sC}, s{sC}, s{sD2}\ns_add_u32 s{sD1}, s{sD1}, s{sD2}"])
    h_loads(sc, range(CFG["hp"]), prio=900, step=0, event="early")
    sc.run(steps, ch["p3"], lambda i: CFG["gh"] if i > CFG["ce"] else CFG["g3"], extra=lambda i: 1 if 126 < i < CFG["x3"] or i > CFG["y3"] else 0)
    sc.drain()
    if CFG["hp"]:
        sc.burst(len([o for o in sc.vq if o.tag[0] == "H"]))
    else:
        P.add(fp)
    a, b = epi(6, 0), epi(6, 1)
    for k in range(0, 20, 4):
        P.add(a[k:k + 4] + b[k:k + 4])
    P.add(a[20:] + b[20:])
    P.add(flag_items("out", "", vFC, 64)) if not CFG["nowait3"] else None
    stamp(P, "p3")
    return sc


def phase4(P, ch, prev):
    sc = Sched(P, "p4")
    sc.events |= {e for e in prev.events if e and e.startswith("p3:")}
    for o in prev.vq:
        o.prio = 60 + (o.prio - 1000)
    sc.vq, sc.pend, sc.pend_tag = prev.vq, prev.pend, prev.pend_tag
    ACC, T = 220, PV + 20
    h_loads(sc, range(CFG["hp"], 54))
    if not CFG["hp"]:
        P.add(check_items("4e", 0))
    stamp(P, "p4")
    sc.burst(CFG["b4"])
    if CFG["nowait3"]:
        sc.alu(flag_items("out", "", vFC, 64), step=CFG["f4"])
    sc.alu([Ins(f"buffer_load_dword v253, v{vPOLL}, s[4:7], s{sFL} offen offset:64 sc1", "fp")], step=CFG["c4"] - 24)
    sc.alu(check_items("4", 64), step=CFG["c4"])
    sc.mark("late")
    for c in range(8, 14):
        sc.dma(ch["p4"][c], 20 * c - 60)
    for c in list(range(CFG["m1"])) + list(range(CFG["n1"], 8)):
        sc.dma(ch["p1"][c], 1000 + c, step=CFG["pf4"])
    steps = []
    for kb in range(54):
        for t in range(5):
            def mf(w, kb=kb, t=t):
                d = V(ACC + 4 * t, 4)
                return [f"{MF} {d}, {w}, {hreg(kb)}, {'0' if kb == 0 else d}"]
            st = dict(fr=divmod(len(steps), 20), mf=mf)
            if t == 0:
                st["xw"] = [f"H{kb}"]
            steps.append(st)
    sc.run(steps, ch["p4"], CFG["g4"], wevery=2)
    P.e(f"s_cmp_lg_u32 s{sLAY}, 0\ns_cbranch_scc1 L_final")
    resid_epilogue(P, ACC, T, XA + LB, STA + LB)
    handoff(P, sc, "out", wr_cluster(sFB, F0 + LB), vFC, "4")
    stamp_flush(P)
    P.e(f"s_mov_b32 s{sLAY}, {LB}\ns_branch L_layer\nL_final:")
    resid_epilogue(P, ACC, T, 0, 0, final=True)
    P.e("s_waitcnt vmcnt(0)")
    stamp_flush(P)
    P.e("s_endpgm")


def start_wait(Q):
    Q.raw(f"s_cmp_lg_u32 s{sWAVE}, 0\ns_cbranch_scc1 L_pd0\ns_mov_b32 s{sSPIN}, {SPIN}\nL_pl0:")
    Q.raw(f"global_load_dword v252, v{vT}, s[{sDBG}:{sDBG+1}] offset:128 sc1\ns_waitcnt vmcnt(0)\nv_cmp_eq_u32 vcc, 0, v252\ns_nop 1\ns_cbranch_vccz L_pd0")
    Q.raw(f"s_sub_u32 s{sSPIN}, s{sSPIN}, 1\ns_cmp_lg_u32 s{sSPIN}, 0\ns_cbranch_scc1 L_pl0\nL_pd0:")
    Q.e("s_waitcnt vmcnt(0)\ns_barrier")
    stamp(Q, "p0", True, 5)


def gen_main():
    ch = mk_chunks()
    Q = Prog()
    P = Prog()
    Sched.dma_ctx = None
    q0 = 4
    if PROF == "p0":
        _nstamp[0] = 7
    n0 = _nstamp[0]
    sc1 = phase1(P, ch)
    left = sorted(o.tag for o in sc1.vq)
    P.e("L_p2:")
    phase2(P, ch, sc1)
    phase4(P, ch, phase3(P, ch))
    order = [x for x in Sched.log if x[0][0] == "1" and not CFG["m1"] <= int(x[0][2:]) < CFG["n1"] and x[0] != "1_8"]
    assert len(order) == 5 * (8 - CFG["n1"] + CFG["m1"])
    P.items = [Ins(".p2align 6"), Ins("L_layer:")] + [Virtual("W" + x[0]) for x in order] + P.items
    Q.e("L_join:")
    stamp(Q, "p0", True, q0)
    Q.e(f"s_mov_b32 s8, s44\ns_and_b32 s9, s45, 0xffff\ns_mov_b32 s10, {XSZ}\ns_mov_b64 s[{sDBG}:{sDBG+1}], s[46:47]")
    Q.e(f"s_and_b32 s{sA}, s2, 7\ns_lshr_b32 s{sB}, s2, 3\ns_and_b32 s{sC}, s{sB}, 3\ns_lshr_b32 s{sCG8}, s{sB}, 2")
    Q.e(f"s_lshr_b32 s{sRB}, s{sA}, 1\ns_lshl_b32 s{sRB}, s{sRB}, 2\ns_add_u32 s{sRB}, s{sRB}, s{sC}")
    Q.e(f"s_and_b32 s{sCG}, s{sA}, 1\ns_lshl_b32 s{sCG}, s{sCG}, 3\ns_add_u32 s{sCG}, s{sCG}, s{sCG8}")
    Q.e(f"s_mul_i32 s{sW5}, s{sWAVE}, 5120\ns_mul_i32 s{sW1}, s{sCG}, {168*1024}\ns_add_u32 s{sW1}, s{sW1}, s{sW5}\ns_add_u32 s{sW1}, s{sW1}, {WF1}")
    Q.e(f"s_lshl_b32 s{sA}, s{sA}, 2\ns_add_u32 s{sA}, s{sA}, s{sC}")
    Q.e(f"s_lshl_b32 s{sMT}, s{sA}, 2\ns_add_u32 s{sMT}, s{sMT}, s{sWAVE}")
    Q.e(f"s_lshl_b32 s{sFB}, s{sA}, 3\ns_add_u32 s{sFB}, s{sFB}, s{sCG8}")
    Q.e(f"s_lshl_b32 s{sFA}, s{sRB}, 4\ns_add_u32 s{sFA}, s{sFA}, s{sCG}")
    Q.e(f"s_lshl_b32 s{sMT0}, s{sRB}, 3\ns_lshl_b32 s{sB}, s{sWAVE}, 1\ns_add_u32 s{sMT0}, s{sMT0}, s{sB}")
    Q.e(f"s_and_b32 s{sFG}, s2, 15\ns_lshl_b32 s{sFG}, s{sFG}, 10\ns_mov_b32 s{sEPS}, {f32(1e-6)}\ns_mov_b32 s{sLAY}, 0")
    for r, base, n, cg in ((sW2, WF2, 100, sCG8), (sW3, WF3, 294, sCG), (sW4, WF4, 270, sCG8)):
        Q.e(f"s_mul_i32 s{r}, s{cg}, {n*1024}\ns_add_u32 s{r}, s{r}, {base}\ns_add_u32 s{r}, s{r}, s{sW5}")
    Q.e("v_add_u32 v3, 0x10000, v2\nv_add_u32 v4, 0x20000, v2")
    Q.e(f"v_mov_b32 v{vT}, {OOB}")
    Q.e(f"v_lshlrev_b32 v{vSTL}, 8, v5\nv_lshl_add_u32 v{vSTL}, v6, 3, v{vSTL}")
    Q.e(f"v_lshrrev_b32 v{vHALF}, 1, v5\nv_lshlrev_b32 v{vHALF}, 8, v{vHALF}\nv_lshl_add_u32 v{vHALF}, v6, 4, v{vHALF}")
    Q.e(f"v_and_b32 v{vPQT}, 1, v5\nv_lshl_add_u32 v{vHALF}, v{vPQT}, 3, v{vHALF}")
    Q.e(f"v_cmp_gt_u32 vcc, 32, v1\nv_cndmask_b32 v{vPQT}, v{vT}, v{vHALF}, vcc")
    Q.e(f"v_cmp_gt_u32 vcc, 16, v1\nv_lshlrev_b32 v{vSTS}, 3, v6\nv_cndmask_b32 v{vSTS}, v{vT}, v{vSTS}, vcc")
    Q.e("v_cmp_gt_u32 vcc, 16, v0")
    Q.e(f"v_lshlrev_b32 v{vFC}, 7, v1\nv_cndmask_b32 v{vFC}, v{vT}, v{vFC}, vcc\nv_lshlrev_b32 v{vFG}, 10, v1\nv_cndmask_b32 v{vFG}, v{vT}, v{vFG}, vcc")
    Q.e(f"v_lshlrev_b32 v{vPOLL}, 2, v6\nv_mov_b32 v{vONE}, 1")
    Q.e(f"v_cmp_gt_u32 vcc, 48, v1\nv_cndmask_b32 v{vPQW}, v{vT}, v2, vcc")
    Q.e(f"s_cmp_lt_u32 s{sCG}, 12\ns_cselect_b32 s{sB}, 0, {OOB}\nv_add_u32 v{vH3}, s{sB}, v{vHALF}")
    Q.e(f"v_mul_u32_u24 v{vO8}, 1280, v6\nv_lshl_add_u32 v{vO16}, v5, 4, v{vO8}\nv_lshl_add_u32 v{vO8}, v5, 3, v{vO8}")
    Q.e(f"s_mul_i32 s{sB}, s{sWAVE}, 3360\ns_add_u32 s{sB}, s{sB}, {RED - 640}")
    Q.e(f"v_mul_u32_u24 v{vRW0}, 336, v5\nv_lshl_add_u32 v{vRW0}, v6, 4, v{vRW0}\nv_add_u32 v{vRW0}, s{sB}, v{vRW0}")
    Q.e(f"v_min_u32 v{vRW1}, 1, v5\nv_mul_u32_u24 v{vRW1}, 320, v{vRW1}\nv_sub_u32 v{vRW1}, v{vRW0}, v{vRW1}")
    Q.e(f"v_lshlrev_b32 v{vAT}, 2, v0\nv_add_u32 v{vRR}, {RED}, v{vAT}\nv_cmp_gt_u32 vcc, 72, v0\nv_cndmask_b32 v{vATM}, v{vT}, v{vAT}, vcc")
    Q.e(f"s_lshl_b32 s{sB}, s{sWAVE}, 7\ns_add_u32 s{sB}, s{sB}, {BNC}\nv_lshl_add_u32 v{vBW}, v6, 2, s{sB}\nv_lshl_add_u32 v{vBR}, v5, 4, s{sB}")
    mk = lanemask(lambda g, i: i < 8)
    Q.e(f"s_mov_b32 s{sM8}, 0x{mk & 0xffffffff:08x}\ns_mov_b32 s{sM8+1}, 0x{mk >> 32:08x}")
    for n, (i, j) in enumerate(PAIRS):
        mk = red_mask(i, j)
        Q.e(f"s_mov_b32 s{sMASK+2*n}, 0x{mk & 0xffffffff:08x}\ns_mov_b32 s{sMASK+2*n+1}, 0x{mk >> 32:08x}")
    a, b, c, d, e = PV, PV + 1, PV + 2, PV + 3, PV + 4
    Q.e(f"s_lshr_b32 s{sA}, s{sWAVE}, 1\ns_and_b32 s{sB}, s{sWAVE}, 1\ns_lshl_b32 s{sB}, s{sB}, 6\nv_add_u32 v{a}, s{sB}, v1")
    Q.e(f"v_mul_u32_u24 v{b}, 3121, v{a}\nv_lshrrev_b32 v{b}, 16, v{b}\nv_mul_u32_u24 v{c}, 21, v{b}\nv_sub_u32 v{c}, v{a}, v{c}")
    Q.e(f"s_mul_i32 s{sB}, s{sA}, 1680\nv_lshl_add_u32 v{vKVL}, v{a}, 4, s{sB}")
    Q.e(f"v_add_u32 v{b}, s{sA}, v{b}\nv_lshrrev_b32 v{d}, 1, v{b}\nv_and_b32 v{b}, 1, v{b}")
    Q.e(f"v_lshlrev_b32 v{e}, 8, v{d}\nv_lshlrev_b32 v{d}, 7, v{d}\nv_add_u32 v{d}, 512, v{d}\nv_cmp_gt_u32 vcc, 16, v{c}\nv_cndmask_b32 v{d}, v{d}, v{e}, vcc")
    Q.e(f"v_lshl_add_u32 v{d}, v{c}, 4, v{d}\nv_lshl_add_u32 v{d}, v{b}, 3, v{d}")
    Q.e(f"v_cmp_gt_u32 vcc, 105, v{a}\nv_mov_b32 v{e}, 1152\nv_cndmask_b32 v{d}, v{e}, v{d}, vcc\nv_cndmask_b32 v{vKVL}, v{vT}, v{vKVL}, vcc")
    Q.e(f"s_mul_i32 s{sB}, s{sA}, 1280\ns_add_u32 s{sB}, s{sB}, {KVT}\nv_add_u32 v{vKVW}, s{sB}, v{d}")
    Q.e(f"v_lshlrev_b32 v{vZF}, 4, v0\nv_add_u32 v{vZF}, {KVT}, v{vZF}")
    Q.e(f"v_and_b32 v{c}, 7, v6\nv_lshlrev_b32 v{c}, 4, v{c}\nv_add_u32 v{c}, 1152, v{c}")
    Q.e(f"v_and_b32 v{b}, 3, v6\nv_lshrrev_b32 v{d}, 2, v6\nv_cmp_eq_u32 vcc, 0, v{b}\nv_cndmask_b32 v{b}, 4, v{d}, vcc")
    Q.e(f"v_lshlrev_b32 v{b}, 4, v{b}\nv_lshl_add_u32 v{b}, v5, 7, v{b}\nv_add_u32 v{b}, 768, v{b}")
    Q.e(f"v_cmp_eq_u32 vcc, 3, v5\nv_cndmask_b32 v{b}, v{b}, v{c}, vcc\nv_add_u32 v{vE1}, {KVT}, v{b}")
    Q.e(f"v_cndmask_b32 v{b}, v2, v{c}, vcc\nv_add_u32 v{vE0}, {KVT}, v{b}")
    Q.e(f"v_mov_b32 v{CE}, 0\nv_mov_b32 v{CE+1}, s{sEPS}\nv_mov_b32 v{CE+2}, 0\nv_mov_b32 v{CE+3}, 0")
    for r in range(4):
        Q.e(f"v_mov_b32 v{ONES+r}, 0x3f803f80")
    Q.e(f"v_mov_b32 v{vT}, 0")
    Sched.dma_ctx = None
    n1 = _nstamp[0]
    _nstamp[0] = n0
    sc0 = phase1(Q, ch, True)
    _nstamp[0] = n1
    assert left == sorted(o.tag for o in sc0.vq), left
    Q.e("s_branch L_p2")
    return Q, P


K0ST = " sc1"
sDBG = 18


def k0_prologue(P):
    P.e("s_cmp_ge_u32 s2, 256\ns_cbranch_scc1 L_exit")
    stamp(P)
    stamp(P, "p0", True, 0)
    P.e("s_load_dwordx2 s[4:5], s[0:1], 72", tag="ka")
    P.e("v_lshrrev_b32 v7, 6, v0\nv_and_b32 v1, 63, v0\nv_readfirstlane_b32 s12, v7\nv_lshlrev_b32 v2, 4, v1\nv_lshrrev_b32 v5, 4, v1\nv_and_b32 v6, 15, v1")
    P.e(f"s_mov_b32 s6, {WS_USED}\ns_mov_b32 s7, 0x20000")
    if CFG.get("cpf"):
        P.e(f"s_getpc_b64 s[40:41]\nL_pc:\ns_add_u32 s40, s40, L_join-L_pc\ns_addc_u32 s41, s41, 0")
        P.e(f"s_lshr_b32 s42, s2, 3\ns_lshl_b32 s42, s42, 12\ns_min_u32 s42, s42, L_exit-L_join-4096\nv_lshl_add_u32 v90, v0, 4, s42")
        P.e("global_load_dwordx4 v[92:95], v90, s[40:41]")


K0_LDS = 40 * 1024
NJ1, NJ3, NJB, NJC = 64, 128, 74, 64


def gen_k0():
    texts = []
    mx = {"v": 0, "s": 0}
    P = Prog()
    k0_prologue(P)
    P.e("s_load_dwordx4 s[52:55], s[0:1], 0", tag="ka")
    P.e("s_load_dwordx2 s[56:57], s[0:1], 16", tag="ka")
    P.e("s_load_dwordx4 s[60:63], s[0:1], 32", tag="ka")
    P.e("s_load_dwordx2 s[58:59], s[0:1], 48", tag="ka")
    P.e("s_load_dwordx4 s[44:47], s[0:1], 56", tag="ka")
    P.e("s_mov_b32 s11, 0x20000")
    P.e("v_lshrrev_b32 v7, 2, v6\nv_and_b32 v8, 3, v6")
    P.e("v_and_b32 v9, 1, v5\nv_lshl_add_u32 v9, v9, 2, v7\nv_lshlrev_b32 v9, 1, v9")
    P.e("v_lshl_add_u32 v10, v5, 3, v7\nv_lshlrev_b32 v10, 8, v10")
    P.e("s_lshr_b32 s17, s12, 1\ns_lshl_b32 s17, s17, 3\nv_lshl_add_u32 v11, v5, 1, s17\nv_xor_b32 v11, v11, v6")
    P.wlg("ka")
    stamp(P, "p0", True, 1)
    P.e("s_and_b32 s5, s5, 0xffff")
    P.e("s_cmp_lt_u32 s2, 64\ns_cbranch_scc1 L_k0_A\ns_cmp_lt_u32 s2, 128\ns_cbranch_scc1 L_k0_C")
    if CFG["bup"]:
        P.e(f"s_cmp_lt_u32 s2, {128 + NJB}\ns_cbranch_scc1 L_k0_B")
    texts.append(P)

    P = Prog()
    P.e("L_k0_A:")
    P.e(f"s_cmp_lt_u32 s2, {NJ1}\ns_cbranch_scc0 L_k0_A3")
    P.e("s_lshr_b32 s14, s2, 2\ns_and_b32 s15, s2, 3")
    P.e(f"s_mov_b32 s8, s54\ns_and_b32 s9, s55, 0xffff\ns_mov_b32 s10, {640*1920*2}\ns_mov_b32 s20, 3840")
    P.e("v_min_u32 v12, 14, v11\nv_mul_u32_u24 v13, 52, v12\nv_lshrrev_b32 v13, 8, v13")
    P.e("v_mul_u32_u24 v13, 1200, v13\nv_lshl_add_u32 v12, v12, 4, v13")
    P.e("s_mul_i32 s21, s14, 80")
    P.e("s_lshl_b32 s22, s12, 5\ns_add_u32 s22, s22, 80\ns_mov_b32 s23, 8\ns_mov_b32 s24, 3")
    P.e("s_mov_b32 s25, 208\ns_mov_b32 s26, 8\ns_mov_b32 s27, 3")
    P.e("s_cmp_eq_u32 s12, 1\ns_cselect_b32 s25, 0, s25\ns_cselect_b32 s26, 16, s26")
    P.e("s_cmp_eq_u32 s12, 2\ns_cselect_b32 s25, 8, s25\ns_cselect_b32 s26, 16, s26")
    P.e("s_cmp_eq_u32 s12, 3\ns_cselect_b32 s25, 64, s25\ns_cselect_b32 s27, 1, s27")
    P.e(f"s_mul_i32 s28, s14, {21*8*1024}\ns_add_u32 s28, s28, {WF1}\ns_lshl_b32 s17, s12, 10\ns_add_u32 s28, s28, s17")
    P.e(f"s_cmp_eq_u32 s12, 0\ns_mov_b32 s17, {104*1024}\ns_mov_b32 s36, 3072\ns_cselect_b32 s17, 4096, s17\ns_cselect_b32 s36, 5120, s36\ns_add_u32 s29, s28, s17\ns_mov_b32 s30, 5120")
    P.e("s_branch L_k0_Ac")
    P.e("L_k0_A3:")
    P.e(f"s_sub_u32 s16, s2, 128\ns_and_b32 s18, s16, 1\ns_lshr_b32 s15, s16, 1\ns_and_b32 s15, s15, 3\ns_lshr_b32 s14, s16, 3")
    P.e("s_cmp_eq_u32 s18, 0\ns_cselect_b32 s8, s60, s62\ns_cselect_b32 s9, s61, s63\ns_and_b32 s9, s9, 0xffff")
    P.e(f"s_mov_b32 s10, {640*1728*2}\ns_mov_b32 s20, 3456")
    P.e("s_cmp_lt_u32 s14, 12\ns_cselect_b32 s17, 13, 11")
    P.e("v_min_u32 v12, s17, v11\nv_lshlrev_b32 v12, 4, v12")
    P.e("s_mul_i32 s21, s14, 224\ns_mul_i32 s17, s14, 192\ns_add_u32 s17, s17, 384\ns_min_u32 s21, s21, s17")
    P.e("s_lshr_b32 s22, s12, 1\ns_lshl_b32 s22, s22, 6\ns_and_b32 s17, s12, 1\ns_lshl_b32 s17, s17, 3\ns_add_u32 s22, s22, s17")
    P.e("s_mov_b32 s23, 16\ns_mov_b32 s24, 3\ns_mov_b32 s27, 3")
    P.e("s_add_u32 s25, s17, 128\ns_cmp_lt_u32 s12, 2\ns_cselect_b32 s25, s25, 192\ns_cselect_b32 s26, 16, 8")
    P.e(f"s_mul_i32 s28, s14, {21*14*1024}\ns_add_u32 s28, s28, {WF3}\ns_lshl_b32 s17, s18, 10\ns_add_u32 s28, s28, s17")
    P.e(f"s_cmp_eq_u32 s12, 1\ns_mov_b32 s17, {252*1024}\ns_cselect_b32 s17, {170*1024}, s17\ns_cmp_eq_u32 s12, 0\ns_cselect_b32 s17, {168*1024}, s17\ns_cmp_lt_u32 s12, 2\ns_mov_b32 s36, 2048\ns_cselect_b32 s36, 4096, s36\ns_add_u32 s29, s28, s17")
    P.e(f"s_lshl_b32 s17, s12, 11\ns_cmp_eq_u32 s12, 3\ns_cselect_b32 s17, {126*1024}, s17\ns_mov_b32 s30, 6144\ns_cselect_b32 s30, 2048, s30\ns_add_u32 s28, s28, s17")
    P.e("L_k0_Ac:")
    P.e("s_lshl_b32 s17, s12, 2\nv_add_u32 v13, s17, v5\nv_mul_lo_u32 v13, v13, s20\nv_add_u32 v12, v12, v13")
    P.e("s_mul_i32 s31, s15, 160\ns_mul_i32 s31, s31, s20\ns_add_u32 s31, s31, s21\ns_lshl_b32 s32, s20, 4")
    P.e("s_lshl_b32 s33, s12, 10")
    for k in range(10):
        P.e(f"s_add_u32 m0, s33, {k*4096}")
        if k:
            P.e("s_add_u32 s31, s31, s32")
        P.e("buffer_load_dwordx4 v12, s[8:11], s31 offen lds", tag="d")
    for tt, (sa, sb, sm) in enumerate(((22, 23, 24), (25, 26, 27))):
        a = 14 + tt
        P.e(f"v_min_u32 v{a}, s{sm}, v8\nv_mul_lo_u32 v{a}, v{a}, s{sb}\nv_add_u32 v{a}, s{sa}, v{a}")
        P.e(f"v_lshrrev_b32 v16, 4, v{a}\nv_xor_b32 v16, v16, v9\nv_and_b32 v{a}, 8, v{a}")
        P.e(f"v_lshl_add_u32 v{a}, v16, 4, v{a}\nv_add_u32 v{a}, v{a}, v10")
    for r in range(4):
        P.e(f"v_mov_b32 v{20+r}, 0x3f803f80")
    P.e("s_mul_i32 s18, s15, 5\ns_mul_i32 s17, s18, s30\ns_add_u32 s34, s28, s17\ns_mul_i32 s17, s18, s36\ns_add_u32 s35, s29, s17")
    P.wvm("d")
    P.e("s_barrier")
    stamp(P, "p0", True, 2)
    for tt in range(2):
        for k in range(5):
            d = 32 + (tt * 5 + k) * 4
            P.e(f"ds_read_b64_tr_b16 {V(d, 2)}, v{14+tt} offset:{k*8192}", tag=f"t{tt}{k}")
            P.e(f"ds_read_b64_tr_b16 {V(d+2, 2)}, v{14+tt} offset:{k*8192+1024}", tag=f"t{tt}{k}")
            if tt == 1 and k == 1:
                P.wlg("t04")
    for tt in range(2):
        for k in range(5):
            d = 32 + (tt * 5 + k) * 4
            P.wlg(f"t{tt}{k}")
            P.e(f"buffer_store_dwordx4 {V(d, 4)}, v2, s[4:7], s{34+tt} offen{K0ST}")
            P.e(f"s_add_u32 s{34+tt}, s{34+tt}, s{36 if tt else 30}")
            c = V(24 + 4 * tt, 4)
            P.e(f"{MF} {c}, {V(20, 4)}, {V(d, 4)}, {'0' if k == 0 else c}")
    P.e("s_lshl_b32 s18, s15, 8\ns_mul_i32 s17, s30, 20\ns_add_u32 s17, s17, s18\ns_add_u32 s28, s28, s17\ns_mul_i32 s17, s36, 20\ns_add_u32 s17, s17, s18\ns_add_u32 s29, s29, s17")
    set_exec(P, 0xffff)
    for tt in range(2):
        c = 24 + 4 * tt
        e = 72 + 4 * tt
        P.e(f"v_cvt_pk_bf16_f32 v{e}, v{c}, v{c}\nv_and_b32 v16, 0xffff0000, v{e}\nv_sub_f32 v17, v{c}, v16")
        P.e(f"v_cvt_pk_bf16_f32 v{e+1}, v17, v17\nv_and_b32 v16, 0xffff0000, v{e+1}\nv_sub_f32 v17, v17, v16")
        P.e(f"v_cvt_pk_bf16_f32 v{e+2}, v17, v{c}\nv_mov_b32 v{e+3}, 0")
        P.e(f"buffer_store_dwordx4 {V(e, 4)}, v2, s[4:7], s{28+tt} offen{K0ST}")
    P.e(f"s_mov_b64 exec, -1\ns_cmp_lt_u32 s2, 64\ns_cbranch_scc1 L_arrive\ns_cmp_ge_u32 s2, {128 + NJB}\ns_cbranch_scc1 L_join")
    if CFG["bup"]:
        P.e("s_branch L_k0_Bp")
    texts.append(P)

    P = Prog()
    P.e("L_k0_B:")
    P.e("s_sub_u32 s16, s2, 128")
    P.e("s_cmp_lt_u32 s16, 20\ns_cbranch_scc1 L_k0_B2")
    P.e(f"s_sub_u32 s16, s16, 20\ns_mov_b32 s8, s58\ns_and_b32 s9, s59, 0xffff\ns_mov_b32 s10, {1728*640*2}")
    P.e(f"s_mov_b32 s20, {54*5*1024}\ns_mov_b32 s21, {WF4}")
    P.e("s_lshr_b32 s22, s16, 1\ns_and_b32 s23, s16, 1\ns_lshl_b32 s23, s23, 5\ns_mov_b32 s24, 16")
    P.e("s_sub_u32 s17, s16, 32\ns_cmp_ge_u32 s16, 32\ns_cselect_b32 s22, s17, s22\ns_cselect_b32 s23, 64, s23")
    P.e("s_sub_u32 s17, s16, 48\ns_lshl_b32 s17, s17, 1\ns_cmp_ge_u32 s16, 48\ns_cselect_b32 s22, s17, s22\ns_cselect_b32 s23, 96, s23\ns_cselect_b32 s24, 112, s24")
    P.e("s_mul_i32 s17, s22, 112\ns_mul_i32 s18, s22, 96\ns_add_u32 s18, s18, 192\ns_min_u32 s17, s17, s18\ns_add_u32 s17, s17, s23")
    P.e("s_lshl_b32 s18, s12, 2\ns_add_u32 s17, s17, s18\nv_add_u32 v12, s17, v5\nv_add_u32 v13, s24, v12")
    P.e("s_branch L_k0_Bc")
    P.e("L_k0_B2:")
    P.e(f"s_mov_b32 s8, s56\ns_and_b32 s9, s57, 0xffff\ns_mov_b32 s10, {640*640*2}")
    P.e(f"s_mov_b32 s20, {20*5*1024}\ns_mov_b32 s21, {WF2}")
    P.e("s_lshl_b32 s18, s12, 2\nv_add_u32 v14, s18, v5\nv_and_b32 v15, 7, v14\nv_lshrrev_b32 v14, 3, v14")
    P.e("s_lshl_b32 s17, s16, 3\nv_add_u32 v15, s17, v15\nv_mul_u32_u24 v16, 205, v15\nv_lshrrev_b32 v16, 10, v16")
    P.e("v_mul_u32_u24 v17, 5, v16\nv_sub_u32 v17, v15, v17\nv_mul_u32_u24 v16, 20, v16")
    P.e("v_cmp_gt_u32 vcc, 4, v17")
    for k in range(2):
        if k:
            P.e("v_add_u32 v14, 2, v14")
        P.e(f"v_lshl_add_u32 v18, v14, 2, v17\nv_add_u32 v19, 16, v14\nv_cndmask_b32 v18, v19, v18, vcc\nv_add_u32 v{12+k}, v16, v18")
    P.e("L_k0_Bc:")
    for k in range(2):
        P.e(f"v_mul_u32_u24 v{12+k}, 1280, v{12+k}\nv_lshl_add_u32 v{12+k}, v11, 4, v{12+k}")
    P.e("s_lshl_b32 s33, s12, 10")
    for pn in range(5):
        for k in range(2):
            P.e(f"s_add_u32 m0, s33, {40960 + pn*8192 + k*4096}\ns_mov_b32 s31, {pn*256}")
            P.e(f"buffer_load_dwordx4 v{12+k}, s[8:11], s31 offen lds", tag="d")
    if CFG["bup"]:
        P.e("s_mov_b32 s37, s16\ns_mov_b32 s38, s20\ns_mov_b32 s39, s21\ns_branch L_k0_A3\nL_k0_Bp:\ns_mov_b32 s16, s37\ns_mov_b32 s20, s38\ns_mov_b32 s21, s39")
    P.e("s_mul_i32 s22, s12, 320")
    P.e("v_lshlrev_b32 v14, 4, v8\nv_add_u32 v14, s22, v14\nv_lshlrev_b32 v15, 3, v8\nv_add_u32 v15, s22, v15")
    for cq in range(2):
        for t in range(5):
            a = 20 + cq * 5 + t
            k0 = 160 * cq + (64 * (t // 2) + 8 * (t % 2) if t < 4 else 128)
            P.e(f"v_add_u32 v16, {k0}, {'v14' if t < 4 else 'v15'}")
            P.e("v_bfe_u32 v17, v16, 4, 4\nv_xor_b32 v17, v17, v9\nv_lshrrev_b32 v18, 8, v16\nv_and_b32 v16, 8, v16")
            P.e(f"v_lshl_add_u32 v16, v17, 4, v16\nv_lshl_add_u32 v16, v18, 13, v16\nv_add_u32 v{a}, v16, v10")
    P.e("s_lshl_b32 s17, s12, 1\ns_mul_i32 s17, s17, s20\ns_add_u32 s21, s21, s17\ns_mul_i32 s17, s16, 5120\ns_add_u32 s21, s21, s17")
    if not CFG["bup"]:
        P.wvm("d")
        P.e("s_barrier")
    stamp(P, "p0", True, 3)
    for n in range(10):
        d = 32 + 4 * n
        P.e(f"ds_read_b64_tr_b16 {V(d, 2)}, v{20+n} offset:40960", tag=f"t{n}")
        P.e(f"ds_read_b64_tr_b16 {V(d+2, 2)}, v{20+n} offset:41984", tag=f"t{n}")
        if n == 6:
            P.wlg("t3")
    for n in range(10):
        d = 32 + 4 * n
        if n == 4:
            P.e("s_add_u32 s17, s21, 4096")
        if n == 5:
            P.e("s_add_u32 s21, s21, s20")
        if n == 9:
            P.e("s_add_u32 s17, s21, 4096")
        P.wlg(f"t{n}")
        t = n % 5
        P.e(f"buffer_store_dwordx4 {V(d, 4)}, v2, s[4:7], {'s21' if t < 4 else 's17'} offen offset:{(t % 4)*1024}{K0ST}")
    P.e("s_branch L_join")
    texts.append(P)

    P = Prog()
    P.e("L_k0_C:")
    P.e("s_sub_u32 s16, s2, 64")
    P.e(f"s_mov_b32 s8, s52\ns_and_b32 s9, s53, 0xffff\ns_mov_b32 s10, {XSZ}")
    P.e("s_lshl_b32 s17, s12, 2\nv_add_u32 v12, s17, v5\nv_xor_b32 v13, v12, v6\nv_mul_u32_u24 v12, 1280, v12\nv_lshl_add_u32 v12, v13, 4, v12")
    P.e("s_mul_i32 s20, s16, 40960\ns_lshl_b32 s33, s12, 10")
    for ml in range(2):
        for pn in range(5):
            P.e(f"s_add_u32 m0, s33, {ml*20480 + pn*4096}\ns_add_u32 s31, s20, {ml*20480 + pn*256}")
            P.e("buffer_load_dwordx4 v12, s[8:11], s31 offen lds", tag="d")
    for r in range(4):
        P.e(f"v_mov_b32 v{20+r}, 0")
    P.e(f"s_and_b32 s17, s16, 31\ns_mul_i32 s17, s17, {ZSZ//32}\ns_lshr_b32 s18, s16, 5\ns_mul_i32 s18, s18, {LB}\ns_add_u32 s17, s17, s18\ns_add_u32 s17, s17, {KVA}")
    P.e(f"v_lshlrev_b32 v14, 4, v0\nbuffer_store_dwordx4 {V(20, 4)}, v14, s[4:7], s17 offen{K0ST}")
    P.e(f"v_cmp_gt_u32 vcc, {(ZSZ//32 - 4096)//16}, v0\nv_mov_b32 v15, 0x40000000\nv_cndmask_b32 v14, v15, v14, vcc\ns_add_u32 s17, s17, 4096")
    P.e(f"buffer_store_dwordx4 {V(20, 4)}, v14, s[4:7], s17 offen{K0ST}")
    P.e("s_lshr_b32 s22, s12, 1\ns_and_b32 s23, s12, 1\ns_mul_i32 s24, s22, 20480\ns_mul_i32 s25, s23, 40")
    P.e("v_add_u32 v14, s25, v5\nv_lshlrev_b32 v15, 8, v6\nv_add_u32 v15, s24, v15")
    for k in range(10):
        P.e(f"v_add_u32 v16, {4*k}, v14\nv_lshrrev_b32 v17, 4, v16\nv_xor_b32 v16, v16, v6\nv_and_b32 v16, 15, v16")
        P.e(f"v_lshl_add_u32 v16, v16, 4, v15\nv_lshl_add_u32 v{72+k}, v17, 12, v16")
    P.e(f"s_add_u32 s26, s20, s24\ns_mul_i32 s17, s23, 10240\ns_add_u32 s26, s26, s17\ns_add_u32 s26, s26, {XA}")
    P.e("v_mov_b32 v24, 0\nv_mov_b32 v25, 0\nv_mov_b32 v26, 0x3f803f80")
    P.wvm("d")
    P.e("s_barrier")
    stamp(P, "p0", True, 2)
    for k in range(10):
        P.e(f"ds_read_b128 {V(32+4*k, 4)}, v{72+k}", tag=f"t{k}")
    for k in range(10):
        if k and k % 4 == 0:
            P.e("s_add_u32 s26, s26, 4096")
        P.wlg(f"t{k}")
        P.e(f"buffer_store_dwordx4 {V(32+4*k, 4)}, v2, s[4:7], s26 offen offset:{(k % 4)*1024}{K0ST}")
        for r in range(4):
            P.e(f"v_dot2_f32_bf16 v24, v{32+4*k+r}, v26, v24")
            P.e(f"v_dot2_f32_bf16 v25, v{32+4*k+r}, v{32+4*k+r}, v25")
    P.add(allreduce_g(24, 27))
    P.add(allreduce_g(25, 28))
    P.e("v_cmp_eq_u32 vcc, 0, v5\nv_cndmask_b32 v24, 0, v24, vcc\nv_cndmask_b32 v25, 0, v25, vcc")
    P.e(f"s_lshl_b32 s17, s16, 1\ns_add_u32 s17, s17, s22\ns_lshl_b32 s17, s17, 10\ns_lshl_b32 s18, s23, 7\ns_add_u32 s17, s17, s18\ns_add_u32 s17, s17, {STA}")
    P.e("v_lshlrev_b32 v14, 8, v5\nv_lshl_add_u32 v14, v6, 3, v14")
    P.e(f"buffer_store_dwordx2 v[24:25], v14, s[4:7], s17 offen{K0ST}")
    P.e("L_arrive:\ns_waitcnt vmcnt(0)\ns_barrier")
    stamp(P, "p0", True, 3)
    P.e("s_cmp_lg_u32 s12, 0\ns_cbranch_scc1 L_join\nv_mov_b32 v20, 0\nv_mov_b32 v21, 1\ns_mov_b64 exec, 1")
    P.e("global_atomic_add v22, v20, v21, s[46:47] sc0\ns_waitcnt vmcnt(0)\nv_readfirstlane_b32 s17, v22\ns_mov_b64 exec, -1")
    P.e("s_cmp_lg_u32 s17, 127\ns_cbranch_scc1 L_join\ns_mov_b64 exec, 1\nglobal_store_dword v20, v21, s[46:47] offset:128 sc1\ns_mov_b64 exec, -1")
    texts.append(P)
    return texts


def build():
    _nstamp[0] = 0
    k0 = gen_k0()
    Q, P = gen_main()
    ns = max(p.max_regs()["s"] for p in k0 + [Q, P]) + 1
    K = "interleave_layers__linear_attn_block__glu_gated_glu__prompt_kernel"
    body = f".globl {K}\n.p2align 8\n.type {K},@function\n{K}:\n" + "".join(p.finish() for p in k0 + [Q, P]) + "L_exit:\n  s_endpgm\n"
    head = "; generated by tools/gen2.py: one persistent launch: weight re-layout, then (qkv, attn-out, gate/up, down) x 2 layers\n"
    return head + f"; @launch grid=(256,1,1) block=(256,1,1) lds={8*SLOT}" + '\n.amdgcn_target "amdgcn-amd-amdhsa--gfx950"\n.text\n' + body + descriptor(K, 256, 256, ns)


if __name__ == "__main__":
    import argparse
    ap = argparse.ArgumentParser()
    ap.add_argument("-o", default="v2.s")
    ap.add_argument("--stamps", action="store_true")
    ap.add_argument("--clk", action="store_true")
    ap.add_argument("--cfg", default="")
    ap.add_argument("--prof", default=None)
    a = ap.parse_args()
    STAMPS = a.stamps or a.prof is not None
    PROF = a.prof
    if PROF and PROF != "p0":
        STAMP_INS = 's_memtime'
    if a.clk:
        STAMP_INS = "s_memtime"
    for kv in a.cfg.split(","):
        if kv:
            k, v = kv.split("=")
            CFG[k] = float(v) if "." in v else int(v)
    open(a.o, "w").write(build())
    print("written", a.o)
```

```python
import sys, struct
from collections import deque
from asmlib import Prog, Ins, Wait, Virtual, V, A, S, descriptor, TRANS
from gen import f32, LOG2E, MF, allreduce_g, stats_finish, lanemask, set_exec

WF1 = 16384
WF2 = WF1 + 16 * 168 * 1024
WF3 = WF2 + 8 * 100 * 1024
WF4 = WF3 + 16 * 294 * 1024
L0 = WF4 + 8 * 270 * 1024 + 4096
XSZ = 2048 * 640 * 2
XA = L0
PQ = XA + XSZ
XB = PQ + XSZ
HB = XB + XSZ
STA = HB + 2048 * 1728 * 2
STB = STA + 128 * 1024
KVA = STB + 128 * 1024
F0 = KVA + 56 * 1024
F1 = F0 + 32768
F1C = F1 + 16384
F2 = F1C + 32768
F3 = F2 + 32768
ZSZ = F3 + 32768 - KVA
LB = F3 + 32768 - L0
STAMP = L0 + 2 * LB
WS_USED = STAMP + 4 * 512 * 256
PROF = None
assert ZSZ == 204800 and L0 % 4096 == 0 and LB % 4096 == 0
STAMPS = False
STAMP_INS = "s_memrealtime"
OOB = 0x40000000
SLOT = 20480
SPIN = 200000
CFG = dict(bm=0, nc=64, gh=1, pq=0, pc=8, b2=6, xa=6, na=170, fa=156, bup=0, x3=170, y3=300, m1=7, n1=7, w1=40, h1=0, m3=6, hp=10, ce=263, pe=9, rep=1, r0=48, ldsc=1, w0=2, b0=24, g0=1, cpf=9, g1=2, g3=2, g4=2, b1=6, b3=6, b4=0, la=6, lead4=50, pf4=200, x2=1, x1=1, e3=232, c4=116, nowait3=1, f4=24)

vSTL, vHALF, vPQT, vSTS, vRW0, vRW1, vRR, vAT, vATM, vKVL, vKVW, vE0, vE1, vZF, vPQW, vFC, vFG, vPOLL, vONE, vBW, vBR, vH3, vO16, vO8, vT = range(7, 32)
XR, CE, ONES, PV = 32, 42, 46, 50
WP = 224
sWAVE, sRB, sCG, sMT0, sMT, sCG8, sLAY = 12, 13, 14, 15, 16, 17, 20
sW5, sW1, sW2, sW3, sW4 = 21, 22, 23, 24, 25
sFA, sFB, sFG, sEPS = 26, 27, 28, 29
sX0, sX1, sXT, sDT, sA, sB, sC, sSPIN = 30, 31, 32, 33, 34, 35, 36, 37
sFL, sD1, sD2 = 60, 61, 62
sM8, sMASK = 38, 40
sSTMP = 64
RED = 7 * SLOT
BNC = RED + 13440
KVT = 6 * SLOT


def cost(it):
    if isinstance(it, (Wait, Virtual)):
        return 0
    if isinstance(it, list):
        return sum(cost(x) for x in it)
    t = it.text
    if it.opaque:
        return 0
    if t.startswith("v_mfma"):
        return 12
    if t.startswith(TRANS):
        return 8
    return 4


def I(text, tag=None):
    return [Ins(x.strip(), tag) for x in text.split("\n") if x.strip()]


_nstamp = [0]


def stamp(P, ph=None, fine=False, j=None):
    if STAMPS and (PROF is None and not fine or PROF is not None and PROF == ph):
        if j is None:
            j = _nstamp[0]
            _nstamp[0] += 1
        P.raw(f"{STAMP_INS} s[{sSTMP+2*j}:{sSTMP+2*j+1}]")


def stamp_flush(P):
    if STAMPS:
        P.raw(f"s_cmp_lg_u32 s{sWAVE}, 0\ns_cbranch_scc1 L_nost{len(P.items)}")
        lab = P.items[-1].text.split()[-1]
        P.raw(f"s_cmp_lg_u32 s{sLAY}, 0\ns_cselect_b32 s100, {512*256}, 0\ns_lshl_b32 s101, s2, 8\ns_add_u32 s100, s100, s101\ns_add_u32 s100, s100, {STAMP + 512*256}")
        P.raw(f"v_mov_b32 v{vT}, 0\ns_waitcnt lgkmcnt(0)")
        for j in range(_nstamp[0]):
            P.raw(f"v_mov_b32 v250, s{sSTMP+2*j}\nv_mov_b32 v251, s{sSTMP+2*j+1}\ns_nop 1")
            P.raw(f"buffer_store_dwordx2 v[250:251], v{vT}, s[4:7], s100 offen offset:{8*j}\ns_nop 1")
        P.raw(f"s_waitcnt vmcnt(0)\n{lab}:")


class Chunk:
    def __init__(self, name, sbase, foff, n, slot, event):
        self.name, self.sbase, self.foff, self.n, self.slot, self.event = name, sbase, foff, n, slot, event
        self.q = (n + 3) // 4
        self.tag = "W" + name


class Op:
    def __init__(self, fn, tag, prio, event=None, step=0):
        self.fn, self.tag, self.prio, self.event, self.step = fn, tag, prio, event, step


class Sched:
    dma_ctx = None
    x_ctx = None
    log = []

    def __init__(self, P, name):
        self.P, self.name = P, name
        self.vq, self.aq = [], deque()
        self.events = {None}
        self.marks = set()
        self.now = 0
        self.pend, self.pend_tag, self.rdnext, self.over = [], None, None, 0
        self.lasttr, self.lastw = set(), set()

    def dma(self, ch, prio, step=0):
        for i in range(ch.q):
            def fn(ch=ch, i=i):
                L = []
                Sched.log.append((ch.name, i))
                key = (ch.name, i // 4)
                if Sched.dma_ctx != key:
                    Sched.dma_ctx = key
                    o = (i // 4) * 4096
                    if ch.q == 5:
                        L += I(f"s_add_u32 m0, s{sW5}, {ch.slot*SLOT + o}\ns_add_u32 s{sDT}, s{ch.sbase}, {ch.foff*1024 + o}")
                    else:
                        L += I(f"s_mul_i32 s{sDT}, s{sWAVE}, {ch.q*1024}\ns_add_u32 m0, s{sDT}, {ch.slot*SLOT}\ns_sub_u32 s{sDT}, s{sDT}, s{sW5}")
                        L += I(f"s_add_u32 s{sDT}, s{sDT}, s{ch.sbase}\ns_add_u32 s{sDT}, s{sDT}, {ch.foff*1024}")
                L += I(f"buffer_load_dwordx4 v2, s[4:7], s{sDT} offen offset:{(i % 4)*1024} lds", ch.tag)
                return L
            self.vq.append(Op(fn, ch.tag, prio(i) if callable(prio) else prio + i * 1e-3, ch.event, step))

    def load(self, dst, vaddr, sbase, off, tag, prio, w=4, event=None, step=0):
        def fn():
            L = []
            if off < 4096:
                so = f"s{sbase}"
            else:
                key = (sbase, off >> 12, tag[0])
                if Sched.x_ctx != key:
                    Sched.x_ctx = key
                    L += I(f"s_add_u32 s{sXT}, s{sbase}, {off & ~4095}")
                so = f"s{sXT}"
            return L + I(f"buffer_load_dwordx{w} {dst}, v{vaddr}, s[4:7], {so} offen offset:{off & 4095}{['', ' sc1', ' sc0', ' nt'][CFG['ldsc']]}", tag)
        self.vq.append(Op(fn, tag, prio, event, step))

    def alu(self, items, step=0, event=None):
        for it in items:
            if isinstance(it, str):
                for x in I(it):
                    self.aq.append((x, step, event))
            else:
                self.aq.append((it, step, event))

    def mark(self, name):
        self.aq.append((name, 0, None))

    def start_op(self, op):
        self.vq.remove(op)
        self.pend = op.fn()
        self.pend_tag = op.tag

    def flush_pend(self):
        self.P.add(self.pend)
        self.pend = []

    def emit_op(self, op):
        self.flush_pend()
        self.start_op(op)
        self.flush_pend()

    def next_op(self):
        el = [o for o in self.vq if o.event in self.events and o.step <= self.now]
        return min(el, key=lambda o: o.prio) if el else None

    def burst(self, n):
        self.flush_pend()
        for _ in range(n):
            el = [o for o in self.vq if o.event in self.events and o.prio < 1e5]
            if not el:
                break
            self.emit_op(min(el, key=lambda o: o.prio))

    def force(self, tag):
        if self.pend and self.pend_tag == tag:
            self.flush_pend()
        ops = sorted([o for o in self.vq if o.tag == tag], key=lambda o: o.prio)
        if ops:
            print(f"  [{self.name}] forced {len(ops)} x {tag} at step {self.now}", file=sys.stderr)
        for o in ops:
            assert o.event in self.events, (tag, o.event)
            self.emit_op(o)

    def pop_alu(self, k=0):
        it = self.aq[k][0]
        del self.aq[k]
        if isinstance(it, str):
            self.marks.add(it)
            self.events.add(it)
            return
        if isinstance(it, Wait) and it.cls == "vm":
            self.force(it.tag)
        self.P.add(it)

    def drain_to(self, mark):
        n = 0
        while mark not in self.marks:
            n += not isinstance(self.aq[0][0], (str, Wait))
            self.pop_alu()
        self.over += n

    def drain(self):
        self.flush_pend()
        while self.aq:
            self.pop_alu()

    def ready(self, k):
        return self.aq[k][1] <= self.now and self.aq[k][2] in self.events

    def head_is(self, kind):
        while self.aq and isinstance(self.aq[0][0], str):
            self.pop_alu()
        if not self.aq or not self.ready(0):
            return False
        it = self.aq[0][0]
        if kind == "wait":
            return isinstance(it, Wait)
        return isinstance(it, Ins) and it.kind == "salu"

    def pick(self, slots):
        best = None
        rd, wr = set(), set()
        for k in range(min(len(self.aq), 14)):
            it = self.aq[k][0]
            if not self.ready(k):
                break
            if isinstance(it, str):
                continue
            if isinstance(it, Wait):
                break
            if isinstance(it, list) or it.kind != "valu":
                if k == 0 or (best is None and not rd and not wr):
                    return k
                break
            if not (it.rd & wr or it.wr & wr or it.wr & rd):
                tr = "trans" in it.flags
                if tr and slots >= 2 and not (it.rd & self.lastw):
                    return k
                if not tr and best is None and not (it.rd & self.lasttr):
                    best = k
            rd |= it.rd
            wr |= it.wr
        return best

    def gap(self, scalar_free, slots, allow_v):
        P = self.P
        issued = False
        if allow_v and not self.pend:
            op = self.next_op()
            if op is not None:
                self.start_op(op)
        pre_m0 = False
        if scalar_free:
            if len(self.pend) > 1:
                it = self.pend.pop(0)
                pre_m0 = "m0" in it.wr
                P.add(it)
            elif self.head_is("wait") or self.head_is("salu"):
                self.pop_alu()
                while self.head_is("wait"):
                    self.pop_alu()
        if self.rdnext is not None:
            self.rdnext()
            self.rdnext = None
            slots -= 1
        if allow_v and len(self.pend) == 1 and not pre_m0:
            self.flush_pend()
            slots -= 2
            issued = True
        self.lasttr = set()
        self.lastw = set()
        while slots > 0:
            k = self.pick(slots)
            if k is None:
                break
            it = self.aq[k][0]
            slots -= cost(it) // 4
            if isinstance(it, Ins):
                self.lastw = set(it.wr)
                if "trans" in it.flags:
                    self.lasttr = set(it.wr)
            self.pop_alu(k)
        return issued

    def run(self, steps, chunks, vgap, extra=0, nobar=(), wevery=1):
        P, LA = self.P, CFG["la"]
        seen = set()

        def newchunk(m):
            st = steps[m]
            if "fr" not in st or st["fr"][0] in seen:
                return False
            c = st["fr"][0]
            seen.add(c)
            if c not in nobar:
                self.force(chunks[c].tag)
                P.wvm(chunks[c].tag)
                P.e("s_barrier")
            stamp(P, self.name, True)
            self.events.add(f"{self.name}:{c}")
            return c not in nobar

        def rd(m):
            st = steps[m]
            dst = A(WP + 4 * (m % 8), 4)
            if "fr" in st:
                c, f = st["fr"]
                off = chunks[c].slot * SLOT + f * 1024
                P.e(f"ds_read_b128 {dst}, v{2 + (off >> 16)} offset:{off & 0xffff}", tag=f"R{m}")
            else:
                P.e(st["rd"](dst), tag=f"R{m}")

        def waits(i, upto):
            st = steps[i]
            any_ = False
            if "aw" in st:
                self.drain_to(st["aw"])
            for t in st.get("xw", []):
                self.force(t)
                P.wvm(t)
                any_ = True
            if self.waited < i or any_:
                self.waited = min(upto, n - 1)
                P.wlg(f"R{self.waited}")
                any_ = True
            return any_

        n = len(steps)
        self.now = 0
        self.waited = -1
        for m in range(min(LA, n)):
            newchunk(m)
            rd(m)
        waits(0, 0)
        lastv = -100
        for i, st in enumerate(steps):
            self.now = i
            mfs = st["mf"](A(WP + 4 * (i % 8), 4))
            for k, t in enumerate(mfs):
                P.e(t)
                last = k == len(mfs) - 1
                free, slots = True, 2 + (extra(i) if callable(extra) else extra)
                if k == 0 and i + LA < n and newchunk(i + LA):
                    free, slots = False, slots - 1
                if last and i + 1 < n and waits(i + 1, i + wevery):
                    free = False
                if last and i + LA < n:
                    self.rdnext = lambda m=i + LA: rd(m)
                if self.gap(free, slots, k == 0 and i - lastv >= (vgap(i) if callable(vgap) else vgap)):
                    lastv = i
        self.now = n
        P.e("s_barrier")
        self.events.add(f"{self.name}:end")
        stamp(P, self.name)
        print(f"  [{self.name}] overfill {self.over}, alu left {len(self.aq)}", file=sys.stderr)

    def late(self):
        n = len(self.vq)
        for o in self.vq:
            o.prio = min(o.prio, 9e4)
        self.burst(10 ** 6)
        assert not self.vq
        print(f"  [{self.name}] late ops {n}", file=sys.stderr)


def mk_chunks():
    ch = {}
    s1 = [6, 7, 0, 1, 2, 3, 4, 5, 6]
    e1 = ["p4:9", "p4:10", "p4:11", "p4:12", "p4:13", "p4:end", "p4:end", "p4:8", "p1:2"]
    ch["p1"] = [Chunk(f"1_{c}", sW1, 20 * c, 20 if c < 8 else 8, s1[c], e1[c]) for c in range(9)]
    ch["p2"] = [Chunk(f"2_{c}", sW2, 20 * c, 20, 1 + c, f"p1:{5+c}" if c < 4 else "p1:end") for c in range(5)]
    e3 = ["p1:4", "p2:2", "p2:3", "p2:4"] + ["p2:end"] * 4 + [f"p3:{c-6}" for c in range(8, 15)]
    ch["p3"] = [Chunk(f"3_{c}", sW3, 20 * c, 20 if c < 14 else 14, c % 8, e3[c]) for c in range(15)]
    e4 = [f"p3:{c+9}" for c in range(6)] + ["p3:end"] * 2 + [f"p4:{c-6}" for c in range(8, 14)]
    ch["p4"] = [Chunk(f"4_{c}", sW4, 20 * c, 20 if c < 13 else 10, (15 + c) % 8, e4[c]) for c in range(14)]
    return ch


def flag_items(wtag, wr, stride_reg, off=0):
    return I(wr) + [Wait("vm", wtag)] + I("s_barrier") + I(f"buffer_store_dword v{vONE}, v{stride_reg}, s[4:7], s{sA} offen offset:{off} sc1", "fl")


def handoff(P, sc, wtag, wr, stride_reg, uid, off=0):
    P.add(flag_items(wtag, wr, stride_reg, off))
    stamp(P, "p" + uid)
    sc.late()


def check_items(uid, off, sFL=sFL):
    R = Prog()
    cmp_ = "v_cmp_eq_u32 vcc, 0, v253"
    if off is None:
        cmp_ = "v_min_u32 v253, v252, v253\nv_min3_u32 v253, v253, v254, v255\n" + cmp_
    ld = (f"buffer_load_dword v253, v{vPOLL}, s[4:7], s{sFL} offen offset:{off} sc1" if off is not None
          else f"buffer_load_dwordx4 v[252:255], v2, s[4:7], s{sFL} offen sc1")
    R.e(f"{cmp_}\ns_nop 1\ns_cbranch_vccz L_ok{uid}")
    R.raw(f"s_mov_b32 s{sSPIN}, {SPIN}\nL_sp{uid}:\n{ld}\ns_waitcnt vmcnt(0)")
    R.raw(f"{cmp_}\ns_nop 1\ns_cbranch_vccz L_ok{uid}")
    R.raw(f"s_sub_u32 s{sSPIN}, s{sSPIN}, 1\ns_cmp_lg_u32 s{sSPIN}, 0\ns_cbranch_scc1 L_sp{uid}\nL_ok{uid}:")
    return [Wait("vm", "fp"), R.items]


def poll(P, rdoff, uid, wide=False, label=None, wtag=None):
    P.e(rdoff)
    P.raw(f"s_cmp_lg_u32 s{sWAVE}, 0\ns_cbranch_scc1 L_pd{uid}\ns_mov_b32 s{sSPIN}, {SPIN}\nL_pl{uid}:")
    if wide:
        P.raw(f"buffer_load_dwordx4 v[252:255], v2, s[4:7], s{sB} offen sc1\ns_waitcnt vmcnt(0)\nv_min_u32 v252, v252, v253\nv_min3_u32 v252, v252, v254, v255")
    else:
        P.raw(f"buffer_load_dword v252, v{vPOLL}, s[4:7], s{sB} offen sc1\ns_waitcnt vmcnt(0)")
    P.raw(f"v_cmp_eq_u32 vcc, 0, v252\ns_nop 1\ns_cbranch_vccz L_pd{uid}")
    P.raw(f"s_sub_u32 s{sSPIN}, s{sSPIN}, 1\ns_cmp_lg_u32 s{sSPIN}, 0\ns_cbranch_scc1 L_pl{uid}\nL_pd{uid}:")
    if wtag:
        P.wvm(wtag)
    P.e("s_barrier")
    if label:
        P.e(label)
    stamp(P, "p" + uid)


def x_phase_loads(sc, P, xbuf, stbuf, VST, nt1):
    P.e(f"s_mul_i32 s{sX0}, s{sMT0}, 20480\ns_add_u32 s{sX0}, s{sX0}, s{sLAY}\ns_add_u32 s{sX0}, s{sX0}, {xbuf}\ns_add_u32 s{sX1}, s{sX0}, 20480")
    P.e(f"s_lshl_b32 s{sC}, s{sMT0}, 10\ns_add_u32 s{sC}, s{sC}, s{sLAY}\ns_add_u32 s{sC}, s{sC}, {stbuf}")
    Sched.x_ctx = None
    for k0 in range(0, 20, 2):
        for m in range(2):
            for kb in (k0, k0 + 1):
                sc.load(A((m * 20 + kb) * 4, 4), 2, sX0 + m, kb * 1024, f"X{k0}", k0 * nt1 - 100 + m + (kb - k0) * 0.1)
    for m in range(2):
        for j in range(2):
            sc.load(V(VST + 4 * m + 2 * j, 2), vSTL, sC, m * 1024 + j * 128, "st", 8 * nt1 - 101, w=2)


def phi4(xs, rs, cs, ts, outs):
    L = [f"v_mul_f32 v{t}, v{x}, v{c}" for x, c, t in zip(xs, cs, ts)]
    L += [f"v_fma_f32 v{o}, v{x}, v{r}, s{sEPS}" for x, r, o in zip(xs, rs, outs)]
    L += [f"v_exp_f32 v{t}, v{t} clamp" for t in ts]
    L += [f"v_max_f32 v{o}, s{sEPS}, v{o}" for o in outs]
    L += [f"v_add_f32 v{o}, v{o}, v{t}" for o, t in zip(outs, ts)]
    return L


PAIRS = [(0, 2), (0, 3), (1, 2), (1, 3), (1, 4), (2, 3), (2, 4), (0, None), (1, None), (2, None)]


def red_mask(i, j):
    def valid(g, nn):
        kk = 4 * i + g
        if kk >= 10:
            return False
        if j is None:
            return nn == 0
        cv = 16 * j + nn - 40
        return 0 <= cv < 40 and cv // 20 == kk // 5
    return lanemask(valid)


def phase1(P, ch, first=False):
    sc = Sched(P, "p1")
    ACC, ACQ, VST, VRS, VSD, VC, VEXT, RST, CT, T, PF, QO = PV, PV + 40, PV + 64, PV + 72, PV + 74, PV + 76, PV + 78, PV + 86, PV + 94, PV + 102, PV + 126, PV + 146
    GD = ACC
    x_phase_loads(sc, P, XA, STA, VST, 5)
    if first:
        for c in range(8):
            ch["p1"][c].event = None
            sc.dma(ch["p1"][c], lambda i, c=c: 20 * c - 100 - CFG["w0"] + i * 1e-3)
        P.e(f"s_mul_i32 s{sD1}, s{sMT}, 20480\ns_mul_i32 s{sB}, s{sCG8}, 2560\ns_add_u32 s{sD1}, s{sD1}, s{sB}\ns_add_u32 s{sD1}, s{sD1}, {XA}")
        sc.load(V(XR, 4), 2, sD1, 0, "res", 130)
        sc.load(V(XR + 4, 4), 2, sD1, 1024, "res", 131)
        sc.load(V(XR + 8, 2), vHALF, sD1, 2048, "res", 132, w=2)
        P.e(f"s_lshl_b32 s{sA}, s{sFA}, 2\ns_add_u32 s{sA}, s{sA}, {F0}\ns_and_b32 s{sFL}, s{sFG}, {(CFG['rep']-1)*1024}\ns_add_u32 s{sFL}, s{sFL}, {F0}")
        P.e(f"v_cmp_gt_u32 vcc, {CFG['rep']}, v0\nv_mov_b32 v251, {OOB}\nv_cndmask_b32 v251, v251, v{vFG}, vcc")
        start_wait(P)
        stamp(P, "p1")
        sc.burst(CFG["b0"])
        stamp(P, "p0", True, 6)
    else:
        poll(P, f"s_lshl_b32 s{sB}, s{sFA}, 7\ns_add_u32 s{sB}, s{sB}, {F0 + LB}", "1")
        sc.burst(2 * CFG["b1"])
        for c in range(CFG["m1"], CFG["n1"]):
            ch["p1"][c].event = None
            sc.dma(ch["p1"][c], 20 * c - 100 + CFG["w1"])
    sc.dma(ch["p1"][8], 120)
    sc.dma(ch["p3"][0], 1000, step=105 if first else 0)
    for c in range(5):
        sc.dma(ch["p2"][c], 500 + c, step=105 if first else 0)
    steps = []
    for t0, nt in ((0, 5), (5, 3)):
        for kb in range(21):
            for t in range(t0, t0 + nt):
                def mf(w, kb=kb, t=t):
                    L = []
                    for m in range(2):
                        x = A((m * 20 + kb) * 4, 4) if kb < 20 else V(VEXT + 4 * m, 4)
                        d = V(ACC + (m * 5 + t) * 4, 4) if t < 5 else V(ACQ + (m * 3 + t - 5) * 4, 4)
                        cc = "0" if kb == 0 else d
                        L.append(f"{MF} {d}, {x}, {w}, {cc}" if t < 5 else f"{MF} {d}, {w}, {x}, {cc}")
                    return L
                st = dict(fr=divmod(len(steps), 20), mf=mf)
                if t == 0 and kb % 2 == 0 and kb < 20:
                    st["xw"] = [f"X{kb}"]
                if t == 0 and kb == 20:
                    st["aw"] = "ext"
                steps.append(st)
    if first:
        sc.alu([Ins(f"buffer_store_dword v{vONE}, v251, s[4:7], s{sA} offen sc1", "fl")], step=CFG["r0"])
    sc.alu([Wait("vm", "st")], step=52)
    for m in range(2):
        sc.alu(stats_finish(VST, m, VRS + m, VSD + m, VEXT + 4 * m, T) + [f"v_mul_f32 v{VC+m}, {f32(LOG2E)}, v{VRS+m}"])
    sc.alu([Ins(f"ds_write_b32 v{vBW}, v{VRS+m} offset:{m*64}", "bw") for m in range(2)], event="p1:3")
    if first:
        sc.alu([Ins(f"buffer_load_dwordx4 v[252:255], v2, s[4:7], s{sFL} offen sc1", "fp")], step=84)
    sc.mark("ext")
    sc.alu([Wait("lgkm", "bw")], step=88)
    sc.alu([Ins(f"ds_read_b128 {V(RST+4*m, 4)}, v{vBR} offset:{m*64}", "br") for m in range(2)])
    sc.alu([Wait("lgkm", "br")], step=94)
    sc.alu([f"v_mul_f32 v{CT+k}, {f32(LOG2E)}, v{RST+k}" for k in range(8)])
    if first:
        sc.alu(check_items("0", None), step=98)
        sc.mark("w2")
        steps[104]["aw"] = "w2"
    head = True
    for t in range(5):
        for m in range(2):
            x = [ACC + (m * 5 + t) * 4 + r for r in range(4)]
            rs = [RST + 4 * m + r for r in range(4)]
            cs = [CT + 4 * m + r for r in range(4)]
            ts = [T + 4 * m + r for r in range(4)]
            L = []
            if t < 2:
                L += phi4(x, rs, cs, ts, x)
            elif t == 2:
                o = [T + 8 + 4 * m + r for r in range(4)]
                L += phi4(x, rs, cs, ts, o)
                L += [f"v_mul_f32 v{a}, v{a}, v{r}" for a, r in zip(x, rs)]
                L += [f"v_cndmask_b32 v{a}, v{a}, v{b}, s[{sM8}:{sM8+1}]" for a, b in zip(x, o)]
            else:
                L += [f"v_mul_f32 v{a}, v{a}, v{r}" for a, r in zip(x, rs)]
            L += [f"v_cvt_pk_bf16_f32 v{PF+4*t+2*m}, v{x[0]}, v{x[1]}", f"v_cvt_pk_bf16_f32 v{PF+4*t+2*m+1}, v{x[2]}, v{x[3]}"]
            sc.alu(L, step=106 if head else 0)
            head = False
    for n, (i, j) in enumerate(PAIRS):
        b = V(PF + 4 * j, 4) if j is not None else V(ONES, 4)
        sc.alu([f"{MF} {V(GD+4*n, 4)}, {V(PF+4*i, 4)}, {b}, 0"])
    for n0 in range(0, 10, 2):
        grp = []
        for n in (n0, n0 + 1):
            i, j = PAIRS[n]
            grp += I(f"s_mov_b64 exec, s[{sMASK+2*n}:{sMASK+2*n+1}]")
            if j is None:
                grp += I(f"ds_write_b128 v{vRW0}, {V(GD+4*n, 4)} offset:{640 + i*1344 + 320}", "gw")
            else:
                off = 640 + i * 1344 + (16 * j - 40) * 16 - (320 if i == 2 else 0)
                grp += I(f"ds_write_b128 v{vRW1 if i == 1 else vRW0}, {V(GD+4*n, 4)} offset:{off}", "gw")
        grp += I("s_mov_b64 exec, -1")
        sc.alu([grp])
    sc.alu([Wait("lgkm", "gw"), "s_barrier"])
    for q in range(4):
        sc.alu([Ins(f"ds_read_b32 v{T+4*q+w}, v{vRR} offset:{w*3360 + q*1024}", f"rr{q}") for w in range(4)])
    sc.alu([f"s_mul_i32 s{sC}, s{sCG}, 3360\ns_add_u32 s{sC}, s{sC}, s{sLAY}\ns_add_u32 s{sC}, s{sC}, {KVA}"])
    for q in range(4):
        a = T + 4 * q
        sc.alu([Wait("lgkm", f"rr{q}"), f"v_add_f32 v{a}, v{a}, v{a+1}\nv_add_f32 v{a+2}, v{a+2}, v{a+3}\nv_add_f32 v{a}, v{a}, v{a+2}",
                Ins(f"buffer_atomic_add_f32 v{a}, v{vATM if q == 3 else vAT}, s[4:7], s{sC} offen offset:{q*1024}", "at")])
    fat = flag_items("at", f"s_lshl_b32 s{sA}, s{sFA}, 2\ns_add_u32 s{sA}, s{sA}, s{sLAY}\ns_add_u32 s{sA}, s{sA}, {F1}", vFG)
    if CFG["fa"]:
        sc.alu(fat[:3])
        sc.alu(fat[3:], step=CFG["fa"])
    sc.run(steps, ch["p1"], lambda i: 1 if first or i < CFG["h1"] else CFG["g1"], extra=lambda i: 0 if i <= 105 else CFG["xa"] if i < CFG["na"] else CFG["x1"])
    sc.drain()
    sc.force("res")
    P.e(f"s_mul_i32 s{sC}, s{sCG}, 1280\ns_add_u32 s{sC}, s{sC}, s{sX0}\ns_add_u32 s{sC}, s{sC}, {PQ - XA}")
    for m in range(2):
        q = QO + 6 * m
        for tq in range(3):
            x = [ACQ + (m * 3 + tq) * 4 + r for r in range(4)]
            P.add(phi4(x, [VRS + m] * 4, [VC + m] * 4, [T + 16 + 4 * (tq % 2) + r for r in range(4)], x))
            P.e(f"v_cvt_pk_bf16_f32 v{q+2*tq}, v{x[0]}, v{x[1]}\nv_cvt_pk_bf16_f32 v{q+2*tq+1}, v{x[2]}, v{x[3]}")
            if tq == 1:
                if m == 1:
                    P.e(f"s_add_u32 s{sC}, s{sC}, 20480")
                P.e(f"buffer_store_dwordx4 {V(q, 4)}, v2, s[4:7], s{sC} offen sc1", tag="out")
        P.e(f"buffer_store_dwordx2 {V(q+4, 2)}, v{vPQT}, s[4:7], s{sC} offen offset:1024 sc1", tag="out")
    if not CFG["fa"]:
        P.add(fat)
    P.e(wr_cluster(sFA, F1C))
    stamp(P, "p1")
    assert not sc.pend
    return sc


def resid_epilogue(P, ACC, T, xbuf, stbuf, final=False):
    P.e(f"s_mul_i32 s{sC}, s{sMT}, 20480\ns_mul_i32 s{sA}, s{sCG8}, 2560\ns_add_u32 s{sC}, s{sC}, s{sA}\ns_add_u32 s{sC}, s{sC}, s{sLAY}\ns_add_u32 s{sC}, s{sC}, {xbuf}")
    P.e(f"s_lshl_b32 s{sB}, s{sMT}, 10\ns_lshl_b32 s{sA}, s{sCG8}, 7\ns_add_u32 s{sB}, s{sB}, s{sA}\ns_add_u32 s{sB}, s{sB}, s{sLAY}\ns_add_u32 s{sB}, s{sB}, {stbuf}")
    P.e(f"v_mov_b32 v{T}, 0\nv_mov_b32 v{T+1}, 0")
    for k0 in (0, 4, 8):
        ks = range(k0, min(k0 + 4, 10))
        for k in ks:
            P.e(f"v_lshlrev_b32 v{T+4+2*(k%4)}, 16, v{XR+k}\nv_and_b32 v{T+5+2*(k%4)}, 0xffff0000, v{XR+k}")
        for k in ks:
            P.e(f"v_pk_add_f32 {V(T+4+2*(k%4), 2)}, {V(T+4+2*(k%4), 2)}, {V(ACC+2*k, 2)}")
        for k in ks:
            P.e(f"v_cvt_pk_bf16_f32 v{XR+k}, v{T+4+2*(k%4)}, v{T+5+2*(k%4)}")
        if final:
            continue
        if k0 < 8:
            P.e(f"buffer_store_dwordx4 {V(XR+k0, 4)}, v2, s[4:7], s{sC} offen offset:{k0*256} sc1", tag="out")
        else:
            P.e(f"buffer_store_dwordx2 {V(XR+8, 2)}, v{vHALF}, s[4:7], s{sC} offen offset:2048 sc1", tag="out")
    if final:
        P.e(f"s_mul_i32 s{sA}, s{sMT}, 20480\ns_mul_i32 s{sB}, s{sCG8}, 160\ns_add_u32 s{sA}, s{sA}, s{sB}")
        P.e(f"buffer_store_dwordx4 {V(XR, 4)}, v{vO16}, s[8:11], s{sA} offen")
        P.e(f"buffer_store_dwordx4 {V(XR+4, 4)}, v{vO16}, s[8:11], s{sA} offen offset:64")
        P.e(f"buffer_store_dwordx2 {V(XR+8, 2)}, v{vO8}, s[8:11], s{sA} offen offset:128")
        return
    for k in range(10):
        P.e(f"v_dot2_f32_bf16 v{T}, v{XR+k}, v{ONES}, v{T}")
        P.e(f"v_dot2_f32_bf16 v{T+1}, v{XR+k}, v{XR+k}, v{T+1}")
    a, b = allreduce_g(T, T + 2), allreduce_g(T + 1, T + 3)
    for x, y in zip(a, b):
        P.e(x)
        P.e(y)
    P.e(f"buffer_store_dwordx2 {V(T, 2)}, v{vSTS}, s[4:7], s{sB} offen sc1", tag="out")


def wr_cluster(sf, F):
    return (f"s_lshr_b32 s{sA}, s{sf}, 4\ns_lshl_b32 s{sA}, s{sA}, 11\ns_and_b32 s{sB}, s{sf}, 15\ns_lshl_b32 s{sB}, s{sB}, 2\n"
            f"s_add_u32 s{sA}, s{sA}, s{sB}\ns_add_u32 s{sA}, s{sA}, s{sLAY}\ns_add_u32 s{sA}, s{sA}, {F}")


def rd_cluster(sf, F):
    return f"s_lshl_b32 s{sB}, s{sf}, 7\ns_add_u32 s{sB}, s{sB}, s{sLAY}\ns_add_u32 s{sB}, s{sB}, {F}"


def phase2(P, ch, prev):
    sc = Sched(P, "p2")
    OR, ACC, DT, T = PV, PV + 80, PV + 100, PV + 132
    for r in range(4):
        P.e(f"v_mov_b32 v{DT+r}, 0")
    for k in range(10):
        P.e(f"ds_write_b128 v{vZF}, {V(DT, 4)} offset:{k*4096}", tag="z")
    P.e(f"s_add_u32 s{sX0}, s{sLAY}, {KVA}")
    P.e(f"s_mul_i32 s{sX1}, s{sMT}, 20480\ns_add_u32 s{sX1}, s{sX1}, s{sLAY}\ns_add_u32 s{sX1}, s{sX1}, {PQ}")
    P.e(rd_cluster(sFB, F1C).replace(f"s{sB}", f"s{sFL}"))
    P.e(f"s_add_u32 s{sB}, s{sFG}, s{sLAY}\ns_add_u32 s{sB}, s{sB}, {F1}")
    P.e(f"buffer_load_dwordx4 v[252:255], v2, s[4:7], s{sB} offen sc1", tag="fp")
    P.wlg("z")
    P.wvm("out")
    P.e("s_barrier")
    P.e(f"buffer_store_dword v{vONE}, v{vFC}, s[4:7], s{sA} offen sc1", tag="fl")
    P.add(check_items("2k", None, sB))
    stamp(P, "p2")
    for rr in range(16):
        if rr:
            P.e(f"s_add_u32 s{sX0}, s{sX0}, 3360")
        P.e(f"buffer_load_dwordx4 {V(OR+4*rr, 4)}, v{vKVL}, s[4:7], s{sX0} offen sc1", tag=f"kv{rr}")
    Sched.dma_ctx = None
    for o in prev.vq:
        o.prio, o.event = 40 + o.prio % 1, None
    sc.vq = prev.vq
    Sched.x_ctx = None
    for h in range(32):
        sc.load(A(4 * h, 4), vPQW, sX1, (5 * h // 2) * 256, f"pq{h}", h)
    for rr in range(16):
        if rr == CFG["pq"]:
            P.e(f"buffer_load_dword v253, v{vPOLL}, s[4:7], s{sFL} offen sc1", tag="fp")
        if rr == CFG["pc"]:
            P.add(check_items("2", 0))
            sc.burst(CFG["b2"])
        P.wvm(f"kv{rr}")
        a = OR + 4 * rr
        P.e(f"v_cvt_pk_bf16_f32 v{a}, v{a}, v{a+1}\nv_cvt_pk_bf16_f32 v{a+1}, v{a+2}, v{a+3}")
        P.e(f"ds_write_b64 v{vKVW}, {V(a, 2)} offset:{rr*2560}", tag="kw")
        if rr >= CFG["pc"]:
            sc.burst(1)
    P.wlg("kw")
    P.e("s_barrier")
    stamp(P, "p2")
    for c in range(1, CFG["m3"]):
        sc.dma(ch["p3"][c], 1000 + c)
    steps = []
    nw = 0

    def wstep(n):
        kb, t = divmod(n, 5)

        def mf(w):
            d = V(ACC + 4 * t, 4)
            return [f"{MF} {d}, {w}, {V(OR+4*kb, 4)}, {'0' if kb == 0 else d}"]
        st = dict(fr=divmod(n, 20), mf=mf)
        if t == 0:
            st["aw"] = f"o{(8*kb+7)//5}"
        return st

    for h in range(32):
        d = DT + 8 * (h % 4)
        for j in range(2):
            st = dict(rd=lambda dst, h=h, j=j: f"ds_read_b128 {dst}, v{vE0+j} offset:{h*1280}",
                      mf=lambda w, h=h, j=j, d=d: [f"{MF} {V(d+4*j, 4)}, {w}, {A(4*h, 4)}, {V(CE, 4) if j else '0'}"])
            if j == 0:
                st["xw"] = [f"pq{h}"]
                if h >= 3:
                    st["aw"] = f"o{h-3}"
            steps.append(st)
        L = [f"v_rcp_f32 v{d+5}, v{d+5}"] + [f"v_mul_f32 v{d+i}, v{d+i}, v{d+5}" for i in range(5)]
        n0 = 5 * h
        if h % 2 == 0:
            L += [f"v_cvt_pk_bf16_f32 v{OR+n0//2}, v{d}, v{d+1}", f"v_cvt_pk_bf16_f32 v{OR+n0//2+1}, v{d+2}, v{d+3}"]
        else:
            dp = DT + 8 * ((h - 1) % 4)
            L += [f"v_cvt_pk_bf16_f32 v{OR+n0//2}, v{dp+4}, v{d}", f"v_cvt_pk_bf16_f32 v{OR+n0//2+1}, v{d+1}, v{d+2}",
                  f"v_cvt_pk_bf16_f32 v{OR+n0//2+2}, v{d+3}, v{d+4}"]
        sc.alu(L, step=len(steps) + 1)
        sc.mark(f"o{h}")
        lim = min(100, int(round((h - 1) * 100 / 32)))
        while nw < lim and (8 * (nw // 5) + 7) // 5 <= h - 2:
            steps.append(wstep(nw))
            nw += 1
    while nw < 100:
        steps.append(wstep(nw))
        nw += 1
    sc.run(steps, ch["p2"], 2, extra=CFG["x2"], nobar=(0, 1), wevery=2)
    sc.drain()
    resid_epilogue(P, ACC, T, XB, STB)
    handoff(P, sc, "out", wr_cluster(sFB, F2), vFC, "2")


def hreg(kb):
    n = CFG["hp"]
    if kb >= n:
        return A(4 * (kb - n), 4)
    return A(160 + 4 * kb, 4) if kb < 16 else V(PV + 4 * (kb - 16) + (24 if kb >= 24 else 0), 4)


def h_loads(sc, kbs, **kw):
    for kb in kbs:
        sc.load(hreg(kb), 2, sX0, kb * 1024, f"H{kb}", **dict(dict(prio=kb * 5 - 50, step=kb * 5 - CFG["lead4"], event="late" if kb >= 32 else None), **kw))


def phase3(P, ch):
    sc = Sched(P, "p3")
    ACC, VST, VRS, VSD, VC, VEXT, T, HO = PV, PV + 112, PV + 120, PV + 122, PV + 124, PV + 126, PV + 134, PV + 142
    x_phase_loads(sc, P, XB, STB, VST, 6)
    poll(P, rd_cluster(sFA, F2), "3")
    sc.burst(2 * CFG["b3"])
    sc.events.add("p2:end")
    for c in range(CFG["m3"], 15):
        sc.dma(ch["p3"][c], 20 * c - 60)
    for c in range(8):
        sc.dma(ch["p4"][c], 1000 + c)
    steps = []
    gend = {}
    for p0, npair in ((0, 3), (3, 1), (4, 2), (6, 1)):
        for kb in range(21):
            for t in range(2 * p0, 2 * (p0 + npair)):
                def mf(w, kb=kb, t=t):
                    L = []
                    for m in range(2):
                        x = A((m * 20 + kb) * 4, 4) if kb < 20 else V(VEXT + 4 * m, 4)
                        d = V(ACC + m * 56 + t * 4, 4)
                        L.append(f"{MF} {d}, {w}, {x}, {'0' if kb == 0 else d}")
                    return L
                st = dict(fr=divmod(len(steps), 20), mf=mf)
                if t == 0 and kb % 2 == 0 and kb < 20:
                    st["xw"] = [f"X{kb}"]
                if t == 0 and kb == 20:
                    st["aw"] = "ext"
                steps.append(st)
        for p in range(p0, p0 + npair):
            gend[p] = len(steps)
    sc.alu([Wait("vm", "st")], step=64)
    for m in range(2):
        sc.alu(stats_finish(VST, m, VRS + m, VSD + m, VEXT + 4 * m, T) + [f"v_mul_f32 v{VC+m}, {f32(-LOG2E)}, v{VRS+m}"])
    sc.mark("ext")
    sc.alu([f"s_lshl_b32 s{sA}, s{sCG}, 11\ns_mul_i32 s{sC}, s{sMT0}, 55296\ns_add_u32 s{sC}, s{sC}, s{sA}\ns_add_u32 s{sC}, s{sC}, s{sLAY}\ns_add_u32 s{sC}, s{sC}, {HB}\ns_add_u32 s{sD1}, s{sC}, 55296",
            f"s_lshl_b32 s{sA}, s{sCG}, 10\ns_sub_u32 s{sD2}, 32768, s{sA}"])

    def epi(p, m):
        g = ACC + m * 56 + 8 * p
        u = g + 4
        L = [f"v_mul_f32 v{g+r}, v{g+r}, v{VC+m}" for r in range(4)]
        L += [f"v_exp_f32 v{g+r}, v{g+r}" for r in range(4)]
        L += [f"v_fma_f32 v{g+r}, v{g+r}, v{VSD+m}, v{VSD+m}" for r in range(4)]
        L += [f"v_rcp_f32 v{g+r}, v{g+r}" for r in range(4)]
        L += [f"v_mul_f32 v{u+r}, v{u+r}, v{g+r}" for r in range(4)]
        o = HO + m * 14 + 2 * p
        L += [f"v_cvt_pk_bf16_f32 v{o}, v{u}, v{u+1}", f"v_cvt_pk_bf16_f32 v{o+1}, v{u+2}, v{u+3}"]
        L = [Ins(x) for x in L]
        so = sD1 if m else sC
        if p % 2 == 1:
            L.append(Ins(f"buffer_store_dwordx4 {V(o-2, 4)}, v2, s[4:7], s{so} offen offset:{1024 if p == 3 else 0} sc1", "outE" if p < 4 else "out"))
        if p == 6:
            L.append(Ins(f"buffer_store_dwordx2 {V(o, 2)}, v{vH3}, s[4:7], s{so} offen sc1", "out"))
        return L

    fp = Ins(f"buffer_load_dword v253, v{vPOLL}, s[4:7], s{sFL} offen sc1", "fp")
    for p in range(6):
        for m in range(2):
            if CFG["pe"] and 2 * p + m == CFG["pe"]:
                sc.alu([fp], step=CFG["ce"] - 10)
            if CFG["pe"] and 2 * p + m == CFG["pe"] + 1:
                sc.alu(check_items("4e", 0), step=CFG["ce"])
                sc.mark("early")
            sc.alu(epi(p, m), step=gend[p] + 1)
        if p == 3:
            sc.alu([f"s_add_u32 s{sC}, s{sC}, s{sD2}\ns_add_u32 s{sD1}, s{sD1}, s{sD2}\ns_lshr_b32 s{sD2}, s{sD2}, 1"])
            fl = flag_items("outE", wr_cluster(sFA, F3), vFC)
            k = [isinstance(x, Wait) for x in fl].index(True)
            sc.alu(fl[:k])
            sc.alu(fl[k:], step=CFG["e3"])
            sc.alu([rd_cluster(sFB, F3).replace(f"s{sB}", f"s{sFL}"), f"s_mul_i32 s{sX0}, s{sMT}, 55296\ns_add_u32 s{sX0}, s{sX0}, s{sLAY}\ns_add_u32 s{sX0}, s{sX0}, {HB}"])
            if CFG["hp"] and CFG["pe"] == 0:
                sc.alu([fp], step=CFG["ce"] - 10)
                sc.alu(check_items("4e", 0), step=CFG["ce"])
                sc.mark("early")
    sc.alu([f"s_add_u32 s{sC}, s{sC}, s{sD2}\ns_add_u32 s{sD1}, s{sD1}, s{sD2}"])
    h_loads(sc, range(CFG["hp"]), prio=900, step=0, event="early")
    sc.run(steps, ch["p3"], lambda i: CFG["gh"] if i > CFG["ce"] else CFG["g3"], extra=lambda i: 1 if 126 < i < CFG["x3"] or i > CFG["y3"] else 0)
    sc.drain()
    if CFG["hp"]:
        sc.burst(len([o for o in sc.vq if o.tag[0] == "H"]))
    else:
        P.add(fp)
    a, b = epi(6, 0), epi(6, 1)
    for k in range(0, 20, 4):
        P.add(a[k:k + 4] + b[k:k + 4])
    P.add(a[20:] + b[20:])
    P.add(flag_items("out", "", vFC, 64)) if not CFG["nowait3"] else None
    stamp(P, "p3")
    return sc


def phase4(P, ch, prev):
    sc = Sched(P, "p4")
    sc.events |= {e for e in prev.events if e and e.startswith("p3:")}
    for o in prev.vq:
        o.prio = 60 + (o.prio - 1000)
    sc.vq, sc.pend, sc.pend_tag = prev.vq, prev.pend, prev.pend_tag
    ACC, T = 220, PV + 20
    h_loads(sc, range(CFG["hp"], 54))
    if not CFG["hp"]:
        P.add(check_items("4e", 0))
    stamp(P, "p4")
    sc.burst(CFG["b4"])
    if CFG["nowait3"]:
        sc.alu(flag_items("out", "", vFC, 64), step=CFG["f4"])
    sc.alu([Ins(f"buffer_load_dword v253, v{vPOLL}, s[4:7], s{sFL} offen offset:64 sc1", "fp")], step=CFG["c4"] - 24)
    sc.alu(check_items("4", 64), step=CFG["c4"])
    sc.mark("late")
    for c in range(8, 14):
        sc.dma(ch["p4"][c], 20 * c - 60)
    for c in list(range(CFG["m1"])) + list(range(CFG["n1"], 8)):
        sc.dma(ch["p1"][c], 1000 + c, step=CFG["pf4"])
    steps = []
    for kb in range(54):
        for t in range(5):
            def mf(w, kb=kb, t=t):
                d = V(ACC + 4 * t, 4)
                return [f"{MF} {d}, {w}, {hreg(kb)}, {'0' if kb == 0 else d}"]
            st = dict(fr=divmod(len(steps), 20), mf=mf)
            if t == 0:
                st["xw"] = [f"H{kb}"]
            steps.append(st)
    sc.run(steps, ch["p4"], CFG["g4"], wevery=2)
    P.e(f"s_cmp_lg_u32 s{sLAY}, 0\ns_cbranch_scc1 L_final")
    resid_epilogue(P, ACC, T, XA + LB, STA + LB)
    handoff(P, sc, "out", wr_cluster(sFB, F0 + LB), vFC, "4")
    stamp_flush(P)
    P.e(f"s_mov_b32 s{sLAY}, {LB}\ns_branch L_layer\nL_final:")
    resid_epilogue(P, ACC, T, 0, 0, final=True)
    P.e("s_waitcnt vmcnt(0)")
    stamp_flush(P)
    P.e("s_endpgm")


def start_wait(Q):
    Q.raw(f"s_cmp_lg_u32 s{sWAVE}, 0\ns_cbranch_scc1 L_pd0\ns_mov_b32 s{sSPIN}, {SPIN}\nL_pl0:")
    Q.raw(f"global_load_dword v252, v{vT}, s[{sDBG}:{sDBG+1}] offset:128 sc1\ns_waitcnt vmcnt(0)\nv_cmp_eq_u32 vcc, 0, v252\ns_nop 1\ns_cbranch_vccz L_pd0")
    Q.raw(f"s_sub_u32 s{sSPIN}, s{sSPIN}, 1\ns_cmp_lg_u32 s{sSPIN}, 0\ns_cbranch_scc1 L_pl0\nL_pd0:")
    Q.e("s_waitcnt vmcnt(0)\ns_barrier")
    stamp(Q, "p0", True, 5)


def gen_main():
    ch = mk_chunks()
    Q = Prog()
    P = Prog()
    Sched.dma_ctx = None
    q0 = 4
    if PROF == "p0":
        _nstamp[0] = 7
    n0 = _nstamp[0]
    sc1 = phase1(P, ch)
    left = sorted(o.tag for o in sc1.vq)
    P.e("L_p2:")
    phase2(P, ch, sc1)
    phase4(P, ch, phase3(P, ch))
    order = [x for x in Sched.log if x[0][0] == "1" and not CFG["m1"] <= int(x[0][2:]) < CFG["n1"] and x[0] != "1_8"]
    assert len(order) == 5 * (8 - CFG["n1"] + CFG["m1"])
    P.items = [Ins(".p2align 6"), Ins("L_layer:")] + [Virtual("W" + x[0]) for x in order] + P.items
    Q.e("L_join:")
    stamp(Q, "p0", True, q0)
    Q.e(f"s_mov_b32 s8, s44\ns_and_b32 s9, s45, 0xffff\ns_mov_b32 s10, {XSZ}\ns_mov_b64 s[{sDBG}:{sDBG+1}], s[46:47]")
    Q.e(f"s_and_b32 s{sA}, s2, 7\ns_lshr_b32 s{sB}, s2, 3\ns_and_b32 s{sC}, s{sB}, 3\ns_lshr_b32 s{sCG8}, s{sB}, 2")
    Q.e(f"s_lshr_b32 s{sRB}, s{sA}, 1\ns_lshl_b32 s{sRB}, s{sRB}, 2\ns_add_u32 s{sRB}, s{sRB}, s{sC}")
    Q.e(f"s_and_b32 s{sCG}, s{sA}, 1\ns_lshl_b32 s{sCG}, s{sCG}, 3\ns_add_u32 s{sCG}, s{sCG}, s{sCG8}")
    Q.e(f"s_mul_i32 s{sW5}, s{sWAVE}, 5120\ns_mul_i32 s{sW1}, s{sCG}, {168*1024}\ns_add_u32 s{sW1}, s{sW1}, s{sW5}\ns_add_u32 s{sW1}, s{sW1}, {WF1}")
    Q.e(f"s_lshl_b32 s{sA}, s{sA}, 2\ns_add_u32 s{sA}, s{sA}, s{sC}")
    Q.e(f"s_lshl_b32 s{sMT}, s{sA}, 2\ns_add_u32 s{sMT}, s{sMT}, s{sWAVE}")
    Q.e(f"s_lshl_b32 s{sFB}, s{sA}, 3\ns_add_u32 s{sFB}, s{sFB}, s{sCG8}")
    Q.e(f"s_lshl_b32 s{sFA}, s{sRB}, 4\ns_add_u32 s{sFA}, s{sFA}, s{sCG}")
    Q.e(f"s_lshl_b32 s{sMT0}, s{sRB}, 3\ns_lshl_b32 s{sB}, s{sWAVE}, 1\ns_add_u32 s{sMT0}, s{sMT0}, s{sB}")
    Q.e(f"s_and_b32 s{sFG}, s2, 15\ns_lshl_b32 s{sFG}, s{sFG}, 10\ns_mov_b32 s{sEPS}, {f32(1e-6)}\ns_mov_b32 s{sLAY}, 0")
    for r, base, n, cg in ((sW2, WF2, 100, sCG8), (sW3, WF3, 294, sCG), (sW4, WF4, 270, sCG8)):
        Q.e(f"s_mul_i32 s{r}, s{cg}, {n*1024}\ns_add_u32 s{r}, s{r}, {base}\ns_add_u32 s{r}, s{r}, s{sW5}")
    Q.e("v_add_u32 v3, 0x10000, v2\nv_add_u32 v4, 0x20000, v2")
    Q.e(f"v_mov_b32 v{vT}, {OOB}")
    Q.e(f"v_lshlrev_b32 v{vSTL}, 8, v5\nv_lshl_add_u32 v{vSTL}, v6, 3, v{vSTL}")
    Q.e(f"v_lshrrev_b32 v{vHALF}, 1, v5\nv_lshlrev_b32 v{vHALF}, 8, v{vHALF}\nv_lshl_add_u32 v{vHALF}, v6, 4, v{vHALF}")
    Q.e(f"v_and_b32 v{vPQT}, 1, v5\nv_lshl_add_u32 v{vHALF}, v{vPQT}, 3, v{vHALF}")
    Q.e(f"v_cmp_gt_u32 vcc, 32, v1\nv_cndmask_b32 v{vPQT}, v{vT}, v{vHALF}, vcc")
    Q.e(f"v_cmp_gt_u32 vcc, 16, v1\nv_lshlrev_b32 v{vSTS}, 3, v6\nv_cndmask_b32 v{vSTS}, v{vT}, v{vSTS}, vcc")
    Q.e("v_cmp_gt_u32 vcc, 16, v0")
    Q.e(f"v_lshlrev_b32 v{vFC}, 7, v1\nv_cndmask_b32 v{vFC}, v{vT}, v{vFC}, vcc\nv_lshlrev_b32 v{vFG}, 10, v1\nv_cndmask_b32 v{vFG}, v{vT}, v{vFG}, vcc")
    Q.e(f"v_lshlrev_b32 v{vPOLL}, 2, v6\nv_mov_b32 v{vONE}, 1")
    Q.e(f"v_cmp_gt_u32 vcc, 48, v1\nv_cndmask_b32 v{vPQW}, v{vT}, v2, vcc")
    Q.e(f"s_cmp_lt_u32 s{sCG}, 12\ns_cselect_b32 s{sB}, 0, {OOB}\nv_add_u32 v{vH3}, s{sB}, v{vHALF}")
    Q.e(f"v_mul_u32_u24 v{vO8}, 1280, v6\nv_lshl_add_u32 v{vO16}, v5, 4, v{vO8}\nv_lshl_add_u32 v{vO8}, v5, 3, v{vO8}")
    Q.e(f"s_mul_i32 s{sB}, s{sWAVE}, 3360\ns_add_u32 s{sB}, s{sB}, {RED - 640}")
    Q.e(f"v_mul_u32_u24 v{vRW0}, 336, v5\nv_lshl_add_u32 v{vRW0}, v6, 4, v{vRW0}\nv_add_u32 v{vRW0}, s{sB}, v{vRW0}")
    Q.e(f"v_min_u32 v{vRW1}, 1, v5\nv_mul_u32_u24 v{vRW1}, 320, v{vRW1}\nv_sub_u32 v{vRW1}, v{vRW0}, v{vRW1}")
    Q.e(f"v_lshlrev_b32 v{vAT}, 2, v0\nv_add_u32 v{vRR}, {RED}, v{vAT}\nv_cmp_gt_u32 vcc, 72, v0\nv_cndmask_b32 v{vATM}, v{vT}, v{vAT}, vcc")
    Q.e(f"s_lshl_b32 s{sB}, s{sWAVE}, 7\ns_add_u32 s{sB}, s{sB}, {BNC}\nv_lshl_add_u32 v{vBW}, v6, 2, s{sB}\nv_lshl_add_u32 v{vBR}, v5, 4, s{sB}")
    mk = lanemask(lambda g, i: i < 8)
    Q.e(f"s_mov_b32 s{sM8}, 0x{mk & 0xffffffff:08x}\ns_mov_b32 s{sM8+1}, 0x{mk >> 32:08x}")
    for n, (i, j) in enumerate(PAIRS):
        mk = red_mask(i, j)
        Q.e(f"s_mov_b32 s{sMASK+2*n}, 0x{mk & 0xffffffff:08x}\ns_mov_b32 s{sMASK+2*n+1}, 0x{mk >> 32:08x}")
    a, b, c, d, e = PV, PV + 1, PV + 2, PV + 3, PV + 4
    Q.e(f"s_lshr_b32 s{sA}, s{sWAVE}, 1\ns_and_b32 s{sB}, s{sWAVE}, 1\ns_lshl_b32 s{sB}, s{sB}, 6\nv_add_u32 v{a}, s{sB}, v1")
    Q.e(f"v_mul_u32_u24 v{b}, 3121, v{a}\nv_lshrrev_b32 v{b}, 16, v{b}\nv_mul_u32_u24 v{c}, 21, v{b}\nv_sub_u32 v{c}, v{a}, v{c}")
    Q.e(f"s_mul_i32 s{sB}, s{sA}, 1680\nv_lshl_add_u32 v{vKVL}, v{a}, 4, s{sB}")
    Q.e(f"v_add_u32 v{b}, s{sA}, v{b}\nv_lshrrev_b32 v{d}, 1, v{b}\nv_and_b32 v{b}, 1, v{b}")
    Q.e(f"v_lshlrev_b32 v{e}, 8, v{d}\nv_lshlrev_b32 v{d}, 7, v{d}\nv_add_u32 v{d}, 512, v{d}\nv_cmp_gt_u32 vcc, 16, v{c}\nv_cndmask_b32 v{d}, v{d}, v{e}, vcc")
    Q.e(f"v_lshl_add_u32 v{d}, v{c}, 4, v{d}\nv_lshl_add_u32 v{d}, v{b}, 3, v{d}")
    Q.e(f"v_cmp_gt_u32 vcc, 105, v{a}\nv_mov_b32 v{e}, 1152\nv_cndmask_b32 v{d}, v{e}, v{d}, vcc\nv_cndmask_b32 v{vKVL}, v{vT}, v{vKVL}, vcc")
    Q.e(f"s_mul_i32 s{sB}, s{sA}, 1280\ns_add_u32 s{sB}, s{sB}, {KVT}\nv_add_u32 v{vKVW}, s{sB}, v{d}")
    Q.e(f"v_lshlrev_b32 v{vZF}, 4, v0\nv_add_u32 v{vZF}, {KVT}, v{vZF}")
    Q.e(f"v_and_b32 v{c}, 7, v6\nv_lshlrev_b32 v{c}, 4, v{c}\nv_add_u32 v{c}, 1152, v{c}")
    Q.e(f"v_and_b32 v{b}, 3, v6\nv_lshrrev_b32 v{d}, 2, v6\nv_cmp_eq_u32 vcc, 0, v{b}\nv_cndmask_b32 v{b}, 4, v{d}, vcc")
    Q.e(f"v_lshlrev_b32 v{b}, 4, v{b}\nv_lshl_add_u32 v{b}, v5, 7, v{b}\nv_add_u32 v{b}, 768, v{b}")
    Q.e(f"v_cmp_eq_u32 vcc, 3, v5\nv_cndmask_b32 v{b}, v{b}, v{c}, vcc\nv_add_u32 v{vE1}, {KVT}, v{b}")
    Q.e(f"v_cndmask_b32 v{b}, v2, v{c}, vcc\nv_add_u32 v{vE0}, {KVT}, v{b}")
    Q.e(f"v_mov_b32 v{CE}, 0\nv_mov_b32 v{CE+1}, s{sEPS}\nv_mov_b32 v{CE+2}, 0\nv_mov_b32 v{CE+3}, 0")
    for r in range(4):
        Q.e(f"v_mov_b32 v{ONES+r}, 0x3f803f80")
    Q.e(f"v_mov_b32 v{vT}, 0")
    Sched.dma_ctx = None
    n1 = _nstamp[0]
    _nstamp[0] = n0
    sc0 = phase1(Q, ch, True)
    _nstamp[0] = n1
    assert left == sorted(o.tag for o in sc0.vq), left
    Q.e("s_branch L_p2")
    return Q, P


K0ST = " sc1"
sDBG = 18


def k0_prologue(P):
    P.e("s_cmp_ge_u32 s2, 256\ns_cbranch_scc1 L_exit")
    stamp(P)
    stamp(P, "p0", True, 0)
    P.e("s_load_dwordx2 s[4:5], s[0:1], 72", tag="ka")
    P.e("v_lshrrev_b32 v7, 6, v0\nv_and_b32 v1, 63, v0\nv_readfirstlane_b32 s12, v7\nv_lshlrev_b32 v2, 4, v1\nv_lshrrev_b32 v5, 4, v1\nv_and_b32 v6, 15, v1")
    P.e(f"s_mov_b32 s6, {WS_USED}\ns_mov_b32 s7, 0x20000")
    if CFG.get("cpf"):
        P.e(f"s_getpc_b64 s[40:41]\nL_pc:\ns_add_u32 s40, s40, L_join-L_pc\ns_addc_u32 s41, s41, 0")
        P.e(f"s_lshr_b32 s42, s2, 3\ns_lshl_b32 s42, s42, 12\ns_min_u32 s42, s42, L_exit-L_join-4096\nv_lshl_add_u32 v90, v0, 4, s42")
        P.e("global_load_dwordx4 v[92:95], v90, s[40:41]")


K0_LDS = 40 * 1024
NJ1, NJ3, NJB, NJC, JB0 = 60, 128, 74, 64, 224


def arrive(P, nxt):
    P.raw("s_waitcnt vmcnt(0)\ns_barrier")
    stamp(P, "p0", True, 3)
    P.e("v_mov_b32 v84, 0\nv_mov_b32 v85, 1\ns_mov_b64 exec, 1")
    P.e("global_atomic_add v86, v84, v85, s[46:47] sc0\ns_waitcnt vmcnt(0)\nv_readfirstlane_b32 s17, v86\ns_mov_b64 exec, -1")
    P.e(f"s_cmp_lg_u32 s17, {NJ1 + NJC - 1}\ns_cbranch_scc1 {nxt}\ns_mov_b64 exec, 1\nglobal_store_dword v84, v85, s[46:47] offset:128 sc1\ns_mov_b64 exec, -1")


def b_loads(P, u):
    P.e("s_and_b32 s49, s50, 1\ns_lshr_b32 s50, s50, 1")
    P.e(f"s_cmp_lt_u32 s50, 20\ns_cbranch_scc1 L_k0_B2{u}")
    P.e(f"s_sub_u32 s50, s50, 20\ns_mov_b32 s8, s58\ns_and_b32 s9, s59, 0xffff\ns_mov_b32 s10, {1728*640*2}")
    P.e(f"s_mov_b32 s51, {54*5*1024}\ns_mov_b32 s39, {WF4}")
    P.e("s_lshr_b32 s42, s50, 1\ns_and_b32 s43, s50, 1\ns_lshl_b32 s43, s43, 5\ns_mov_b32 s48, 16")
    P.e("s_sub_u32 s17, s50, 32\ns_cmp_ge_u32 s50, 32\ns_cselect_b32 s42, s17, s42\ns_cselect_b32 s43, 64, s43")
    P.e("s_sub_u32 s17, s50, 48\ns_lshl_b32 s17, s17, 1\ns_cmp_ge_u32 s50, 48\ns_cselect_b32 s42, s17, s42\ns_cselect_b32 s43, 96, s43\ns_cselect_b32 s48, 112, s48")
    P.e("s_mul_i32 s17, s42, 112\ns_mul_i32 s18, s42, 96\ns_add_u32 s18, s18, 192\ns_min_u32 s17, s17, s18\ns_add_u32 s17, s17, s43")
    P.e("s_lshl_b32 s18, s12, 2\ns_add_u32 s17, s17, s18\ns_mul_i32 s18, s48, s49\ns_add_u32 s17, s17, s18\nv_add_u32 v12, s17, v5")
    P.e(f"s_branch L_k0_Bc{u}")
    P.e(f"L_k0_B2{u}:")
    P.e(f"s_mov_b32 s8, s56\ns_and_b32 s9, s57, 0xffff\ns_mov_b32 s10, {640*640*2}")
    P.e(f"s_mov_b32 s51, {20*5*1024}\ns_mov_b32 s39, {WF2}")
    P.e("s_lshl_b32 s18, s12, 2\nv_add_u32 v14, s18, v5\nv_and_b32 v15, 7, v14\nv_lshrrev_b32 v14, 3, v14")
    P.e("s_lshl_b32 s17, s50, 3\nv_add_u32 v15, s17, v15\nv_mul_u32_u24 v16, 205, v15\nv_lshrrev_b32 v16, 10, v16")
    P.e("v_mul_u32_u24 v17, 5, v16\nv_sub_u32 v17, v15, v17\nv_mul_u32_u24 v16, 20, v16")
    P.e("v_cmp_gt_u32 vcc, 4, v17")
    P.e("s_lshl_b32 s17, s49, 1\nv_add_u32 v14, s17, v14")
    P.e("v_lshl_add_u32 v18, v14, 2, v17\nv_add_u32 v19, 16, v14\nv_cndmask_b32 v18, v19, v18, vcc\nv_add_u32 v12, v16, v18")
    P.e(f"L_k0_Bc{u}:")
    P.e("v_mul_u32_u24 v12, 1280, v12\nv_lshl_add_u32 v12, v11, 4, v12")
    P.e("s_lshl_b32 s33, s12, 10")
    for pn in range(5):
        P.e(f"s_add_u32 m0, s33, {40960 + pn*4096}\ns_mov_b32 s31, {pn*256}")
        P.e(f"buffer_load_dwordx4 v12, s[8:11], s31 offen lds", tag="b")


def gen_k0():
    texts = []
    mx = {"v": 0, "s": 0}
    P = Prog()
    k0_prologue(P)
    P.e("s_load_dwordx4 s[52:55], s[0:1], 0", tag="ka")
    P.e("s_load_dwordx2 s[56:57], s[0:1], 16", tag="ka")
    P.e("s_load_dwordx4 s[60:63], s[0:1], 32", tag="ka")
    P.e("s_load_dwordx2 s[58:59], s[0:1], 48", tag="ka")
    P.e("s_load_dwordx4 s[44:47], s[0:1], 56", tag="ka")
    P.e("s_mov_b32 s11, 0x20000")
    P.e("v_lshrrev_b32 v7, 2, v6\nv_and_b32 v8, 3, v6")
    P.e("v_and_b32 v9, 1, v5\nv_lshl_add_u32 v9, v9, 2, v7\nv_lshlrev_b32 v9, 1, v9")
    P.e("v_lshl_add_u32 v10, v5, 3, v7\nv_lshlrev_b32 v10, 8, v10")
    P.e("s_lshr_b32 s17, s12, 1\ns_lshl_b32 s17, s17, 3\nv_lshl_add_u32 v11, v5, 1, s17\nv_xor_b32 v11, v11, v6")
    P.wlg("ka")
    stamp(P, "p0", True, 1)
    P.e("s_and_b32 s5, s5, 0xffff")
    P.e("s_mov_b32 s37, 0")
    P.e(f"s_cmp_lt_u32 s2, {NJ1}\ns_cbranch_scc1 L_k0_A\ns_cmp_lt_u32 s2, 64\ns_cbranch_scc1 L_k0_B\ns_cmp_lt_u32 s2, 128\ns_cbranch_scc1 L_k0_C")
    texts.append(P)

    P = Prog()
    P.e("L_k0_A:")
    P.e(f"s_cmp_lt_u32 s2, {NJ1}\ns_cbranch_scc0 L_k0_A3")
    P.e("s_lshr_b32 s14, s2, 2\ns_and_b32 s15, s2, 3")
    P.e(f"s_mov_b32 s8, s54\ns_and_b32 s9, s55, 0xffff\ns_mov_b32 s10, {640*1920*2}\ns_mov_b32 s20, 3840")
    P.e("v_lshlrev_b32 v12, 4, v11\ns_lshl_b32 s21, s14, 8")
    P.e("s_lshl_b32 s22, s12, 5\ns_mov_b32 s23, 8\ns_mov_b32 s24, 3\ns_add_u32 s25, s22, 128\ns_mov_b32 s26, 8\ns_mov_b32 s27, 3")
    P.e("s_mul_i32 s17, s14, 52\ns_lshr_b32 s38, s17, 8\ns_mul_i32 s17, s38, 5\ns_sub_u32 s17, s14, s17")
    P.e("s_lshl_b32 s17, s17, 7\ns_lshl_b32 s18, s12, 4\ns_add_u32 s17, s17, s18")
    P.e("s_cmp_eq_u32 s38, 2\ns_cselect_b32 s39, 40, 0\ns_cmp_eq_u32 s38, 0\ns_mov_b32 s30, 5120\ns_cselect_b32 s30, 3072, s30\ns_mov_b32 s36, s30")
    P.e(f"s_mov_b32 s28, {WF1}\ns_mov_b32 s29, {WF1}\ns_cselect_b64 s[48:49], -1, 0")
    for tt in range(2):
        d = 80 + tt
        P.e(f"v_add_u32 v13, s17, v6\nv_add_u32 v13, {64*tt}, v13\nv_mul_u32_u24 v14, 1639, v13\nv_lshrrev_b32 v14, 16, v14")
        P.e("v_mul_u32_u24 v15, 40, v14\nv_sub_u32 v13, v13, v15")
        P.e(f"v_mul_u32_u24 v14, {168*1024}, v14\nv_lshl_add_u32 v14, v5, 8, v14")
        P.e("v_add_u32 v15, s39, v13\nv_lshrrev_b32 v16, 4, v15\nv_and_b32 v15, 15, v15\nv_lshlrev_b32 v15, 4, v15\nv_lshl_add_u32 v15, v16, 10, v15")
        P.e("v_bfe_u32 v16, v13, 2, 1\nv_lshrrev_b32 v17, 3, v13\nv_and_b32 v18, 3, v13\nv_lshl_add_u32 v17, v17, 2, v18")
        P.e("v_lshlrev_b32 v17, 4, v17\nv_lshl_add_u32 v16, v16, 10, v17\nv_lshlrev_b32 v17, 4, v13\nv_add_u32 v17, 1536, v17")
        P.e(f"v_cmp_gt_u32 vcc, 32, v13\nv_cndmask_b32 v16, v17, v16, vcc\nv_add_u32 v16, {105*1024}, v16")
        P.e(f"v_cndmask_b32 v15, v15, v16, s[48:49]\nv_add_u32 v{d}, v14, v15")
        P.e(f"v_add_u32 v14, 128, v{d}\nv_mov_b32 v15, {OOB}\nv_cndmask_b32 v{d+2}, v14, v15, vcc")
    P.e("s_branch L_k0_Ac")
    P.e("L_k0_A3:")
    P.e(f"v_mov_b32 v80, v2\nv_mov_b32 v81, v2\nv_mov_b32 v82, {OOB}\nv_mov_b32 v83, {OOB}\ns_mov_b32 s38, 1")
    P.e(f"s_sub_u32 s16, s2, 128\ns_and_b32 s18, s16, 1\ns_lshr_b32 s15, s16, 1\ns_and_b32 s15, s15, 3\ns_lshr_b32 s14, s16, 3")
    P.e("s_cmp_eq_u32 s18, 0\ns_cselect_b32 s8, s60, s62\ns_cselect_b32 s9, s61, s63\ns_and_b32 s9, s9, 0xffff")
    P.e(f"s_mov_b32 s10, {640*1728*2}\ns_mov_b32 s20, 3456")
    P.e("s_cmp_lt_u32 s14, 12\ns_cselect_b32 s17, 13, 11")
    P.e("v_min_u32 v12, s17, v11\nv_lshlrev_b32 v12, 4, v12")
    P.e("s_mul_i32 s21, s14, 224\ns_mul_i32 s17, s14, 192\ns_add_u32 s17, s17, 384\ns_min_u32 s21, s21, s17")
    P.e("s_lshr_b32 s22, s12, 1\ns_lshl_b32 s22, s22, 6\ns_and_b32 s17, s12, 1\ns_lshl_b32 s17, s17, 3\ns_add_u32 s22, s22, s17")
    P.e("s_mov_b32 s23, 16\ns_mov_b32 s24, 3\ns_mov_b32 s27, 3")
    P.e("s_add_u32 s25, s17, 128\ns_cmp_lt_u32 s12, 2\ns_cselect_b32 s25, s25, 192\ns_cselect_b32 s26, 16, 8")
    P.e(f"s_mul_i32 s28, s14, {21*14*1024}\ns_add_u32 s28, s28, {WF3}\ns_lshl_b32 s17, s18, 10\ns_add_u32 s28, s28, s17")
    P.e(f"s_cmp_eq_u32 s12, 1\ns_mov_b32 s17, {252*1024}\ns_cselect_b32 s17, {170*1024}, s17\ns_cmp_eq_u32 s12, 0\ns_cselect_b32 s17, {168*1024}, s17\ns_cmp_lt_u32 s12, 2\ns_mov_b32 s36, 2048\ns_cselect_b32 s36, 4096, s36\ns_add_u32 s29, s28, s17")
    P.e(f"s_lshl_b32 s17, s12, 11\ns_cmp_eq_u32 s12, 3\ns_cselect_b32 s17, {126*1024}, s17\ns_mov_b32 s30, 6144\ns_cselect_b32 s30, 2048, s30\ns_add_u32 s28, s28, s17")
    P.e("L_k0_Ac:")
    P.e("s_lshl_b32 s17, s12, 2\nv_add_u32 v13, s17, v5\nv_mul_lo_u32 v13, v13, s20\nv_add_u32 v12, v12, v13")
    P.e("s_mul_i32 s31, s15, 160\ns_mul_i32 s31, s31, s20\ns_add_u32 s31, s31, s21\ns_lshl_b32 s32, s20, 4")
    P.e("s_lshl_b32 s33, s12, 10")
    for k in range(10):
        P.e(f"s_add_u32 m0, s33, {k*4096}")
        if k:
            P.e("s_add_u32 s31, s31, s32")
        P.e("buffer_load_dwordx4 v12, s[8:11], s31 offen lds", tag="d")
    nc = CFG["nc"]
    na = 2 * NJB - 8 - nc
    P.raw(f"s_cmp_lt_u32 s2, {256 - na}\ns_cbranch_scc1 L_k0_An\ns_sub_u32 s50, s2, {256 - na - nc}\ns_mov_b32 s37, 1")
    b_loads(P, "a")
    P.raw("L_k0_An:")
    for tt, (sa, sb, sm) in enumerate(((22, 23, 24), (25, 26, 27))):
        a = 14 + tt
        P.e(f"v_min_u32 v{a}, s{sm}, v8\nv_mul_lo_u32 v{a}, v{a}, s{sb}\nv_add_u32 v{a}, s{sa}, v{a}")
        P.e(f"v_lshrrev_b32 v16, 4, v{a}\nv_xor_b32 v16, v16, v9\nv_and_b32 v{a}, 8, v{a}")
        P.e(f"v_lshl_add_u32 v{a}, v16, 4, v{a}\nv_add_u32 v{a}, v{a}, v10")
    for r in range(4):
        P.e(f"v_mov_b32 v{20+r}, 0x3f803f80")
    P.e("s_mul_i32 s18, s15, 5\ns_mul_i32 s17, s18, s30\ns_add_u32 s34, s28, s17\ns_mul_i32 s17, s18, s36\ns_add_u32 s35, s29, s17")
    P.raw("s_waitcnt vmcnt(0)")
    P.e("s_barrier")
    stamp(P, "p0", True, 2)
    for tt in range(2):
        for k in range(5):
            d = 32 + (tt * 5 + k) * 4
            P.e(f"ds_read_b64_tr_b16 {V(d, 2)}, v{14+tt} offset:{k*8192}", tag=f"t{tt}{k}")
            P.e(f"ds_read_b64_tr_b16 {V(d+2, 2)}, v{14+tt} offset:{k*8192+1024}", tag=f"t{tt}{k}")
            if tt == 1 and k == 1:
                P.wlg("t04")
    for tt in range(2):
        for k in range(5):
            d = 32 + (tt * 5 + k) * 4
            P.wlg(f"t{tt}{k}")
            P.e(f"buffer_store_dwordx4 {V(d, 4)}, v{80+tt}, s[4:7], s{34+tt} offen{K0ST}")
            P.e(f"s_add_u32 s{34+tt}, s{34+tt}, s{36 if tt else 30}")
            c = V(24 + 4 * tt, 4)
            P.e(f"{MF} {c}, {V(20, 4)}, {V(d, 4)}, {'0' if k == 0 else c}")
    P.e("s_lshl_b32 s18, s15, 8\ns_mul_i32 s17, s30, 20\ns_add_u32 s17, s17, s18\ns_add_u32 s28, s28, s17\ns_mul_i32 s17, s36, 20\ns_add_u32 s17, s17, s18\ns_add_u32 s29, s29, s17")
    set_exec(P, 0xffff)
    for tt in range(2):
        c = 24 + 4 * tt
        e = 72 + 4 * tt
        P.e(f"v_cvt_pk_bf16_f32 v{e}, v{c}, v{c}\nv_and_b32 v16, 0xffff0000, v{e}\nv_sub_f32 v17, v{c}, v16")
        P.e(f"v_cvt_pk_bf16_f32 v{e+1}, v17, v17\nv_and_b32 v16, 0xffff0000, v{e+1}\nv_sub_f32 v17, v17, v16")
        P.e(f"v_cvt_pk_bf16_f32 v{e+2}, v17, v{c}\nv_mov_b32 v{e+3}, 0")
        P.e(f"buffer_store_dwordx4 {V(e, 4)}, v{80+tt}, s[4:7], s{28+tt} offen{K0ST}")
    P.raw("s_cmp_lg_u32 s38, 0\ns_cbranch_scc1 L_k0_Ae")
    for tt in range(2):
        P.e(f"buffer_store_dwordx4 {V(72+4*tt, 4)}, v{82+tt}, s[4:7], s{28+tt} offen{K0ST}")
    P.e("s_mov_b64 exec, -1")
    for k in range(4, -1, -1):
        P.e("s_sub_u32 s34, s34, s30")
        for tt in range(2):
            P.e(f"buffer_store_dwordx4 {V(32+(tt*5+k)*4, 4)}, v{82+tt}, s[4:7], s34 offen{K0ST}")
    P.raw("L_k0_Ae:")
    P.e(f"s_mov_b64 exec, -1\ns_cmp_lt_u32 s2, 128\ns_cbranch_scc1 L_arrive\ns_cmp_eq_u32 s37, 0\ns_cbranch_scc1 L_join\ns_branch L_k0_Bp")
    texts.append(P)

    P = Prog()
    P.e(f"L_k0_B:\ns_mov_b32 s37, 2\ns_lshl_b32 s50, s2, 1\ns_add_u32 s50, s50, {2*NJB - 128}\nL_k0_Bs:")
    b_loads(P, "s")
    P.raw("s_waitcnt vmcnt(0)\ns_barrier\nL_k0_Bp:")
    P.e("s_mul_i32 s22, s12, 320\nv_lshrrev_b32 v19, 1, v5\nv_mul_u32_u24 v15, 160, v19\nv_add_u32 v15, s22, v15")
    P.e("v_lshl_add_u32 v14, v8, 4, v15\nv_lshl_add_u32 v15, v8, 3, v15\nv_and_b32 v13, 0xfff, v10")
    for t in range(5):
        k0 = 64 * (t // 2) + 8 * (t % 2) if t < 4 else 128
        P.e(f"v_add_u32 v16, {k0}, {'v14' if t < 4 else 'v15'}")
        P.e("v_bfe_u32 v17, v16, 4, 4\nv_xor_b32 v17, v17, v9\nv_lshrrev_b32 v18, 8, v16\nv_and_b32 v16, 8, v16")
        P.e(f"v_lshl_add_u32 v16, v17, 4, v16\nv_lshl_add_u32 v16, v18, 12, v16\nv_add_u32 v{20+t}, v16, v13")
    for n in range(5):
        d = 32 + 4 * n
        P.e(f"ds_read_b64_tr_b16 {V(d, 2)}, v{20+n} offset:40960", tag=f"t{n}")
        P.e(f"ds_read_b64_tr_b16 {V(d+2, 2)}, v{20+n} offset:41984", tag=f"t{n}")
    P.e("s_lshl_b32 s17, s12, 1\ns_mul_i32 s17, s17, s51\ns_add_u32 s39, s39, s17\ns_mul_i32 s17, s50, 5120\ns_add_u32 s39, s39, s17")
    P.e("s_lshl_b32 s17, s49, 9\ns_add_u32 s39, s39, s17\ns_add_u32 s17, s39, 4096")
    P.e("v_mul_lo_u32 v19, v19, s51\nv_and_b32 v18, 0x1ff, v2\nv_add_u32 v19, v19, v18")
    for n in range(5):
        P.wlg(f"t{n}")
        P.e(f"buffer_store_dwordx4 {V(32 + 4 * n, 4)}, v19, s[4:7], {'s39' if n < 4 else 's17'} offen offset:{(n % 4)*1024}{K0ST}")
    P.raw(f"s_cmp_lg_u32 s37, 2\ns_cbranch_scc1 L_join\ns_mov_b32 s37, 0\ns_barrier\ns_lshl_b32 s50, s2, 1\ns_add_u32 s50, s50, {2*NJB - 128 + 1}\ns_branch L_k0_Bs")
    texts.append(P)

    P = Prog()
    P.e("L_k0_C:")
    P.e("s_sub_u32 s16, s2, 64")
    P.e(f"s_mov_b32 s8, s52\ns_and_b32 s9, s53, 0xffff\ns_mov_b32 s10, {XSZ}")
    P.e("s_lshl_b32 s17, s12, 2\nv_add_u32 v12, s17, v5\nv_xor_b32 v13, v12, v6\nv_mul_u32_u24 v12, 1280, v12\nv_lshl_add_u32 v12, v13, 4, v12")
    P.e("s_mul_i32 s20, s16, 40960\ns_lshl_b32 s33, s12, 10")
    for ml in range(2):
        for pn in range(5):
            P.e(f"s_add_u32 m0, s33, {ml*20480 + pn*4096}\ns_add_u32 s31, s20, {ml*20480 + pn*256}")
            P.e("buffer_load_dwordx4 v12, s[8:11], s31 offen lds", tag="d")
    if CFG["bm"] == 0:
        assert nc == 64
        P.e("s_mov_b32 s50, s16\ns_mov_b32 s37, 1")
        b_loads(P, "c")
    else:
        P.e(f"s_mov_b32 s50, s16\ns_cmp_lt_u32 s16, {nc}\ns_cselect_b32 s37, 1, 0")
    for r in range(4):
        P.e(f"v_mov_b32 v{20+r}, 0")
    P.e(f"s_and_b32 s17, s16, 31\ns_mul_i32 s17, s17, {ZSZ//32}\ns_lshr_b32 s18, s16, 5\ns_mul_i32 s18, s18, {LB}\ns_add_u32 s17, s17, s18\ns_add_u32 s17, s17, {KVA}")
    P.e(f"v_lshlrev_b32 v14, 4, v0\nbuffer_store_dwordx4 {V(20, 4)}, v14, s[4:7], s17 offen{K0ST}")
    P.e(f"v_cmp_gt_u32 vcc, {(ZSZ//32 - 4096)//16}, v0\nv_mov_b32 v15, 0x40000000\nv_cndmask_b32 v14, v15, v14, vcc\ns_add_u32 s17, s17, 4096")
    P.e(f"buffer_store_dwordx4 {V(20, 4)}, v14, s[4:7], s17 offen{K0ST}")
    P.e("s_lshr_b32 s22, s12, 1\ns_and_b32 s23, s12, 1\ns_mul_i32 s24, s22, 20480\ns_mul_i32 s25, s23, 40")
    P.e("v_add_u32 v14, s25, v5\nv_lshlrev_b32 v15, 8, v6\nv_add_u32 v15, s24, v15")
    for k in range(10):
        P.e(f"v_add_u32 v16, {4*k}, v14\nv_lshrrev_b32 v17, 4, v16\nv_xor_b32 v16, v16, v6\nv_and_b32 v16, 15, v16")
        P.e(f"v_lshl_add_u32 v16, v16, 4, v15\nv_lshl_add_u32 v{72+k}, v17, 12, v16")
    P.e(f"s_add_u32 s26, s20, s24\ns_mul_i32 s17, s23, 10240\ns_add_u32 s26, s26, s17\ns_add_u32 s26, s26, {XA}")
    P.e("v_mov_b32 v24, 0\nv_mov_b32 v25, 0\nv_mov_b32 v26, 0x3f803f80")
    P.wvm("d")
    P.e("s_barrier")
    stamp(P, "p0", True, 2)
    for k in range(10):
        P.e(f"ds_read_b128 {V(32+4*k, 4)}, v{72+k}", tag=f"t{k}")
    for k in range(10):
        if k and k % 4 == 0:
            P.e("s_add_u32 s26, s26, 4096")
        P.wlg(f"t{k}")
        P.e(f"buffer_store_dwordx4 {V(32+4*k, 4)}, v2, s[4:7], s26 offen offset:{(k % 4)*1024}{K0ST}")
        for r in range(4):
            P.e(f"v_dot2_f32_bf16 v24, v{32+4*k+r}, v26, v24")
            P.e(f"v_dot2_f32_bf16 v25, v{32+4*k+r}, v{32+4*k+r}, v25")
    P.add(allreduce_g(24, 27))
    P.add(allreduce_g(25, 28))
    P.e("v_cmp_eq_u32 vcc, 0, v5\nv_cndmask_b32 v24, 0, v24, vcc\nv_cndmask_b32 v25, 0, v25, vcc")
    P.e(f"s_lshl_b32 s17, s16, 1\ns_add_u32 s17, s17, s22\ns_lshl_b32 s17, s17, 10\ns_lshl_b32 s18, s23, 7\ns_add_u32 s17, s17, s18\ns_add_u32 s17, s17, {STA}")
    P.e("v_lshlrev_b32 v14, 8, v5\nv_lshl_add_u32 v14, v6, 3, v14")
    P.e(f"buffer_store_dwordx2 v[24:25], v14, s[4:7], s17 offen{K0ST}")
    P.raw("L_arrive:\ns_cmp_eq_u32 s12, 0\ns_cbranch_scc1 L_arr0\ns_waitcnt vmcnt(0)\ns_barrier\ns_branch L_arr1\nL_arr0:")
    arrive(P, "L_arr1")
    P.raw(f"L_arr1:\ns_cmp_lg_u32 s37, 0\ns_cbranch_scc1 {'L_k0_Bp' if CFG['bm'] == 0 else 'L_k0_Bs'}")
    texts.append(P)
    return texts


def build():
    _nstamp[0] = 0
    k0 = gen_k0()
    Q, P = gen_main()
    ns = max(p.max_regs()["s"] for p in k0 + [Q, P]) + 1
    K = "interleave_layers__linear_attn_block__glu_gated_glu__prompt_kernel"
    body = f".globl {K}\n.p2align 8\n.type {K},@function\n{K}:\n" + "".join(p.finish() for p in k0 + [Q, P]) + "L_exit:\n  s_endpgm\n"
    head = "; generated by tools/gen2.py: one persistent launch: weight re-layout, then (qkv, attn-out, gate/up, down) x 2 layers\n"
    return head + f"; @launch grid=(256,1,1) block=(256,1,1) lds={8*SLOT}" + '\n.amdgcn_target "amdgcn-amd-amdhsa--gfx950"\n.text\n' + body + descriptor(K, 256, 256, ns)


if __name__ == "__main__":
    import argparse
    ap = argparse.ArgumentParser()
    ap.add_argument("-o", default="v2.s")
    ap.add_argument("--stamps", action="store_true")
    ap.add_argument("--clk", action="store_true")
    ap.add_argument("--cfg", default="")
    ap.add_argument("--prof", default=None)
    a = ap.parse_args()
    STAMPS = a.stamps or a.prof is not None
    PROF = a.prof
    if PROF and PROF != "p0":
        STAMP_INS = 's_memtime'
    if a.clk:
        STAMP_INS = "s_memtime"
    for kv in a.cfg.split(","):
        if kv:
            k, v = kv.split("=")
            CFG[k] = float(v) if "." in v else int(v)
    open(a.o, "w").write(build())
    print("written", a.o)
```
